```python
import torch

def _softmax(x, axis=-1):
    return torch.softmax(x, dim=axis)
def _gelu(x):
    return torch.nn.functional.gelu(x, approximate="tanh")
def _silu(x):
    return torch.nn.functional.silu(x)
def _sigmoid(x):
    return torch.sigmoid(x)
def _layernorm(x, axis=-1, eps=1e-5):
    m = x.mean(dim=axis, keepdim=True)
    v = x.var(dim=axis, keepdim=True, unbiased=False)
    return (x - m) / torch.sqrt(v + eps)
def _scatter_add(tgt, idx, src, axis=0):
    return tgt.clone().index_add_(axis, idx, src)
def _segment_sum(src, seg, n):
    out = torch.zeros((n,) + src.shape[1:], dtype=src.dtype)
    return out.index_add_(0, seg, src)
def _pad(x, pw):
    flat = tuple(v for pair in reversed(pw) for v in pair)
    return torch.nn.functional.pad(x, flat)

kernel_name = 'recurrent_scan__gqa_block_cached__dense_activation_gelu__prompt'

def setup_inputs():

    _w = (lambda a: (lambda t: t.to(torch.bfloat16) if t.is_floating_point() else t)(torch.as_tensor(a)))
    def _A_setup():
        B, Sq, D = 1, 2048, 640
        Hq, Hkv, Sk, Dh = 32, 32, 2048, 192
        assert Hq % Hkv == 0, (Hq, Hkv)
        return {
            "x": _w((lambda *s: torch.randn(*s, dtype=torch.bfloat16) * 0.05)(B, Sq, D)),
            "k_cache": _w((lambda *s: torch.randn(*s, dtype=torch.bfloat16) * 3.2)(B, Hkv, Sk, Dh)),
            "v_cache": _w((lambda *s: torch.randn(*s, dtype=torch.bfloat16) * 3.2)(B, Hkv, Sk, Dh)),
            "wq": _w((lambda *s: torch.randn(*s, dtype=torch.bfloat16) * 3.2)(D, Hq * Dh) * (D ** -0.5)),
            "wo": _w((lambda *s: torch.randn(*s, dtype=torch.bfloat16) * 3.2)(Hq * Dh, D) * ((Hq * Dh) ** -0.5)),
        }
    _A_in = _A_setup()

    def _B_setup():
        B, S, D, F = 1, 2048, 640, 1536
        return {
            "x": _w((lambda *s: torch.randn(*s, dtype=torch.bfloat16) * 0.05)(B, S, D)),
            "w1": _w((lambda *s: torch.randn(*s, dtype=torch.bfloat16) * 3.2)(D, F) * (D ** -0.5)),
            "b1": _w((lambda *s: torch.randn(*s, dtype=torch.bfloat16) * 3.2)(F) * 0.01),
            "w2": _w((lambda *s: torch.randn(*s, dtype=torch.bfloat16) * 0.4)(F, D) * (F ** -0.5)),
            "b2": _w((lambda *s: torch.randn(*s, dtype=torch.bfloat16) * 0.4)(D) * 0.01),
        }
    _B_in = _B_setup()

    return {
        "A_x": _A_in["x"],
        "A_k_cache": _A_in["k_cache"],
        "A_v_cache": _A_in["v_cache"],
        "A_wq": _A_in["wq"],
        "A_wo": _A_in["wo"],
        "B_x": _B_in["x"],
        "B_w1": _B_in["w1"],
        "B_b1": _B_in["b1"],
        "B_w2": _B_in["w2"],
        "B_b2": _B_in["b2"],
    }

def reference(A_x, A_k_cache, A_v_cache, A_wq, A_wo, B_x, B_w1, B_b1, B_w2, B_b2):
    def _A_ref(x, k_cache, v_cache, wq, wo):
        B, Sq, D = x.shape
        Hq, Dh = 32, 192
        Hkv = k_cache.shape[1]
        rep = Hq // Hkv
        q = (lambda x, *d: x.permute(*d))((x @ wq).reshape(B, Sq, Hq, Dh), 0, 2, 1, 3)
        k = (lambda x, n, axis: torch.repeat_interleave(x, n, dim=axis))(k_cache, rep, axis=1)
        v = (lambda x, n, axis: torch.repeat_interleave(x, n, dim=axis))(v_cache, rep, axis=1)
        scores = torch.einsum("bhqd,bhkd->bhqk", q, k) * (Dh ** -0.5)
        p = _softmax(scores, axis=-1)
        o = torch.einsum("bhqk,bhkd->bhqd", p, v)
        return (lambda x, *d: x.permute(*d))(o, 0, 2, 1, 3).reshape(B, Sq, Hq * Dh) @ wo

    def _B_ref(x, w1, b1, w2, b2):
        h = torch.einsum("bsd,df->bsf", x, w1) + b1
        h = _gelu(h)
        return torch.einsum("bsf,fd->bsd", h, w2) + b2

    x = A_x
    xn = _layernorm(x, axis=-1)
    s = _A_ref(xn, A_k_cache, A_v_cache, A_wq, A_wo)
    g = _silu(_B_ref(xn, B_w1, B_b1, B_w2, B_b2))
    return x + s * g
```

```python
import re

RE_RANGE = re.compile(r'\b([vas])\[(\d+):(\d+)\]')
RE_SINGLE = re.compile(r'\b([vas])(\d+)\b')

def regs_of(tok):
    out = []
    t = tok
    for m in RE_RANGE.finditer(t):
        out += [f"{m.group(1)}{i}" for i in range(int(m.group(2)), int(m.group(3)) + 1)]
    t = RE_RANGE.sub(" ", t)
    for m in RE_SINGLE.finditer(t):
        out.append(f"{m.group(1)}{m.group(2)}")
    for sp in ("vcc", "m0", "exec"):
        if re.search(r'\b' + sp + r'(_lo|_hi)?\b', t): out.append(sp)
    return out

TRANS = ("v_exp_f32", "v_log_f32", "v_rcp_f32", "v_rsq_f32", "v_sqrt_f32")

class Ins:
    __slots__ = ("text", "op", "kind", "rd", "wr", "tag", "srcc", "n")
    def __init__(self, text, tag=None):
        self.text = text; self.tag = tag
        code = text.split(";")[0].strip()
        self.rd = set(); self.wr = set(); self.srcc = set(); self.n = 1
        if code.endswith(":") or code.startswith(".") or not code:
            self.op = code; self.kind = "label" if code.endswith(":") else "dir"; self.n = 0
            return
        parts = code.split(None, 1)
        op = parts[0]; self.op = op
        ops = [o.strip() for o in parts[1].split(",")] if len(parts) > 1 else []
        R = lambda i: set(regs_of(ops[i]))
        allr = lambda a: set().union(*[set(regs_of(o)) for o in ops[a:]]) if len(ops) > a else set()
        if op.startswith("v_mfma"):
            self.kind = "mfma"; self.wr = R(0); self.rd = allr(1); self.srcc = R(3)
        elif op.startswith("ds_read") or op.startswith("ds_bpermute") or op.startswith("ds_swizzle"):
            self.kind = "ds"; self.wr = R(0); self.rd = allr(1)
        elif op.startswith("ds_write"):
            self.kind = "ds"; self.rd = allr(0)
        elif op.startswith("buffer_load") or op.startswith("global_load"):
            self.kind = "vmem"
            if re.search(r'\blds\b', code): self.rd = allr(0) | {"m0"}
            else: self.wr = R(0); self.rd = allr(1)
        elif op.startswith("buffer_store") or op.startswith("global_store") or op.startswith("buffer_atomic") or op.startswith("global_atomic"):
            self.kind = "vmem"; self.rd = allr(0)
        elif op.startswith("buffer_inv") or op.startswith("buffer_wbl2"):
            self.kind = "vmem"
        elif op.startswith("s_load") or op.startswith("s_memtime") or op.startswith("s_memrealtime"):
            self.kind = "smem"; self.wr = R(0); self.rd = allr(1)
        elif op == "s_waitcnt": self.kind = "wait"
        elif op == "s_nop": self.kind = "nop"; self.n = int(ops[0], 0) + 1
        elif op == "s_barrier": self.kind = "barrier"
        elif op.startswith("s_cbranch") or op == "s_branch": self.kind = "branch"
        elif op in ("s_endpgm", "s_setprio", "s_sleep"): self.kind = "salu"
        elif op.startswith(("s_cmp", "s_bitcmp")):
            self.kind = "salu"; self.rd = allr(0)
        elif op.startswith("s_"):
            self.kind = "salu"; self.wr = R(0); self.rd = allr(1)
            if "saveexec" in op: self.wr |= {"exec"}
        elif op.startswith("v_"):
            self.kind = "trans" if op.split("_e")[0] in TRANS or op in TRANS else "valu"
            if op.startswith("v_cmp"):
                self.wr = R(0); self.rd = allr(1)
            elif op.startswith("v_permlane") and "swap" in op:
                self.wr = R(0) | R(1); self.rd = R(0) | R(1)
            elif op.startswith("v_readfirstlane") or op.startswith("v_readlane"):
                self.wr = R(0); self.rd = allr(1)
            elif op.startswith("v_fmac") or op.startswith("v_writelane"):
                self.wr = R(0); self.rd = allr(0)
            elif op.startswith(("v_add_co", "v_addc_co", "v_sub_co")):
                self.wr = R(0) | R(1); self.rd = allr(2)
            else:
                self.wr = R(0); self.rd = allr(1)
        else:
            raise Exception("unknown op " + op)

def isvec(r): return r[0] in "va" and r != "vcc"
def issg(r): return r[0] == "s" or r == "vcc"

def check_hazards(seq, where=""):
    probs = check_scc(seq, where)
    live = [x for x in seq if x.n > 0]
    for i, c in enumerate(live):
        dist = 0
        for j in range(i - 1, max(-1, i - 30), -1):
            p = live[j]
            need = 0; why = ""
            pv = p.kind in ("valu", "trans")
            cv = c.kind in ("valu", "trans")
            if pv and c.kind == "mfma" and (p.wr & c.rd): need, why = 2, "valu->mfma"
            if p.kind == "mfma":
                if c.kind == "mfma":
                    ab = c.rd - c.srcc
                    if p.wr & ab: need, why = 8, "mfma D->A/B"
                    elif (p.wr & c.srcc) and p.wr != c.srcc: need, why = 6, "mfma D->C partial"
                    elif (p.wr & c.wr) and not (p.wr & c.srcc): need, why = max(need, 6), "mfma WAW"
                elif cv and (p.wr & (c.rd | c.wr)): need, why = 8, "mfma D->valu"
                elif c.kind in ("ds", "vmem") and (p.wr & (c.rd | c.wr)): need, why = 8, "mfma D->mem"
                if cv and (p.srcc & c.wr) and need < 3: need, why = 3, "mfma C WAR"
            if p.kind == "trans" and c.kind == "valu" and (p.wr & c.rd) and need < 1: need, why = 1, "trans->valu"
            if p.kind == "trans" and c.kind in ("ds", "vmem") and (p.wr & c.rd) and need < 1: need, why = 1, "trans->mem"
            if pv and c.op.startswith("v_permlane") and (p.wr & c.rd) and need < 2: need, why = 2, "valu->permlane"
            if pv and ("dpp" in c.text or "row_" in c.text) and (p.wr & c.rd) and need < 2: need, why = 2, "valu->dpp"
            if pv and (c.op.startswith("v_readfirstlane") or c.op.startswith("v_readlane")) and {r for r in p.wr & c.rd if isvec(r)} and need < 1: need, why = 1, "valu->readlane"
            if pv and c.kind == "vmem" and {r for r in p.wr & c.rd if issg(r)} and need < 5: need, why = 5, "valu sgpr->vmem"
            if pv and cv and {r for r in p.wr & c.rd if issg(r)} and need < 2: need, why = 2, "valu sgpr->valu"
            if pv and c.kind == "salu" and {r for r in p.wr & c.rd if issg(r)} and need < 1: need, why = 1, "valu sgpr->salu (pad)"
            if p.kind == "salu" and "m0" in p.wr and c.kind == "vmem" and "m0" in c.rd and need < 1: need, why = 1, "m0->dma"
            if p.kind == "vmem" and "store" in p.op and ("x4" in p.op or "x3" in p.op) and (c.wr & {r for r in p.rd if isvec(r)}) and need < 2: need, why = 2, "store data WAR"
            if pv and "exec" in p.wr and c.kind == "mfma" and need < 4: need, why = 4, "exec->mfma"
            if dist < need:
                probs.append(f"{where} HAZARD {why}: need {need} have {dist}: [{p.text}] -> [{c.text}]")
            dist += p.n
            if dist >= 12: break
    return probs

SCC_W = ("s_add", "s_sub", "s_cmp", "s_bitcmp", "s_and", "s_or", "s_xor", "s_lshl", "s_lshr", "s_ashr", "s_bfe", "s_min", "s_max", "s_andn2", "s_not", "s_addk", "s_abs")
def check_scc(seq, where=""):
    probs = []; last = None
    for c in seq:
        if c.n == 0: continue
        if c.op.startswith(("s_cbranch_scc", "s_cselect")):
            if last is None or not last.op.startswith(("s_cmp", "s_bitcmp")): probs.append(f"{where} SCC: [{last.text if last else None}] feeds [{c.text}]")
        if c.op.startswith(("s_addc", "s_subb")):
            if last is None or not last.op.startswith(("s_add_u32", "s_sub_u32")): probs.append(f"{where} SCC: [{last.text if last else None}] feeds [{c.text}]")
        if c.op.startswith(SCC_W): last = c
    return probs

def check_waits(seq, where="", vm0=None, lg0=None):
    probs = []
    lg = list(lg0 or []); vm = list(vm0 or [])
    for c in seq:
        if c.n == 0: continue
        if c.kind == "wait":
            m = re.search(r'lgkmcnt\((\d+)\)', c.text)
            if m:
                n = int(m.group(1)); lg = lg[len(lg) - n:] if n < len(lg) else lg
                if n == 0: lg = []
            m = re.search(r'vmcnt\((\d+)\)', c.text)
            if m:
                n = int(m.group(1)); vm = vm[len(vm) - n:] if n < len(vm) else vm
                if n == 0: vm = []
            continue
        for q, nm in ((lg, "lgkm"), (vm, "vm")):
            for o in q:
                if o.wr & (c.rd | c.wr) and not (o.kind == c.kind and not (o.wr & c.rd)):
                    probs.append(f"{where} WAIT {nm}: [{o.text}] outstanding at [{c.text}]")
        if c.kind in ("ds", "smem"): lg.append(c)
        if c.kind == "vmem": vm.append(c)
        if len(lg) > 15 and c.kind == "ds": pass
    return probs, vm, lg

class Asm:
    def __init__(self): self.l = []
    def __call__(self, text, tag=None):
        for t in text.split("\n"):
            t = t.strip()
            if t: self.l.append(Ins(t, tag))
    def ext(self, seq): self.l += seq
    def text(self): return "\n".join(("" if x.kind in ("label", "dir") else "    ") + x.text for x in self.l)

def auto_lgkm(seq, pre=None):
    q = []
    def step(c, fix):
        nonlocal q
        if c.kind == "wait":
            if "lgkmcnt(?)" in c.text or (c.tag and isinstance(c.tag, tuple) and c.tag[0] == "lg"):
                need = c.tag[1]
                last = -1
                for k, o in enumerate(q):
                    if o.wr & need: last = k
                n = len(q) - 1 - last
                n = min(n, 15)
                if fix: c.text = re.sub(r'lgkmcnt\([^)]*\)', f'lgkmcnt({n})', c.text)
                q = q[len(q) - n:] if n < len(q) else q
                if n == 0: q = []
            else:
                m = re.search(r'lgkmcnt\((\d+)\)', c.text)
                if m:
                    n = int(m.group(1)); q = q[len(q) - n:] if 0 < n < len(q) else ([] if n == 0 else q)
        elif c.kind in ("ds", "smem"): q.append(c)
    for c in (pre or []): step(c, False)
    for c in seq: step(c, True)

def auto_vm(seq, pre=None):
    q = []
    def step(c, fix):
        nonlocal q
        if c.kind == "wait":
            if c.tag and isinstance(c.tag, tuple) and c.tag[0] == "vm":
                need = c.tag[1]
                last = -1
                for k, o in enumerate(q):
                    if o.tag in need: last = k
                n = len(q) - 1 - last
                assert n <= 63
                if fix: c.text = re.sub(r'vmcnt\([^)]*\)', f'vmcnt({n})', c.text)
                q = q[len(q) - n:] if 0 < n < len(q) else ([] if n == 0 else q)
            else:
                m = re.search(r'vmcnt\((\d+)\)', c.text)
                if m:
                    n = int(m.group(1)); q = q[len(q) - n:] if 0 < n < len(q) else ([] if n == 0 else q)
        elif c.kind == "vmem": q.append(c)
    for c in (pre or []): step(c, False)
    for c in seq: step(c, True)
```

```python
import sys, math, struct
from asmlib import *

NAME = "recurrent_scan__gqa_block_cached__dense_activation_gelu__prompt"
def f2u(x): return struct.unpack("<I", struct.pack("<f", x))[0]
def fh(x): return f"0x{f2u(x):08x}"

CSC = math.log2(math.e) / math.sqrt(192.0)
XS_OFF = 0;             XS_SZ = 128 * 20 * 1024
OH_OFF = 0x400000;      OH_SZ = 128 * 240 * 1024
SL_OFF = 0x2800000;     SL_SZ = 128 * 40 * 1024
BIAS = 24.0
LMAX = 2.0 ** 96

opt = dict(stamp=0)
for a in sys.argv[1:]:
    k, v = a.split("="); opt[k] = type(opt.get(k, ""))(v)

problems = []
def finish(A, where, loops=()):
    global problems
    problems += check_hazards(A.l, where)

def srd(A, d, lo, hi, size, add=None):
    if add is None:
        A(f"s_mov_b32 s{d}, s{lo}\ns_and_b32 s{d+1}, s{hi}, 0xffff")
    else:
        A(f"s_add_u32 s{d}, s{lo}, {add}\ns_addc_u32 s{d+1}, s{hi}, 0\ns_and_b32 s{d+1}, s{d+1}, 0xffff")
    A(f"s_mov_b32 s{d+2}, {size}\ns_mov_b32 s{d+3}, 0x20000")

def kd(name, vgpr, accum, sgpr=96):
    return f""".section .rodata,"a"
.p2align 6
.amdhsa_kernel {name}
  .amdhsa_next_free_vgpr {vgpr}
  .amdhsa_next_free_sgpr {sgpr}
  .amdhsa_accum_offset {accum}
  .amdhsa_group_segment_fixed_size 0
  .amdhsa_kernarg_size 104
  .amdhsa_user_sgpr_count 2
  .amdhsa_user_sgpr_kernarg_segment_ptr 1
  .amdhsa_system_sgpr_workgroup_id_x 1
.end_amdhsa_kernel
"""
def head(name):
    return f".text\n.globl {name}\n.p2align 8\n.type {name},@function\n{name}:\n"

def vr(b, n=4): return f"v[{b}:{b+n-1}]"
def ar(b, n=4): return f"a[{b}:{b+n-1}]"

def gen_ln():
    A = Asm()
    A("s_cmp_ge_u32 s2, 128\ns_cbranch_scc1 L_ln_done")
    A("s_load_dwordx2 s[4:5], s[0:1], 0\ns_load_dwordx2 s[6:7], s[0:1], 96")
    A("v_and_b32 v1, 63, v0\nv_lshrrev_b32 v2, 6, v0\nv_and_b32 v3, 15, v0\nv_lshrrev_b32 v4, 4, v1")
    A("v_mul_u32_u24 v5, 1280, v3\nv_mul_u32_u24 v6, 320, v2\nv_lshlrev_b32 v7, 3, v4\nv_add3_u32 v5, v5, v6, v7")
    A("s_mul_i32 s3, s2, 20480")
    A("s_waitcnt lgkmcnt(0)")
    srd(A, 8, 4, 5, 2621440)
    srd(A, 12, 6, 7, XS_SZ, XS_OFF)
    for i in range(5):
        A(f"buffer_load_dwordx2 {vr(16+4*i,2)}, v5, s[8:11], s3 offen offset:{64*i}")
        A(f"buffer_load_dwordx2 {vr(18+4*i,2)}, v5, s[8:11], s3 offen offset:{64*i+32}")
    A("v_lshlrev_b32 v8, 6, v3\nv_lshl_add_u32 v9, v2, 2, v4\nv_lshl_add_u32 v9, v9, 2, v8")
    A("v_mul_u32_u24 v10, 5120, v2\nv_lshl_add_u32 v10, v1, 4, v10")
    A("s_waitcnt vmcnt(0)")
    for i in range(20):
        A(f"v_lshlrev_b32 v{40+2*i}, 16, v{16+i}\nv_and_b32 v{41+2*i}, 0xffff0000, v{16+i}")
    A("v_add_f32 v11, v40, v41\nv_add_f32 v12, v42, v43")
    for i in range(4, 40, 2):
        A(f"v_add_f32 v11, v11, v{40+i}\nv_add_f32 v12, v12, v{41+i}")
    A("v_add_f32 v11, v11, v12")
    def xsum(off):
        A(f"ds_write_b32 v9, v11 offset:{off}\ns_waitcnt lgkmcnt(0)\ns_barrier")
        for i in range(4): A(f"ds_read_b128 {vr(16+4*i)}, v8 offset:{off+16*i}")
        A("s_waitcnt lgkmcnt(0)")
        for i in range(8): A(f"v_add_f32 v{16+i}, v{16+i}, v{24+i}")
        for i in range(4): A(f"v_add_f32 v{16+i}, v{16+i}, v{20+i}")
        A("v_add_f32 v16, v16, v18\nv_add_f32 v17, v17, v19\nv_add_f32 v16, v16, v17")
    xsum(0)
    A(f"v_mul_f32 v13, {fh(1/640)}, v16")
    for i in range(40): A(f"v_sub_f32 v{40+i}, v{40+i}, v13")
    A("v_mul_f32 v11, v40, v40\nv_mul_f32 v12, v41, v41")
    for i in range(2, 40, 2):
        A(f"v_fmac_f32 v11, v{40+i}, v{40+i}\nv_fmac_f32 v12, v{41+i}, v{41+i}")
    A("v_add_f32 v11, v11, v12")
    xsum(1024)
    A(f"v_mov_b32 v14, {fh(1e-5)}\nv_fmac_f32 v14, {fh(1/640)}, v16\nv_rsq_f32 v14, v14\ns_nop 0\nv_mul_f32 v14, {fh(CSC)}, v14")
    for i in range(40): A(f"v_mul_f32 v{40+i}, v{40+i}, v14")
    for i in range(20): A(f"v_cvt_pk_bf16_f32 v{16+i}, v{40+2*i}, v{41+2*i}")
    for i in range(5):
        if i < 4: A(f"buffer_store_dwordx4 {vr(16+4*i)}, v10, s[12:15], s3 offen offset:{1024*i}")
        else: A(f"s_add_u32 s3, s3, 4096\nbuffer_store_dwordx4 {vr(16+4*i)}, v10, s[12:15], s3 offen")
    A("L_ln_done:\ns_endpgm")
    finish(A, "ln")
    p, _, _ = check_waits(A.l, "ln"); problems.extend(p)
    return head("ln_kernel") + A.text() + "\n", kd("ln_kernel", 80, 80, 32)

class Gaps:
    def __init__(self, mfmas):
        self.m = mfmas; n = len(mfmas)
        self.sc = [[] for _ in range(n)]; self.mem = [[] for _ in range(n)]; self.va = [[] for _ in range(n)]
    def vcost(self, g): return len(self.mem[g]) + sum(2 if x.kind == "trans" else 1 for x in self.va[g])
    def cost(self, g): return self.vcost(g) + len(self.sc[g])
    def fits(self, g, ins):
        c = 2 if ins.kind == "trans" else 1
        if ins.kind in ("valu", "trans", "ds", "vmem"):
            if self.vcost(g) + c > 2: return False
            return self.vcost(g) + c + len(self.sc[g]) <= 3
        return self.cost(g) + 1 <= 3
    def put(self, g, ins):
        if ins.kind in ("ds", "vmem"): self.mem[g].append(ins)
        elif ins.kind in ("valu", "trans"): self.va[g].append(ins)
        else: self.sc[g].append(ins)
    def place(self, g, text, tag=None, force=False):
        ins = Ins(text, tag)
        while not force and not self.fits(g, ins): g += 1
        self.put(g, ins); return g
    def place2(self, g, t1, t2):
        while self.cost(g) + 2 > 3: g += 1
        self.put(g, Ins(t1)); self.put(g, Ins(t2)); return g
    def emit(self):
        out = []
        for g, m in enumerate(self.m):
            out.append(m); out += self.sc[g] + self.mem[g] + self.va[g]
        return out

KA = [1, 2]; VA = [3, 4, 5, 6]; DSR = [7, 8, 9]; LS = [10, 11, 12, 13]; T0, T1 = 14, 15
NREF = 16; QV = 32; SB = 64; PB = [128, 160]; KV = 192
WA = [240, 241]; WA2 = [242, 243]; W1A = [244, 245, 246]; DW = [247, 248, 249]; DW1 = 250; XV = [251, 252, 253, 254]
KRING = 0; VRING = 73728; STG = 24576; W1RING = 49152
def qfrag(qb, ks):
    f = qb * 6 + ks
    return ar(192 + 4 * f) if f < 16 else vr(QV + 4 * (f - 16))
def S(kb, qb): return SB + 4 * (kb * 4 + qb)
def P(par, qb, e): return PB[par] + 4 * (qb * 2 + e)
def O(db, qb): return 4 * (db * 4 + qb)
MF = "v_mfma_f32_16x16x32_bf16"
sK, sV, sWQ, sW1, sXS, sOH, sB1 = 4, 8, 12, 16, 20, 24, 28
sW, sHEAD, sQB0 = 32, 33, 34
sKo, sKo2, sVo, sVo2, sSlot, sM, sInc, sCnt, sWb = 36, 37, 38, 39, 40, 41, 42, 43, 44
sA, sB, sC, sD = 46, 47, 48, 49
sNeg = 45

def kread(buf, kb, ks):
    d = KV + 24 * buf + 4 * ks
    return f"ds_read_b128 {vr(d)}, v{KA[ks & 1]} offset:{(ks >> 1) * 128 + kb * 6144}"
def vread(db, e, half):
    d = KV + 8 * (db % 6) + 4 * e + 2 * half
    return f"ds_read_b64_tr_b16 {vr(d,2)}, v{VA[db & 3]} offset:{(db >> 2) * 128 + e * 12288 + half * 6144}"
def rs(b, n): return {f"v{i}" for i in range(b, b + n)}
def lgw(regs): return Ins("s_waitcnt lgkmcnt(?)", ("lg", regs))

def qk_mfmas(cinit):
    out = []
    for kb in range(4):
        for qb in range(4):
            for ks in range(6):
                a = KV + 24 * (kb & 1) + 4 * ks
                c = (vr(NREF + 4 * qb) if cinit else "0") if ks == 0 else vr(S(kb, qb))
                out.append(Ins(f"{MF} {vr(S(kb,qb))}, {vr(a)}, {qfrag(qb,ks)}, {c}"))
    return out
def pv_mfmas(par):
    out = []
    for db in range(12):
        for qb in range(4):
            for e in range(2):
                a = KV + 8 * (db % 6) + 4 * e
                out.append(Ins(f"{MF} {ar(O(db,qb))}, {vr(a)}, {vr(P(par,qb,e))}, {ar(O(db,qb))}"))
    return out

def sm_ops(par):
    out = []
    for kb in range(4):
        for qb in range(4):
            s = S(kb, qb); p = P(par, qb, kb >> 1) + 2 * (kb & 1)
            out.append(([f"v_exp_f32 v{s+r}, v{s+r}" for r in range(4)],
                        [f"v_add_f32 v{LS[qb]}, v{LS[qb]}, v{s+r}" for r in range(4)],
                        [f"v_cvt_pk_bf16_f32 v{p+r}, v{s+2*r}, v{s+2*r+1}" for r in range(2)]))
    return out

def qk_reads(G, base, vpre=True):
    for kb in range(3):
        for ks in range(6): G.place(base + 24 * kb + 1 + 3 * ks, kread((kb + 1) & 1, kb + 1, ks))
    if vpre:
        n = 0
        for db in range(3):
            for e in range(2):
                for h in range(2):
                    G.place(base + 73 + (n * 3) // 2, vread(db, e, h)); n += 1
    for kb in range(4):
        for ks in (0, 2, 4):
            g = base + 24 * kb + ks - 1
            if g >= 0:
                G.put(g, lgw(rs(KV + 24 * (kb & 1) + 4 * ks, 8)))

def gen_step(par):
    G = Gaps(qk_mfmas(True) + pv_mfmas(par))
    qk_reads(G, 0)
    B = 96
    for db in range(9):
        n = 0
        for e in range(2):
            for h in range(2):
                G.place(B + 8 * db + 2 * n, vread(db + 3, e, h)); n += 1
    for db in range(12):
        G.put(B + 8 * db - 1, lgw(rs(KV + 8 * (db % 6), 8)))
    gb = B + 80
    G.put(gb, Ins("s_waitcnt vmcnt(12) lgkmcnt(0)")); G.put(gb, Ins("s_barrier"))
    for ks in range(6): G.place(gb + 1 + 2 * ks, kread(0, 0, ks))
    G.put(191, lgw(rs(KV, 8)))
    G.place(0, f"s_add_u32 s{sM}, s{sSlot}, s{sWb}")
    G.place(1, f"s_add_u32 s{sKo2}, s{sKo}, 3072")
    G.place(2, f"s_sub_u32 s{sVo}, s{sKo}, {STG}")
    G.place(3, f"s_sub_u32 s{sVo2}, s{sKo}, {STG - 3072}")
    G.place2(4, f"s_cmp_eq_u32 s{sSlot}, {STG}", f"s_cselect_b32 s{sInc}, s{sNeg}, {STG}")
    dm = [(sK, sKo, 0), (sK, sKo2, 3072), (sV, sVo, VRING), (sV, sVo2, VRING + 3072)]
    g = 8
    for (sr, so, mo) in dm:
        G.place(g, f"s_add_u32 m0, s{sM}, {mo}" if mo else f"s_mov_b32 m0, s{sM}")
        for j in range(3):
            g2 = G.place(g + 2 + 12 * j, f"buffer_load_dwordx4 v{DSR[j]}, s[{sr}:{sr+3}], s{so} offen offset:{1024*j} lds")
        g = g2 + 10
    G.place(g, f"s_add_u32 s{sKo}, s{sKo}, {STG}")
    g = G.place(g + 1, f"s_add_u32 s{sSlot}, s{sSlot}, {STG}")
    g = G.place2(g + 1, f"s_cmp_eq_u32 s{sSlot}, {3 * STG}", f"s_cselect_b32 s{sSlot}, 0, s{sSlot}")
    for i, r in enumerate(KA): G.place(B + 10 + 2 * i, f"v_add_u32 v{r}, s{sInc}, v{r}")
    for i, r in enumerate(VA): G.place(B + 82 + 2 * i, f"v_add_u32 v{r}, s{sInc}, v{r}")
    ops = sm_ops(par ^ 1)
    ng = 192
    first, last = 10, 186
    k = 0
    pend = []
    exps = [(i, r) for i in range(16) for r in range(4)]
    done_exp = {}
    ei = 0
    for g in range(ng):
        if ei < 64:
            i, r = exps[ei]
            target = first + (last - first) * ei / 64.0
            if g >= 6 * i + 5 + 4 and g >= target and G.vcost(g) == 0:
                G.put(g, Ins(ops[i][0][r])); ei += 1
                pend.append((g + 1, ops[i][1][r]))
                if r & 1: pend.append((g + 1, ops[i][2][r >> 1]))
                continue
        while pend and pend[0][0] <= g and G.fits(g, Ins(pend[0][1])):
            G.put(g, Ins(pend.pop(0)[1]))
    assert ei == 64 and not pend, (ei, pend)
    return G

def gen_attn():
    A = Asm()
    A("s_cmp_ge_u32 s2, 256\ns_cbranch_scc1 L_a_done")
    A("s_load_dwordx4 s[52:55], s[0:1], 8")
    A("s_load_dwordx2 s[56:57], s[0:1], 24")
    A("s_load_dwordx4 s[60:63], s[0:1], 48")
    A("s_load_dwordx2 s[58:59], s[0:1], 96")
    A("v_lshrrev_b32 v14, 6, v0\nv_and_b32 v0, 63, v0")
    A(f"v_readfirstlane_b32 s{sW}, v14")
    A(f"s_and_b32 s{sA}, s2, 7\ns_lshr_b32 s{sB}, s2, 3\ns_and_b32 s{sC}, s{sB}, 3\ns_lshl_b32 s{sA}, s{sA}, 2\ns_add_u32 s{sHEAD}, s{sA}, s{sC}")
    A(f"s_lshr_b32 s{sB}, s{sB}, 2\ns_lshl_b32 s{sB}, s{sB}, 4\ns_lshl_b32 s{sC}, s{sW}, 2\ns_add_u32 s{sQB0}, s{sB}, s{sC}")
    for j in range(3):
        A(f"v_add_u32 v14, {64*j}, v0\nv_mul_u32_u24 v15, 2731, v14\nv_lshrrev_b32 v15, 16, v15")
        A(f"v_mul_u32_u24 v16, 24, v15\nv_sub_u32 v16, v14, v16\nv_and_b32 v17, 6, v15\nv_xor_b32 v16, v16, v17\nv_lshlrev_b32 v16, 4, v16")
        A(f"v_mul_u32_u24 v17, 384, v15\nv_add_u32 v17, v17, v16\nv_add_u32 v{DSR[j]}, {(128 - 1024*j) & 0xffffffff}, v17")
        A(f"v_mul_u32_u24 v17, 12288, v15\nv_add_u32 v17, v17, v16\nv_add_u32 v{DW[j]}, {(-1024*j) & 0xffffffff}, v17")
    A(f"v_lshrrev_b32 v15, 3, v0\nv_and_b32 v16, 7, v0\nv_and_b32 v17, 6, v15\nv_xor_b32 v16, v16, v17\nv_lshlrev_b32 v16, 4, v16\nv_mul_u32_u24 v17, 3072, v15\nv_add_u32 v{DW1}, v17, v16")
    for qb in range(4): A(f"v_lshlrev_b32 v14, 4, v0\nv_add_u32 v{XV[qb]}, {qb*20480}, v14")
    A("s_waitcnt lgkmcnt(0)")
    A(f"s_mul_i32 s{sA}, s{sHEAD}, 786432")
    for (d, lo) in ((sK, 52), (sV, 54)):
        A(f"s_add_u32 s{d}, s{lo}, s{sA}\ns_addc_u32 s{d+1}, s{lo+1}, 0\ns_sub_u32 s{d}, s{d}, 128\ns_subb_u32 s{d+1}, s{d+1}, 0\ns_and_b32 s{d+1}, s{d+1}, 0xffff")
        A(f"s_mov_b32 s{d+2}, {786432 + 128}\ns_mov_b32 s{d+3}, 0x20000")
    A(f"s_mul_i32 s{sA}, s{sHEAD}, 384")
    A(f"s_add_u32 s{sWQ}, s56, s{sA}\ns_addc_u32 s{sWQ+1}, s57, 0\ns_and_b32 s{sWQ+1}, s{sWQ+1}, 0xffff\ns_sub_u32 s{sWQ+2}, {640*12288}, s{sA}\ns_mov_b32 s{sWQ+3}, 0x20000")
    A(f"s_mul_i32 s{sA}, s{sHEAD}, 96")
    A(f"s_add_u32 s{sW1}, s60, s{sA}\ns_addc_u32 s{sW1+1}, s61, 0\ns_and_b32 s{sW1+1}, s{sW1+1}, 0xffff\ns_sub_u32 s{sW1+2}, {640*3072}, s{sA}\ns_mov_b32 s{sW1+3}, 0x20000")
    srd(A, sXS, 58, 59, XS_SZ, XS_OFF)
    srd(A, sOH, 58, 59, OH_SZ, OH_OFF)
    srd(A, sB1, 62, 63, 3072)
    A(f"s_mul_i32 s{sWb}, s{sW}, 6144")
    A(f"s_mul_i32 s{sA}, s{sW}, {16*12288}\ns_mul_i32 s{sB}, s{sW}, {16*3072}\ns_mul_i32 s{sC}, s{sQB0}, 20480")
    A(f"s_lshl_b32 s{sD}, s{sW}, 11")
    XB = [PB[0], PB[1], SB]
    def wdma(ch):
        sl = ch % 3; o = []
        o.append(f"s_add_u32 m0, s{sWb}, {VRING + sl*STG}")
        o += [(f"buffer_load_dwordx4 v{DW[j]}, s[{sWQ}:{sWQ+3}], s{sA} offen offset:{1024*j} lds", f"W{ch}") for j in range(3)]
        o.append(f"s_add_u32 s{sA}, s{sA}, {8*12288}")
        o.append(f"s_add_u32 m0, s{sWb}, {VRING + sl*STG + 3072}")
        o += [(f"buffer_load_dwordx4 v{DW[j]}, s[{sWQ}:{sWQ+3}], s{sA} offen offset:{1024*j} lds", f"W{ch}") for j in range(3)]
        o.append(f"s_add_u32 s{sA}, s{sA}, {56*12288}")
        o.append(f"s_add_u32 m0, s{sD}, {W1RING + sl*8192}")
        o.append((f"buffer_load_dwordx4 v{DW1}, s[{sW1}:{sW1+3}], s{sB} offen lds", f"W{ch}"))
        o.append(f"s_add_u32 s{sB}, s{sB}, {8*3072 - 1024}")
        o.append((f"buffer_load_dwordx4 v{DW1}, s[{sW1}:{sW1+3}], s{sB} offen offset:1024 lds", f"W{ch}"))
        o.append(f"s_add_u32 s{sB}, s{sB}, {56*3072 + 1024}")
        return o
    def xload(ch):
        o = []
        for qb in range(4):
            for e in range(2):
                o.append((f"buffer_load_dwordx4 {vr(XB[ch%3] + 4*(qb*2+e))}, v{XV[qb]}, s[{sXS}:{sXS+3}], s{sC} offen offset:{1024*e}", f"X{ch}"))
        o.append(f"s_add_u32 s{sC}, s{sC}, 2048")
        return o
    def kvdma(sr, slotbase, t, tag):
        o = []
        for hf in range(2):
            o.append(f"s_add_u32 s{sKo2}, s{sWb}, {t*STG + 3072*hf}")
            o.append(f"s_add_u32 m0, s{sWb}, {slotbase + 3072*hf}")
            o += [(f"buffer_load_dwordx4 v{DSR[j]}, s[{sr}:{sr+3}], s{sKo2} offen offset:{1024*j} lds", tag) for j in range(3)]
        return o
    def straight(lst):
        prev_m0 = False
        for x in lst:
            t, tag = x if isinstance(x, tuple) else (x, None)
            if prev_m0 and "lds" in t: A("s_nop 0")
            A(t, tag); prev_m0 = " m0," in t
    straight(wdma(0) + xload(0) + wdma(1) + xload(1))
    A(f"v_lshrrev_b32 v14, 4, v0\nv_lshlrev_b32 v14, 3, v14\ns_mul_i32 s{sVo}, s{sHEAD}, 96")
    for ct in range(3): A(f"buffer_load_dwordx2 {vr(NREF + 8 + 2*ct, 2)}, v14, s[{sB1}:{sB1+3}], s{sVo} offen offset:{32*ct}", "B1")
    straight(kvdma(sK, KRING, 0, "K0") + kvdma(sK, KRING + STG, 1, "K1"))
    A("v_lshrrev_b32 v14, 2, v0\nv_and_b32 v15, 6, v14\nv_and_b32 v18, 3, v0")
    A("v_lshrrev_b32 v19, 1, v18\nv_and_b32 v20, 1, v18\nv_lshlrev_b32 v20, 3, v20")
    A(f"v_mul_u32_u24 v21, 384, v14\nv_add_u32 v21, {VRING}, v21")
    for m in range(4):
        A(f"v_add_u32 v22, {2*m}, v19\nv_xor_b32 v22, v22, v15\nv_lshlrev_b32 v22, 4, v22\nv_add3_u32 v{VA[m]}, v21, v22, v20\nv_add_u32 v{VA[m]}, {STG}, v{VA[m]}")
    for e in range(2):
        A(f"v_add_u32 v22, {4*e}, v18\nv_xor_b32 v22, v22, v15\nv_lshlrev_b32 v22, 4, v22\nv_add_u32 v{WA[e]}, v21, v22\nv_add_u32 v{WA2[e]}, {2*STG}, v{WA[e]}")
    A(f"v_lshlrev_b32 v21, 7, v14\nv_add_u32 v21, {W1RING}, v21")
    for ct in range(3):
        A(f"v_add_u32 v22, {2*ct}, v19\nv_xor_b32 v22, v22, v15\nv_lshlrev_b32 v22, 4, v22\nv_add3_u32 v{W1A[ct]}, v21, v22, v20")
    A("v_and_b32 v14, 15, v0\nv_and_b32 v15, 6, v14\nv_lshrrev_b32 v18, 4, v0\nv_mul_u32_u24 v21, 384, v14")
    for e in range(2):
        A(f"v_add_u32 v22, {4*e}, v18\nv_xor_b32 v22, v22, v15\nv_lshlrev_b32 v22, 4, v22\nv_add_u32 v{KA[e]}, v21, v22")
    def wread(ch, ct, e, h):
        n = 15 * ch + ct; d = KV + 8 * (n % 6) + 4 * e + 2 * h; sl = ch % 3
        if ct < 12:
            ks, p = ct >> 1, ct & 1
            if sl < 2: a, o = WA[ks & 1], sl * STG
            else: a, o = WA2[ks & 1], 0
            return f"ds_read_b64_tr_b16 {vr(d,2)}, v{a} offset:{o + (ks >> 1)*128 + 8*p + e*12288 + h*6144}"
        return f"ds_read_b64_tr_b16 {vr(d,2)}, v{W1A[ct-12]} offset:{sl*8192 + e*4096 + h*2048}"
    mf = []
    for ch in range(10):
        for ct in range(15):
            n = 15 * ch + ct
            for qb in range(4):
                for e in range(2):
                    acc = ar(4 * (ct * 4 + qb))
                    c = "0" if (ch == 0 and e == 0) else acc
                    mf.append(Ins(f"{MF} {acc}, {vr(KV + 8*(n%6) + 4*e)}, {vr(XB[ch%3] + 4*(qb*2+e))}, {c}"))
    G = Gaps(mf)
    pre = []
    A("s_waitcnt vmcnt(?)", ("vm", {"W0"})); A("s_barrier")
    for ct in range(3):
        for e in range(2):
            for h in range(2): A(wread(0, ct, e, h))
    A("s_waitcnt vmcnt(?)", ("vm", {"X0"}))
    A.l.append(lgw(rs(KV, 8)))
    for ch in range(10):
        b = 120 * ch
        for ct in range(12):
            n = 0
            for e in range(2):
                for h in range(2):
                    G.place(b + 8 * ct + 2 * n, wread(ch, ct + 3, e, h)); n += 1
        gb = b + 102
        if ch < 9:
            tg = {f"W{ch+1}"}
        else:
            tg = {"K0", "K1", "V0"}
        G.put(gb, Ins("s_waitcnt vmcnt(?) lgkmcnt(0)", ("vm", tg))); G.put(gb, Ins("s_barrier"))
        if ch < 9:
            n = 0
            for ct in range(3):
                for e in range(2):
                    for h in range(2):
                        G.place(gb + 1 + n + n // 4, wread(ch + 1, ct, e, h)); n += 1
            G.put(b + 118, Ins("s_waitcnt vmcnt(?)", ("vm", {f"X{ch+1}"})))
        for ct in range(15):
            n = 15 * ch + ct
            if b + 8 * ct - 1 >= 0: G.put(b + 8 * ct - 1, lgw(rs(KV + 8 * (n % 6), 8)))
        if ch + 2 < 10: lst = wdma(ch + 2) + xload(ch + 2)
        elif ch == 8: lst = kvdma(sV, VRING + STG, 0, "V0")
        else: lst = kvdma(sV, VRING + 2 * STG, 1, "V1")
        g = b + 1
        for x in lst:
            t, tag = x if isinstance(x, tuple) else (x, None)
            g = G.place(g, t, tag) + (3 if tag else 1)
        assert g < gb, g
    A.ext(G.emit())
    straight(kvdma(sK, KRING + 2 * STG, 2, "K2"))
    for ks in range(6): A(kread(0, 0, ks))
    A("s_waitcnt vmcnt(?)", ("vm", {"B1"}))
    BF = SB + 32
    for ct in range(3):
        for r in range(2):
            A(f"v_lshlrev_b32 v{BF+4*ct+2*r}, 16, v{NREF+8+2*ct+r}\nv_and_b32 v{BF+4*ct+2*r+1}, 0xffff0000, v{NREF+8+2*ct+r}")
    k0 = -2.0 * math.log2(math.e) * math.sqrt(2.0 / math.pi); k1 = k0 * 0.044715
    A(f"s_mov_b32 s{sA}, {fh(1.0/CSC)}\ns_mov_b32 s{sB}, {fh(k1)}\nv_mov_b32 v{T0}, {fh(k0)}")
    A(f"s_mul_i32 s{sC}, s{sQB0}, {240*1024}\ns_mul_i32 s{sD}, s{sHEAD}, 3")
    A(f"v_lshlrev_b32 v{T1}, 4, v0")
    HT = PB[0]
    for ct in range(3):
        A(f"s_add_u32 s{sVo}, s{sD}, {ct}\ns_lshr_b32 s{sVo2}, s{sVo}, 1\ns_lshl_b32 s{sVo2}, s{sVo2}, 10\ns_and_b32 s{sVo}, s{sVo}, 1\ns_lshl_b32 s{sVo}, s{sVo}, 3")
        A(f"s_add_u32 s{sVo}, s{sVo}, s{sVo2}\ns_add_u32 s{sVo}, s{sVo}, s{sC}\ns_add_u32 s{sVo}, s{sVo}, {192*1024}")
        for qb in range(4):
            x = HT + 16 * (qb & 1); y = x + 4; z = x + 8; pk = x + 12
            for r in range(4): A(f"v_accvgpr_read_b32 v{x+r}, a{4*((12+ct)*4+qb)+r}")
            for r in range(4): A(f"v_fma_f32 v{x+r}, v{x+r}, s{sA}, v{BF+4*ct+r}")
            for r in range(4): A(f"v_mul_f32 v{y+r}, v{x+r}, v{x+r}")
            for r in range(4): A(f"v_fma_f32 v{y+r}, v{y+r}, s{sB}, v{T0}")
            for r in range(4): A(f"v_mul_f32 v{y+r}, v{y+r}, v{x+r}")
            for r in range(4): A(f"v_exp_f32 v{y+r}, v{y+r}")
            for r in range(4): A(f"v_add_f32 v{y+r}, 1.0, v{y+r}")
            for r in range(4): A(f"v_rcp_f32 v{y+r}, v{y+r}")
            for r in range(4): A(f"v_mul_f32 v{y+r}, v{y+r}, v{x+r}")
            for r in range(2): A(f"v_cvt_pk_bf16_f32 v{pk+r}, v{y+2*r}, v{y+2*r+1}")
            A(f"buffer_store_dwordx2 {vr(pk,2)}, v{T1}, s[{sOH}:{sOH+3}], s{sVo} offen", "H")
            if qb < 3: A(f"s_add_u32 s{sVo}, s{sVo}, {240*1024}")
    for qb in range(4):
        for ks in range(6):
            f = qb * 6 + ks
            x = PB[1] + 16 * (f & 1)
            for p in range(2):
                for r in range(4): A(f"v_accvgpr_read_b32 v{x+4*p+r}, a{4*((2*ks+p)*4+qb)+r}")
            d = (x + 8) if f < 16 else QV + 4 * (f - 16)
            for i in range(4): A(f"v_cvt_pk_bf16_f32 v{d+i}, v{x+2*i}, v{x+2*i+1}")
            if f < 16:
                for i in range(4): A(f"v_accvgpr_write_b32 a{192+4*f+i}, v{d+i}")
    for i in range(192): A(f"v_accvgpr_write_b32 a{i}, 0")
    for r in LS: A(f"v_mov_b32 v{r}, 0")
    A.l.append(lgw(rs(KV, 8)))
    G = Gaps(qk_mfmas(False)); qk_reads(G, 0, vpre=False)
    A.ext(G.emit())
    A("s_barrier")
    for r in KA: A(f"v_add_u32 v{r}, {STG}, v{r}")
    A("s_nop 0")
    for ks in range(6): A(kread(0, 0, ks))
    for qb in range(4):
        m = NREF + 4 * qb
        v = [S(kb, qb) + r for kb in range(4) for r in range(4)]
        A(f"v_max3_f32 v{m}, v{v[0]}, v{v[1]}, v{v[2]}")
        for i in range(3, 15, 2): A(f"v_max3_f32 v{m}, v{m}, v{v[i]}, v{v[i+1]}")
        A(f"v_max_f32 v{m}, v{m}, v{v[15]}")
    for sw in ("v_permlane32_swap_b32", "v_permlane16_swap_b32"):
        for qb in range(4): A(f"v_mov_b32 v{NREF+4*qb+1}, v{NREF+4*qb}")
        for qb in range(4): A(f"{sw} v{NREF+4*qb}, v{NREF+4*qb+1}")
        for qb in range(4): A(f"v_max_f32 v{NREF+4*qb}, v{NREF+4*qb}, v{NREF+4*qb+1}")
    for qb in range(4):
        m = NREF + 4 * qb
        A(f"v_sub_f32 v{m}, {fh(-BIAS)}, v{m}")
        for r in range(1, 4): A(f"v_mov_b32 v{m+r}, v{m}")
    for kb in range(4):
        for qb in range(4):
            for r in range(4): A(f"v_add_f32 v{S(kb,qb)+r}, v{S(kb,qb)+r}, v{NREF+4*qb}")
    for (ex, ad, cv) in sm_ops(0):
        for t in ex: A(t)
        A("s_nop 0")
        for t in ad + cv: A(t)
    A(f"s_mov_b32 s{sNeg}, {-2 * STG & 0xffffffff}\ns_mov_b32 s{sSlot}, 0\ns_add_u32 s{sKo}, s{sWb}, {3*STG}\ns_mov_b32 s{sCnt}, 15")
    A("s_waitcnt lgkmcnt(0)")
    pro = list(A.l)
    auto_vm(pro); auto_lgkm(pro)
    G0 = gen_step(0); G1 = gen_step(1)
    G0.place(186, f"s_cmp_eq_u32 s{sCnt}, 0")
    G1.place(186, f"s_sub_u32 s{sCnt}, s{sCnt}, 1")
    s0 = G0.emit(); s1 = G1.emit()
    auto_lgkm(s0, pre=s1); auto_lgkm(s1, pre=s0)
    A(".p2align 6\nL_a_loop:")
    A.ext(s0); A("s_cbranch_scc1 L_a_tail"); A.ext(s1); A("s_branch L_a_loop")
    A("L_a_tail:")
    G = Gaps(pv_mfmas(1))
    tail = []
    for db in range(3):
        for e in range(2):
            for h in range(2): tail.append(Ins(vread(db, e, h)))
    tail.append(lgw(rs(KV, 8)))
    for db in range(9):
        n = 0
        for e in range(2):
            for h in range(2):
                G.place(8 * db + 2 * n, vread(db + 3, e, h)); n += 1
    for db in range(1, 12): G.put(8 * db - 1, lgw(rs(KV + 8 * (db % 6), 8)))
    tail += G.emit()
    auto_lgkm(tail, pre=s0)
    A.ext(tail)
    E = Asm()
    for sw in ("v_permlane32_swap_b32", "v_permlane16_swap_b32"):
        for qb in range(4): E(f"v_mov_b32 v{NREF+qb}, v{LS[qb]}")
        E("s_nop 0")
        for qb in range(4): E(f"{sw} v{LS[qb]}, v{NREF+qb}")
        for qb in range(4): E(f"v_add_f32 v{LS[qb]}, v{LS[qb]}, v{NREF+qb}")
    for qb in range(4): E(f"v_rcp_f32 v{LS[qb]}, v{LS[qb]}")
    E(f"s_mul_i32 s{sC}, s{sQB0}, {240*1024}\ns_mul_i32 s{sD}, s{sHEAD}, {6*1024}\ns_add_u32 s{sC}, s{sC}, s{sD}")
    E(f"v_lshlrev_b32 v{T1}, 4, v0")
    n = 0
    for qb in range(4):
        for m in range(6):
            x = SB + 16 * (n % 8); n += 1
            for p in range(2):
                for r in range(4): E(f"v_accvgpr_read_b32 v{x+4*p+r}, a{O(2*m+p,qb)+r}")
            for i in range(8): E(f"v_mul_f32 v{x+i}, v{x+i}, v{LS[qb]}")
            for i in range(4): E(f"v_cvt_pk_bf16_f32 v{x+8+i}, v{x+2*i}, v{x+2*i+1}")
            if m == 4: E(f"s_add_u32 s{sD}, s{sC}, 4096")
            so, off = (sC, 1024 * m) if m < 4 else (sD, 1024 * (m - 4))
            E(f"buffer_store_dwordx4 {vr(x+8)}, v{T1}, s[{sOH}:{sOH+3}], s{so} offen offset:{off}")
        if qb < 3: E(f"s_add_u32 s{sC}, s{sC}, {240*1024}")
    A.ext(E.l)
    A("L_a_done:\ns_endpgm")
    global problems
    problems += check_hazards(pro + s0 + s1 + s0 + tail + E.l, "attn")
    p, _, _ = check_waits(pro + s0 + s1 + s0 + s1 + s0 + tail + E.l, "attn"); problems += p
    return head(NAME + "_kernel") + A.text() + "\n", kd(NAME + "_kernel", 512, 256)

def gen_proj():
    A = Asm()
    sWm, sO, sSL, sB2 = 4, 8, 12, 16
    sW_, sMT, sNT, sSP, sKH, sQH = 20, 21, 22, 23, 24, 25
    sOo, sWo, sWo2, sMb, sSlotB, sIncB, sCn, sT, sT2 = 26, 27, 28, 29, 30, 31, 32, 33, 34
    DS5 = [1, 2, 3, 4, 5]; RA = [6, 7]; OV = [8, 9, 10, 11]
    OB = [16, 48, 80]; WF = 112
    STB = 40960
    A("s_cmp_ge_u32 s2, 256\ns_cbranch_scc1 L_b_done")
    A("s_load_dwordx2 s[40:41], s[0:1], 32\ns_load_dwordx4 s[44:47], s[0:1], 64\ns_load_dwordx2 s[42:43], s[0:1], 96")
    A("v_lshrrev_b32 v14, 6, v0\nv_and_b32 v0, 63, v0")
    A(f"v_readfirstlane_b32 s{sW_}, v14")
    A(f"s_and_b32 s{sSP}, s2, 3\ns_bfe_u32 s{sT}, s2, 0x10002\ns_lshl_b32 s{sT}, s{sT}, 3\ns_bfe_u32 s{sMT}, s2, 0x30003\ns_add_u32 s{sMT}, s{sMT}, s{sT}\ns_lshr_b32 s{sNT}, s2, 6")
    A(f"s_lshr_b32 s{sKH}, s{sW_}, 1\ns_and_b32 s{sQH}, s{sW_}, 1")
    for j in range(5):
        A(f"v_add_u32 v14, {64*j}, v0\nv_mul_u32_u24 v15, 3277, v14\nv_lshrrev_b32 v15, 16, v15")
        A(f"v_mul_u32_u24 v12, 20, v15\nv_sub_u32 v12, v14, v12\nv_lshrrev_b32 v13, 1, v15\nv_and_b32 v13, 2, v13\nv_xor_b32 v12, v12, v13\nv_lshlrev_b32 v12, 4, v12")
        A(f"v_mul_u32_u24 v13, 1280, v15\nv_add_u32 v13, v13, v12")
        A(f"v_add_u32 v{DS5[j]}, {(-1024*(j if j < 4 else 0)) & 0xffffffff}, v13")
    A("v_lshrrev_b32 v14, 2, v0\nv_mul_u32_u24 v14, 320, v14\nv_and_b32 v15, 3, v0\nv_lshl_add_u32 v14, v15, 3, v14")
    A(f"s_mul_i32 s{sT}, s{sKH}, 20480\nv_bfe_u32 v15, v0, 4, 1\nv_add_u32 v14, s{sT}, v14")
    A(f"v_lshl_add_u32 v{RA[0]}, v15, 5, v14\nv_xor_b32 v15, 1, v15\nv_lshl_add_u32 v{RA[1]}, v15, 5, v14")
    for qb in range(4): A(f"v_lshlrev_b32 v14, 4, v0\nv_add_u32 v{OV[qb]}, {qb*240*1024}, v14")
    A("s_waitcnt lgkmcnt(0)")
    A(f"s_mov_b32 s{sT}, {6144*1280}\ns_movk_i32 s{sT2}, 1024\ns_cmp_eq_u32 s{sSP}, 3")
    A(f"s_cselect_b32 s{sWm}, s44, s40\ns_cselect_b32 s{sWm+1}, s45, s41\ns_cselect_b32 s{sWm+2}, {1536*1280}, s{sT}")
    A(f"s_cselect_b32 s{sCn}, 12, 16\ns_cselect_b32 s{sT}, 768, s{sT2}\ns_cselect_b32 s{sT2}, 0, s{sSP}")
    A(f"s_and_b32 s{sWm+1}, s{sWm+1}, 0xffff\ns_mov_b32 s{sWm+3}, 0x20000")
    A(f"s_mul_i32 s{sT}, s{sT}, s{sKH}\ns_lshl_b32 s{sT2}, s{sT2}, 11\ns_add_u32 s{sT}, s{sT}, s{sT2}")
    A(f"s_lshl_b32 s{sT2}, s{sQH}, 5\ns_add_u32 s{sWo}, s{sT}, s{sT2}\ns_mul_i32 s{sWo}, s{sWo}, 1280\ns_mul_i32 s{sT2}, s{sNT}, 320\ns_add_u32 s{sWo}, s{sWo}, s{sT2}")
    A(f"s_lshl_b32 s{sT}, s{sT}, 5\ns_cmp_eq_u32 s{sSP}, 3\ns_cselect_b32 s{sT2}, {192*1024}, 0\ns_add_u32 s{sT}, s{sT}, s{sT2}")
    A(f"s_lshl_b32 s{sT2}, s{sMT}, 1\ns_add_u32 s{sT2}, s{sT2}, s{sQH}\ns_mul_i32 s{sOo}, s{sT2}, {4*240*1024}\ns_add_u32 s{sOo}, s{sOo}, s{sT}")
    srd(A, sO, 42, 43, OH_SZ, OH_OFF)
    srd(A, sSL, 42, 43, 4 * SL_SZ, SL_OFF)
    srd(A, sB2, 46, 47, 1280)
    A(f"s_mul_i32 s{sMb}, s{sKH}, 20480\ns_mul_i32 s{sT}, s{sQH}, 10240\ns_add_u32 s{sMb}, s{sMb}, s{sT}")
    def wdma(tag, slot_sgpr=None, slot_imm=0):
        o = []
        if slot_sgpr is not None: o.append(f"s_add_u32 s{sT}, s{sMb}, s{slot_sgpr}")
        else: o.append(f"s_add_u32 s{sT}, s{sMb}, {slot_imm}")
        o.append(f"s_add_u32 s{sWo2}, s{sWo}, {16*1280}")
        for hf, so in enumerate((sWo, sWo2)):
            o.append(f"s_add_u32 m0, s{sT}, {5120*hf}")
            o += [(f"buffer_load_dwordx4 v{DS5[j]}, s[{sWm}:{sWm+3}], s{so} offen offset:{1024*j} lds", tag) for j in range(4)]
            o.append(f"s_add_u32 m0, s{sT}, {5120*hf + 4096}")
            o.append((f"buffer_load_dwordx4 v{DS5[4]}, s[{sWm}:{sWm+3}], s{so} offen lds", tag))
        o.append(f"s_add_u32 s{sWo}, s{sWo}, {64*1280}")
        return o
    def oload(buf, tag):
        o = [(f"buffer_load_dwordx4 {vr(OB[buf] + 4*(qb*2+e))}, v{OV[qb]}, s[{sO}:{sO+3}], s{sOo} offen offset:{1024*e}", tag) for qb in range(4) for e in range(2)]
        o.append(f"s_add_u32 s{sOo}, s{sOo}, 2048")
        return o
    def straight(lst):
        prev_m0 = False
        for x in lst:
            t, tag = x if isinstance(x, tuple) else (x, None)
            if prev_m0 and "lds" in t: A("s_nop 0")
            A(t, tag); prev_m0 = " m0," in t
    straight(wdma("c0", None, 0) + oload(0, "c0") + wdma("c1", None, STB) + oload(1, "c1"))
    for i in range(160): A(f"v_accvgpr_write_b32 a{i}, 0")
    def wread(u, nb, e, h):
        d = WF + 8 * ((10 * u + nb) % 6) + 4 * e + 2 * h
        return f"ds_read_b64_tr_b16 {vr(d,2)}, v{RA[nb & 1]} offset:{64*(nb >> 1) + e*10240 + h*5120}"
    A(f"s_mov_b32 s{sSlotB}, {2*STB}")
    A("s_waitcnt vmcnt(18)\ns_barrier")
    for nb in range(3):
        for e in range(2):
            for h in range(2): A(wread(0, nb, e, h))
    A("s_waitcnt lgkmcnt(0)")
    pro = list(A.l)
    steps = []
    for u in range(3):
        mf = []
        for nb in range(10):
            for qb in range(4):
                for e in range(2):
                    acc = ar(4 * (nb * 4 + qb))
                    mf.append(Ins(f"{MF} {acc}, {vr(WF + 8*((10*u+nb)%6) + 4*e)}, {vr(OB[u] + 4*(qb*2+e))}, {acc}"))
        G = Gaps(mf)
        for nb in range(7):
            n = 0
            for e in range(2):
                for h in range(2):
                    G.place(8 * nb + 2 * n, wread(u, nb + 3, e, h)); n += 1
        for nb in range(1, 10): G.put(8 * nb - 1, lgw(rs(WF + 8 * ((10 * u + nb) % 6), 8)))
        gb = 62
        G.put(gb, Ins("s_waitcnt vmcnt(18) lgkmcnt(0)")); G.put(gb, Ins("s_barrier"))
        inc = STB if u < 2 else -2 * STB
        for i, r in enumerate(RA): G.place(gb - 3 + i, f"v_add_u32 v{r}, {inc & 0xffffffff}, v{r}")
        n = 0
        for nb in range(3):
            for e in range(2):
                for h in range(2):
                    G.place(gb + 1 + n + n // 4, wread((u + 1) % 3, nb, e, h)); n += 1
        G.put(79, lgw(rs(WF + 8 * ((10 * ((u + 1) % 3)) % 6), 8)))
        lst = wdma("x", None, ((u + 2) % 3) * STB) + oload((u + 2) % 3, "x")
        g = 1
        for x in lst:
            t, tag = x if isinstance(x, tuple) else (x, None)
            g = G.place(g, t, tag) + (2 if tag else 1)
        assert g < gb - 3, g
        G.place(70, f"s_sub_u32 s{sCn}, s{sCn}, 1")
        G.place(72, f"s_cmp_eq_u32 s{sCn}, 0")
        steps.append(G.emit())
    for u in range(3): auto_lgkm(steps[u], pre=steps[(u + 2) % 3])
    A(".p2align 6\nL_b_loop:")
    for u in range(3):
        A.ext(steps[u])
        A("s_cbranch_scc1 L_b_end" if u < 2 else "s_cbranch_scc0 L_b_loop")
    E = Asm()
    E("L_b_end:")
    E("s_waitcnt vmcnt(0) lgkmcnt(0)\ns_barrier")
    E(f"s_mul_i32 s{sT}, s{sW_}, 20480\nv_lshlrev_b32 v1, 4, v0\nv_add_u32 v2, s{sT}, v1")
    E(f"s_xor_b32 s{sT}, s{sW_}, 2\ns_mul_i32 s{sT}, s{sT}, 20480\nv_add_u32 v3, s{sT}, v1")
    E(f"s_cmp_eq_u32 s{sKH}, 0\ns_cbranch_scc1 L_b_k0")
    def xchg(keep, lab):
        send = 5 - keep
        for i in range(20): E(f"ds_write_b128 v2, {ar(4*(send*4+i))} offset:{1024*i}")
        E("s_waitcnt lgkmcnt(0)\ns_barrier")
        for i in range(20): E(f"ds_read_b128 {vr(16+4*i)}, v3 offset:{1024*i}")
        for i in range(80): E(f"v_accvgpr_read_b32 v{96+i}, a{16*keep+i}")
    xchg(5, "k1")
    E("s_branch L_b_j\nL_b_k0:")
    xchg(0, "k0")
    E("L_b_j:")
    E(f"s_mul_i32 s{sT}, s{sNT}, 320\ns_mul_i32 s{sT2}, s{sKH}, 160\ns_add_u32 s{sT}, s{sT}, s{sT2}")
    E("v_lshrrev_b32 v4, 4, v0\nv_lshlrev_b32 v4, 3, v4")
    for i in range(5): E(f"buffer_load_dwordx2 {vr(180+2*i,2)}, v4, s[{sB2}:{sB2+3}], s{sT} offen offset:{32*i}")
    E("s_waitcnt lgkmcnt(0)")
    for i in range(80): E(f"v_add_f32 v{16+i}, v{16+i}, v{96+i}")
    E(f"s_cmp_lg_u32 s{sSP}, 3\ns_cbranch_scc1 L_b_st")
    E("s_waitcnt vmcnt(0)")
    for i in range(5):
        for r in range(2):
            E(f"v_lshlrev_b32 v{192+4*i+2*r}, 16, v{180+2*i+r}\nv_and_b32 v{192+4*i+2*r+1}, 0xffff0000, v{180+2*i+r}")
    for i in range(20):
        x = 16 + 4 * i; y = 96 + 4 * i
        for r in range(4): E(f"v_add_f32 v{x+r}, v{x+r}, v{192+4*(i//4)+r}")
        for r in range(4): E(f"v_mul_f32 v{y+r}, {fh(-math.log2(math.e))}, v{x+r}")
        for r in range(4): E(f"v_exp_f32 v{y+r}, v{y+r}")
        for r in range(4): E(f"v_add_f32 v{y+r}, 1.0, v{y+r}")
        for r in range(4): E(f"v_rcp_f32 v{y+r}, v{y+r}")
        for r in range(4): E(f"v_mul_f32 v{x+r}, v{x+r}, v{y+r}")
    E("L_b_st:")
    E(f"s_lshl_b32 s{sT}, s{sMT}, 1\ns_add_u32 s{sT}, s{sT}, s{sQH}\ns_mul_i32 s{sT}, s{sT}, 160\ns_mul_i32 s{sT2}, s{sNT}, 10\ns_add_u32 s{sT}, s{sT}, s{sT2}")
    E(f"s_mul_i32 s{sT2}, s{sKH}, 5\ns_add_u32 s{sT}, s{sT}, s{sT2}\ns_lshl_b32 s{sT}, s{sT}, 10\ns_mul_i32 s{sT2}, s{sSP}, {SL_SZ}\ns_add_u32 s{sT}, s{sT}, s{sT2}")
    for qb in range(4): E(f"v_add_u32 v{8+qb}, {qb*40*1024}, v1")
    E(f"s_add_u32 s{sT2}, s{sT}, 4096")
    for i in range(5):
        for qb in range(4):
            so, off = (sT, 1024 * i) if i < 4 else (sT2, 0)
            E(f"buffer_store_dwordx4 {vr(16+4*(i*4+qb))}, v{8+qb}, s[{sSL}:{sSL+3}], s{so} offen offset:{off}")
    A.ext(E.l)
    A("L_b_done:\ns_endpgm")
    global problems
    for u in range(3):
        tr = pro + steps[0] + steps[1] + steps[2] + steps[0] + (steps[1] if u >= 1 else []) + (steps[2] if u >= 2 else []) + E.l
        problems += check_hazards(tr, "proj")
    p, _, _ = check_waits(pro + steps[0] + steps[1] + steps[2] + steps[0] + steps[1] + E.l, "proj"); problems += p
    return head("proj_kernel") + A.text() + "\n", kd("proj_kernel", 256 + 160, 256, 64)

def gen_fin():
    A = Asm()
    A("s_cmp_ge_u32 s2, 256\ns_cbranch_scc1 L_c_done")
    A("s_load_dwordx2 s[4:5], s[0:1], 0\ns_load_dwordx2 s[6:7], s[0:1], 80\ns_load_dwordx2 s[20:21], s[0:1], 96")
    A("v_lshrrev_b32 v14, 6, v0\nv_and_b32 v0, 63, v0")
    A("v_readfirstlane_b32 s3, v14")
    A("v_lshlrev_b32 v1, 4, v0\nv_and_b32 v2, 15, v0\nv_mul_u32_u24 v2, 1280, v2\nv_lshrrev_b32 v3, 4, v0\nv_lshl_add_u32 v2, v3, 3, v2")
    A("s_lshl_b32 s22, s2, 2\ns_add_u32 s22, s22, s3\ns_mul_i32 s22, s22, 5120")
    A("s_lshr_b32 s23, s2, 1\ns_mul_i32 s23, s23, 20480\ns_and_b32 s24, s2, 1\ns_mul_i32 s24, s24, 640\ns_mul_i32 s25, s3, 160\ns_add_u32 s23, s23, s24\ns_add_u32 s23, s23, s25")
    A("s_waitcnt lgkmcnt(0)")
    srd(A, 8, 4, 5, 2621440); srd(A, 12, 6, 7, 2621440); srd(A, 16, 20, 21, 4 * SL_SZ, SL_OFF)
    for sp in range(4):
        A(f"s_add_u32 s{26+2*sp}, s22, {sp*SL_SZ}\ns_add_u32 s{27+2*sp}, s22, {sp*SL_SZ + 4096}")
    for i in range(5):
        for sp in range(4):
            so, off = (26 + 2 * sp, 1024 * i) if i < 4 else (27 + 2 * sp, 0)
            A(f"buffer_load_dwordx4 {vr(16 + 16*i + 4*sp)}, v1, s[16:19], s{so} offen offset:{off}")
        A(f"buffer_load_dwordx2 {vr(4+2*i,2)}, v2, s[8:11], s23 offen offset:{32*i}")
    for i in range(5):
        b = 16 + 16 * i
        A(f"s_waitcnt vmcnt({5*(4-i) + i})")
        for r in range(4): A(f"v_add_f32 v{b+r}, v{b+r}, v{b+4+r}")
        for r in range(4): A(f"v_add_f32 v{b+r}, v{b+r}, v{b+8+r}")
        for r in range(2): A(f"v_lshlrev_b32 v{b+4+2*r}, 16, v{4+2*i+r}\nv_and_b32 v{b+5+2*r}, 0xffff0000, v{4+2*i+r}")
        for r in range(4): A(f"v_fma_f32 v{b+r}, v{b+r}, v{b+12+r}, v{b+4+r}")
        for r in range(2): A(f"v_cvt_pk_bf16_f32 v{b+8+r}, v{b+2*r}, v{b+2*r+1}")
        A(f"buffer_store_dwordx2 {vr(b+8,2)}, v2, s[12:15], s23 offen offset:{32*i}")
    A("L_c_done:\ns_endpgm")
    finish(A, "fin")
    p, _, _ = check_waits(A.l, "fin"); problems.extend(p)
    return head("fin_kernel") + A.text() + "\n", kd("fin_kernel", 96, 96, 48)

parts = [gen_ln(), gen_attn(), gen_proj(), gen_fin()]
hdr = f"""; generated by gen/gen.py (hand-written generator): layernorm -> fused Qproj/FFN1/attention -> Oproj/FFN2 -> combine
; @launch kernel=ln_kernel grid=(128,1,1) block=(256,1,1) lds=2048
; @launch kernel={NAME}_kernel grid=(256,1,1) block=(256,1,1) lds=147456
; @launch kernel=proj_kernel grid=(256,1,1) block=(256,1,1) lds=122880
; @launch kernel=fin_kernel grid=(256,1,1) block=(256,1,1) lds=0
.amdgcn_target "amdgcn-amd-amdhsa--gfx950"
"""
out = hdr + "".join(p[0] for p in parts) + "".join(p[1] for p in parts)
if problems:
    for p in sorted(set(problems)): print(p, file=sys.stderr)
    print(f"{len(set(problems))} problems", file=sys.stderr)
sys.stdout.write(out)
```

```python
import sys, math, struct
from asmlib import *

NAME = "recurrent_scan__gqa_block_cached__dense_activation_gelu__prompt"
def f2u(x): return struct.unpack("<I", struct.pack("<f", x))[0]
def fh(x): return f"0x{f2u(x):08x}"
LOG2E = math.log2(math.e)
CSC = LOG2E / math.sqrt(192.0)
XS_OFF = 0
OH_OFF = 0x400000
YC_OFF = 0x2400000
XC_OFF = 0x3c00000
FL_OFF = 0x4800000
AF_OFF = FL_OFF; HF_OFF = FL_OFF + 0x4000; XF_OFF = FL_OFF + 0x8000; YF_OFF = FL_OFF + 0xc000; LF_OFF = FL_OFF + 0x10000
WS_SZ = 0x5000000
ST_OFF = 0x8000000
BIAS = 48.0
LMAX = 2.0 ** 64
LDS_LN = 147456; LDS_FL = LDS_LN + 2048; LDS_SZ = LDS_FL + 64
SPIN = 1 << 18

opt = dict(stamp=0, forcesafe=0)
for a in sys.argv[1:]:
    k, v = a.split("="); opt[k] = type(opt.get(k, ""))(v)
problems = []

def vr(b, n=4): return f"v[{b}:{b+n-1}]"
def ar(b, n=4): return f"a[{b}:{b+n-1}]"
def sr(b, n=4): return f"s[{b}:{b+n-1}]"
def rs(b, n): return {f"v{i}" for i in range(b, b + n)}
def lgw(regs): return Ins("s_waitcnt lgkmcnt(?)", ("lg", regs))
def vmw(tags, extra=""): return Ins("s_waitcnt vmcnt(?)" + extra, ("vm", set(tags)))
MF = "v_mfma_f32_16x16x32_bf16"

sK, sV, sWQ, sW1, sWS, sB1, sX, sDBG, sOUT, sWO, sB2, sW2 = 4, 8, 12, 16, 20, 24, 28, 32, 36, 40, 44, 48
sSP = 3
(sW, sHEAD, sQT, sQB0, sKo, sKo2, sVo, sVo2, sSlot, sM, sInc, sCnt, sA, sB, sC, sD, sWb, sNeg, sN0, sN1,
 sMT, sNT, sE, sF, sKH, sQH) = range(52, 78)
sMSK, sFL, sG, sH = 12, 13, 14, 15
KT = 76
NST = [0]
def stamp(A, i):
    if opt["stamp"]:
        A(f"s_memrealtime vcc\ns_waitcnt lgkmcnt(0)\ns_mov_b32 s{78+2*i}, vcc_lo\ns_memtime vcc\ns_waitcnt lgkmcnt(0)\ns_mov_b32 s{79+2*i}, vcc_lo")
        NST[0] = max(NST[0], i + 1)

KA = [1, 2]; VA = [3, 4, 5, 6]; DSR = [7, 8, 9]; LS = [10, 11, 12, 13]; T0, T1 = 14, 15
NREF = 16; QV = 32; SB = 64; PB = [128, 160]; KV = 192
WA = [240, 241]; WA2 = [242, 243]; W1A = [244, 245, 246]; DW = [247, 248, 249]; DW1 = 250; XV = [251, 252, 253, 254]
KRING = 0; VRING = 73728; STG = 24576; W1RING = 49152
DS5 = [240, 241, 242, 243, 244]; RA = [245, 246]; OV = [247, 248, 249, 250]; PFV = 251; ZV = 252; FLV = 253
OB = [16, 48, 160]; WF = 192; STB = 40960; PK = 80

def qfrag(qb, ks):
    f = qb * 6 + ks
    return ar(192 + 4 * f) if f < 16 else vr(QV + 4 * (f - 16))
def S(kb, qb): return SB + 4 * (kb * 4 + qb)
def P(par, qb, e): return PB[par] + 4 * (qb * 2 + e)
def O(db, qb): return 4 * (db * 4 + qb)

class Gaps:
    def __init__(self, mfmas):
        self.m = mfmas; n = len(mfmas); self.n = n
        self.sc = [[] for _ in range(n)]; self.mem = [[] for _ in range(n)]; self.va = [[] for _ in range(n)]
    def vcost(self, g): return len(self.mem[g]) + sum(2 if x.kind == "trans" else 1 for x in self.va[g])
    def cost(self, g): return self.vcost(g) + len(self.sc[g])
    def fits(self, g, ins):
        c = 2 if ins.kind == "trans" else 1
        if ins.kind in ("valu", "trans", "ds", "vmem"):
            if self.vcost(g) + c > 2: return False
            if ins.kind in ("ds", "vmem") and self.va[g]: return False
            return self.vcost(g) + c + len(self.sc[g]) <= 3
        return self.cost(g) + 1 <= 3
    def put(self, g, ins):
        if ins.kind in ("ds", "vmem"): self.mem[g].append(ins)
        elif ins.kind in ("valu", "trans"): self.va[g].append(ins)
        else: self.sc[g].append(ins)
    def place(self, g, text, tag=None):
        ins = Ins(text, tag)
        while not self.fits(g, ins): g += 1
        self.put(g, ins); return g
    def place2(self, g, t1, t2):
        while self.cost(g) + 2 > 3: g += 1
        self.put(g, Ins(t1)); self.put(g, Ins(t2)); return g
    def fill(self, queue, g0=0, g1=None):
        g1 = self.n if g1 is None else g1
        g = g0; i = 0; last = -1; lastkind = None
        while i < len(queue):
            t, e, ng, tag = (list(queue[i]) + [0, False, None])[:4] if not isinstance(queue[i], str) else (queue[i], 0, False, None)
            ins = Ins(t, tag)
            g = max(g, e)
            order = {"salu": 0, "wait": 0, "ds": 1, "vmem": 1, "valu": 2, "trans": 2}
            if last >= 0 and (ng or order[ins.kind] < order[lastkind] or (lastkind == "salu" and "m0" in queue_prev and ins.kind == "vmem")): g = max(g, last + 1)
            while g < g1 and not self.fits(g, ins): g += 1
            if g >= g1: break
            self.put(g, ins); last = g; lastkind = ins.kind; queue_prev = t; i += 1
        return queue[i:]
    def emit(self):
        out = []
        for g, m in enumerate(self.m):
            out.append(m); out += self.sc[g] + self.mem[g] + self.va[g]
        return out

def spread(G, lst, g0, g1):
    nv = sum(1 for x in lst if isinstance(x, tuple))
    k = 0; g = g0
    for x in lst:
        t, tag = x if isinstance(x, tuple) else (x, None)
        if tag:
            tgt = g0 + 1 + int((g1 - g0 - 1) * k / nv); k += 1
            g = G.place(max(g, tgt), t, tag) + 1
        else:
            g = G.place(g, t)
            if " m0," in t: g += 1
    return g

def straight(A, lst):
    prev_m0 = False
    for x in lst:
        if isinstance(x, str): t, tag = x, None
        elif len(x) == 2: t, tag = x
        else:
            t = x[0]; tag = x[3] if len(x) > 3 else None
            if len(x) > 2 and x[2]: A("s_nop 1")
        if prev_m0 and "lds" in t: A("s_nop 0")
        A(t, tag); prev_m0 = " m0," in t

def srd(A, d, lo, size, add=None):
    if add is None:
        A(f"s_mov_b32 s{d}, s{lo}\ns_and_b32 s{d+1}, s{lo+1}, 0xffff")
    else:
        A(f"s_add_u32 s{d}, s{lo}, {add}\ns_addc_u32 s{d+1}, s{lo+1}, 0\ns_and_b32 s{d+1}, s{d+1}, 0xffff")
    A(f"s_mov_b32 s{d+2}, {size}\ns_mov_b32 s{d+3}, 0x20000")

def kread(buf, kb, ks):
    d = KV + 24 * buf + 4 * ks
    return f"ds_read_b128 {vr(d)}, v{KA[ks & 1]} offset:{(ks >> 1) * 128 + kb * 6144}"
def vread(db, e, half):
    d = KV + 8 * (db % 6) + 4 * e + 2 * half
    return f"ds_read_b64_tr_b16 {vr(d,2)}, v{VA[db & 3]} offset:{(db >> 2) * 128 + e * 12288 + half * 6144}"

def qk_mfmas(cinit):
    out = []
    for kb in range(4):
        for qb in range(4):
            for ks in range(6):
                a = KV + 24 * (kb & 1) + 4 * ks
                c = (vr(NREF + 4 * qb) if kb in cinit else "0") if ks == 0 else vr(S(kb, qb))
                out.append(Ins(f"{MF} {vr(S(kb,qb))}, {vr(a)}, {qfrag(qb,ks)}, {c}"))
    return out
def pv_mfmas(par, first=False):
    out = []
    for db in range(12):
        for qb in range(4):
            for e in range(2):
                a = KV + 8 * (db % 6) + 4 * e
                c = "0" if (first and e == 0) else ar(O(db, qb))
                out.append(Ins(f"{MF} {ar(O(db,qb))}, {vr(a)}, {vr(P(par,qb,e))}, {c}"))
    return out
def sm_ops(par):
    out = []
    for kb in range(4):
        for qb in range(4):
            s = S(kb, qb); p = P(par, qb, kb >> 1) + 2 * (kb & 1)
            out.append(([f"v_exp_f32 v{s+r}, v{s+r}" for r in range(4)],
                        [f"v_add_f32 v{LS[qb]}, v{LS[qb]}, v{s+r}" for r in range(4)],
                        [f"v_cvt_pk_bf16_f32 v{p+r}, v{s+2*r}, v{s+2*r+1}" for r in range(2)]))
    return out
def qk_reads(G, base, vpre=True):
    for kb in range(3):
        for ks in range(6): G.place(base + 24 * kb + 1 + 3 * ks, kread((kb + 1) & 1, kb + 1, ks))
    if vpre:
        n = 0
        for db in range(3):
            for e in range(2):
                for h in range(2):
                    G.place(base + 73 + (n * 3) // 2, vread(db, e, h)); n += 1
    for ks in (2, 4): G.put(base + ks - 1, lgw(rs(KV + 4 * ks, 8)))
    for kb in range(1, 4): G.put(base + 24 * kb - 1, lgw(rs(KV + 24 * (kb & 1), 24)))
def pv_reads(G, B, first_wait=True):
    for db in range(9):
        n = 0
        for e in range(2):
            for h in range(2):
                G.place(B + 8 * db + 2 * n, vread(db + 3, e, h)); n += 1
    for db in range(12):
        if B + 8 * db - 1 >= 0: G.put(B + 8 * db - 1, lgw(rs(KV + 8 * (db % 6), 8)))

def gen_step(par, first=False, extra=()):
    G = Gaps(qk_mfmas({0, 1, 2, 3}) + pv_mfmas(par, first))
    qk_reads(G, 0)
    B = 96
    pv_reads(G, B)
    gb = B + 80
    G.put(gb, Ins("s_waitcnt vmcnt(12) lgkmcnt(0)")); G.put(gb, Ins("s_barrier"))
    for (g_, t_) in extra: G.place(g_, t_)
    for ks in range(6): G.place(gb + 1 + 2 * ks, kread(0, 0, ks))
    G.put(191, lgw(rs(KV, 8)))
    G.place(0, f"s_add_u32 s{sM}, s{sSlot}, s{sWb}")
    G.place(2, f"s_add_u32 s{sKo2}, s{sKo}, 3072")
    G.place(4, f"s_sub_u32 s{sVo}, s{sKo}, {STG}")
    G.place(5, f"s_sub_u32 s{sVo2}, s{sKo}, {STG - 3072}")
    G.place2(6, f"s_cmp_eq_u32 s{sSlot}, {STG}", f"s_cselect_b32 s{sInc}, s{sNeg}, {STG}")
    dm = [(sK, sKo, 0), (sK, sKo2, 3072), (sV, sVo, VRING), (sV, sVo2, VRING + 3072)]
    g = 8
    for (srd_, so, mo) in dm:
        G.place(g, f"s_add_u32 m0, s{sM}, {mo}" if mo else f"s_mov_b32 m0, s{sM}")
        for j in range(3):
            g2 = G.place(g + 3 + 12 * j, f"buffer_load_dwordx4 v{DSR[j]}, {sr(srd_)}, s{so} offen offset:{1024*j} lds")
        g = g2 + 9
    G.place(g, f"s_add_u32 s{sKo}, s{sKo}, {STG}")
    g = G.place(g + 1, f"s_add_u32 s{sSlot}, s{sSlot}, {STG}")
    g = G.place2(g + 1, f"s_cmp_eq_u32 s{sSlot}, {3 * STG}", f"s_cselect_b32 s{sSlot}, 0, s{sSlot}")
    for i, r in enumerate(KA): G.place(B + 10 + 2 * i, f"v_add_u32 v{r}, s{sInc}, v{r}")
    for i, r in enumerate(VA): G.place(B + 82 + 2 * i, f"v_add_u32 v{r}, s{sInc}, v{r}")
    ops = sm_ops(par ^ 1)
    first_g, last_g = 10, 186
    pend = []
    exps = [(i, r) for i in range(16) for r in range(4)]
    ei = 0
    for g in range(192):
        if ei < 64:
            i, r = exps[ei]
            target = first_g + (last_g - first_g) * ei / 64.0
            if g >= 6 * i + 5 + 4 and g >= target and G.vcost(g) == 0 and len(G.sc[g]) <= 1:
                G.put(g, Ins(ops[i][0][r])); ei += 1
                pend.append((g + 1, ops[i][1][r]))
                if r & 1: pend.append((g + 1, ops[i][2][r >> 1]))
                continue
        while pend and pend[0][0] <= g and G.fits(g, Ins(pend[0][1])):
            G.put(g, Ins(pend.pop(0)[1]))
    assert ei == 64 and not pend, (ei, pend)
    return G


def poll(A, lab, voff, srd_, soff, cond, sleep=2, precheck=False):
    if precheck:
        cond(); A(f"s_cbranch_scc0 {lab}_ok")
    A(f"s_mov_b32 s{sE}, {SPIN}")
    A(f"{lab}:")
    A(f"buffer_load_dwordx2 {vr(T0,2)}, v{voff}, {sr(srd_)}, {soff} offen sc1")
    A("s_waitcnt vmcnt(0)")
    cond()
    A(f"s_cbranch_scc0 {lab}_ok")
    A(f"s_sleep {sleep}\ns_sub_u32 s{sE}, s{sE}, 1\ns_cmp_lg_u32 s{sE}, 0\ns_cbranch_scc1 {lab}")
    A(f"{lab}_ok:")
def cond_nonce(A, mask):
    def f():
        A(f"v_cmp_ne_u32 vcc, s{sN0}, v{T0}\nv_cmp_ne_u32 s[{sA}:{sA+1}], s{sN1}, v{T1}\ns_nop 0")
        A(f"s_or_b32 s{sA}, vcc_lo, s{sA}\ns_and_b32 s{sA}, s{sA}, {mask}\ns_cmp_lg_u32 s{sA}, 0")
    return f
assert sA % 2 == 0 and sC % 2 == 0

def gelu_ops(x, y, pk, store):
    q = []
    for r in range(4): q.append(f"v_mul_f32 v{y+r}, v{x+r}, v{x+r}")
    for r in range(4): q.append(f"v_fma_f32 v{y+r}, v{y+r}, s{sB}, v{T0}")
    for r in range(4): q.append(f"v_mul_f32 v{y+r}, v{y+r}, v{x+r}")
    for r in range(4): q.append(f"v_exp_f32 v{y+r}, v{y+r}")
    for r in range(4): q.append(f"v_fma_f32 v{y+r}, v{y+r}, s{sA}, s{sA}")
    for r in range(4): q.append(f"v_rcp_f32 v{y+r}, v{y+r}")
    for r in range(4): q.append(f"v_mul_f32 v{y+r}, v{y+r}, v{x+r}")
    for r in range(2): q.append(f"v_cvt_pk_bf16_f32 v{pk+r}, v{y+2*r}, v{y+2*r+1}")
    return [(t, 0, False, None) for t in q] + store

def b_wdma(srd_, tag, slot_imm):
    o = [f"s_add_u32 s{sInc}, s{sM}, {slot_imm}", f"s_add_u32 s{sVo2}, s{sVo}, {16*1280}"]
    for hf, so in enumerate((sVo, sVo2)):
        o.append(f"s_add_u32 m0, s{sInc}, {5120*hf}")
        o += [(f"buffer_load_dwordx4 v{DS5[j]}, {sr(srd_)}, s{so} offen offset:{1024*j} lds", tag) for j in range(4)]
        o.append(f"s_add_u32 m0, s{sInc}, {5120*hf + 4096}")
        o.append((f"buffer_load_dwordx4 v{DS5[4]}, {sr(srd_)}, s{so} offen lds", tag))
    o.append(f"s_add_u32 s{sVo}, s{sVo}, {64*1280}")
    return o
def oload(buf, tag):
    o = [(f"buffer_load_dwordx4 {vr(OB[buf] + 4*(r*2+e))}, v{OV[r]}, {sr(sWS)}, s{sKo} offen offset:{1024*e} sc1", tag) for r in range(4) for e in range(2)]
    o.append(f"s_add_u32 s{sKo}, s{sKo}, 2048")
    return o
def b_scalars():
    o = [f"s_lshl_b32 s{sA}, s{sSP}, 1", f"s_add_u32 s{sA}, s{sA}, s{sKH}"]
    o += [f"s_mul_i32 s{sB}, s{sQH}, {32*1280}", f"s_mul_i32 s{sC}, s{sNT}, 320", f"s_add_u32 s{sB}, s{sB}, s{sC}"]
    o += [f"s_mul_i32 s{sVo}, s{sA}, {192*1280}", f"s_add_u32 s{sVo}, s{sVo}, s{sB}", f"s_mul_i32 s{sH}, s{sA}, {768*1280}", f"s_add_u32 s{sH}, s{sH}, s{sB}"]
    o += [f"s_mul_i32 s{sB}, s{sFL}, {4*240*4}", f"s_add_u32 s{sB}, s{sB}, {OH_OFF}"]
    o += [f"s_mul_i32 s{sKo}, s{sA}, {6*1024}", f"s_add_u32 s{sKo}, s{sKo}, s{sB}", f"s_add_u32 s{sKo}, s{sKo}, {192*1024}"]
    o += [f"s_mul_i32 s{sF}, s{sA}, {24*1024}", f"s_add_u32 s{sF}, s{sF}, s{sB}"]
    o += [f"s_mul_i32 s{sM}, s{sW}, 10240"]
    o += [f"s_lshr_b32 s{sD}, s2, 3", f"s_lshl_b32 s{sD}, s{sD}, 2", f"s_add_u32 s{sD}, s{sD}, s{sW}", f"s_mul_i32 s{sD}, s{sD}, 15360",
          f"s_mul_i32 s{sKo2}, s{sSP}, {1536*1280}", f"s_add_u32 s{sKo2}, s{sKo2}, s{sD}"]
    return o
def b_warm():
    o = []
    for i in range(4):
        o.append((f"buffer_load_dword v7, v{PFV}, {sr(sWO)}, s{sKo2} offen", "PF"))
        if i < 3: o.append(f"s_add_u32 s{sKo2}, s{sKo2}, 4096")
    return o
def b_addr_ops():
    q = []
    t0, t1, t2, t3 = 255, 253, 254, 255
    for j in range(5):
        q += [f"v_add_u32 v{t0}, {64*j}, v0", f"v_mul_u32_u24 v{t1}, 3277, v{t0}", f"v_lshrrev_b32 v{t1}, 16, v{t1}",
              f"v_mul_u32_u24 v{t2}, 20, v{t1}", f"v_sub_u32 v{t2}, v{t0}, v{t2}", f"v_lshrrev_b32 v{t3}, 1, v{t1}", f"v_and_b32 v{t3}, 2, v{t3}",
              f"v_xor_b32 v{t2}, v{t2}, v{t3}", f"v_mul_u32_u24 v{t3}, 80, v{t1}", f"v_add_u32 v{t3}, v{t3}, v{t2}"]
        q += [f"v_lshlrev_b32 v{DS5[j]}, 4, v{t3}"]
        if 0 < j < 4: q += [f"v_subrev_u32 v{DS5[j]}, {1024*j}, v{DS5[j]}"]
    q += [f"v_and_b32 v{FLV}, 31, v0", f"v_lshlrev_b32 v{FLV}, 3, v{FLV}"]
    p = [f"s_mul_i32 s{sF}, s{sKH}, 20480"]
    p += [f"v_lshrrev_b32 v{t0}, 2, v0", f"v_mul_u32_u24 v{t0}, 320, v{t0}", f"v_and_b32 v{t1}, 3, v0", f"v_lshl_add_u32 v{t0}, v{t1}, 3, v{t0}",
          f"v_add_u32 v{t0}, s{sF}, v{t0}", f"v_bfe_u32 v{t1}, v0, 4, 1", f"v_lshl_add_u32 v{RA[0]}, v{t1}, 5, v{t0}", f"v_xor_b32 v{t1}, 1, v{t1}", f"v_lshl_add_u32 v{RA[1]}, v{t1}, 5, v{t0}"]
    p += [f"v_lshlrev_b32 v{t0}, 4, v0"]
    for r in range(4):
        p += [f"s_add_u32 s{sF}, s{sSP}, {r}", f"s_and_b32 s{sF}, s{sF}, 3", f"s_mul_i32 s{sF}, s{sF}, {240*1024}", f"v_add_u32 v{OV[r]}, s{sF}, v{t0}"]
    p += [f"v_lshlrev_b32 v{PFV}, 6, v0", f"v_mov_b32 v{ZV}, 0"]
    return p, q

def lred(A):
    for sw in ("v_permlane32_swap_b32", "v_permlane16_swap_b32"):
        for qb in range(4): A(f"v_mov_b32 v{NREF+qb}, v{LS[qb]}")
        for qb in range(4): A(f"{sw} v{LS[qb]}, v{NREF+qb}")
        for qb in range(4): A(f"v_add_f32 v{LS[qb]}, v{LS[qb]}, v{NREF+qb}")
NEARLY = 8
def oepi_ops():
    q = []; late = []; n = 0
    so = [sA, sB, sC, sD]
    for m in range(6):
        for qb in range(4):
            x = 144 + 8 * (n & 1); d = PK + 4 * (n % 16)
            e = 16 * m + 8 + 2 * qb + 1 + 5
            for p in range(2):
                for r in range(4): q.append((f"v_accvgpr_read_b32 v{x+4*p+r}, a{O(2*m+p,qb)+r}", e, False, None))
            for i in range(8): q.append((f"v_mul_f32 v{x+i}, v{x+i}, v{LS[qb]}", 0, False, None))
            for i in range(4): q.append((f"v_cvt_pk_bf16_f32 v{d+i}, v{x+2*i}, v{x+2*i+1}", 0, False, None))
            v, off = (T1, 1024 * m) if m < 4 else (T0, 1024 * (m - 4))
            st = f"buffer_store_dwordx4 {vr(d)}, v{v}, {sr(sWS)}, s{so[qb]} offen offset:{off} sc1"
            if n < NEARLY: q.append((st, 0, False, "OST"))
            else: late.append((st, "OST"))
            n += 1
    return q, late
def oepi_pre():
    return [f"s_mul_i32 s{sA}, s{sQB0}, {240*1024}", f"s_mul_i32 s{sB}, s{sHEAD}, {6*1024}", f"s_add_u32 s{sA}, s{sA}, s{sB}", f"s_add_u32 s{sA}, s{sA}, {OH_OFF}",
            f"s_add_u32 s{sB}, s{sA}, {240*1024}", f"s_add_u32 s{sC}, s{sA}, {480*1024}", f"s_add_u32 s{sD}, s{sA}, {720*1024}",
            f"v_lshlrev_b32 v{T1}, 4, v0", f"v_add_u32 v{T0}, 4096, v{T1}"]
def bread(u, nb, e, h):
    d = WF + 8 * ((10 * u + nb) % 6) + 4 * e + 2 * h
    return f"ds_read_b64_tr_b16 {vr(d,2)}, v{RA[nb & 1]} offset:{64*(nb >> 1) + e*10240 + h*5120}"
def merge(a, b):
    out = []; k = 0
    na = sum(1 for x in a if isinstance(x, tuple)); seen = 0
    for x in a:
        out.append(x)
        if isinstance(x, tuple):
            seen += 1
            while k < len(b) and (k + 1) * na <= seen * len(b) and " m0," not in out[-1][0]:
                out.append(b[k]); k += 1
    return out + b[k:]
def b_chunk(u, lst, wtags, otags, czero=False, after_barrier=None, first_gap=(), last_gap=()):
    mf = []
    for nb in range(10):
        for r in range(4):
            for e in range(2):
                acc = ar(4 * (nb * 4 + r))
                mf.append(Ins(f"{MF} {acc}, {vr(WF + 8*((10*u+nb)%6) + 4*e)}, {vr(OB[u] + 4*(r*2+e))}, {'0' if czero and e == 0 else acc}"))
    G = Gaps(mf)
    for nb in range(7):
        n = 0
        for e in range(2):
            for h in range(2):
                G.place(8 * nb + 2 * n, bread(u, nb + 3, e, h)); n += 1
    for nb in range(1, 10): G.put(8 * nb - 1, lgw(rs(WF + 8 * ((10 * u + nb) % 6), 8)))
    gb = 62
    G.put(gb, vmw(wtags, " lgkmcnt(0)")); G.put(gb, Ins("s_barrier"))
    if otags: G.put(78, vmw(otags))
    inc = STB if u < 2 else -2 * STB
    for i, r in enumerate(RA): G.place(gb - 4 + i, f"v_add_u32 v{r}, {inc & 0xffffffff}, v{r}")
    if after_barrier: G.place(gb + 1, after_barrier, "FLAG")
    n = 0
    for nb in range(3):
        for e in range(2):
            for h in range(2):
                G.place(gb + 1 + n + n // 4, bread((u + 1) % 3, nb, e, h)); n += 1
    G.put(79, lgw(rs(WF + 8 * ((10 * ((u + 1) % 3)) % 6), 8)))
    for t in first_gap: G.put(0, Ins(t))
    g = spread(G, lst, 1 if first_gap else 0, 76 if otags else 60)
    assert g <= 79, g
    for t in last_gap: G.place(g, t)
    return G.emit()

def gen():
    global problems
    A = Asm()
    A("s_cmp_ge_u32 s2, 256\ns_cbranch_scc1 L_done")
    A("s_load_dwordx16 s[76:91], s[0:1], 0\ns_load_dwordx8 s[92:99], s[0:1], 64\ns_load_dwordx2 s[100:101], s[0:1], 96")
    pX, pK, pV, pWQ, pWO, pW1, pB1, pW2, pB2, pOUT, pDBG, pWS = 76, 78, 80, 82, 84, 88, 90, 92, 94, 96, 98, 100
    A(f"s_memrealtime s[{sN0}:{sN1}]")
    if opt["stamp"]: A(f"s_memtime s[{sInc}:{sInc+1}]")
    A("v_lshrrev_b32 v14, 6, v0\nv_and_b32 v0, 63, v0")
    A(f"v_readfirstlane_b32 s{sW}, v14")
    A(f"s_and_b32 s{sA}, s2, 7\ns_lshr_b32 s{sB}, s2, 3\ns_and_b32 s{sC}, s{sB}, 3\ns_lshl_b32 s{sA}, s{sA}, 2\ns_add_u32 s{sHEAD}, s{sA}, s{sC}")
    A(f"s_lshr_b32 s{sQT}, s{sB}, 2\ns_lshl_b32 s{sB}, s{sQT}, 4\ns_lshl_b32 s{sC}, s{sW}, 2\ns_add_u32 s{sQB0}, s{sB}, s{sC}")
    A(f"s_lshr_b32 s{sC}, s{sHEAD}, 1\ns_add_u32 s{sD}, s{sB}, s{sC}\ns_mul_i32 s{sE}, s{sD}, 20480")
    A("v_and_b32 v3, 15, v0\nv_lshrrev_b32 v4, 4, v0\nv_mul_u32_u24 v5, 1280, v3\nv_mul_u32_u24 v6, 320, v14\nv_lshlrev_b32 v7, 3, v4\nv_add3_u32 v5, v5, v6, v7")
    A("v_mov_b32 v96, 0\nv_mov_b32 v94, 0")
    A(f"s_or_b32 s{sKo}, s2, s{sW}")
    A("s_waitcnt lgkmcnt(0)")
    srd(A, sX, pX, 2621440)
    srd(A, sDBG, pDBG, 256)
    A(f"s_cmp_lg_u32 s{sKo}, 0\ns_cbranch_scc1 L_nonc")
    A(f"s_or_b32 s{sKo}, s{sN0}, 1\nv_mov_b32 v80, s{sKo}\nv_mov_b32 v81, s{sN1}")
    A(f"buffer_store_dwordx2 v[80:81], v96, {sr(sDBG)}, 0 offen sc1")
    A("L_nonc:")
    A(f"s_bitcmp1_b32 s{sHEAD}, 0\ns_cbranch_scc1 L_nox")
    for i in range(5):
        A(f"buffer_load_dwordx2 {vr(16+4*i,2)}, v5, {sr(sX)}, s{sE} offen offset:{64*i}", "LX")
        A(f"buffer_load_dwordx2 {vr(18+4*i,2)}, v5, {sr(sX)}, s{sE} offen offset:{64*i+32}", "LX")
    A("L_nox:")
    for j in range(3):
        A(f"v_add_u32 v82, {64*j}, v0\nv_mul_u32_u24 v83, 2731, v82\nv_lshrrev_b32 v83, 16, v83")
        A(f"v_mul_u32_u24 v97, 24, v83\nv_sub_u32 v82, v82, v97\nv_and_b32 v97, 6, v83\nv_xor_b32 v82, v82, v97\nv_lshlrev_b32 v82, 4, v82")
        A(f"v_mul_u32_u24 v97, 12288, v83\nv_add_u32 v97, v97, v82\nv_add_u32 v{DW[j]}, {(-1024*j) & 0xffffffff}, v97")
        A(f"v_mul_u32_u24 v97, 384, v83\nv_add_u32 v97, v97, v82\nv_add_u32 v{84+j}, {(128 - 1024*j) & 0xffffffff}, v97")
    A(f"v_lshrrev_b32 v83, 3, v0\nv_and_b32 v82, 7, v0\nv_and_b32 v97, 6, v83\nv_xor_b32 v82, v82, v97\nv_lshlrev_b32 v82, 4, v82\nv_mul_u32_u24 v97, 3072, v83\nv_add_u32 v{DW1}, v97, v82")
    A(f"s_mul_i32 s{sA}, s{sHEAD}, 384")
    A(f"s_add_u32 s{sWQ}, s{pWQ}, s{sA}\ns_addc_u32 s{sWQ+1}, s{pWQ+1}, 0\ns_and_b32 s{sWQ+1}, s{sWQ+1}, 0xffff\ns_sub_u32 s{sWQ+2}, {640*12288}, s{sA}\ns_mov_b32 s{sWQ+3}, 0x20000")
    A(f"s_mul_i32 s{sF}, s{sHEAD}, 96")
    A(f"s_add_u32 s{sW1}, s{pW1}, s{sF}\ns_addc_u32 s{sW1+1}, s{pW1+1}, 0\ns_and_b32 s{sW1+1}, s{sW1+1}, 0xffff\ns_sub_u32 s{sW1+2}, {640*3072}, s{sF}\ns_mov_b32 s{sW1+3}, 0x20000")
    A(f"s_mul_i32 s{sWb}, s{sW}, 6144")
    A(f"s_mul_i32 s{sA}, s{sW}, {16*12288}\ns_mul_i32 s{sB}, s{sW}, {16*3072}\ns_mul_i32 s{sC}, s{sQB0}, 20480\ns_lshl_b32 s{sM}, s{sW}, 11")
    XB = [SB, SB + 32, PB[0]]
    def wdma(ch):
        sl = ch % 3; o = []
        o.append(f"s_add_u32 m0, s{sWb}, {VRING + sl*STG}")
        o += [(f"buffer_load_dwordx4 v{DW[j]}, {sr(sWQ)}, s{sA} offen offset:{1024*j} lds", f"W{ch}") for j in range(3)]
        o.append(f"s_add_u32 s{sA}, s{sA}, {8*12288}")
        o.append(f"s_add_u32 m0, s{sWb}, {VRING + sl*STG + 3072}")
        o += [(f"buffer_load_dwordx4 v{DW[j]}, {sr(sWQ)}, s{sA} offen offset:{1024*j} lds", f"W{ch}") for j in range(3)]
        o.append(f"s_add_u32 s{sA}, s{sA}, {56*12288}")
        o.append(f"s_add_u32 m0, s{sM}, {W1RING + sl*8192}")
        o.append((f"buffer_load_dwordx4 v{DW1}, {sr(sW1)}, s{sB} offen lds", f"W{ch}"))
        o.append(f"s_add_u32 s{sB}, s{sB}, {8*3072 - 1024}")
        o.append((f"buffer_load_dwordx4 v{DW1}, {sr(sW1)}, s{sB} offen offset:1024 lds", f"W{ch}"))
        o.append(f"s_add_u32 s{sB}, s{sB}, {56*3072 + 1024}")
        return o
    def xload(ch):
        o = [(f"buffer_load_dwordx4 {vr(XB[ch%3] + 4*(qb*2+e))}, v{XV[qb]}, {sr(sWS)}, s{sC} offen offset:{1024*e} sc1", f"X{ch}") for qb in range(4) for e in range(2)]
        o.append(f"s_add_u32 s{sC}, s{sC}, 2048")
        return o
    def kvdma(srd_, slotbase, t, tag):
        o = []
        for hf in range(2):
            o.append(f"s_add_u32 s{sKo2}, s{sWb}, {t*STG + 3072*hf}")
            o.append(f"s_add_u32 m0, s{sWb}, {slotbase + 3072*hf}")
            o += [(f"buffer_load_dwordx4 v{DSR[j]}, {sr(srd_)}, s{sKo2} offen offset:{1024*j} lds", tag) for j in range(3)]
        return o
    straight(A, wdma(0))
    srd(A, sB1, pB1, 3072)
    for ct in range(3): A(f"buffer_load_dwordx2 {vr(88 + 2*ct, 2)}, v7, {sr(sB1)}, s{sF} offen offset:{32*ct}", "B1")
    straight(A, wdma(1))
    A(f"s_mul_i32 s{sKo}, s{sHEAD}, 786432")
    for (d, lo) in ((sK, pK), (sV, pV)):
        A(f"s_add_u32 s{d}, s{lo}, s{sKo}\ns_addc_u32 s{d+1}, s{lo+1}, 0\ns_sub_u32 s{d}, s{d}, 128\ns_subb_u32 s{d+1}, s{d+1}, 0\ns_and_b32 s{d+1}, s{d+1}, 0xffff")
        A(f"s_mov_b32 s{d+2}, {786432 + 128}\ns_mov_b32 s{d+3}, 0x20000")
    srd(A, sWS, pWS, WS_SZ)
    srd(A, sOUT, pOUT, 2621440)
    srd(A, sB2, pB2, 1280)
    srd(A, sWO, pWO, 6144 * 1280)
    srd(A, sW2, pW2, 1536 * 1280)
    if opt["stamp"]:
        A(f"s_mov_b32 s78, s{sN0}\ns_mov_b32 s79, s{sInc}"); NST[0] = 1
    A(f"s_and_b32 s{sSP}, s2, 3\ns_bfe_u32 s{sKo}, s2, 0x10002\ns_lshl_b32 s{sKo}, s{sKo}, 3\ns_bfe_u32 s{sMT}, s2, 0x30003\ns_add_u32 s{sMT}, s{sMT}, s{sKo}\ns_lshr_b32 s{sNT}, s2, 6")
    A(f"s_lshr_b32 s{sKH}, s{sW}, 1\ns_and_b32 s{sQH}, s{sW}, 1")
    A(f"s_lshl_b32 s{sVo}, s{sQT}, 7\ns_add_u32 s{sVo}, s{sVo}, {LF_OFF}")
    A(f"s_bitcmp1_b32 s{sHEAD}, 0\ns_cbranch_scc1 L_noln")
    A(f"v_lshlrev_b32 v8, 6, v3\nv_add_u32 v8, {LDS_LN}, v8\nv_lshl_add_u32 v9, v14, 2, v4\nv_lshl_add_u32 v9, v9, 2, v8")
    A("v_mul_u32_u24 v10, 5120, v14\nv_lshl_add_u32 v10, v0, 4, v10")
    A("s_waitcnt vmcnt(19)")
    for i in range(20):
        A(f"v_lshlrev_b32 v{40+2*i}, 16, v{16+i}\nv_and_b32 v{41+2*i}, 0xffff0000, v{16+i}")
    A("v_add_f32 v11, v40, v41\nv_add_f32 v12, v42, v43")
    for i in range(4, 40, 2): A(f"v_add_f32 v11, v11, v{40+i}\nv_add_f32 v12, v12, v{41+i}")
    A("v_add_f32 v11, v11, v12")
    def xsum(off):
        A(f"ds_write_b32 v9, v11 offset:{off}\ns_waitcnt lgkmcnt(0)\ns_barrier")
        for i in range(4): A(f"ds_read_b128 {vr(16+4*i)}, v8 offset:{off+16*i}")
        A("s_waitcnt lgkmcnt(0)")
        for i in range(8): A(f"v_add_f32 v{16+i}, v{16+i}, v{24+i}")
        for i in range(4): A(f"v_add_f32 v{16+i}, v{16+i}, v{20+i}")
        A("v_add_f32 v16, v16, v18\nv_add_f32 v17, v17, v19\nv_add_f32 v16, v16, v17")
    xsum(0)
    A(f"v_mul_f32 v13, {fh(1/640)}, v16")
    for i in range(40): A(f"v_sub_f32 v{40+i}, v{40+i}, v13")
    A("v_mul_f32 v11, v40, v40\nv_mul_f32 v12, v41, v41")
    for i in range(2, 40, 2): A(f"v_fmac_f32 v11, v{40+i}, v{40+i}\nv_fmac_f32 v12, v{41+i}, v{41+i}")
    A("v_add_f32 v11, v11, v12")
    xsum(1024)
    A(f"v_mov_b32 v13, {fh(1e-5)}\nv_fmac_f32 v13, {fh(1/640)}, v16\nv_rsq_f32 v13, v13\ns_nop 0\nv_mul_f32 v13, {fh(CSC)}, v13")
    for i in range(5):
        for k in range(8): A(f"v_mul_f32 v{40+8*i+k}, v{40+8*i+k}, v13")
        for k in range(4): A(f"v_cvt_pk_bf16_f32 v{16+4*i+k}, v{40+8*i+2*k}, v{41+8*i+2*k}")
        if i == 4: A(f"s_add_u32 s{sE}, s{sE}, 4096")
        A(f"buffer_store_dwordx4 {vr(16+4*i)}, v10, {sr(sWS)}, s{sE} offen offset:{1024*i if i < 4 else 0} sc1")
    A(f"s_cmp_lg_u32 s{sW}, 0\ns_cbranch_scc1 L_ln2")
    A(f"buffer_load_dwordx2 v[94:95], v96, {sr(sDBG)}, 0 offen sc1")
    A("L_ln2:")
    A("s_waitcnt vmcnt(0)\ns_barrier")
    A("L_noln:")
    A(f"s_cmp_lg_u32 s{sW}, 0\ns_cbranch_scc1 L_w0a")
    A(f"v_mov_b32 v{T0}, v94\nv_mov_b32 v{T1}, v95\ns_nop 0")
    def cond_non():
        A(f"v_readfirstlane_b32 s{sN0}, v{T0}\nv_readfirstlane_b32 s{sN1}, v{T1}\ns_nop 0\ns_cmp_eq_u32 s{sN0}, 0")
    poll(A, "L_pnon", 96, sDBG, "0", cond_non, sleep=8, precheck=True)
    A(f"s_bitcmp1_b32 s{sHEAD}, 0\ns_cbranch_scc1 L_w0a")
    A(f"s_lshl_b32 s{sKo}, s{sHEAD}, 2\ns_add_u32 s{sKo}, s{sKo}, s{sVo}")
    A(f"buffer_store_dwordx2 {vr(T0,2)}, v96, {sr(sWS)}, s{sKo} offen sc1")
    A("L_w0a:")
    stamp(A, 1)
    for j in range(3): A(f"v_mov_b32 v{DSR[j]}, v{84+j}")
    for qb in range(4): A(f"v_lshlrev_b32 v17, 4, v0\nv_add_u32 v{XV[qb]}, {XS_OFF + qb*20480}, v17")
    A("v_lshrrev_b32 v16, 2, v0\nv_and_b32 v17, 6, v16\nv_and_b32 v18, 3, v0")
    A("v_lshrrev_b32 v19, 1, v18\nv_and_b32 v20, 1, v18\nv_lshlrev_b32 v20, 3, v20")
    A(f"v_mul_u32_u24 v21, 384, v16\nv_add_u32 v21, {VRING}, v21")
    for m in range(4):
        A(f"v_add_u32 v22, {2*m}, v19\nv_xor_b32 v22, v22, v17\nv_lshlrev_b32 v22, 4, v22\nv_add3_u32 v{VA[m]}, v21, v22, v20\nv_add_u32 v{VA[m]}, {STG}, v{VA[m]}")
    for e in range(2):
        A(f"v_add_u32 v22, {4*e}, v18\nv_xor_b32 v22, v22, v17\nv_lshlrev_b32 v22, 4, v22\nv_add_u32 v{WA[e]}, v21, v22\nv_add_u32 v{WA2[e]}, {2*STG}, v{WA[e]}")
    A(f"v_lshlrev_b32 v21, 7, v16\nv_add_u32 v21, {W1RING}, v21")
    for ct in range(3):
        A(f"v_add_u32 v22, {2*ct}, v19\nv_xor_b32 v22, v22, v17\nv_lshlrev_b32 v22, 4, v22\nv_add3_u32 v{W1A[ct]}, v21, v22, v20")
    A("v_and_b32 v16, 15, v0\nv_and_b32 v17, 6, v16\nv_lshrrev_b32 v18, 4, v0\nv_mul_u32_u24 v21, 384, v16")
    for e in range(2):
        A(f"v_add_u32 v22, {4*e}, v18\nv_xor_b32 v22, v22, v17\nv_lshlrev_b32 v22, 4, v22\nv_add_u32 v{KA[e]}, v21, v22")
    A(f"v_lshlrev_b32 v40, 3, v16\nv_mov_b32 v41, {LDS_FL}")
    for r in LS: A(f"v_mov_b32 v{r}, 0")
    HACC = {12: PB[1], 13: PB[1] + 16, 14: NREF}
    A("s_waitcnt vmcnt(0)")
    for ct in range(3):
        h = HACC[12 + ct]
        for r in range(2):
            A(f"v_lshlrev_b32 v{h+2*r}, 16, v{88+2*ct+r}\nv_and_b32 v{h+2*r+1}, 0xffff0000, v{88+2*ct+r}")
        for r in range(4): A(f"v_mul_f32 v{h+r}, {fh(CSC)}, v{h+r}")
        for qb in range(1, 4):
            for r in range(4): A(f"v_mov_b32 v{h+4*qb+r}, v{h+r}")
    A(f"s_cmp_lg_u32 s{sW}, 0\ns_cbranch_scc1 L_w0b")
    A(f"s_mov_b32 s{sKo}, s{sA}\ns_mov_b32 s{sKo2}, s{sB}")
    poll(A, "L_pln", 40, sWS, f"s{sVo}", cond_nonce(A, "0xffff"), sleep=2)
    A(f"s_mov_b32 s{sA}, s{sKo}\ns_mov_b32 s{sB}, s{sKo2}")
    A(f"v_mov_b32 v42, s{sN0}\nv_mov_b32 v43, s{sN1}\nds_write_b64 v41, v[42:43]\ns_waitcnt lgkmcnt(0)")
    A("L_w0b:")
    A("s_barrier")
    stamp(A, 2)
    straight(A, xload(0) + xload(1))
    A("ds_read_b64 v[42:43], v41")
    order = [list(range(15))] * 9 + [[14, 12, 13] + list(range(12))]
    def wread(ch, pos, e, h):
        ct = order[ch][pos]
        n = 15 * ch + pos; d = KV + 8 * (n % 6) + 4 * e + 2 * h; sl = ch % 3
        if ct < 12:
            ks, p = ct >> 1, ct & 1
            a, o = (WA[ks & 1], sl * STG) if sl < 2 else (WA2[ks & 1], 0)
            return f"ds_read_b64_tr_b16 {vr(d,2)}, v{a} offset:{o + (ks >> 1)*128 + 8*p + e*12288 + h*6144}"
        return f"ds_read_b64_tr_b16 {vr(d,2)}, v{W1A[ct-12]} offset:{sl*8192 + e*4096 + h*2048}"
    mf = []
    for ch in range(10):
        for pos in range(15):
            ct = order[ch][pos]; n = 15 * ch + pos
            for qb in range(4):
                for e in range(2):
                    acc = ar(4 * (ct * 4 + qb)) if ct < 12 else vr(HACC[ct] + 4 * qb)
                    c = "0" if (ch == 0 and e == 0 and ct < 12) else acc
                    mf.append(Ins(f"{MF} {acc}, {vr(KV + 8*(n%6) + 4*e)}, {vr(XB[ch%3] + 4*(qb*2+e))}, {c}"))
    G = Gaps(mf)
    for pos in range(3):
        for e in range(2):
            for h in range(2): A(wread(0, pos, e, h))
    A.l.append(lgw(rs(KV, 8)))
    A(f"v_readfirstlane_b32 s{sN0}, v42\nv_readfirstlane_b32 s{sN1}, v43")
    A.l.append(vmw({"X0"}))
    stamp(A, 3)
    for ch in range(10):
        b = 120 * ch
        for pos in range(12):
            n = 0
            for e in range(2):
                for h in range(2):
                    G.place(b + 8 * pos + 2 * n, wread(ch, pos + 3, e, h)); n += 1
        gb = b + 102
        G.put(gb, vmw({f"W{ch+1}"} if ch < 9 else {"K0", "V0"}, " lgkmcnt(0)")); G.put(gb, Ins("s_barrier"))
        if ch < 9:
            n = 0
            for pos in range(3):
                for e in range(2):
                    for h in range(2):
                        G.place(gb + 1 + n + n // 4, wread(ch + 1, pos, e, h)); n += 1
            G.put(b + 118, vmw({f"X{ch+1}"}))
        else:
            for ks in range(6): G.place(gb + 1 + 2 * ks, kread(0, 0, ks))
        for pos in range(15):
            n = 15 * ch + pos
            if b + 8 * pos - 1 >= 0: G.put(b + 8 * pos - 1, lgw(rs(KV + 8 * (n % 6), 8)))
        if ch + 2 < 10: lst = wdma(ch + 2) + xload(ch + 2)
        elif ch == 8: lst = kvdma(sK, KRING, 0, "K0") + kvdma(sV, VRING + STG, 0, "V0")
        else: lst = kvdma(sK, KRING + STG, 1, "K1") + kvdma(sV, VRING + 2 * STG, 1, "V1")
        g = spread(G, lst, b, b + (117 if ch < 9 else 100))
        assert g <= b + 120, g
    b = 1080
    spread(G, kvdma(sK, KRING + 2 * STG, 2, "K2"), b + 103, b + 119)
    k0 = -2.0 * LOG2E * math.sqrt(2.0 / math.pi) / CSC; k1 = k0 * 0.044715 / (CSC * CSC)
    HS = {14: sVo, 12: sVo2, 13: sInc}
    pre = [f"s_mov_b32 s{sA}, {fh(CSC)}", f"s_mov_b32 s{sB}, {fh(k1)}", f"s_mul_i32 s{sC}, s{sQB0}, {240*1024}", f"s_add_u32 s{sC}, s{sC}, {OH_OFF + 192*1024}", f"s_mul_i32 s{sD}, s{sHEAD}, 3"]
    for ct in (14, 12, 13):
        s_ = HS[ct]
        pre += [f"s_add_u32 s{s_}, s{sD}, {ct-12}", f"s_lshr_b32 s{sE}, s{s_}, 1", f"s_lshl_b32 s{sE}, s{sE}, 10", f"s_and_b32 s{s_}, s{s_}, 1", f"s_lshl_b32 s{s_}, s{s_}, 3",
                f"s_add_u32 s{s_}, s{s_}, s{sE}", f"s_add_u32 s{s_}, s{s_}, s{sC}"]
    pre += [f"s_lshl_b32 s{sFL}, s{sMT}, 1", f"s_add_u32 s{sFL}, s{sFL}, s{sQH}", f"s_lshl_b32 s{sFL}, s{sFL}, 8", f"s_add_u32 s{sG}, s{sFL}, {HF_OFF}",
            f"s_lshl_b32 s{sE}, s{sSP}, 1", f"s_add_u32 s{sE}, s{sE}, s{sKH}", f"s_lshl_b32 s{sE}, s{sE}, 2", f"s_lshl_b32 s{sMSK}, 15, s{sE}",
            f"s_lshl_b32 s{sE}, s{sQB0}, 6", f"s_and_b32 s{sE}, s{sE}, 0xffffff00", f"s_lshl_b32 s{sD}, s{sHEAD}, 3", f"s_add_u32 s{sQT}, s{sE}, s{sD}"]
    g = b - 118
    for t in pre: g = G.place(g, t) + 1
    assert g < b
    G.place(b - 30, f"v_mov_b32 v{T0}, {fh(k0)}"); G.place(b - 28, f"v_lshlrev_b32 v{T1}, 4, v0")
    def gelu_q(ct, tmp):
        q = []
        for qb in range(4):
            y = tmp + 8 * (qb & 1); pk = y + 4
            st = [(f"buffer_store_dwordx2 {vr(pk,2)}, v{T1}, {sr(sWS)}, s{HS[ct]} offen sc1", 0, False, "H")]
            if qb < 3: st.append((f"s_add_u32 s{HS[ct]}, s{HS[ct]}, {240*1024}", 0, False, None))
            q += gelu_ops(HACC[ct] + 4 * qb, y, pk, st)
        return q
    q = gelu_q(14, XB[1])
    q[0] = (q[0][0], b + 8 + 4, False, None)
    n = 0
    for ks in range(6):
        for qb in range(4):
            f = qb * 6 + ks; x = PB[0] + 16 * (n & 1); n += 1
            e = b + 24 + 16 * ks + 8 + 2 * qb + 1 + 5
            for p in range(2):
                for r in range(4): q.append((f"v_accvgpr_read_b32 v{x+4*p+r}, a{4*((2*ks+p)*4+qb)+r}", e, False, None))
            d = (x + 8) if f < 16 else QV + 4 * (f - 16)
            for i in range(4): q.append((f"v_cvt_pk_bf16_f32 v{d+i}, v{x+2*i}, v{x+2*i+1}", 0, False, None))
            if f < 16:
                for i in range(4): q.append((f"v_accvgpr_write_b32 a{192+4*f+i}, v{d+i}", 0, False, None))
    left = G.fill(q, b)
    A.ext(G.emit())
    stamp(A, 4)
    A("s_nop 7")
    straight(A, left)
    A.l.append(lgw(rs(KV, 8)))
    G = Gaps(qk_mfmas({2, 3})); qk_reads(G, 0, vpre=False)
    def refq(pair, e0):
        q = []
        m = [NREF + 4 * qb for qb in pair]; s = [S(0, qb) for qb in pair]
        q += [(f"v_max3_f32 v{m[i]}, v{s[i]}, v{s[i]+1}, v{s[i]+2}", e0, False, None) for i in range(2)]
        q += [f"v_max_f32 v{m[i]}, v{m[i]}, v{s[i]+3}" for i in range(2)]
        for sw in ("v_permlane32_swap_b32", "v_permlane16_swap_b32"):
            q += [f"v_mov_b32 v{m[i]+1}, v{m[i]}" for i in range(2)]
            q += [(f"{sw} v{m[0]}, v{m[0]+1}", 0, True, None), (f"{sw} v{m[1]}, v{m[1]+1}", 0, False, None)]
            q += [f"v_max_f32 v{m[i]}, v{m[i]}, v{m[i]+1}" for i in range(2)]
        q += [f"v_sub_f32 v{m[i]}, {fh(-BIAS)}, v{m[i]}" for i in range(2)]
        q += [f"v_mov_b32 v{m[i]+r}, v{m[i]}" for i in range(2) for r in range(1, 4)]
        return q
    assert not G.fill(refq((0, 1), 16), 0, 45)
    assert not G.fill(refq((2, 3), 28), 0, 57)
    q = gelu_q(12, 240) + gelu_q(13, 240)
    sm = sm_ops(0)
    for i in range(16):
        kb, qb = i >> 2, i & 3
        e = max(6 * i + 5 + 5, 58)
        if kb < 2: q += [(f"v_add_f32 v{S(kb,qb)+r}, v{S(kb,qb)+r}, v{NREF+4*qb}", e, False, None) for r in range(4)]
        q += [(t, e, False, None) for t in sm[i][0]]
        if i > 0: q += [(t, 0, False, None) for t in sm[i - 1][1] + sm[i - 1][2]]
    q += [("s_nop 0", 0, False, None)] + [(t, 0, False, None) for t in sm[15][1] + sm[15][2]]
    left = G.fill(q, 0)
    A.ext(G.emit())
    A.l.append(vmw({"K1"})); A("s_barrier")
    for r in KA: A(f"v_add_u32 v{r}, {STG}, v{r}")
    A("s_nop 4")
    for ks in range(6): A(kread(0, 0, ks))
    straight(A, left)
    A(f"s_mov_b32 s{sNeg}, {-2 * STG & 0xffffffff}\ns_mov_b32 s{sSlot}, 0\ns_add_u32 s{sKo}, s{sWb}, {3*STG}\ns_mov_b32 s{sCnt}, 15")
    A(f"s_add_u32 s{sE}, s{sQT}, {HF_OFF}")
    A(f"v_mov_b32 v{T0}, s{sN0}\nv_mov_b32 v{T1}, s{sN1}")
    bp, bq = b_addr_ops()
    for t in bp: A(t)
    stamp(A, 5)
    A("s_waitcnt lgkmcnt(0)")
    Gf = gen_step(0, first=True)
    Gf.place(177, f"buffer_store_dwordx2 {vr(T0,2)}, v{ZV}, {sr(sWS)}, s{sE} offen sc1")
    assert not Gf.fill(bq, 0, 192)
    sf = Gf.emit()
    G1 = gen_step(1); G0 = gen_step(0, extra=[(177, f"buffer_load_dwordx2 {vr(T0,2)}, v{FLV}, {sr(sWS)}, s{sG} offen sc1")])
    G1.place(186, f"s_sub_u32 s{sCnt}, s{sCnt}, 1")
    G0.place(186, f"s_cmp_lg_u32 s{sCnt}, 0")
    s1 = G1.emit(); s0 = G0.emit()
    pro = list(A.l)
    auto_vm(pro); auto_lgkm(pro)
    auto_lgkm(sf); auto_lgkm(s1, pre=s0); auto_lgkm(s0, pre=s1)
    A.ext(sf)
    A(".p2align 6\nL_loop:")
    A.ext(s1); A.ext(s0); A("s_cbranch_scc1 L_loop")
    T = Asm()
    stamp(T, 6)
    for db in range(3):
        for e in range(2):
            for h in range(2): T(vread(db, e, h))
    lred(T)
    T(f"s_mov_b32 s{sA}, {fh(LMAX)}")
    T(f"v_cmp_nge_f32 vcc, s{sA}, v{LS[0]}")
    for qb in range(1, 4): T(f"v_cmp_nge_f32 s[{sC}:{sC+1}], s{sA}, v{LS[qb]}\ns_nop 0\ns_or_b64 vcc, vcc, s[{sC}:{sC+1}]")
    T(f"s_cmp_lg_u64 vcc, 0\ns_cselect_b32 s{sA}, 1, {opt['forcesafe']}\ns_lshl_b32 s{sB}, s{sW}, 2\ns_add_u32 s{sB}, s{sB}, {LDS_FL}")
    T(f"v_mov_b32 v{NREF}, s{sA}\nv_mov_b32 v{NREF+1}, s{sB}\nv_mov_b32 v{NREF+2}, {LDS_FL}")
    T(f"ds_write_b32 v{NREF+1}, v{NREF}")
    for qb in range(4): T(f"v_rcp_f32 v{LS[qb]}, v{LS[qb]}")
    T(f"v_mov_b32 v254, s{sN0}\nv_mov_b32 v255, s{sN1}")
    for t in b_scalars(): T(t)
    T("s_waitcnt vmcnt(0) lgkmcnt(0)\ns_barrier")
    T(f"ds_read_b128 {vr(NREF+4)}, v{NREF+2}")
    poll(T, "L_ph", FLV, sWS, f"s{sG}", cond_nonce(T, f"s{sMSK}"), sleep=8, precheck=True)
    for t in oepi_pre(): T(t)
    G = Gaps(pv_mfmas(1)); pv_reads(G, 0)
    G.put(3, lgw(rs(NREF + 4, 4)))
    G.place(4, f"v_or3_b32 v{NREF}, v{NREF+4}, v{NREF+5}, v{NREF+6}"); G.place(5, f"v_or_b32 v{NREF}, v{NREF}, v{NREF+7}")
    G.place(7, f"v_readfirstlane_b32 s{sE}, v{NREF}")
    gck = G.place2(9, f"s_cmp_lg_u32 s{sE}, 0", "s_cbranch_scc1 L_safe")
    ylo = b_wdma(sW2, "W0", 0) + oload(0, "O0") + b_wdma(sW2, "W1", STB) + oload(1, "O1") + b_warm()
    g = spread(G, ylo, gck + 1, 94)
    oq, olate = oepi_ops()
    left = G.fill(oq, 12)
    T.ext(G.emit())
    T("s_nop 7")
    straight(T, left)
    T("L_join:")
    stamp(T, 7)
    T.l.append(vmw({"W0", "O0"})); T("s_barrier")
    for nb in range(3):
        for e in range(2):
            for h in range(2): T(bread(0, nb, e, h))
    T(f"s_add_u32 s{sG}, s{sQT}, {AF_OFF}")
    T("s_waitcnt lgkmcnt(0)")
    T.ext(b_chunk(0, merge(b_wdma(sW2, "W2", 2 * STB) + oload(2, "O2"), olate[:9]), {"W1"}, {"O1"}, czero=True))
    T.ext(b_chunk(1, [f"s_mov_b32 s{sVo}, s{sH}"] + merge(b_wdma(sWO, "W0", 0), olate[9:]), {"W2"}, {"O2"}))
    T.ext(b_chunk(2, b_wdma(sWO, "W1", STB), {"W0", "OST"}, None,
                  after_barrier=f"buffer_store_dwordx2 v[254:255], v{ZV}, {sr(sWS)}, s{sG} offen sc1"))
    stamp(T, 8)
    T(f"s_add_u32 s{sG}, s{sFL}, {AF_OFF}\ns_mov_b32 s{sKo}, s{sF}")
    poll(T, "L_pat", FLV, sWS, f"s{sG}", cond_nonce(T, f"s{sMSK}"), sleep=4)
    stamp(T, 9)
    straight(T, oload(0, "O0") + oload(1, "O1"))
    T(f"s_lshl_b32 s{sH}, s{sMT}, 2\ns_add_u32 s{sH}, s{sH}, s{sNT}")
    T(f"s_lshl_b32 s{sE}, s{sSP}, 2\ns_add_u32 s{sE}, s{sE}, s{sW}\ns_mul_i32 s{sE}, s{sE}, 6144")
    T(f"s_mul_i32 s{sF}, s{sH}, {64*6144}\ns_add_u32 s{sE}, s{sE}, s{sF}\ns_add_u32 s{sE}, s{sE}, {YC_OFF}")
    for r, d in enumerate((sA, sB, sC, sD)):
        T(f"s_add_u32 s{d}, s{sSP}, {r}\ns_and_b32 s{d}, s{d}, 3\ns_mul_i32 s{d}, s{d}, {16*6144}\ns_add_u32 s{d}, s{d}, s{sE}")
    T(f"v_lshlrev_b32 v{T1}, 4, v0\nv_add_u32 v{T0}, 3072, v{T1}\nv_lshlrev_b32 v1, 3, v0\nv_add_u32 v1, 2048, v1")
    T(f"s_lshl_b32 s{sG}, s{sH}, 1\ns_add_u32 s{sG}, s{sG}, s{sQH}\ns_lshl_b32 s{sG}, s{sG}, 6\ns_add_u32 s{sF}, s{sG}, {YF_OFF}")
    T(f"s_lshl_b32 s{sG}, s{sSP}, 1\ns_add_u32 s{sG}, s{sG}, s{sKH}\ns_lshl_b32 s{sG}, s{sG}, 3\ns_add_u32 s{sG}, s{sG}, s{sF}")
    n = 0
    for r in range(4):
        for nb in range(10):
            x = OB[2] + 4 * (n % 8); n += 1
            for k in range(4): T(f"v_accvgpr_read_b32 v{x+k}, a{4*(nb*4+r)+k}")
            for k in range(2): T(f"v_cvt_pk_bf16_f32 v{PK+20*r+2*nb+k}, v{x+2*k}, v{x+2*k+1}")
    yst = []
    for r, d in enumerate((sA, sB, sC, sD)):
        for hh in range(2):
            p = PK + 20 * r + 10 * hh; v = (T1, T0)[hh]
            yst.append((f"buffer_store_dwordx4 {vr(p)}, v{v}, {sr(sWS)}, s{d} offen sc1", "YST"))
            yst.append((f"buffer_store_dwordx4 {vr(p+4)}, v{v}, {sr(sWS)}, s{d} offen offset:1024 sc1", "YST"))
            yst.append((f"buffer_store_dwordx2 {vr(p+8,2)}, v1, {sr(sWS)}, s{d} offen offset:{3072*hh} sc1", "YST"))
    T(f"s_mov_b32 s{sCnt}, 3")
    T.l.append(vmw({"O0"}))
    def sl(u): return b_wdma(sWO, f"W{(u+2)%3}", ((u + 2) % 3) * STB) + oload((u + 2) % 3, f"O{(u+2)%3}")
    for u in range(3):
        T.ext(b_chunk(u, merge(sl(u), yst[8 * u: 8 * u + 8]), {f"W{(u+1)%3}"}, {f"O{(u+1)%3}"}, czero=(u == 0)))
    tail = list(T.l)
    auto_lgkm(tail, pre=s0); auto_vm(tail)
    A.ext(tail)
    steps = [b_chunk(0, sl(0), {"W1"}, {"O1"}, first_gap=[f"s_sub_u32 s{sCnt}, s{sCnt}, 1"]),
             b_chunk(1, sl(1), {"W2"}, {"O2"}, after_barrier=f"buffer_store_dwordx2 v[254:255], v{ZV}, {sr(sWS)}, s{sG} offen sc1",
                     first_gap=[f"s_cmp_eq_u32 s{sCnt}, 0", f"s_cselect_b32 s{sVo}, 0x80000000, s{sVo}", f"s_cselect_b32 s{sKo}, 0x80000000, s{sKo}"]),
             b_chunk(2, sl(2), {"W0"}, {"O0"}, last_gap=[f"s_cmp_lg_u32 s{sCnt}, 0"])]
    for u in range(3):
        auto_lgkm(steps[u], pre=steps[(u + 2) % 3]); auto_vm(steps[u], pre=steps[(u + 1) % 3] + steps[(u + 2) % 3])
    A(".p2align 6\nL_bloop:")
    for u in range(3): A.ext(steps[u])
    A("s_cbranch_scc1 L_bloop")
    E = Asm()
    stamp(E, 10)
    YL = 16; SP_ = 96; PKS = 192; XL = 222; B2L = 176; RING = 240
    E("v_and_b32 v2, 7, v0\nv_lshlrev_b32 v2, 3, v2")
    poll(E, "L_py", 2, sWS, f"s{sF}", cond_nonce(E, "0xff"), sleep=4)
    E(f"s_lshl_b32 s{sA}, s{sH}, 2\ns_add_u32 s{sA}, s{sA}, s{sSP}\ns_mul_i32 s{sA}, s{sA}, {16*6144}\ns_mul_i32 s{sB}, s{sQH}, 6144\ns_add_u32 s{sA}, s{sA}, s{sB}")
    E(f"s_mul_i32 s{sB}, s{sKH}, 3072\ns_add_u32 s{sA}, s{sA}, s{sB}\ns_add_u32 s{sA}, s{sA}, {YC_OFF}")
    E(f"v_lshlrev_b32 v{T1}, 4, v0")
    for p in range(8):
        E(f"buffer_load_dwordx4 {vr(YL+10*p)}, v{T1}, {sr(sWS)}, s{sA} offen sc1")
        E(f"buffer_load_dwordx4 {vr(YL+10*p+4)}, v{T1}, {sr(sWS)}, s{sA} offen offset:1024 sc1")
        E(f"buffer_load_dwordx2 {vr(YL+10*p+8,2)}, v1, {sr(sWS)}, s{sA} offen sc1")
        if p < 7: E(f"s_add_u32 s{sA}, s{sA}, {2*6144}")
    E(f"s_lshr_b32 s{sA}, s{sFL}, 6\ns_add_u32 s{sA}, s{sA}, s{sSP}\ns_mul_i32 s{sKo}, s{sA}, 20480")
    E(f"s_mul_i32 s{sA}, s{sNT}, 320\ns_mul_i32 s{sB}, s{sKH}, 160\ns_add_u32 s{sA}, s{sA}, s{sB}\ns_add_u32 s{sKo}, s{sKo}, s{sA}")
    E("v_lshrrev_b32 v4, 4, v0\nv_lshlrev_b32 v4, 3, v4\nv_and_b32 v5, 15, v0\nv_mul_u32_u24 v5, 1280, v5\nv_add_u32 v5, v5, v4")
    for i in range(5): E(f"buffer_load_dwordx2 {vr(B2L+2*i,2)}, v4, {sr(sB2)}, s{sA} offen offset:{32*i}")
    for i in range(5): E(f"buffer_load_dwordx2 {vr(XL+2*i,2)}, v5, {sr(sX)}, s{sKo} offen offset:{32*i}")
    E(f"s_mul_i32 s{sB}, s{sW}, 20480\nv_add_u32 v2, s{sB}, v{T1}")
    E(f"s_xor_b32 s{sB}, s{sW}, 2\ns_mul_i32 s{sB}, s{sB}, 20480\nv_add_u32 v3, s{sB}, v{T1}")
    E("s_waitcnt lgkmcnt(0)\ns_barrier")
    E(f"s_cmp_eq_u32 s{sKH}, 0\ns_cbranch_scc1 L_bk0")
    ordr = [(i, r) for r in (1, 2, 3, 0) for i in range(5)]
    def xchg(keep):
        send = 5 - keep
        for i in range(20): E(f"ds_write_b128 v2, {ar(4*(send*4+i))} offset:{1024*i}")
        E("s_waitcnt lgkmcnt(0)\ns_barrier")
        for (i, r) in ordr: E(f"ds_read_b128 {vr(SP_+4*(4*i+r))}, v3 offset:{1024*(4*i+r)}")
        for n, (i, r) in enumerate(ordr):
            t = RING + 4 * (n & 1); x = SP_ + 4 * (4 * i + r)
            for k in range(4): E(f"v_accvgpr_read_b32 v{t+k}, a{16*keep+4*(4*i+r)+k}")
            if n < 5 or n % 5 == 0: E(f"s_waitcnt lgkmcnt({max(0, min(15, 19 - n if n < 5 else 15 - n))})")
            for k in range(4): E(f"v_add_f32 v{x+k}, v{x+k}, v{t+k}")
            if r:
                for k in range(2): E(f"v_cvt_pk_bf16_f32 v{PKS+10*(r-1)+2*i+k}, v{x+2*k}, v{x+2*k+1}")
                if i == 4:
                    p = PKS + 10 * (r - 1); d = (None, sB, sC, sD)[r]
                    E(f"buffer_store_dwordx4 {vr(p)}, v{T1}, {sr(sWS)}, s{d} offen sc1")
                    E(f"buffer_store_dwordx4 {vr(p+4)}, v{T1}, {sr(sWS)}, s{d} offen offset:1024 sc1")
                    E(f"buffer_store_dwordx2 {vr(p+8,2)}, v1, {sr(sWS)}, s{d} offen sc1")
    pre = Asm()
    pre(f"s_mul_i32 s{sA}, s{sH}, {64*3072}\ns_mul_i32 s{sE}, s{sW}, 3072\ns_add_u32 s{sA}, s{sA}, s{sE}\ns_add_u32 s{sA}, s{sA}, {XC_OFF}")
    pre(f"s_mul_i32 s{sE}, s{sSP}, {16*3072}\ns_add_u32 s{sVo2}, s{sA}, s{sE}")
    pre(f"s_mul_i32 s{sE}, s{sSP}, {4*3072}\ns_add_u32 s{sA}, s{sA}, s{sE}")
    for r, d in ((1, sB), (2, sC), (3, sD)):
        pre(f"s_add_u32 s{d}, s{sSP}, {r}\ns_and_b32 s{d}, s{d}, 3\ns_mul_i32 s{d}, s{d}, {16*3072}\ns_add_u32 s{d}, s{d}, s{sA}")
    pre(f"s_lshl_b32 s{sE}, s{sH}, 2\ns_add_u32 s{sE}, s{sE}, s{sW}\ns_lshl_b32 s{sE}, s{sE}, 6\ns_add_u32 s{sVo}, s{sE}, {XF_OFF}")
    pre(f"s_lshl_b32 s{sE}, s{sSP}, 3\ns_add_u32 s{sG}, s{sVo}, s{sE}")
    k = [i for i, x in enumerate(E.l) if x.text == "s_waitcnt lgkmcnt(0)"][-1]
    E.l[k:k] = pre.l
    e0 = list(E.l); E.l = []
    xchg(5); E("s_branch L_bj"); ea = list(E.l); E.l = []
    E("L_bk0:"); xchg(0); eb = list(E.l); E.l = []
    E("L_bj:")
    E("s_waitcnt vmcnt(9)")
    GV = 96 + 4
    for i in range(5):
        g_ = SP_ + 4 * (4 * i + 1); t = SP_ + 4 * (4 * i + 2)
        for k in range(2): E(f"v_lshlrev_b32 v{g_+2*k}, 16, v{B2L+2*i+k}\nv_and_b32 v{g_+2*k+1}, 0xffff0000, v{B2L+2*i+k}")
        for p in range(8):
            for k in range(2): E(f"v_lshlrev_b32 v{t+2*k}, 16, v{YL+10*p+2*i+k}\nv_and_b32 v{t+2*k+1}, 0xffff0000, v{YL+10*p+2*i+k}")
            for k in range(4): E(f"v_add_f32 v{g_+k}, v{g_+k}, v{t+k}")
        if i == 2:
            E("s_waitcnt vmcnt(0)")
            E(f"buffer_store_dwordx2 v[254:255], v{ZV}, {sr(sWS)}, s{sG} offen sc1")
    for i in range(5):
        g_ = SP_ + 4 * (4 * i + 1); t = SP_ + 4 * (4 * i + 2)
        for k in range(4): E(f"v_mul_f32 v{t+k}, {fh(-LOG2E)}, v{g_+k}")
        for k in range(4): E(f"v_exp_f32 v{t+k}, v{t+k}")
        for k in range(4): E(f"v_add_f32 v{t+k}, 1.0, v{t+k}")
        for k in range(4): E(f"v_rcp_f32 v{t+k}, v{t+k}")
        for k in range(4): E(f"v_mul_f32 v{g_+k}, v{g_+k}, v{t+k}")
        for k in range(2): E(f"v_lshlrev_b32 v{t+2*k}, 16, v{XL+2*i+k}\nv_and_b32 v{t+2*k+1}, 0xffff0000, v{XL+2*i+k}")
    E(f"v_and_b32 v2, 3, v0\nv_lshlrev_b32 v2, 3, v2\nv_mov_b32 v3, v{T1}")
    E(f"s_lshl_b32 s{sMSK}, 1, s{sSP}\ns_xor_b32 s{sMSK}, s{sMSK}, 15")
    poll(E, "L_pxc", 2, sWS, f"s{sVo}", cond_nonce(E, f"s{sMSK}"), sleep=1)
    if NST[0] < 12: stamp(E, 11)
    for r in (1, 2, 3):
        p = PKS + 10 * (r - 1)
        E(f"s_add_u32 s{sA}, s{sSP}, {r}\ns_and_b32 s{sA}, s{sA}, 3\ns_mul_i32 s{sA}, s{sA}, {4*3072}\ns_add_u32 s{sA}, s{sA}, s{sVo2}")
        E(f"buffer_load_dwordx4 {vr(p)}, v3, {sr(sWS)}, s{sA} offen sc1")
        E(f"buffer_load_dwordx4 {vr(p+4)}, v3, {sr(sWS)}, s{sA} offen offset:1024 sc1")
        E(f"buffer_load_dwordx2 {vr(p+8,2)}, v1, {sr(sWS)}, s{sA} offen sc1")
    for r in (1, 2, 3):
        E(f"s_waitcnt vmcnt({9-3*r})")
        for i in range(5):
            x = SP_ + 16 * i; t = SP_ + 4 * (4 * i + 3); p = PKS + 10 * (r - 1) + 2 * i
            for k in range(2): E(f"v_lshlrev_b32 v{t+2*k}, 16, v{p+k}\nv_and_b32 v{t+2*k+1}, 0xffff0000, v{p+k}")
            for k in range(4): E(f"v_add_f32 v{x+k}, v{x+k}, v{t+k}")
    for i in range(5):
        x = SP_ + 16 * i
        for k in range(4): E(f"v_fma_f32 v{x+k}, v{x+k}, v{x+4+k}, v{x+8+k}")
        for k in range(2): E(f"v_cvt_pk_bf16_f32 v{x+12+k}, v{x+2*k}, v{x+2*k+1}")
        E(f"buffer_store_dwordx2 {vr(x+12,2)}, v5, {sr(sOUT)}, s{sKo} offen offset:{32*i}")
    if opt["stamp"]:
        E("s_waitcnt vmcnt(0)")
        E("s_memrealtime s[4:5]\ns_memtime s[6:7]\ns_load_dwordx2 s[8:9], s[0:1], 96\ns_waitcnt lgkmcnt(0)")
        E(f"s_add_u32 s8, s8, {ST_OFF}\ns_addc_u32 s9, s9, 0\ns_and_b32 s9, s9, 0xffff\ns_mov_b32 s10, 0x40000\ns_mov_b32 s11, 0x20000")
        E(f"s_lshl_b32 s12, s2, 2\ns_add_u32 s12, s12, s{sW}\ns_lshl_b32 s12, s12, 7\nv_mov_b32 v2, 0\ns_mov_b64 exec, 1")
        for i in range(NST[0] + 1):
            a, b_ = (78 + 2 * i, 79 + 2 * i) if i < NST[0] else (4, 6)
            E(f"v_mov_b32 v4, s{a}\nv_mov_b32 v5, s{b_}\nbuffer_store_dwordx2 v[4:5], v2, s[8:11], s12 offen offset:{8*i}\ns_waitcnt vmcnt(0)")
    ec = list(E.l)
    A.ext(e0 + ea + eb + ec)
    A("L_done:\ns_endpgm")
    F = Asm()
    F("L_safe:")
    F("s_waitcnt vmcnt(0) lgkmcnt(0)\ns_nop 7")
    for r in KA: F(f"v_subrev_u32 v{r}, {2*STG}, v{r}")
    for r in VA: F(f"v_subrev_u32 v{r}, {2*STG}, v{r}")
    for i in range(192): F(f"v_accvgpr_write_b32 a{i}, 0")
    MX = PB[1]
    for qb in range(4): F(f"v_mov_b32 v{LS[qb]}, 0\nv_mov_b32 v{MX+qb}, 0xff7fffff")
    F(f"s_mov_b32 s{sSlot}, s{sWb}\ns_mov_b32 s{sCnt}, 32")
    Fp = list(F.l)
    L = Asm()
    L("L_sloop:")
    L("s_barrier")
    for srd_, base in ((sK, KRING), (sV, VRING)):
        for hf in range(2):
            L(f"s_add_u32 s{sInc}, s{sSlot}, {3072*hf}\ns_add_u32 m0, s{sWb}, {base + 3072*hf}\ns_nop 0")
            for j in range(3): L(f"buffer_load_dwordx4 v{DSR[j]}, {sr(srd_)}, s{sInc} offen offset:{1024*j} lds")
    L(f"s_add_u32 s{sSlot}, s{sSlot}, {STG}")
    L("s_waitcnt vmcnt(0)\ns_barrier")
    for ks in range(6): L(kread(0, 0, ks))
    L("s_waitcnt lgkmcnt(0)")
    G = Gaps(qk_mfmas(set())); qk_reads(G, 0, vpre=True)
    L.ext(G.emit())
    L("s_nop 7")
    for qb in range(4):
        m = NREF + 4 * qb
        v = [S(kb, qb) + r for kb in range(4) for r in range(4)]
        L(f"v_max3_f32 v{m}, v{v[0]}, v{v[1]}, v{MX+qb}")
        for i in range(2, 16, 2): L(f"v_max3_f32 v{m}, v{m}, v{v[i]}, v{v[i+1]}")
    for sw in ("v_permlane32_swap_b32", "v_permlane16_swap_b32"):
        for qb in range(4): L(f"v_mov_b32 v{NREF+4*qb+1}, v{NREF+4*qb}")
        for qb in range(4): L(f"{sw} v{NREF+4*qb}, v{NREF+4*qb+1}")
        for qb in range(4): L(f"v_max_f32 v{NREF+4*qb}, v{NREF+4*qb}, v{NREF+4*qb+1}")
    for qb in range(4): L(f"v_sub_f32 v{NREF+4*qb+1}, v{MX+qb}, v{NREF+4*qb}")
    for qb in range(4): L(f"v_exp_f32 v{NREF+4*qb+1}, v{NREF+4*qb+1}")
    for qb in range(4): L(f"v_mov_b32 v{MX+qb}, v{NREF+4*qb}")
    for qb in range(4): L(f"v_mul_f32 v{LS[qb]}, v{LS[qb]}, v{NREF+4*qb+1}")
    for db in range(12):
        for qb in range(4):
            t = PB[1] + 8 + 4 * ((db * 4 + qb) % 4)
            for r in range(4): L(f"v_accvgpr_read_b32 v{t+r}, a{O(db,qb)+r}")
            for r in range(4): L(f"v_mul_f32 v{t+r}, v{t+r}, v{NREF+4*qb+1}")
            for r in range(4): L(f"v_accvgpr_write_b32 a{O(db,qb)+r}, v{t+r}")
    for kb in range(4):
        for qb in range(4):
            for r in range(4): L(f"v_sub_f32 v{S(kb,qb)+r}, v{S(kb,qb)+r}, v{MX+qb}")
    for (ex, ad, cv) in sm_ops(0):
        for t in ex: L(t)
        L("s_nop 0")
        for t in ad + cv: L(t)
    L("s_waitcnt lgkmcnt(0)\ns_nop 1")
    G = Gaps(pv_mfmas(0)); pv_reads(G, 0)
    L.ext(G.emit())
    L(f"s_sub_u32 s{sCnt}, s{sCnt}, 1\ns_cmp_lg_u32 s{sCnt}, 0\ns_cbranch_scc1 L_sloop")
    auto_lgkm(L.l)
    X = Asm()
    X("s_waitcnt lgkmcnt(0)\ns_barrier")
    lred(X)
    for qb in range(4): X(f"v_rcp_f32 v{LS[qb]}, v{LS[qb]}")
    straight(X, ylo)
    straight(X, oq)
    X("s_waitcnt vmcnt(0)\ns_branch L_join")
    A.ext(Fp); A.ext(L.l); A.ext(X.l)
    j = [i for i, x in enumerate(tail) if x.text == "L_join:"][0]
    ck = [i for i, x in enumerate(tail) if "L_safe" in x.text][0]
    bl = steps[0] + steps[1] + steps[2]
    for nm, br in (("mainA", ea), ("mainB", eb)):
        main = pro + sf + s1 + s0 + s1 + s0 + tail + bl + bl + e0 + br + ec
        problems += check_hazards(main, nm); problems += check_waits(main, nm)[0]
    safe = s0 + tail[:ck + 1] + Fp + L.l + L.l + X.l + tail[j:]
    problems += check_hazards(safe, "safe"); problems += check_waits(safe, "safe")[0]
    return A.text()

body = gen()
kn = NAME + "_kernel"
out = f"""; generated by gen/gen3.py (own generator): one persistent launch, 1 workgroup per CU
; @launch grid=(256,1,1) block=(256,1,1) lds={LDS_SZ}
.amdgcn_target "amdgcn-amd-amdhsa--gfx950"
.text
.globl {kn}
.p2align 8
.type {kn},@function
{kn}:
{body}
.section .rodata,"a"
.p2align 6
.amdhsa_kernel {kn}
  .amdhsa_next_free_vgpr 512
  .amdhsa_next_free_sgpr 102
  .amdhsa_accum_offset 256
  .amdhsa_group_segment_fixed_size 0
  .amdhsa_kernarg_size 104
  .amdhsa_user_sgpr_count 2
  .amdhsa_user_sgpr_kernarg_segment_ptr 1
  .amdhsa_system_sgpr_workgroup_id_x 1
.end_amdhsa_kernel
"""
if problems:
    for p in sorted(set(problems)): print(p, file=sys.stderr)
    print(f"{len(set(problems))} problems", file=sys.stderr)
sys.stdout.write(out)
```

```python
import sys, math, struct
from asmlib import *

NAME = "recurrent_scan__gqa_block_cached__dense_activation_gelu__prompt"
def f2u(x): return struct.unpack("<I", struct.pack("<f", x))[0]
def fh(x): return f"0x{f2u(x):08x}"
LOG2E = math.log2(math.e)
CSC = LOG2E / math.sqrt(192.0)
XS_OFF = 0
OH_OFF = 0x400000
YC_OFF = 0x2400000
XC_OFF = 0x3c00000
FL_OFF = 0x4800000
AF_OFF = FL_OFF; HF_OFF = FL_OFF + 0x4000; XF_OFF = FL_OFF + 0x8000; YF_OFF = FL_OFF + 0xc000; LF_OFF = FL_OFF + 0x10000
WS_SZ = 0x5000000
ST_OFF = 0x8000000
LDS_LN = 147456; LDS_FL = LDS_LN + 2048; LDS_SZ = LDS_FL + 64
SPIN = 1 << 18

opt = dict(stamp=0, forcesafe=0, pf=1, warm=0, pst=128, snake=1, bias=102, opf=0, dense=4, zoom=0, nearly=8, tst=0)
for a in sys.argv[1:]:
    k, v = a.split("="); opt[k] = type(opt.get(k, ""))(v)
problems = []
BIAS = opt["bias"]; BIAS_LO = 48
def snk(n, i): return list(range(n))[::-1] if (opt["snake"] and i & 1) else list(range(n))

def vr(b, n=4): return f"v[{b}:{b+n-1}]"
def ar(b, n=4): return f"a[{b}:{b+n-1}]"
def sr(b, n=4): return f"s[{b}:{b+n-1}]"
def rs(b, n): return {f"v{i}" for i in range(b, b + n)}
def lgw(regs): return Ins("s_waitcnt lgkmcnt(?)", ("lg", regs))
def vmw(tags, extra=""): return Ins("s_waitcnt vmcnt(?)" + extra, ("vm", set(tags)))
MF = "v_mfma_f32_16x16x32_bf16"

sK, sV, sWQ, sW1, sWS, sB1, sX, sDBG, sOUT, sWO, sB2, sW2 = 4, 8, 12, 16, 20, 24, 28, 32, 36, 40, 44, 48
sSP = 3
(sW, sHEAD, sQT, sQB0, sKo, sKo2, sVo, sVo2, sSlot, sM, sInc, sCnt, sA, sB, sC, sD, sWb, sNeg, sN0, sN1,
 sMT, sNT, sE, sF, sKH, sQH) = range(52, 78)
sMSK, sFL, sG, sH = 12, 13, 14, 15
sBI, sLM = 32, 33
KT = 76
NST = [0]
def zst(A, z, i):
    if opt["zoom"] == z: stamp(A, i, True)
def stamp(A, i, force=False):
    if opt["zoom"] and not force: return
    if opt["stamp"]:
        A(f"s_memrealtime vcc\ns_waitcnt lgkmcnt(0)\ns_mov_b32 s{78+2*i}, vcc_lo\ns_memtime vcc\ns_waitcnt lgkmcnt(0)\ns_mov_b32 s{79+2*i}, vcc_lo")
        NST[0] = max(NST[0], i + 1)

KA = [1, 2]; VA = [3, 4, 5, 6]; DSR = [7, 8, 9]; LS = [10, 11, 12, 13]; T0, T1 = 14, 15
NREF = 16; QV = 32; SB = 64; PB = [128, 160]; KV = 192
WA = [240, 241]; WA2 = [242, 243]; W1A = [244, 245, 246]; DW = [247, 248, 249]; DW1 = 250; XV = [251, 252, 253, 254]
KRING = 0; VRING = 73728; STG = 24576; W1RING = 49152
DS5 = [240, 241, 242, 243, 244]; RA = [245, 246, 8, 9]; RAT = [245, 246, 254, 255]; OV = [247, 248, 249, 250]; PFV = 251; ZV = 252; FLV = 253
OB = [16, 48, 160]; WF = 192; STB = 40960; PK = 80

def qfrag(qb, ks):
    f = qb * 6 + ks
    return ar(192 + 4 * f) if f < 16 else vr(QV + 4 * (f - 16))
def S(kb, qb): return SB + 4 * (kb * 4 + qb)
def P(par, qb, e): return PB[par] + 4 * (qb * 2 + e)
def O(db, qb): return 4 * (db * 4 + qb)

class Gaps:
    def __init__(self, mfmas):
        self.m = mfmas; n = len(mfmas); self.n = n; self.cap = 2
        self.sc = [[] for _ in range(n)]; self.mem = [[] for _ in range(n)]; self.va = [[] for _ in range(n)]
    def vcost(self, g): return len(self.mem[g]) + sum(2 if x.kind == "trans" else 1 for x in self.va[g])
    def cost(self, g): return self.vcost(g) + len(self.sc[g])
    def fits(self, g, ins):
        c = 2 if ins.kind == "trans" else 1
        if ins.kind in ("valu", "trans", "ds", "vmem"):
            if self.vcost(g) + c > self.cap: return False
            if ins.kind in ("ds", "vmem") and self.va[g]: return False
            return self.vcost(g) + c + len(self.sc[g]) <= self.cap + 1
        return self.cost(g) + 1 <= 3
    def put(self, g, ins):
        if ins.kind in ("ds", "vmem"): self.mem[g].append(ins)
        elif ins.kind in ("valu", "trans"): self.va[g].append(ins)
        else: self.sc[g].append(ins)
    def place(self, g, text, tag=None):
        ins = Ins(text, tag)
        while not self.fits(g, ins): g += 1
        self.put(g, ins); return g
    def place2(self, g, t1, t2):
        while self.cost(g) + 2 > 3: g += 1
        self.put(g, Ins(t1)); self.put(g, Ins(t2)); return g
    def fill(self, queue, g0=0, g1=None):
        g1 = self.n if g1 is None else g1
        g = g0; i = 0; last = -1; lastkind = None
        while i < len(queue):
            t, e, ng, tag = (list(queue[i]) + [0, False, None])[:4] if not isinstance(queue[i], str) else (queue[i], 0, False, None)
            ins = Ins(t, tag)
            g = max(g, e)
            order = {"salu": 0, "wait": 0, "ds": 1, "vmem": 1, "valu": 2, "trans": 2}
            if last >= 0 and (ng or order[ins.kind] < order[lastkind] or (lastkind == "salu" and "m0" in queue_prev and ins.kind == "vmem")): g = max(g, last + 1)
            while g < g1 and not self.fits(g, ins): g += 1
            if g >= g1: break
            self.put(g, ins); last = g; lastkind = ins.kind; queue_prev = t; i += 1
        return queue[i:]
    def emit(self):
        out = []
        for g, m in enumerate(self.m):
            out.append(m); out += self.sc[g] + self.mem[g] + self.va[g]
        return out

def spread(G, lst, g0, g1):
    nv = sum(1 for x in lst if isinstance(x, tuple))
    k = 0; g = g0
    for x in lst:
        t, tag = x if isinstance(x, tuple) else (x, None)
        if tag:
            tgt = g0 + 1 + int((g1 - g0 - 1) * k / nv); k += 1
            g = G.place(max(g, tgt), t, tag) + 1
        else:
            g = G.place(g, t)
            if " m0," in t: g += 1
    return g

def straight(A, lst):
    prev_m0 = False
    for x in lst:
        if isinstance(x, str): t, tag = x, None
        elif len(x) == 2: t, tag = x
        else:
            t = x[0]; tag = x[3] if len(x) > 3 else None
            if len(x) > 2 and x[2]: A("s_nop 1")
        if prev_m0 and "lds" in t: A("s_nop 0")
        A(t, tag); prev_m0 = " m0," in t

def srd(A, d, lo, size, add=None):
    if add is None:
        A(f"s_mov_b32 s{d}, s{lo}\ns_and_b32 s{d+1}, s{lo+1}, 0xffff")
    else:
        A(f"s_add_u32 s{d}, s{lo}, {add}\ns_addc_u32 s{d+1}, s{lo+1}, 0\ns_and_b32 s{d+1}, s{d+1}, 0xffff")
    A(f"s_mov_b32 s{d+2}, {size}\ns_mov_b32 s{d+3}, 0x20000")

def kread(buf, kb, ks):
    d = KV + 24 * buf + 4 * ks
    return f"ds_read_b128 {vr(d)}, v{KA[ks & 1]} offset:{(ks >> 1) * 128 + kb * 6144}"
def vread(db, e, half):
    d = KV + 8 * (db % 6) + 4 * e + 2 * half
    return f"ds_read_b64_tr_b16 {vr(d,2)}, v{VA[db & 3]} offset:{(db >> 2) * 128 + e * 12288 + half * 6144}"

def qk_mfmas(cinit):
    out = []
    for kb in range(4):
        for qb in range(4):
            for n, ks in enumerate(snk(6, qb)):
                a = KV + 24 * (kb & 1) + 4 * ks
                c = (vr(NREF + 4 * qb) if kb in cinit else "0") if n == 0 else vr(S(kb, qb))
                out.append(Ins(f"{MF} {vr(S(kb,qb))}, {vr(a)}, {qfrag(qb,ks)}, {c}"))
    return out
def pv_mfmas(par, first=False):
    out = []
    for db in range(12):
        for qb in range(4):
            for n, e in enumerate(snk(2, qb)):
                a = KV + 8 * (db % 6) + 4 * e
                c = "0" if (first and n == 0) else ar(O(db, qb))
                out.append(Ins(f"{MF} {ar(O(db,qb))}, {vr(a)}, {vr(P(par,qb,e))}, {c}"))
    return out
def sm_ops(par):
    out = []
    for kb in range(4):
        for qb in range(4):
            s = S(kb, qb); p = P(par, qb, kb >> 1) + 2 * (kb & 1)
            out.append(([f"v_exp_f32 v{s+r}, v{s+r}" for r in range(4)],
                        [f"v_add_f32 v{LS[qb]}, v{LS[qb]}, v{s+r}" for r in range(4)],
                        [f"v_cvt_pk_bf16_f32 v{p+r}, v{s+2*r}, v{s+2*r+1}" for r in range(2)]))
    return out
def qk_reads(G, base, vpre=True):
    for kb in range(3):
        for ks in range(6): G.place(base + 24 * kb + 1 + 3 * ks, kread((kb + 1) & 1, kb + 1, ks))
    if vpre:
        n = 0
        for db in range(3):
            for e in range(2):
                for h in range(2):
                    G.place(base + 73 + (n * 3) // 2, vread(db, e, h)); n += 1
    for ks in (2, 4): G.put(base + ks - 1, lgw(rs(KV + 4 * ks, 8)))
    for kb in range(1, 4): G.put(base + 24 * kb - 1, lgw(rs(KV + 24 * (kb & 1), 24)))
def pv_reads(G, B, first_wait=True):
    for db in range(9):
        n = 0
        for e in range(2):
            for h in range(2):
                G.place(B + 8 * db + 2 * n, vread(db + 3, e, h)); n += 1
    for db in range(12):
        if B + 8 * db - 1 >= 0: G.put(B + 8 * db - 1, lgw(rs(KV + 8 * (db % 6), 8)))

def gen_step(par, first=False, extra=()):
    G = Gaps(qk_mfmas({0, 1, 2, 3}) + pv_mfmas(par, first))
    qk_reads(G, 0)
    B = 96
    pv_reads(G, B)
    gb = B + 80
    G.put(gb, Ins("s_waitcnt vmcnt(12) lgkmcnt(0)")); G.put(gb, Ins("s_barrier"))
    for (g_, t_) in extra: G.place(g_, t_)
    for ks in range(6): G.place(gb + 1 + 2 * ks, kread(0, 0, ks))
    G.put(191, lgw(rs(KV, 8)))
    G.place(0, f"s_add_u32 s{sM}, s{sSlot}, s{sWb}")
    G.place(2, f"s_add_u32 s{sKo2}, s{sKo}, 3072")
    G.place(4, f"s_sub_u32 s{sVo}, s{sKo}, {STG}")
    G.place(5, f"s_sub_u32 s{sVo2}, s{sKo}, {STG - 3072}")
    G.place2(6, f"s_cmp_eq_u32 s{sSlot}, {STG}", f"s_cselect_b32 s{sInc}, s{sNeg}, {STG}")
    dm = [(sK, sKo, 0), (sK, sKo2, 3072), (sV, sVo, VRING), (sV, sVo2, VRING + 3072)]
    g = 8
    for (srd_, so, mo) in dm:
        G.place(g, f"s_add_u32 m0, s{sM}, {mo}" if mo else f"s_mov_b32 m0, s{sM}")
        for j in range(3):
            g2 = G.place(g + 3 + 12 * j, f"buffer_load_dwordx4 v{DSR[j]}, {sr(srd_)}, s{so} offen offset:{1024*j} lds")
        g = g2 + 9
    G.place(g, f"s_add_u32 s{sKo}, s{sKo}, {STG}")
    g = G.place(g + 1, f"s_add_u32 s{sSlot}, s{sSlot}, {STG}")
    g = G.place2(g + 1, f"s_cmp_eq_u32 s{sSlot}, {3 * STG}", f"s_cselect_b32 s{sSlot}, 0, s{sSlot}")
    for i, r in enumerate(KA): G.place(B + 10 + 2 * i, f"v_add_u32 v{r}, s{sInc}, v{r}")
    for i, r in enumerate(VA): G.place(B + 82 + 2 * i, f"v_add_u32 v{r}, s{sInc}, v{r}")
    ops = sm_ops(par ^ 1)
    first_g, last_g = 10, 186
    pend = []
    exps = [(i, r) for i in range(16) for r in range(4)]
    ei = 0
    for g in range(192):
        if ei < 64:
            i, r = exps[ei]
            target = first_g + (last_g - first_g) * ei / 64.0
            if g >= 6 * i + 5 + 4 and g >= target and G.vcost(g) == 0 and len(G.sc[g]) <= 1:
                G.put(g, Ins(ops[i][0][r])); ei += 1
                pend.append((g + 1, ops[i][1][r]))
                if r & 1: pend.append((g + 1, ops[i][2][r >> 1]))
                continue
        while pend and pend[0][0] <= g and G.fits(g, Ins(pend[0][1])):
            G.put(g, Ins(pend.pop(0)[1]))
    assert ei == 64 and not pend, (ei, pend)
    return G


def poll(A, lab, voff, srd_, soff, cond, sleep=2, precheck=False):
    if precheck:
        cond(); A(f"s_cbranch_scc0 {lab}_ok")
    A(f"s_mov_b32 s{sE}, {SPIN}")
    A(f"{lab}:")
    A(f"buffer_load_dwordx2 {vr(T0,2)}, v{voff}, {sr(srd_)}, {soff} offen sc1")
    A("s_waitcnt vmcnt(0)")
    cond()
    A(f"s_cbranch_scc0 {lab}_ok")
    A(f"s_sleep {sleep}\ns_sub_u32 s{sE}, s{sE}, 1\ns_cmp_lg_u32 s{sE}, 0\ns_cbranch_scc1 {lab}")
    A(f"{lab}_ok:")
def cond_nonce(A, mask):
    def f():
        A(f"v_cmp_ne_u32 vcc, s{sN0}, v{T0}\nv_cmp_ne_u32 s[{sA}:{sA+1}], s{sN1}, v{T1}\ns_nop 0")
        A(f"s_or_b32 s{sA}, vcc_lo, s{sA}\ns_and_b32 s{sA}, s{sA}, {mask}\ns_cmp_lg_u32 s{sA}, 0")
    return f
assert sA % 2 == 0 and sC % 2 == 0

def gelu_ops(x, y, pk, store):
    q = []
    for r in range(4): q.append(f"v_mul_f32 v{y+r}, v{x+r}, v{x+r}")
    for r in range(4): q.append(f"v_fma_f32 v{y+r}, v{y+r}, s{sB}, v{T0}")
    for r in range(4): q.append(f"v_mul_f32 v{y+r}, v{y+r}, v{x+r}")
    for r in range(4): q.append(f"v_exp_f32 v{y+r}, v{y+r}")
    for r in range(4): q.append(f"v_fma_f32 v{y+r}, v{y+r}, s{sA}, s{sA}")
    for r in range(4): q.append(f"v_rcp_f32 v{y+r}, v{y+r}")
    for r in range(4): q.append(f"v_mul_f32 v{y+r}, v{y+r}, v{x+r}")
    for r in range(2): q.append(f"v_cvt_pk_bf16_f32 v{pk+r}, v{y+2*r}, v{y+2*r+1}")
    return [(t, 0, False, None) for t in q] + store

def b_wdma(srd_, tag, slot_imm):
    o = [f"s_add_u32 s{sInc}, s{sM}, {slot_imm}", f"s_add_u32 s{sVo2}, s{sVo}, {16*1280}"]
    for hf, so in enumerate((sVo, sVo2)):
        o.append(f"s_add_u32 m0, s{sInc}, {5120*hf}")
        o += [(f"buffer_load_dwordx4 v{DS5[j]}, {sr(srd_)}, s{so} offen offset:{1024*j} lds", tag) for j in range(4)]
        o.append(f"s_add_u32 m0, s{sInc}, {5120*hf + 4096}")
        o.append((f"buffer_load_dwordx4 v{DS5[4]}, {sr(srd_)}, s{so} offen lds", tag))
    o.append(f"s_add_u32 s{sVo}, s{sVo}, {64*1280}")
    return o
def oload(buf, tag):
    o = [(f"buffer_load_dwordx4 {vr(OB[buf] + 4*(r*2+e))}, v{OV[r]}, {sr(sWS)}, s{sKo} offen offset:{1024*e} sc1", tag) for r in range(4) for e in range(2)]
    o.append(f"s_add_u32 s{sKo}, s{sKo}, 2048")
    return o
def b_scalars():
    o = [f"s_lshl_b32 s{sA}, s{sSP}, 1", f"s_add_u32 s{sA}, s{sA}, s{sKH}"]
    o += [f"s_mul_i32 s{sB}, s{sQH}, {32*1280}", f"s_mul_i32 s{sC}, s{sNT}, 320", f"s_add_u32 s{sB}, s{sB}, s{sC}"]
    o += [f"s_mul_i32 s{sVo}, s{sA}, {192*1280}", f"s_add_u32 s{sVo}, s{sVo}, s{sB}", f"s_mul_i32 s{sH}, s{sA}, {768*1280}", f"s_add_u32 s{sH}, s{sH}, s{sB}"]
    o += [f"s_mul_i32 s{sB}, s{sFL}, {4*240*4}", f"s_add_u32 s{sB}, s{sB}, {OH_OFF}"]
    o += [f"s_mul_i32 s{sKo}, s{sA}, {6*1024}", f"s_add_u32 s{sKo}, s{sKo}, s{sB}", f"s_add_u32 s{sKo}, s{sKo}, {192*1024}"]
    o += [f"s_mul_i32 s{sF}, s{sA}, {24*1024}", f"s_add_u32 s{sF}, s{sF}, s{sB}"]
    o += [f"s_mul_i32 s{sM}, s{sW}, 10240"]
    o += [f"s_lshr_b32 s{sD}, s2, 3", f"s_lshl_b32 s{sD}, s{sD}, 2", f"s_add_u32 s{sD}, s{sD}, s{sW}", f"s_mul_i32 s{sD}, s{sD}, 15360",
          f"s_mul_i32 s{sKo2}, s{sSP}, {1536*1280}", f"s_add_u32 s{sKo2}, s{sKo2}, s{sD}"]
    return o
def b_warm():
    o = []
    for i in range(4):
        o.append((f"buffer_load_dword v7, v{PFV}, {sr(sWO)}, s{sKo2} offen", "PF"))
        if i < 3: o.append(f"s_add_u32 s{sKo2}, s{sKo2}, 4096")
    return o
def b_addr_ops():
    q = []
    t0, t1, t2, t3 = 255, 253, 254, 255
    for j in range(5):
        q += [f"v_add_u32 v{t0}, {64*j}, v0", f"v_mul_u32_u24 v{t1}, 3277, v{t0}", f"v_lshrrev_b32 v{t1}, 16, v{t1}",
              f"v_mul_u32_u24 v{t2}, 20, v{t1}", f"v_sub_u32 v{t2}, v{t0}, v{t2}", f"v_lshrrev_b32 v{t3}, 1, v{t1}", f"v_and_b32 v{t3}, 2, v{t3}",
              f"v_xor_b32 v{t2}, v{t2}, v{t3}", f"v_mul_u32_u24 v{t3}, 80, v{t1}", f"v_add_u32 v{t3}, v{t3}, v{t2}"]
        q += [f"v_lshlrev_b32 v{DS5[j]}, 4, v{t3}"]
        if 0 < j < 4: q += [f"v_subrev_u32 v{DS5[j]}, {1024*j}, v{DS5[j]}"]
    q += [f"v_and_b32 v{FLV}, 31, v0", f"v_lshlrev_b32 v{FLV}, 3, v{FLV}"]
    p = []
    p += [f"v_lshlrev_b32 v{t0}, 4, v0"]
    for r in range(4):
        p += [f"s_add_u32 s{sF}, s{sSP}, {r}", f"s_and_b32 s{sF}, s{sF}, 3", f"s_mul_i32 s{sF}, s{sF}, {240*1024}", f"v_add_u32 v{OV[r]}, s{sF}, v{t0}"]
    p += [f"v_lshlrev_b32 v{PFV}, {6 if opt['pst'] == 64 else 7}, v0", f"v_mov_b32 v{ZV}, 0"]
    if opt["pst"] == 128: p += [f"v_min_u32 v{PFV}, {47*128}, v{PFV}"] if False else []
    return p, q

def b_ra_ops():
    t0, t1, t2 = NREF + 8, NREF + 9, NREF + 10
    lo, hi = (NREF + 11, NREF + 12), (NREF + 13, NREF + 14)
    q = [f"s_mul_i32 s{sE}, s{sKH}, 20480", f"v_lshrrev_b32 v{t0}, 2, v0", f"v_mul_u32_u24 v{t0}, 320, v{t0}", f"v_and_b32 v{t1}, 3, v0", f"v_lshl_add_u32 v{t0}, v{t1}, 3, v{t0}",
         f"v_add_u32 v{t0}, s{sE}, v{t0}", f"v_bfe_u32 v{t1}, v0, 4, 1", f"v_xor_b32 v{t2}, 1, v{t1}",
         f"v_lshl_add_u32 v{lo[0]}, v{t1}, 5, v{t0}", f"v_lshl_add_u32 v{lo[1]}, v{t2}, 5, v{t0}",
         f"v_add_u32 v{hi[0]}, 128, v{lo[1]}", f"v_add_u32 v{hi[1]}, 192, v{lo[0]}",
         f"s_cmp_eq_u32 s{sKH}, 0", f"s_cselect_b64 vcc, -1, 0", "s_nop 0"]
    for k in range(2):
        q += [f"v_cndmask_b32 v{RA[k]}, v{lo[k]}, v{hi[k]}, vcc", f"v_cndmask_b32 v{RA[2+k]}, v{hi[k]}, v{lo[k]}, vcc"]
    return q
def lred(A):
    for sw in ("v_permlane32_swap_b32", "v_permlane16_swap_b32"):
        for qb in range(4): A(f"v_mov_b32 v{NREF+qb}, v{LS[qb]}")
        for qb in range(4): A(f"{sw} v{LS[qb]}, v{NREF+qb}")
        for qb in range(4): A(f"v_add_f32 v{LS[qb]}, v{LS[qb]}, v{NREF+qb}")
NEARLY = 24
def oepi_ops():
    q = []; late = []; n = 0
    so = [sA, sB, sC, sD]
    for m in range(6):
        for qb in range(4):
            x = 144 + 8 * (n & 1); d = PK + 4 * (n % 16)
            e = 16 * m + 8 + 2 * qb + 1 + 5
            for p in range(2):
                for r in range(4): q.append((f"v_accvgpr_read_b32 v{x+4*p+r}, a{O(2*m+p,qb)+r}", e, False, None))
            for i in range(8): q.append((f"v_mul_f32 v{x+i}, v{x+i}, v{LS[qb]}", 0, False, None))
            for i in range(4): q.append((f"v_cvt_pk_bf16_f32 v{d+i}, v{x+2*i}, v{x+2*i+1}", 0, False, None))
            v, off = (T1, 1024 * m) if m < 4 else (T0, 1024 * (m - 4))
            st = f"buffer_store_dwordx4 {vr(d)}, v{v}, {sr(sWS)}, s{so[qb]} offen offset:{off} sc1"
            if n < NEARLY: q.append((st, 0, False, "OST"))
            else: late.append((st, "OST"))
            n += 1
    return q, late
def oepi_pre():
    return [f"s_mul_i32 s{sA}, s{sQB0}, {240*1024}", f"s_mul_i32 s{sB}, s{sHEAD}, {6*1024}", f"s_add_u32 s{sA}, s{sA}, s{sB}", f"s_add_u32 s{sA}, s{sA}, {OH_OFF}",
            f"s_add_u32 s{sB}, s{sA}, {240*1024}", f"s_add_u32 s{sC}, s{sA}, {480*1024}", f"s_add_u32 s{sD}, s{sA}, {720*1024}",
            f"v_lshlrev_b32 v{T1}, 4, v0", f"v_add_u32 v{T0}, 4096, v{T1}"]
def BA(nb, r): return (192 + 16 * nb if nb < 4 else 16 * (nb - 4)) + 4 * r
def bread(u, nb, e, h):
    d = WF + 8 * ((10 * u + nb) % 6) + 4 * e + 2 * h
    j = nb % 5
    return f"ds_read_b64_tr_b16 {vr(d,2)}, v{RA[2 * (nb // 5) + (j & 1)]} offset:{64*(j >> 1) + e*10240 + h*5120}"
ORDR = [(i, r) for r in (1, 2, 3, 0) for i in range(5)]
def xchg_reads(E, tr):
    for (i, r) in ORDR: E(f"ds_read_b128 {vr(tr(i, r))}, v3 offset:{1024*(4*i+r)}")
def xchg_sum(E, tr, PKS, so, emit):
    st = []; RING = 150
    for n, (i, r) in enumerate(ORDR):
        t = RING + 4 * (n & 1); x = tr(i, r)
        for k in range(4): E(f"v_accvgpr_read_b32 v{t+k}, a{BA(5+i, r)+k}")
        if n % 5 == 0 and emit: E(f"s_waitcnt lgkmcnt({15 - n})")
        for k in range(4): E(f"v_add_f32 v{x+k}, v{x+k}, v{t+k}")
        if r:
            for k in range(2): E(f"v_cvt_pk_bf16_f32 v{PKS+10*(r-1)+2*i+k}, v{x+2*k}, v{x+2*k+1}")
            if i == 4:
                p = PKS + 10 * (r - 1)
                ss = [f"buffer_store_dwordx4 {vr(p)}, v4, {sr(sWS)}, s{so[r]} offen sc1",
                      f"buffer_store_dwordx4 {vr(p+4)}, v4, {sr(sWS)}, s{so[r]} offen offset:1024 sc1",
                      f"buffer_store_dwordx2 {vr(p+8,2)}, v1, {sr(sWS)}, s{so[r]} offen sc1"]
                if emit:
                    for t_ in ss: E(t_)
                else: st += [(t_, "YST") for t_ in ss]
    return st
def slot_scalars(off, so, cons):
    o = [f"s_mul_i32 s{sA}, s{sH}, {64*3072}", f"s_mul_i32 s{sE}, s{sW}, 3072", f"s_add_u32 s{sA}, s{sA}, s{sE}", f"s_add_u32 s{sA}, s{sA}, {off}",
         f"s_mul_i32 s{sE}, s{sSP}, {16*3072}", f"s_add_u32 s{cons}, s{sA}, s{sE}", f"s_mul_i32 s{sE}, s{sSP}, {4*3072}", f"s_add_u32 s{sA}, s{sA}, s{sE}"]
    for r in (1, 2, 3):
        d = so[r]
        o += [f"s_add_u32 s{d}, s{sSP}, {r}", f"s_and_b32 s{d}, s{d}, 3", f"s_mul_i32 s{d}, s{d}, {16*3072}", f"s_add_u32 s{d}, s{d}, s{sA}"]
    return o
def inbox_loads(cons, P0, tag):
    o = []
    for r in (1, 2, 3):
        p = P0 + 10 * (r - 1)
        o += [f"s_add_u32 s{sA}, s{sSP}, {r}", f"s_and_b32 s{sA}, s{sA}, 3", f"s_mul_i32 s{sA}, s{sA}, {4*3072}", f"s_add_u32 s{sA}, s{sA}, s{cons}"]
        o += [(f"buffer_load_dwordx4 {vr(p)}, v4, {sr(sWS)}, s{sA} offen sc1", tag), (f"buffer_load_dwordx4 {vr(p+4)}, v4, {sr(sWS)}, s{sA} offen offset:1024 sc1", tag),
              (f"buffer_load_dwordx2 {vr(p+8,2)}, v1, {sr(sWS)}, s{sA} offen sc1", tag)]
    return o
def merge(a, b):
    out = []; k = 0
    na = sum(1 for x in a if isinstance(x, tuple)); seen = 0
    for x in a:
        out.append(x)
        if isinstance(x, tuple):
            seen += 1
            while k < len(b) and (k + 1) * na <= seen * len(b) and " m0," not in out[-1][0]:
                out.append(b[k]); k += 1
    return out + b[k:]
def b_chunk(u, lst, wtags, otags, czero=False, after_barrier=None, first_gap=(), last_gap=(), fillq=None, nxt=True, lim=None, xw=False):
    mf = []
    for nb in range(10):
        for r in range(4):
            for n, e in enumerate(snk(2, r)):
                acc = ar(BA(nb, r))
                mf.append(Ins(f"{MF} {acc}, {vr(WF + 8*((10*u+nb)%6) + 4*e)}, {vr(OB[u] + 4*(r*2+e))}, {'0' if czero and n == 0 else acc}"))
    G = Gaps(mf)
    for nb in range(7):
        n = 0
        for e in range(2):
            for h in range(2):
                G.place(8 * nb + 2 * n, bread(u, nb + 3, e, h)); n += 1
    for nb in range(1, 10): G.put(8 * nb - 1, lgw(rs(WF + 8 * ((10 * u + nb) % 6), 8)))
    gb = 62
    if nxt:
        G.put(gb, vmw(wtags, " lgkmcnt(0)")); G.put(gb, Ins("s_barrier"))
        inc = STB if u < 2 else -2 * STB
        for i, r in enumerate(RA): G.place((30 + 2 * i) if i < 2 else (gb - 6 + i), f"v_add_u32 v{r}, {inc & 0xffffffff}, v{r}")
        if after_barrier: G.place(gb + 1, after_barrier, "FLAG")
        n = 0
        for nb in range(3):
            for e in range(2):
                for h in range(2):
                    G.place(gb + 1 + n + n // 4, bread((u + 1) % 3, nb, e, h)); n += 1
        G.put(79, lgw(rs(WF + 8 * ((10 * ((u + 1) % 3)) % 6), 8)))
    if otags: G.put(78, vmw(otags))
    if xw:
        for n, (i, r) in enumerate(ORDR): G.place(44 + (n * 7) // 4, f"ds_write_b128 v2, {ar(BA(i, r))} offset:{1024*(4*i+r)}")
    for t in first_gap: G.put(0, Ins(t))
    g = spread(G, lst, 1 if first_gap else 0, lim or (76 if otags else 60)) if lst else 70
    assert g <= 79, g
    for t in last_gap: G.place(g, t)
    if fillq is not None:
        G.cap = opt["dense"]
        left = G.fill(fillq, 0)
        return G.emit(), left
    return G.emit()

def gen():
    global problems
    A = Asm()
    A("s_cmp_ge_u32 s2, 256\ns_cbranch_scc1 L_done")
    A("s_load_dwordx16 s[76:91], s[0:1], 0\ns_load_dwordx8 s[92:99], s[0:1], 64\ns_load_dwordx2 s[100:101], s[0:1], 96")
    pX, pK, pV, pWQ, pWO, pW1, pB1, pW2, pB2, pOUT, pDBG, pWS = 76, 78, 80, 82, 84, 88, 90, 92, 94, 96, 98, 100
    A(f"s_memrealtime s[{sN0}:{sN1}]")
    if opt["stamp"]: A(f"s_memtime s[{sInc}:{sInc+1}]")
    if opt["pf"]:
        A(f"s_getpc_b64 s[{sA}:{sA+1}]\nL_pc:\ns_bfe_u32 s{sC}, s2, 0x10003\ns_lshl_b32 s{sC}, s{sC}, 15\nv_lshlrev_b32 v98, 7, v0\nv_add_u32 v98, s{sC}, v98")
        A(f"global_load_dword v99, v98, s[{sA}:{sA+1}]")
    A("v_lshrrev_b32 v14, 6, v0\nv_and_b32 v0, 63, v0")
    A(f"v_readfirstlane_b32 s{sW}, v14")
    A(f"s_and_b32 s{sA}, s2, 7\ns_lshr_b32 s{sB}, s2, 3\ns_and_b32 s{sC}, s{sB}, 3\ns_lshl_b32 s{sA}, s{sA}, 2\ns_add_u32 s{sHEAD}, s{sA}, s{sC}")
    A(f"s_lshr_b32 s{sQT}, s{sB}, 2\ns_lshl_b32 s{sB}, s{sQT}, 4\ns_lshl_b32 s{sC}, s{sW}, 2\ns_add_u32 s{sQB0}, s{sB}, s{sC}")
    A(f"s_lshr_b32 s{sC}, s{sHEAD}, 1\ns_add_u32 s{sD}, s{sB}, s{sC}\ns_mul_i32 s{sE}, s{sD}, 20480")
    A("v_and_b32 v3, 15, v0\nv_lshrrev_b32 v4, 4, v0\nv_mul_u32_u24 v5, 1280, v3\nv_mul_u32_u24 v6, 320, v14\nv_lshlrev_b32 v7, 3, v4\nv_add3_u32 v5, v5, v6, v7")
    A("v_mov_b32 v96, 0\nv_mov_b32 v94, 0")
    A(f"s_or_b32 s{sKo}, s2, s{sW}")
    A("s_waitcnt lgkmcnt(0)")
    srd(A, sX, pX, 2621440)
    srd(A, sDBG, pDBG, 256)
    A(f"s_cmp_lg_u32 s{sKo}, 0\ns_cbranch_scc1 L_nonc")
    A(f"s_or_b32 s{sKo}, s{sN0}, 1\nv_mov_b32 v80, s{sKo}\nv_mov_b32 v81, s{sN1}")
    A(f"buffer_store_dwordx2 v[80:81], v96, {sr(sDBG)}, 0 offen sc1")
    A("L_nonc:")
    A(f"s_bitcmp1_b32 s{sHEAD}, 0\ns_cbranch_scc1 L_nox")
    for i in range(5):
        A(f"buffer_load_dwordx2 {vr(16+4*i,2)}, v5, {sr(sX)}, s{sE} offen offset:{64*i}", "LX")
        A(f"buffer_load_dwordx2 {vr(18+4*i,2)}, v5, {sr(sX)}, s{sE} offen offset:{64*i+32}", "LX")
    A("L_nox:")
    for j in range(3):
        A(f"v_add_u32 v82, {64*j}, v0\nv_mul_u32_u24 v83, 2731, v82\nv_lshrrev_b32 v83, 16, v83")
        A(f"v_mul_u32_u24 v97, 24, v83\nv_sub_u32 v82, v82, v97\nv_and_b32 v97, 6, v83\nv_xor_b32 v82, v82, v97\nv_lshlrev_b32 v82, 4, v82")
        A(f"v_mul_u32_u24 v97, 12288, v83\nv_add_u32 v97, v97, v82\nv_add_u32 v{DW[j]}, {(-1024*j) & 0xffffffff}, v97")
        A(f"v_mul_u32_u24 v97, 384, v83\nv_add_u32 v97, v97, v82\nv_add_u32 v{84+j}, {(128 - 1024*j) & 0xffffffff}, v97")
    A(f"v_lshrrev_b32 v83, 3, v0\nv_and_b32 v82, 7, v0\nv_and_b32 v97, 6, v83\nv_xor_b32 v82, v82, v97\nv_lshlrev_b32 v82, 4, v82\nv_mul_u32_u24 v97, 3072, v83\nv_add_u32 v{DW1}, v97, v82")
    A(f"s_mul_i32 s{sA}, s{sHEAD}, 384")
    A(f"s_add_u32 s{sWQ}, s{pWQ}, s{sA}\ns_addc_u32 s{sWQ+1}, s{pWQ+1}, 0\ns_and_b32 s{sWQ+1}, s{sWQ+1}, 0xffff\ns_sub_u32 s{sWQ+2}, {640*12288}, s{sA}\ns_mov_b32 s{sWQ+3}, 0x20000")
    A(f"s_mul_i32 s{sF}, s{sHEAD}, 96")
    A(f"s_add_u32 s{sW1}, s{pW1}, s{sF}\ns_addc_u32 s{sW1+1}, s{pW1+1}, 0\ns_and_b32 s{sW1+1}, s{sW1+1}, 0xffff\ns_sub_u32 s{sW1+2}, {640*3072}, s{sF}\ns_mov_b32 s{sW1+3}, 0x20000")
    A(f"s_mul_i32 s{sWb}, s{sW}, 6144")
    A(f"s_mul_i32 s{sA}, s{sW}, {16*12288}\ns_mul_i32 s{sB}, s{sW}, {16*3072}\ns_mul_i32 s{sC}, s{sQB0}, 20480\ns_lshl_b32 s{sM}, s{sW}, 11")
    XB = [SB, SB + 32, PB[0]]
    def wdma(ch):
        sl = ch % 3; o = []
        o.append(f"s_add_u32 m0, s{sWb}, {VRING + sl*STG}")
        o += [(f"buffer_load_dwordx4 v{DW[j]}, {sr(sWQ)}, s{sA} offen offset:{1024*j} lds", f"W{ch}") for j in range(3)]
        o.append(f"s_add_u32 s{sA}, s{sA}, {8*12288}")
        o.append(f"s_add_u32 m0, s{sWb}, {VRING + sl*STG + 3072}")
        o += [(f"buffer_load_dwordx4 v{DW[j]}, {sr(sWQ)}, s{sA} offen offset:{1024*j} lds", f"W{ch}") for j in range(3)]
        o.append(f"s_add_u32 s{sA}, s{sA}, {56*12288}")
        o.append(f"s_add_u32 m0, s{sM}, {W1RING + sl*8192}")
        o.append((f"buffer_load_dwordx4 v{DW1}, {sr(sW1)}, s{sB} offen lds", f"W{ch}"))
        o.append(f"s_add_u32 s{sB}, s{sB}, {8*3072 - 1024}")
        o.append((f"buffer_load_dwordx4 v{DW1}, {sr(sW1)}, s{sB} offen offset:1024 lds", f"W{ch}"))
        o.append(f"s_add_u32 s{sB}, s{sB}, {56*3072 + 1024}")
        return o
    def xload(ch):
        o = [(f"buffer_load_dwordx4 {vr(XB[ch%3] + 4*(qb*2+e))}, v{XV[qb]}, {sr(sWS)}, s{sC} offen offset:{1024*e} sc1", f"X{ch}") for qb in range(4) for e in range(2)]
        o.append(f"s_add_u32 s{sC}, s{sC}, 2048")
        return o
    def kvdma(srd_, slotbase, t, tag):
        o = []
        for hf in range(2):
            o.append(f"s_add_u32 s{sKo2}, s{sWb}, {t*STG + 3072*hf}")
            o.append(f"s_add_u32 m0, s{sWb}, {slotbase + 3072*hf}")
            o += [(f"buffer_load_dwordx4 v{DSR[j]}, {sr(srd_)}, s{sKo2} offen offset:{1024*j} lds", tag) for j in range(3)]
        return o
    straight(A, wdma(0))
    srd(A, sB1, pB1, 3072)
    for ct in range(3): A(f"buffer_load_dwordx2 {vr(88 + 2*ct, 2)}, v7, {sr(sB1)}, s{sF} offen offset:{32*ct}", "B1")
    straight(A, wdma(1))
    A(f"s_mul_i32 s{sKo}, s{sHEAD}, 786432")
    for (d, lo) in ((sK, pK), (sV, pV)):
        A(f"s_add_u32 s{d}, s{lo}, s{sKo}\ns_addc_u32 s{d+1}, s{lo+1}, 0\ns_sub_u32 s{d}, s{d}, 128\ns_subb_u32 s{d+1}, s{d+1}, 0\ns_and_b32 s{d+1}, s{d+1}, 0xffff")
        A(f"s_mov_b32 s{d+2}, {786432 + 128}\ns_mov_b32 s{d+3}, 0x20000")
    srd(A, sWS, pWS, WS_SZ)
    srd(A, sOUT, pOUT, 2621440)
    srd(A, sB2, pB2, 1280)
    srd(A, sWO, pWO, 6144 * 1280)
    srd(A, sW2, pW2, 1536 * 1280)
    if opt["stamp"]:
        A(f"s_mov_b32 s78, s{sN0}\ns_mov_b32 s79, s{sInc}"); NST[0] = 1
    A(f"s_and_b32 s{sSP}, s2, 3\ns_bfe_u32 s{sKo}, s2, 0x10002\ns_lshl_b32 s{sKo}, s{sKo}, 3\ns_bfe_u32 s{sMT}, s2, 0x30003\ns_add_u32 s{sMT}, s{sMT}, s{sKo}\ns_lshr_b32 s{sNT}, s2, 6")
    A(f"s_lshr_b32 s{sKH}, s{sW}, 1\ns_and_b32 s{sQH}, s{sW}, 1")
    A(f"s_lshl_b32 s{sVo}, s{sQT}, 7\ns_add_u32 s{sVo}, s{sVo}, {LF_OFF}")
    A(f"s_bitcmp1_b32 s{sHEAD}, 0\ns_cbranch_scc1 L_noln")
    A(f"v_lshlrev_b32 v8, 6, v3\nv_add_u32 v8, {LDS_LN}, v8\nv_lshl_add_u32 v9, v14, 2, v4\nv_lshl_add_u32 v9, v9, 2, v8")
    A("v_mul_u32_u24 v10, 5120, v14\nv_lshl_add_u32 v10, v0, 4, v10")
    A("s_waitcnt vmcnt(19)")
    for i in range(20):
        A(f"v_lshlrev_b32 v{40+2*i}, 16, v{16+i}\nv_and_b32 v{41+2*i}, 0xffff0000, v{16+i}")
    A("v_add_f32 v11, v40, v41\nv_add_f32 v12, v42, v43")
    for i in range(4, 40, 2): A(f"v_add_f32 v11, v11, v{40+i}\nv_add_f32 v12, v12, v{41+i}")
    A("v_add_f32 v11, v11, v12")
    def xsum(off):
        A(f"ds_write_b32 v9, v11 offset:{off}\ns_waitcnt lgkmcnt(0)\ns_barrier")
        for i in range(4): A(f"ds_read_b128 {vr(16+4*i)}, v8 offset:{off+16*i}")
        A("s_waitcnt lgkmcnt(0)")
        for i in range(8): A(f"v_add_f32 v{16+i}, v{16+i}, v{24+i}")
        for i in range(4): A(f"v_add_f32 v{16+i}, v{16+i}, v{20+i}")
        A("v_add_f32 v16, v16, v18\nv_add_f32 v17, v17, v19\nv_add_f32 v16, v16, v17")
    xsum(0)
    A(f"v_mul_f32 v13, {fh(1/640)}, v16")
    for i in range(40): A(f"v_sub_f32 v{40+i}, v{40+i}, v13")
    A("v_mul_f32 v11, v40, v40\nv_mul_f32 v12, v41, v41")
    for i in range(2, 40, 2): A(f"v_fmac_f32 v11, v{40+i}, v{40+i}\nv_fmac_f32 v12, v{41+i}, v{41+i}")
    A("v_add_f32 v11, v11, v12")
    xsum(1024)
    A(f"v_mov_b32 v13, {fh(1e-5)}\nv_fmac_f32 v13, {fh(1/640)}, v16\nv_rsq_f32 v13, v13\ns_nop 0\nv_mul_f32 v13, {fh(CSC)}, v13")
    for i in range(5):
        for k in range(8): A(f"v_mul_f32 v{40+8*i+k}, v{40+8*i+k}, v13")
        for k in range(4): A(f"v_cvt_pk_bf16_f32 v{16+4*i+k}, v{40+8*i+2*k}, v{41+8*i+2*k}")
        if i == 4: A(f"s_add_u32 s{sE}, s{sE}, 4096")
        A(f"buffer_store_dwordx4 {vr(16+4*i)}, v10, {sr(sWS)}, s{sE} offen offset:{1024*i if i < 4 else 0} sc1")
    A(f"s_cmp_lg_u32 s{sW}, 0\ns_cbranch_scc1 L_ln2")
    A(f"buffer_load_dwordx2 v[94:95], v96, {sr(sDBG)}, 0 offen sc1")
    A("L_ln2:")
    A("s_waitcnt vmcnt(0)\ns_barrier")
    A("L_noln:")
    A(f"s_cmp_lg_u32 s{sW}, 0\ns_cbranch_scc1 L_w0a")
    A(f"v_mov_b32 v{T0}, v94\nv_mov_b32 v{T1}, v95\ns_nop 0")
    def cond_non():
        A(f"v_readfirstlane_b32 s{sN0}, v{T0}\nv_readfirstlane_b32 s{sN1}, v{T1}\ns_nop 0\ns_cmp_eq_u32 s{sN0}, 0")
    poll(A, "L_pnon", 96, sDBG, "0", cond_non, sleep=8, precheck=True)
    A(f"s_bitcmp1_b32 s{sHEAD}, 0\ns_cbranch_scc1 L_w0a")
    A(f"s_lshl_b32 s{sKo}, s{sHEAD}, 2\ns_add_u32 s{sKo}, s{sKo}, s{sVo}")
    A(f"buffer_store_dwordx2 {vr(T0,2)}, v96, {sr(sWS)}, s{sKo} offen sc1")
    A("L_w0a:")
    stamp(A, 1)
    for j in range(3): A(f"v_mov_b32 v{DSR[j]}, v{84+j}")
    for qb in range(4): A(f"v_lshlrev_b32 v17, 4, v0\nv_add_u32 v{XV[qb]}, {XS_OFF + qb*20480}, v17")
    A("v_lshrrev_b32 v16, 2, v0\nv_and_b32 v17, 6, v16\nv_and_b32 v18, 3, v0")
    A("v_lshrrev_b32 v19, 1, v18\nv_and_b32 v20, 1, v18\nv_lshlrev_b32 v20, 3, v20")
    A(f"v_mul_u32_u24 v21, 384, v16\nv_add_u32 v21, {VRING}, v21")
    for m in range(4):
        A(f"v_add_u32 v22, {2*m}, v19\nv_xor_b32 v22, v22, v17\nv_lshlrev_b32 v22, 4, v22\nv_add3_u32 v{VA[m]}, v21, v22, v20\nv_add_u32 v{VA[m]}, {STG}, v{VA[m]}")
    for e in range(2):
        A(f"v_add_u32 v22, {4*e}, v18\nv_xor_b32 v22, v22, v17\nv_lshlrev_b32 v22, 4, v22\nv_add_u32 v{WA[e]}, v21, v22\nv_add_u32 v{WA2[e]}, {2*STG}, v{WA[e]}")
    A(f"v_lshlrev_b32 v21, 7, v16\nv_add_u32 v21, {W1RING}, v21")
    for ct in range(3):
        A(f"v_add_u32 v22, {2*ct}, v19\nv_xor_b32 v22, v22, v17\nv_lshlrev_b32 v22, 4, v22\nv_add3_u32 v{W1A[ct]}, v21, v22, v20")
    A("v_and_b32 v16, 15, v0\nv_and_b32 v17, 6, v16\nv_lshrrev_b32 v18, 4, v0\nv_mul_u32_u24 v21, 384, v16")
    for e in range(2):
        A(f"v_add_u32 v22, {4*e}, v18\nv_xor_b32 v22, v22, v17\nv_lshlrev_b32 v22, 4, v22\nv_add_u32 v{KA[e]}, v21, v22")
    A(f"v_lshlrev_b32 v40, 3, v16\nv_mov_b32 v41, {LDS_FL}")
    for r in LS: A(f"v_mov_b32 v{r}, 0")
    HACC = {12: PB[1], 13: PB[1] + 16, 14: NREF}
    A("s_waitcnt vmcnt(0)")
    for ct in range(3):
        h = HACC[12 + ct]
        for r in range(2):
            A(f"v_lshlrev_b32 v{h+2*r}, 16, v{88+2*ct+r}\nv_and_b32 v{h+2*r+1}, 0xffff0000, v{88+2*ct+r}")
        for r in range(4): A(f"v_mul_f32 v{h+r}, {fh(CSC)}, v{h+r}")
        for qb in range(1, 4):
            for r in range(4): A(f"v_mov_b32 v{h+4*qb+r}, v{h+r}")
    A(f"s_cmp_lg_u32 s{sW}, 0\ns_cbranch_scc1 L_w0b")
    A(f"s_mov_b32 s{sKo}, s{sA}\ns_mov_b32 s{sKo2}, s{sB}")
    poll(A, "L_pln", 40, sWS, f"s{sVo}", cond_nonce(A, "0xffff"), sleep=2)
    A(f"s_mov_b32 s{sA}, s{sKo}\ns_mov_b32 s{sB}, s{sKo2}")
    A(f"v_mov_b32 v42, s{sN0}\nv_mov_b32 v43, s{sN1}\nds_write_b64 v41, v[42:43]\ns_waitcnt lgkmcnt(0)")
    A("L_w0b:")
    A("s_barrier")
    stamp(A, 2)
    straight(A, xload(0) + xload(1))
    A("ds_read_b64 v[42:43], v41")
    order = [list(range(15))] * 9 + [[14, 12, 13] + list(range(12))]
    def wread(ch, pos, e, h):
        ct = order[ch][pos]
        n = 15 * ch + pos; d = KV + 8 * (n % 6) + 4 * e + 2 * h; sl = ch % 3
        if ct < 12:
            ks, p = ct >> 1, ct & 1
            a, o = (WA[ks & 1], sl * STG) if sl < 2 else (WA2[ks & 1], 0)
            return f"ds_read_b64_tr_b16 {vr(d,2)}, v{a} offset:{o + (ks >> 1)*128 + 8*p + e*12288 + h*6144}"
        return f"ds_read_b64_tr_b16 {vr(d,2)}, v{W1A[ct-12]} offset:{sl*8192 + e*4096 + h*2048}"
    mf = []
    for ch in range(10):
        for pos in range(15):
            ct = order[ch][pos]; n = 15 * ch + pos
            for qb in range(4):
                for i_, e in enumerate(snk(2, qb)):
                    acc = ar(4 * (ct * 4 + qb)) if ct < 12 else vr(HACC[ct] + 4 * qb)
                    c = "0" if (ch == 0 and i_ == 0 and ct < 12) else acc
                    mf.append(Ins(f"{MF} {acc}, {vr(KV + 8*(n%6) + 4*e)}, {vr(XB[ch%3] + 4*(qb*2+e))}, {c}"))
    G = Gaps(mf)
    for pos in range(3):
        for e in range(2):
            for h in range(2): A(wread(0, pos, e, h))
    A.l.append(lgw(rs(KV, 8)))
    A(f"v_readfirstlane_b32 s{sN0}, v42\nv_readfirstlane_b32 s{sN1}, v43")
    A.l.append(vmw({"X0"}))
    stamp(A, 3)
    for ch in range(10):
        b = 120 * ch
        for pos in range(12):
            n = 0
            for e in range(2):
                for h in range(2):
                    G.place(b + 8 * pos + 2 * n, wread(ch, pos + 3, e, h)); n += 1
        gb = b + 102
        G.put(gb, vmw({f"W{ch+1}"} if ch < 9 else {"K0", "V0"}, " lgkmcnt(0)")); G.put(gb, Ins("s_barrier"))
        if ch < 9:
            n = 0
            for pos in range(3):
                for e in range(2):
                    for h in range(2):
                        G.place(gb + 1 + n + n // 4, wread(ch + 1, pos, e, h)); n += 1
            G.put(b + 118, vmw({f"X{ch+1}"}))
        else:
            for ks in range(6): G.place(gb + 1 + 2 * ks, kread(0, 0, ks))
        for pos in range(15):
            n = 15 * ch + pos
            if b + 8 * pos - 1 >= 0: G.put(b + 8 * pos - 1, lgw(rs(KV + 8 * (n % 6), 8)))
        if ch + 2 < 10: lst = wdma(ch + 2) + xload(ch + 2)
        elif ch == 8: lst = kvdma(sK, KRING, 0, "K0") + kvdma(sV, VRING + STG, 0, "V0")
        else: lst = kvdma(sK, KRING + STG, 1, "K1") + kvdma(sV, VRING + 2 * STG, 1, "V1")
        g = spread(G, lst, b, b + (117 if ch < 9 else 100))
        assert g <= b + 120, g
    b = 1080
    spread(G, kvdma(sK, KRING + 2 * STG, 2, "K2"), b + 103, b + 119)
    k0 = -2.0 * LOG2E * math.sqrt(2.0 / math.pi) / CSC; k1 = k0 * 0.044715 / (CSC * CSC)
    HS = {14: sVo, 12: sVo2, 13: sInc}
    pre = [f"s_mov_b32 s{sA}, {fh(CSC)}", f"s_mov_b32 s{sB}, {fh(k1)}", f"s_mul_i32 s{sC}, s{sQB0}, {240*1024}", f"s_add_u32 s{sC}, s{sC}, {OH_OFF + 192*1024}", f"s_mul_i32 s{sD}, s{sHEAD}, 3"]
    for ct in (14, 12, 13):
        s_ = HS[ct]
        pre += [f"s_add_u32 s{s_}, s{sD}, {ct-12}", f"s_lshr_b32 s{sE}, s{s_}, 1", f"s_lshl_b32 s{sE}, s{sE}, 10", f"s_and_b32 s{s_}, s{s_}, 1", f"s_lshl_b32 s{s_}, s{s_}, 3",
                f"s_add_u32 s{s_}, s{s_}, s{sE}", f"s_add_u32 s{s_}, s{s_}, s{sC}"]
    pre += [f"s_lshl_b32 s{sFL}, s{sMT}, 1", f"s_add_u32 s{sFL}, s{sFL}, s{sQH}", f"s_lshl_b32 s{sFL}, s{sFL}, 8", f"s_add_u32 s{sG}, s{sFL}, {HF_OFF}",
            f"s_lshl_b32 s{sE}, s{sSP}, 1", f"s_add_u32 s{sE}, s{sE}, s{sKH}", f"s_lshl_b32 s{sE}, s{sE}, 2", f"s_lshl_b32 s{sMSK}, 15, s{sE}",
            f"s_lshl_b32 s{sE}, s{sQB0}, 6", f"s_and_b32 s{sE}, s{sE}, 0xffffff00", f"s_lshl_b32 s{sD}, s{sHEAD}, 3", f"s_add_u32 s{sQT}, s{sE}, s{sD}"]
    g = b - 118
    for t in pre: g = G.place(g, t) + 1
    assert g < b
    G.place(b - 30, f"v_mov_b32 v{T0}, {fh(k0)}"); G.place(b - 28, f"v_lshlrev_b32 v{T1}, 4, v0")
    def gelu_q(ct, tmp):
        q = []
        for qb in range(4):
            y = tmp + 8 * (qb & 1); pk = y + 4
            st = [(f"buffer_store_dwordx2 {vr(pk,2)}, v{T1}, {sr(sWS)}, s{HS[ct]} offen sc1", 0, False, "H")]
            if qb < 3: st.append((f"s_add_u32 s{HS[ct]}, s{HS[ct]}, {240*1024}", 0, False, None))
            q += gelu_ops(HACC[ct] + 4 * qb, y, pk, st)
        return q
    q = gelu_q(14, XB[1])
    q[0] = (q[0][0], b + 8 + 4, False, None)
    n = 0
    for ks in range(6):
        for qb in range(4):
            f = qb * 6 + ks; x = PB[0] + 16 * (n & 1); n += 1
            e = b + 24 + 16 * ks + 8 + 2 * qb + 1 + 5
            for p in range(2):
                for r in range(4): q.append((f"v_accvgpr_read_b32 v{x+4*p+r}, a{4*((2*ks+p)*4+qb)+r}", e, False, None))
            d = (x + 8) if f < 16 else QV + 4 * (f - 16)
            for i in range(4): q.append((f"v_cvt_pk_bf16_f32 v{d+i}, v{x+2*i}, v{x+2*i+1}", 0, False, None))
            if f < 16:
                for i in range(4): q.append((f"v_accvgpr_write_b32 a{192+4*f+i}, v{d+i}", 0, False, None))
    left = G.fill(q, b)
    A.ext(G.emit())
    stamp(A, 4)
    A("s_nop 7")
    straight(A, left)
    for i in range(4): A(f"ds_read_b64 {vr(244+2*i,2)}, v{VA[i]} offset:{6144*i}")
    A.l.append(lgw(rs(244, 8)))
    for i in range(8): A(f"v_and_b32 v{244+i}, 0x7fff7fff, v{244+i}")
    for i in range(4): A(f"v_pk_max_u16 v{244+i}, v{244+i}, v{248+i}")
    A("v_pk_max_u16 v244, v244, v245\nv_pk_max_u16 v246, v246, v247\nv_pk_max_u16 v244, v244, v246\nv_lshlrev_b32 v245, 16, v244\nv_max_u32 v244, v244, v245")
    A(f"v_cmp_le_u32 vcc, {fh(2.0**-6)}, v244\ns_mov_b32 s{sBI}, {fh(-BIAS_LO)}\ns_mov_b32 s{sLM}, {fh(2.0**(112-BIAS_LO))}\ns_cmp_lg_u64 vcc, 0")
    A(f"s_cselect_b32 s{sBI}, {fh(-BIAS)}, s{sBI}\ns_cselect_b32 s{sLM}, {fh(2.0**(112-BIAS))}, s{sLM}")
    G = Gaps(qk_mfmas(set())); qk_reads(G, 0, vpre=False)
    q = gelu_q(12, 240) + gelu_q(13, 240)
    for kb in range(4):
        mq = []
        for qb in range(4):
            m = NREF + 4 * qb; s_ = S(kb, qb); e = 6 * (4 * kb + qb) + 5 + 5
            if kb == 0: mq += [(f"v_max3_f32 v{m}, v{s_}, v{s_+1}, v{s_+2}", e, False, None), (f"v_max_f32 v{m}, v{m}, v{s_+3}", e, False, None)]
            else: mq += [(f"v_max3_f32 v{m}, v{m}, v{s_}, v{s_+1}", e, False, None), (f"v_max3_f32 v{m}, v{m}, v{s_+2}, v{s_+3}", e, False, None)]
        mleft = G.fill(mq, 0)
        assert kb == 3 or not mleft
    left = G.fill(q, 0)
    A.ext(G.emit())
    A.l.append(vmw({"K1"})); A("s_barrier")
    for r in KA: A(f"v_add_u32 v{r}, {STG}, v{r}")
    A("s_nop 4")
    for ks in range(6): A(kread(0, 0, ks))
    straight(A, mleft)
    for sw in ("v_permlane32_swap_b32", "v_permlane16_swap_b32"):
        for qb in range(4): A(f"v_mov_b32 v{NREF+4*qb+1}, v{NREF+4*qb}")
        for qb in range(4): A(f"{sw} v{NREF+4*qb}, v{NREF+4*qb+1}")
        for qb in range(4): A(f"v_max_f32 v{NREF+4*qb}, v{NREF+4*qb}, v{NREF+4*qb+1}")
    for qb in range(4): A(f"v_sub_f32 v{NREF+4*qb}, s{sBI}, v{NREF+4*qb}")
    for qb in range(4):
        for r in range(1, 4): A(f"v_mov_b32 v{NREF+4*qb+r}, v{NREF+4*qb}")
    straight(A, left)
    sm = sm_ops(0)
    for i in range(16):
        kb, qb = i >> 2, i & 3
        for r in range(4): A(f"v_add_f32 v{S(kb,qb)+r}, v{S(kb,qb)+r}, v{NREF+4*qb}")
        for t in sm[i][0]: A(t)
        if i > 0:
            for t in sm[i - 1][1] + sm[i - 1][2]: A(t)
    A("s_nop 0")
    for t in sm[15][1] + sm[15][2]: A(t)
    A(f"s_mov_b32 s{sNeg}, {-2 * STG & 0xffffffff}\ns_mov_b32 s{sSlot}, 0\ns_add_u32 s{sKo}, s{sWb}, {3*STG}\ns_mov_b32 s{sCnt}, 15")
    A(f"s_add_u32 s{sE}, s{sQT}, {HF_OFF}")
    A(f"v_mov_b32 v{T0}, s{sN0}\nv_mov_b32 v{T1}, s{sN1}")
    bp, bq = b_addr_ops()
    for t in bp: A(t)
    stamp(A, 5)
    A("s_waitcnt lgkmcnt(0)")
    Gf = gen_step(0, first=True)
    Gf.place(177, f"buffer_store_dwordx2 {vr(T0,2)}, v{ZV}, {sr(sWS)}, s{sE} offen sc1")
    assert not Gf.fill(bq, 0, 192)
    sf = Gf.emit()
    ex = [(177, f"buffer_load_dwordx2 {vr(T0,2)}, v{FLV}, {sr(sWS)}, s{sG} offen sc1")]
    A(f"s_getpc_b64 s[16:17]\nL_pc2:\ns_lshr_b32 s19, s2, 3\ns_lshl_b32 s19, s19, 2\ns_add_u32 s19, s19, s{sW}\ns_lshl_b32 s18, s{sW}, 13")
    A("s_add_u32 s18, s18, L_tail-L_pc2\ns_add_u32 s16, s16, s18\ns_addc_u32 s17, s17, 0")
    A(f"s_mul_i32 s18, s19, 15360\ns_mul_i32 s24, s{sSP}, {1536*1280}\ns_add_u32 s18, s18, s24\ns_add_u32 s26, s18, 8192")
    A(f"s_mul_i32 s19, s19, 3840\ns_mul_i32 s24, s{sSP}, {384*1280}\ns_add_u32 s19, s19, s24\ns_brev_b32 s27, 1")
    ex.append((181, f"global_load_dword v254, v{PFV}, s[16:17]"))
    ex.append((185, f"buffer_load_dword v254, v{PFV}, {sr(sWO)}, s24 offen"))
    G1 = gen_step(1, extra=[(179, f"buffer_load_dword v254, v{PFV}, {sr(sWO)}, s24 offen"), (185, f"buffer_load_dword v254, v{PFV}, {sr(sW2)}, s25 offen")])
    G0 = gen_step(0, extra=ex)
    G1.place2(150, f"s_cmp_eq_u32 s{sCnt}, 3", "s_cselect_b32 s24, s18, s27")
    G1.place2(160, f"s_cmp_eq_u32 s{sCnt}, 2", "s_cselect_b32 s25, s19, s27")
    G0.place2(150, f"s_cmp_eq_u32 s{sCnt}, 2", "s_cselect_b32 s24, s26, s27")
    G1.place(186, f"s_sub_u32 s{sCnt}, s{sCnt}, 1")
    G0.place(186, f"s_cmp_lg_u32 s{sCnt}, 0")
    s1 = G1.emit(); s0 = G0.emit()
    pro = list(A.l)
    auto_vm(pro); auto_lgkm(pro)
    auto_lgkm(sf); auto_lgkm(s1, pre=s0); auto_lgkm(s0, pre=s1)
    A.ext(sf)
    A(".p2align 6\nL_loop:")
    A.ext(s1); A.ext(s0); A("s_cbranch_scc1 L_loop")
    T = Asm()
    T("L_tail:")
    zst(T, 1, 1)
    stamp(T, 6)
    for db in range(3):
        for e in range(2):
            for h in range(2): T(vread(db, e, h))
    lred(T)
    T(f"v_cmp_nge_f32 vcc, s{sLM}, v{LS[0]}")
    for qb in range(1, 4): T(f"v_cmp_nge_f32 s[{sC}:{sC+1}], s{sLM}, v{LS[qb]}\ns_nop 0\ns_or_b64 vcc, vcc, s[{sC}:{sC+1}]")
    T(f"s_cmp_lg_u64 vcc, 0\ns_cselect_b32 s{sA}, 1, {opt['forcesafe']}\ns_lshl_b32 s{sB}, s{sW}, 2\ns_add_u32 s{sB}, s{sB}, {LDS_FL}")
    T(f"v_mov_b32 v{NREF}, s{sA}\nv_mov_b32 v{NREF+1}, s{sB}\nv_mov_b32 v{NREF+2}, {LDS_FL}")
    T(f"ds_write_b32 v{NREF+1}, v{NREF}")
    for qb in range(4): T(f"v_rcp_f32 v{LS[qb]}, v{LS[qb]}")
    for t in b_scalars(): T(t)
    ra = [t.replace(f"v_cndmask_b32 v{RA[2]},", "v_cndmask_b32 v254,").replace(f"v_cndmask_b32 v{RA[3]},", "v_cndmask_b32 v255,") for t in b_ra_ops()]
    b_ra_fin = [f"v_mov_b32 v{RA[2]}, v254", f"v_mov_b32 v{RA[3]}, v255", f"v_mov_b32 v254, s{sN0}", f"v_mov_b32 v255, s{sN1}"]
    T("s_waitcnt vmcnt(0) lgkmcnt(0)\ns_barrier")
    for t in ra: T(t)
    T(f"ds_read_b128 {vr(NREF+4)}, v{NREF+2}")
    poll(T, "L_ph", FLV, sWS, f"s{sG}", cond_nonce(T, f"s{sMSK}"), sleep=8, precheck=True)
    for t in oepi_pre(): T(t)
    if opt["tst"] == 1: stamp(T, 7)
    G = Gaps(pv_mfmas(1)); pv_reads(G, 0)
    G.put(3, lgw(rs(NREF + 4, 4)))
    G.place(4, f"v_or3_b32 v{NREF}, v{NREF+4}, v{NREF+5}, v{NREF+6}"); G.place(5, f"v_or_b32 v{NREF}, v{NREF}, v{NREF+7}")
    G.place(7, f"v_readfirstlane_b32 s{sE}, v{NREF}")
    gck = G.place2(9, f"s_cmp_lg_u32 s{sE}, 0", "s_cbranch_scc1 L_safe")
    ylo = b_wdma(sW2, "W0", 0) + oload(0, "O0") + b_wdma(sW2, "W1", STB) + oload(1, "O1")
    g = spread(G, ylo, gck + 1, 94)
    oq, _ = oepi_ops()
    cut = [i for i, x in enumerate(oq) if x[3] == "OST"][11] + 1
    left = G.fill(oq[:cut], 12)
    T.ext(G.emit())
    if opt["tst"] == 2: stamp(T, 7)
    zst(T, 1, 2)
    T("s_nop 7")
    straight(T, left)
    T("L_join:")
    zst(T, 1, 3)
    if opt["tst"] == 0: stamp(T, 7)
    for t in b_ra_fin: T(t)
    T.l.append(vmw({"W0", "O0"})); T("s_barrier")
    for nb in range(3):
        for e in range(2):
            for h in range(2): T(bread(0, nb, e, h))
    T(f"s_add_u32 s{sG}, s{sQT}, {AF_OFF}")
    T("s_waitcnt lgkmcnt(0)")
    zst(T, 1, 4)
    late = [(t, 0, ng, tag) for (t, e, ng, tag) in oq[cut:]]
    c0, late = b_chunk(0, b_wdma(sW2, "W2", 2 * STB) + oload(2, "O2"), {"W1"}, {"O1"}, czero=True, fillq=late)
    T.ext(c0); straight(T, late); print("y0 leftover", len(late), file=sys.stderr)
    zst(T, 1, 5)
    afl = f"buffer_store_dwordx2 v[254:255], v{ZV}, {sr(sWS)}, s{sG} offen sc1"
    so = {1: 18, 2: 19, 3: 16}; sYC, sXC, sYF, sXF = 26, 27, 24, 25
    a1 = [f"v_lshlrev_b32 v4, 4, v0", f"s_mul_i32 s{sE}, s{sW}, 20480", f"v_add_u32 v2, s{sE}, v4", f"s_xor_b32 s{sE}, s{sW}, 2", f"s_mul_i32 s{sE}, s{sE}, 20480", f"v_add_u32 v3, s{sE}, v4",
          "v_lshlrev_b32 v1, 3, v0", "v_add_u32 v1, 2048, v1", f"s_mov_b32 s{sVo}, s{sH}", f"s_lshl_b32 s{sH}, s{sMT}, 2", f"s_add_u32 s{sH}, s{sH}, s{sNT}"]
    c1, left = b_chunk(1, [], {"W2", "OST"}, {"O2"}, after_barrier=afl, fillq=a1); assert not left
    T.ext(c1)
    zst(T, 1, 6)
    a2 = slot_scalars(YC_OFF, so, sYC)
    a2 += [f"s_lshl_b32 s{sE}, s{sH}, 2", f"s_add_u32 s{sE}, s{sE}, s{sW}", f"s_lshl_b32 s{sE}, s{sE}, 6", f"s_add_u32 s{sYF}, s{sE}, {YF_OFF}", f"s_add_u32 s{sXF}, s{sE}, {XF_OFF}",
           f"s_add_u32 s{sG}, s{sFL}, {AF_OFF}", f"s_mov_b32 s{sKo}, s{sF}"]
    c2, left = b_chunk(2, [], None, None, nxt=False, xw=True, fillq=a2); assert not left
    T.ext(c2)
    zst(T, 1, 7); stamp(T, 8)
    YO = 80; YP = 100
    try_ = lambda i, r: (YO + 4 * i, 48 + 4 * i, 130 + 4 * i, 192 + 4 * i if i < 4 else 232)[r]
    T("s_waitcnt lgkmcnt(0)\ns_barrier")
    xchg_reads(T, try_)
    straight(T, b_wdma(sWO, "W2", 2 * STB))
    poll(T, "L_pat", FLV, sWS, f"s{sG}", cond_nonce(T, f"s{sMSK}"), sleep=4)
    stamp(T, 9); zst(T, 1, 8); zst(T, 2, 1)
    straight(T, oload(2, "O2") + oload(0, "O0"))
    T("s_waitcnt lgkmcnt(0)\ns_barrier")
    straight(T, b_wdma(sWO, "W0", 0))
    for nb in range(3):
        for e in range(2):
            for h in range(2): T(bread(2, nb, e, h))
    yst = xchg_sum(T, try_, YP, so, False)
    T(f"s_mov_b32 s{sCnt}, 2\ns_lshl_b32 s{sE}, s{sSP}, 3\ns_add_u32 s{sG}, s{sYF}, s{sE}")
    zst(T, 1, 9)
    T.l.append(vmw({"O2"}, " lgkmcnt(0)"))
    zst(T, 1, 10); zst(T, 2, 2)
    def sl(u): return b_wdma(sWO, f"W{(u+2)%3}", ((u + 2) % 3) * STB) + oload((u + 2) % 3, f"O{(u+2)%3}")
    def nx(k, u): return {f"{k}{(u+1)%3}"}
    for n, u in enumerate((2, 0, 1)):
        T.ext(b_chunk(u, merge(sl(u), yst[5 * n: 5 * n + 5]), nx("W", u), nx("O", u), czero=(n == 0)))
        zst(T, 2, 3 + n)
    zst(T, 1, 11)
    tail = list(T.l)
    auto_lgkm(tail, pre=s0); auto_vm(tail)
    A.ext(tail)
    steps = [b_chunk(2, sl(2), nx("W", 2), nx("O", 2), first_gap=[f"s_sub_u32 s{sCnt}, s{sCnt}, 1"]),
             b_chunk(0, sl(0), nx("W", 0), nx("O", 0), after_barrier=f"buffer_store_dwordx2 v[254:255], v{ZV}, {sr(sWS)}, s{sG} offen sc1"),
             b_chunk(1, sl(1), nx("W", 1), nx("O", 1), last_gap=[f"s_cmp_lg_u32 s{sCnt}, 0"])]
    for u in range(3):
        auto_lgkm(steps[u], pre=steps[(u + 2) % 3]); auto_vm(steps[u], pre=steps[(u + 1) % 3] + steps[(u + 2) % 3])
    A(".p2align 6\nL_bloop:")
    for u in range(3): A.ext(steps[u])
    A("s_cbranch_scc1 L_bloop")
    PKS = 48; XL = 16; B2L = 26
    E = Asm()
    zst(E, 2, 6)
    E(f"v_and_b32 v6, 3, v0\nv_lshlrev_b32 v6, 3, v6\ns_lshl_b32 s{sMSK}, 1, s{sSP}\ns_xor_b32 s{sMSK}, s{sMSK}, 15")
    a3 = [f"s_mul_i32 s{sE}, s{sKH}, 40960", f"v_add_u32 v2, s{sE}, v2", f"s_sub_u32 s{sE}, 40960, s{sE}", f"v_add_u32 v3, s{sE}, v3",
          "v_lshrrev_b32 v7, 4, v0", "v_lshlrev_b32 v7, 3, v7", "v_and_b32 v5, 15, v0", "v_mul_u32_u24 v5, 1280, v5", "v_add_u32 v5, v5, v7"]
    c, left = b_chunk(2, [(f"buffer_load_dwordx2 {vr(T0,2)}, v6, {sr(sWS)}, s{sYF} offen sc1", "YF")] + sl(2), nx("W", 2), nx("O", 2), fillq=a3); assert not left
    E.ext(c)
    E.l.append(vmw({"YF"}))
    poll(E, "L_py", 6, sWS, f"s{sYF}", cond_nonce(E, f"s{sMSK}"), sleep=4, precheck=True)
    zst(E, 2, 7)
    a4 = [f"s_lshr_b32 s{sC}, s{sFL}, 6", f"s_add_u32 s{sC}, s{sC}, s{sSP}", f"s_mul_i32 s{sKo}, s{sC}, 20480",
          f"s_mul_i32 s{sC}, s{sNT}, 320", f"s_mul_i32 s{sB}, s{sKH}, 160", f"s_add_u32 s{sC}, s{sC}, s{sB}", f"s_add_u32 s{sKo}, s{sKo}, s{sC}"]
    E.ext(b_chunk(0, inbox_loads(sYC, YP, "YL") + a4, nx("W", 0), nx("O", 0), lim=50))
    zst(E, 2, 8)
    l2 = [(f"buffer_load_dwordx2 {vr(B2L+2*i,2)}, v7, {sr(sB2)}, s{sC} offen offset:{32*i}", "YL") for i in range(5)]
    l2 += [(f"buffer_load_dwordx2 {vr(XL+2*i,2)}, v5, {sr(sX)}, s{sKo} offen offset:{32*i}", "YL") for i in range(5)]
    a5 = slot_scalars(XC_OFF, so, sXC) + [f"s_lshl_b32 s{sE}, s{sSP}, 3", f"s_add_u32 s{sG}, s{sXF}, s{sE}"]
    c, left = b_chunk(1, l2, None, None, nxt=False, xw=True, lim=36, fillq=a5); assert not left
    E.ext(c)
    stamp(E, 10); zst(E, 2, 9); zst(E, 3, 1)
    auto_lgkm(E.l, pre=steps[2]); auto_vm(E.l, pre=steps[1] + steps[2])
    trs = lambda i, r: 160 + 20 * r + 4 * i
    E("s_waitcnt lgkmcnt(0)\ns_barrier")
    xchg_reads(E, trs)
    xchg_sum(E, trs, PKS, so, True)
    zst(E, 2, 10); zst(E, 3, 2)
    E("s_waitcnt vmcnt(9)")
    for i in range(5):
        g_ = YO + 4 * i
        for p in range(4):
            t = 130 + 4 * (p & 1); src = (B2L + 2 * i) if p == 3 else (YP + 10 * p + 2 * i)
            for k in range(2): E(f"v_lshlrev_b32 v{t+2*k}, 16, v{src+k}\nv_and_b32 v{t+2*k+1}, 0xffff0000, v{src+k}")
            for k in range(4): E(f"v_add_f32 v{g_+k}, v{g_+k}, v{t+k}")
    zst(E, 3, 3)
    E("s_waitcnt vmcnt(0)")
    zst(E, 3, 4)
    E(f"buffer_store_dwordx2 v[254:255], v{ZV}, {sr(sWS)}, s{sG} offen sc1")
    for i in range(5):
        g_ = YO + 4 * i; t = 130 + 4 * i
        for k in range(4): E(f"v_mul_f32 v{t+k}, {fh(-LOG2E)}, v{g_+k}")
        for k in range(4): E(f"v_exp_f32 v{t+k}, v{t+k}")
        for k in range(4): E(f"v_add_f32 v{t+k}, 1.0, v{t+k}")
        for k in range(4): E(f"v_rcp_f32 v{t+k}, v{t+k}")
        for k in range(4): E(f"v_mul_f32 v{g_+k}, v{g_+k}, v{t+k}")
        for k in range(2): E(f"v_lshlrev_b32 v{t+2*k}, 16, v{XL+2*i+k}\nv_and_b32 v{t+2*k+1}, 0xffff0000, v{XL+2*i+k}")
    zst(E, 3, 5)
    poll(E, "L_pxc", 6, sWS, f"s{sXF}", cond_nonce(E, f"s{sMSK}"), sleep=1)
    stamp(E, 11); zst(E, 2, 11); zst(E, 3, 6)
    straight(E, inbox_loads(sXC, PKS, "XL"))
    for r in (1, 2, 3):
        E(f"s_waitcnt vmcnt({9-3*r})")
        for i in range(5):
            x = trs(i, 0); t = trs(i, 1); p = PKS + 10 * (r - 1) + 2 * i
            for k in range(2): E(f"v_lshlrev_b32 v{t+2*k}, 16, v{p+k}\nv_and_b32 v{t+2*k+1}, 0xffff0000, v{p+k}")
            for k in range(4): E(f"v_add_f32 v{x+k}, v{x+k}, v{t+k}")
    for i in range(5):
        x = trs(i, 0)
        for k in range(4): E(f"v_fma_f32 v{x+k}, v{x+k}, v{YO+4*i+k}, v{130+4*i+k}")
        for k in range(2): E(f"v_cvt_pk_bf16_f32 v{trs(i,2)+k}, v{x+2*k}, v{x+2*k+1}")
        E(f"buffer_store_dwordx2 {vr(trs(i,2),2)}, v5, {sr(sOUT)}, s{sKo} offen offset:{32*i}")
    if opt["stamp"]:
        E("s_waitcnt vmcnt(0)")
        E("s_memrealtime s[4:5]\ns_memtime s[6:7]\ns_load_dwordx2 s[8:9], s[0:1], 96\ns_waitcnt lgkmcnt(0)")
        E(f"s_add_u32 s8, s8, {ST_OFF}\ns_addc_u32 s9, s9, 0\ns_and_b32 s9, s9, 0xffff\ns_mov_b32 s10, 0x40000\ns_mov_b32 s11, 0x20000")
        E(f"s_lshl_b32 s12, s2, 2\ns_add_u32 s12, s12, s{sW}\ns_lshl_b32 s12, s12, 7\nv_mov_b32 v2, 0\ns_mov_b64 exec, 1")
        for i in range(NST[0] + 1):
            a, b_ = (78 + 2 * i, 79 + 2 * i) if i < NST[0] else (4, 6)
            E(f"v_mov_b32 v{16+2*i}, s{a}\nv_mov_b32 v{17+2*i}, s{b_}\nbuffer_store_dwordx2 v[{16+2*i}:{17+2*i}], v2, s[8:11], s12 offen offset:{8*i}")
    ec = list(E.l)
    A.ext(ec)
    A("L_done:\ns_endpgm")
    F = Asm()
    F("L_safe:")
    F("s_waitcnt vmcnt(0) lgkmcnt(0)\ns_nop 7")
    for r in KA: F(f"v_subrev_u32 v{r}, {2*STG}, v{r}")
    for r in VA: F(f"v_subrev_u32 v{r}, {2*STG}, v{r}")
    for i in range(192): F(f"v_accvgpr_write_b32 a{i}, 0")
    MX = PB[1]
    for qb in range(4): F(f"v_mov_b32 v{LS[qb]}, 0\nv_mov_b32 v{MX+qb}, 0xff7fffff")
    F(f"s_mov_b32 s{sSlot}, s{sWb}\ns_mov_b32 s{sCnt}, 32")
    Fp = list(F.l)
    L = Asm()
    L("L_sloop:")
    L("s_barrier")
    for srd_, base in ((sK, KRING), (sV, VRING)):
        for hf in range(2):
            L(f"s_add_u32 s{sInc}, s{sSlot}, {3072*hf}\ns_add_u32 m0, s{sWb}, {base + 3072*hf}\ns_nop 0")
            for j in range(3): L(f"buffer_load_dwordx4 v{DSR[j]}, {sr(srd_)}, s{sInc} offen offset:{1024*j} lds")
    L(f"s_add_u32 s{sSlot}, s{sSlot}, {STG}")
    L("s_waitcnt vmcnt(0)\ns_barrier")
    for ks in range(6): L(kread(0, 0, ks))
    L("s_waitcnt lgkmcnt(0)")
    G = Gaps(qk_mfmas(set())); qk_reads(G, 0, vpre=True)
    L.ext(G.emit())
    L("s_nop 7")
    for qb in range(4):
        m = NREF + 4 * qb
        v = [S(kb, qb) + r for kb in range(4) for r in range(4)]
        L(f"v_max3_f32 v{m}, v{v[0]}, v{v[1]}, v{MX+qb}")
        for i in range(2, 16, 2): L(f"v_max3_f32 v{m}, v{m}, v{v[i]}, v{v[i+1]}")
    for sw in ("v_permlane32_swap_b32", "v_permlane16_swap_b32"):
        for qb in range(4): L(f"v_mov_b32 v{NREF+4*qb+1}, v{NREF+4*qb}")
        for qb in range(4): L(f"{sw} v{NREF+4*qb}, v{NREF+4*qb+1}")
        for qb in range(4): L(f"v_max_f32 v{NREF+4*qb}, v{NREF+4*qb}, v{NREF+4*qb+1}")
    for qb in range(4): L(f"v_sub_f32 v{NREF+4*qb+1}, v{MX+qb}, v{NREF+4*qb}")
    for qb in range(4): L(f"v_exp_f32 v{NREF+4*qb+1}, v{NREF+4*qb+1}")
    for qb in range(4): L(f"v_mov_b32 v{MX+qb}, v{NREF+4*qb}")
    for qb in range(4): L(f"v_mul_f32 v{LS[qb]}, v{LS[qb]}, v{NREF+4*qb+1}")
    for db in range(12):
        for qb in range(4):
            t = PB[1] + 8 + 4 * ((db * 4 + qb) % 4)
            for r in range(4): L(f"v_accvgpr_read_b32 v{t+r}, a{O(db,qb)+r}")
            for r in range(4): L(f"v_mul_f32 v{t+r}, v{t+r}, v{NREF+4*qb+1}")
            for r in range(4): L(f"v_accvgpr_write_b32 a{O(db,qb)+r}, v{t+r}")
    for kb in range(4):
        for qb in range(4):
            for r in range(4): L(f"v_sub_f32 v{S(kb,qb)+r}, v{S(kb,qb)+r}, v{MX+qb}")
    for (ex, ad, cv) in sm_ops(0):
        for t in ex: L(t)
        L("s_nop 0")
        for t in ad + cv: L(t)
    L("s_waitcnt lgkmcnt(0)\ns_nop 1")
    G = Gaps(pv_mfmas(0)); pv_reads(G, 0)
    L.ext(G.emit())
    L(f"s_sub_u32 s{sCnt}, s{sCnt}, 1\ns_cmp_lg_u32 s{sCnt}, 0\ns_cbranch_scc1 L_sloop")
    auto_lgkm(L.l)
    X = Asm()
    X("s_waitcnt lgkmcnt(0)\ns_barrier")
    lred(X)
    for qb in range(4): X(f"v_rcp_f32 v{LS[qb]}, v{LS[qb]}")
    straight(X, ylo)
    straight(X, oq[:cut])
    X("s_waitcnt vmcnt(0)\ns_branch L_join")
    A.ext(Fp); A.ext(L.l); A.ext(X.l)
    j = [i for i, x in enumerate(tail) if x.text == "L_join:"][0]
    ck = [i for i, x in enumerate(tail) if "L_safe" in x.text][0]
    bl = steps[0] + steps[1] + steps[2]
    main = pro + sf + s1 + s0 + s1 + s0 + tail + bl + bl + ec
    problems += check_hazards(main, "main"); problems += check_waits(main, "main")[0]
    safe = s0 + tail[:ck + 1] + Fp + L.l + L.l + X.l + tail[j:]
    problems += check_hazards(safe, "safe"); problems += check_waits(safe, "safe")[0]
    return A.text()

body = gen()
kn = NAME + "_kernel"
out = f"""; generated by gen/gen5.py (own generator): one persistent launch, 1 workgroup per CU
; @launch grid=(256,1,1) block=(256,1,1) lds={LDS_SZ}
.amdgcn_target "amdgcn-amd-amdhsa--gfx950"
.text
.globl {kn}
.p2align 8
.type {kn},@function
{kn}:
{body}
.section .rodata,"a"
.p2align 6
.amdhsa_kernel {kn}
  .amdhsa_next_free_vgpr 512
  .amdhsa_next_free_sgpr 102
  .amdhsa_accum_offset 256
  .amdhsa_group_segment_fixed_size 0
  .amdhsa_kernarg_size 104
  .amdhsa_user_sgpr_count 2
  .amdhsa_user_sgpr_kernarg_segment_ptr 1
  .amdhsa_system_sgpr_workgroup_id_x 1
.end_amdhsa_kernel
"""
if problems:
    for p in sorted(set(problems)): print(p, file=sys.stderr)
    print(f"{len(set(problems))} problems", file=sys.stderr)
sys.stdout.write(out)
```

```python
import re

RE_RANGE = re.compile(r'\b([vas])\[(\d+):(\d+)\]')
RE_SINGLE = re.compile(r'\b([vas])(\d+)\b')

def regs_of(tok):
    out = []
    t = tok
    for m in RE_RANGE.finditer(t):
        out += [f"{m.group(1)}{i}" for i in range(int(m.group(2)), int(m.group(3)) + 1)]
    t = RE_RANGE.sub(" ", t)
    for m in RE_SINGLE.finditer(t):
        out.append(f"{m.group(1)}{m.group(2)}")
    for sp in ("vcc", "m0", "exec"):
        if re.search(r'\b' + sp + r'(_lo|_hi)?\b', t): out.append(sp)
    return out

TRANS = ("v_exp_f32", "v_log_f32", "v_rcp_f32", "v_rsq_f32", "v_sqrt_f32")

class Ins:
    __slots__ = ("text", "op", "kind", "rd", "wr", "tag", "srcc", "n")
    def __init__(self, text, tag=None):
        self.text = text; self.tag = tag
        code = text.split(";")[0].strip()
        self.rd = set(); self.wr = set(); self.srcc = set(); self.n = 1
        if code.endswith(":") or code.startswith(".") or not code:
            self.op = code; self.kind = "label" if code.endswith(":") else "dir"; self.n = 0
            return
        parts = code.split(None, 1)
        op = parts[0]; self.op = op
        ops = [o.strip() for o in parts[1].split(",")] if len(parts) > 1 else []
        R = lambda i: set(regs_of(ops[i]))
        allr = lambda a: set().union(*[set(regs_of(o)) for o in ops[a:]]) if len(ops) > a else set()
        if op.startswith("v_mfma"):
            self.kind = "mfma"; self.wr = R(0); self.rd = allr(1); self.srcc = R(3)
        elif op.startswith("ds_read") or op.startswith("ds_bpermute") or op.startswith("ds_swizzle"):
            self.kind = "ds"; self.wr = R(0); self.rd = allr(1)
        elif op.startswith("ds_write") or op.startswith("ds_add"):
            self.kind = "ds"; self.rd = allr(0)
        elif op.startswith("buffer_load") or op.startswith("global_load"):
            self.kind = "vmem"
            if re.search(r'\blds\b', code): self.rd = allr(0) | {"m0"}
            else: self.wr = R(0); self.rd = allr(1)
        elif op.startswith("buffer_store") or op.startswith("global_store") or op.startswith("buffer_atomic") or op.startswith("global_atomic"):
            self.kind = "vmem"; self.rd = allr(0)
        elif op.startswith("buffer_inv") or op.startswith("buffer_wbl2"):
            self.kind = "vmem"
        elif op.startswith("s_load") or op.startswith("s_memtime") or op.startswith("s_memrealtime"):
            self.kind = "smem"; self.wr = R(0); self.rd = allr(1)
        elif op == "s_waitcnt": self.kind = "wait"
        elif op == "s_nop": self.kind = "nop"; self.n = int(ops[0], 0) + 1
        elif op == "s_barrier": self.kind = "barrier"
        elif op.startswith("s_cbranch") or op == "s_branch": self.kind = "branch"
        elif op in ("s_endpgm", "s_setprio", "s_sleep"): self.kind = "salu"
        elif op.startswith(("s_cmp", "s_bitcmp")):
            self.kind = "salu"; self.rd = allr(0)
        elif op.startswith("s_"):
            self.kind = "salu"; self.wr = R(0); self.rd = allr(1)
            if "saveexec" in op: self.wr |= {"exec"}
        elif op.startswith("v_"):
            self.kind = "trans" if op.split("_e")[0] in TRANS or op in TRANS else "valu"
            if op == "v_nop": pass
            elif op.startswith("v_cmp"):
                self.wr = R(0); self.rd = allr(1)
            elif op.startswith("v_permlane") and "swap" in op:
                self.wr = R(0) | R(1); self.rd = R(0) | R(1)
            elif op.startswith("v_readfirstlane") or op.startswith("v_readlane"):
                self.wr = R(0); self.rd = allr(1)
            elif op.startswith("v_fmac") or op.startswith("v_writelane"):
                self.wr = R(0); self.rd = allr(0)
            elif op.startswith(("v_add_co", "v_addc_co", "v_sub_co")):
                self.wr = R(0) | R(1); self.rd = allr(2)
            else:
                self.wr = R(0); self.rd = allr(1)
        else:
            raise Exception("unknown op " + op)

def isvec(r): return r[0] in "va" and r != "vcc"
def issg(r): return r[0] == "s" or r == "vcc"

def check_hazards(seq, where=""):
    probs = check_scc(seq, where)
    live = [x for x in seq if x.n > 0]
    for i, c in enumerate(live):
        dist = 0
        for j in range(i - 1, max(-1, i - 30), -1):
            p = live[j]
            need = 0; why = ""
            pv = p.kind in ("valu", "trans")
            cv = c.kind in ("valu", "trans")
            if pv and c.kind == "mfma" and (p.wr & c.rd): need, why = 2, "valu->mfma"
            if p.kind == "mfma":
                if c.kind == "mfma":
                    ab = c.rd - c.srcc
                    if p.wr & ab: need, why = 8, "mfma D->A/B"
                    elif (p.wr & c.srcc) and p.wr != c.srcc: need, why = 6, "mfma D->C partial"
                    elif (p.wr & c.wr) and not (p.wr & c.srcc): need, why = max(need, 6), "mfma WAW"
                elif cv and (p.wr & (c.rd | c.wr)): need, why = 8, "mfma D->valu"
                elif c.kind in ("ds", "vmem") and (p.wr & (c.rd | c.wr)): need, why = 8, "mfma D->mem"
                if cv and (p.srcc & c.wr) and need < 3: need, why = 3, "mfma C WAR"
            if p.kind == "trans" and c.kind == "valu" and (p.wr & c.rd) and need < 1: need, why = 1, "trans->valu"
            if p.kind == "trans" and c.kind in ("ds", "vmem") and (p.wr & c.rd) and need < 1: need, why = 1, "trans->mem"
            if pv and c.op.startswith("v_permlane") and (p.wr & c.rd) and need < 2: need, why = 2, "valu->permlane"
            if pv and ("dpp" in c.text or "row_" in c.text) and (p.wr & c.rd) and need < 2: need, why = 2, "valu->dpp"
            if pv and (c.op.startswith("v_readfirstlane") or c.op.startswith("v_readlane")) and {r for r in p.wr & c.rd if isvec(r)} and need < 1: need, why = 1, "valu->readlane"
            if pv and c.kind == "vmem" and {r for r in p.wr & c.rd if issg(r)} and need < 5: need, why = 5, "valu sgpr->vmem"
            if pv and cv and {r for r in p.wr & c.rd if issg(r)} and need < 2: need, why = 2, "valu sgpr->valu"
            if pv and c.kind == "salu" and {r for r in p.wr & c.rd if issg(r)} and need < 1: need, why = 1, "valu sgpr->salu (pad)"
            if p.kind == "salu" and "m0" in p.wr and c.kind == "vmem" and "m0" in c.rd and need < 1: need, why = 1, "m0->dma"
            if p.kind == "vmem" and "store" in p.op and ("x4" in p.op or "x3" in p.op) and (c.wr & {r for r in p.rd if isvec(r)}) and need < 2: need, why = 2, "store data WAR"
            if p.op.startswith("v_dot") and (p.wr & (c.rd | c.wr)) and need < 3:
                last = set(regs_of(c.text.split(";")[0].split(",")[-1])) if c.op == p.op else set()
                if not (c.op == p.op and (p.wr & c.rd) <= last and not ((p.wr & c.rd) & (set(regs_of(",".join(c.text.split(",")[1:3])))))): need, why = 3, "dot->other"
            if pv and "exec" in p.wr and c.kind == "mfma" and need < 4: need, why = 4, "exec->mfma"
            if dist < need:
                probs.append(f"{where} HAZARD {why}: need {need} have {dist}: [{p.text}] -> [{c.text}]")
            dist += p.n
            if dist >= 12: break
    return probs

SCC_W = ("s_add", "s_sub", "s_cmp", "s_bitcmp", "s_and", "s_or", "s_xor", "s_lshl", "s_lshr", "s_ashr", "s_bfe", "s_min", "s_max", "s_andn2", "s_not", "s_addk", "s_abs")
def check_scc(seq, where=""):
    probs = []; last = None
    for c in seq:
        if c.n == 0: continue
        if c.op.startswith(("s_cbranch_scc", "s_cselect")):
            if last is None or not last.op.startswith(("s_cmp", "s_bitcmp")): probs.append(f"{where} SCC: [{last.text if last else None}] feeds [{c.text}]")
        if c.op.startswith(("s_addc", "s_subb")):
            if last is None or not last.op.startswith(("s_add_u32", "s_sub_u32")): probs.append(f"{where} SCC: [{last.text if last else None}] feeds [{c.text}]")
        if c.op.startswith(SCC_W): last = c
    return probs

def check_waits(seq, where="", vm0=None, lg0=None):
    probs = []
    lg = list(lg0 or []); vm = list(vm0 or [])
    for c in seq:
        if c.n == 0: continue
        if c.kind == "wait":
            m = re.search(r'lgkmcnt\((\d+)\)', c.text)
            if m:
                n = int(m.group(1)); lg = lg[len(lg) - n:] if n < len(lg) else lg
                if n == 0: lg = []
            m = re.search(r'vmcnt\((\d+)\)', c.text)
            if m:
                n = int(m.group(1)); vm = vm[len(vm) - n:] if n < len(vm) else vm
                if n == 0: vm = []
            continue
        for q, nm in ((lg, "lgkm"), (vm, "vm")):
            for o in q:
                if o.wr & (c.rd | c.wr) and not (o.kind == c.kind and not (o.wr & c.rd)):
                    probs.append(f"{where} WAIT {nm}: [{o.text}] outstanding at [{c.text}]")
        if c.kind in ("ds", "smem"): lg.append(c)
        if c.kind == "vmem": vm.append(c)
        if len(lg) > 15 and c.kind == "ds": pass
    return probs, vm, lg

class Asm:
    def __init__(self): self.l = []
    def __call__(self, text, tag=None):
        for t in text.split("\n"):
            t = t.strip()
            if t: self.l.append(Ins(t, tag))
    def ext(self, seq): self.l += seq
    def text(self): return "\n".join(("" if x.kind in ("label", "dir") else "    ") + x.text for x in self.l)

def auto_lgkm(seq, pre=None):
    q = []
    def step(c, fix):
        nonlocal q
        if c.kind == "wait":
            if "lgkmcnt(?)" in c.text or (c.tag and isinstance(c.tag, tuple) and c.tag[0] == "lg"):
                need = c.tag[1]
                last = -1
                for k, o in enumerate(q):
                    if o.wr & need: last = k
                n = len(q) - 1 - last
                n = min(n, 15)
                if fix: c.text = re.sub(r'lgkmcnt\([^)]*\)', f'lgkmcnt({n})', c.text)
                q = q[len(q) - n:] if n < len(q) else q
                if n == 0: q = []
            else:
                m = re.search(r'lgkmcnt\((\d+)\)', c.text)
                if m:
                    n = int(m.group(1)); q = q[len(q) - n:] if 0 < n < len(q) else ([] if n == 0 else q)
        elif c.kind in ("ds", "smem"): q.append(c)
    for c in (pre or []): step(c, False)
    for c in seq: step(c, True)

def auto_vm(seq, pre=None):
    q = []
    def step(c, fix):
        nonlocal q
        if c.kind == "wait":
            if c.tag and isinstance(c.tag, tuple) and c.tag[0] == "vm":
                need = c.tag[1]
                last = -1
                for k, o in enumerate(q):
                    if o.tag in need: last = k
                n = len(q) - 1 - last
                assert n <= 63
                if fix: c.text = re.sub(r'vmcnt\([^)]*\)', f'vmcnt({n})', c.text)
                q = q[len(q) - n:] if 0 < n < len(q) else ([] if n == 0 else q)
            else:
                m = re.search(r'vmcnt\((\d+)\)', c.text)
                if m:
                    n = int(m.group(1)); q = q[len(q) - n:] if 0 < n < len(q) else ([] if n == 0 else q)
        elif c.kind == "vmem": q.append(c)
    for c in (pre or []): step(c, False)
    for c in seq: step(c, True)
```

```python
import sys, math, struct, re
from asmlib import *

NAME = "recurrent_scan__gqa_block_cached__dense_activation_gelu__prompt"
def f2u(x): return struct.unpack("<I", struct.pack("<f", x))[0]
def fh(x): return f"0x{f2u(x):08x}"
LOG2E = math.log2(math.e)
CSC = LOG2E / math.sqrt(192.0)
XS_OFF = 0
OH_OFF = 0x400000
YC_OFF = 0x2400000
XC_OFF = 0x3c00000
FL_OFF = 0x4800000
AF_OFF = FL_OFF; HF_OFF = FL_OFF + 0x4000; XF_OFF = FL_OFF + 0x8000; YF_OFF = FL_OFF + 0xc000; LF_OFF = FL_OFF + 0x10000
WS_SZ = 0x5000000
ST_OFF = 0x8000000
LDS_LN = 147456; LDS_FL = LDS_LN + 2048; LDS_SZ = LDS_FL + 64
SPIN = 1 << 18

opt = dict(stamp=0, forcesafe=0, pf=1, warm=0, pst=128, snake=1, bias=102, opf=0, dense=4, zoom=0, pace="5,10,9,0", afc=2, afg=10, lim1=64, wqpf=1, aflg=60, pk=1, nearly=8, tst=0)
for a in sys.argv[1:]:
    k, v = a.split("="); opt[k] = type(opt.get(k, ""))(v)
problems = []
BIAS = opt["bias"]; BIAS_LO = 48
def snk(n, i): return list(range(n))[::-1] if (opt["snake"] and i & 1) else list(range(n))

def vr(b, n=4): return f"v[{b}:{b+n-1}]"
def ar(b, n=4): return f"a[{b}:{b+n-1}]"
def sr(b, n=4): return f"s[{b}:{b+n-1}]"
def rs(b, n): return {f"v{i}" for i in range(b, b + n)}
def lgw(regs): return Ins("s_waitcnt lgkmcnt(?)", ("lg", regs))
def vmw(tags, extra=""): return Ins("s_waitcnt vmcnt(?)" + extra, ("vm", set(tags)))
MF = "v_mfma_f32_16x16x32_bf16"

sK, sV, sWQ, sW1, sWS, sB1, sX, sDBG, sOUT, sWO, sB2, sW2 = 4, 8, 12, 16, 20, 24, 28, 32, 36, 40, 44, 48
sSP = 3
(sW, sHEAD, sQT, sQB0, sKo, sKo2, sVo, sVo2, sSlot, sM, sInc, sCnt, sA, sB, sC, sD, sWb, sNeg, sN0, sN1,
 sMT, sNT, sE, sF, sKH, sQH) = range(52, 78)
sMSK, sFL, sG, sH = 12, 13, 14, 15
sBI, sLM = 32, 33
KT = 76
NST = [0]
def zst(A, z, i):
    if opt["zoom"] == z: stamp(A, i, True)
def stamp(A, i, force=False):
    if opt["zoom"] and not force: return
    if opt["stamp"]:
        A(f"s_memrealtime vcc\ns_waitcnt lgkmcnt(0)\ns_mov_b32 s{78+2*i}, vcc_lo\ns_memtime vcc\ns_waitcnt lgkmcnt(0)\ns_mov_b32 s{79+2*i}, vcc_lo")
        NST[0] = max(NST[0], i + 1)

KA = [1, 2]; VA = [3, 4, 5, 6]; DSR = [7, 8, 9]; LS = [10, 11, 12, 13]; T0, T1 = 14, 15
NREF = 16; QV = 32; SB = 64; PB = [128, 160]; KV = 192
WA = [240, 241]; WA2 = [242, 243]; W1A = [244, 245, 246]; DW = [247, 248, 249]; DW1 = 250; XV = [251, 252, 253, 254]
KRING = 0; VRING = 73728; STG = 24576; W1RING = 49152
DS5 = [240, 241, 242, 243, 244]; RA = [245, 246, 8, 9]; RAT = [245, 246, 254, 255]; OV = [247, 248, 249, 250]; PFV = 251; ZV = 252; FLV = 253
OB = [16, 48, 160]; WF = 192; STB = 40960; PK = 80

def qfrag(qb, ks):
    f = qb * 6 + ks
    return ar(192 + 4 * f) if f < 16 else vr(QV + 4 * (f - 16))
def S(kb, qb): return SB + 4 * (kb * 4 + qb)
def P(par, qb, e): return PB[par] + 4 * (qb * 2 + e)
def O(db, qb): return 4 * (db * 4 + qb)

class Gaps:
    def __init__(self, mfmas):
        self.m = mfmas; n = len(mfmas); self.n = n; self.cap = 2
        self.sc = [[] for _ in range(n)]; self.mem = [[] for _ in range(n)]; self.va = [[] for _ in range(n)]
    def vcost(self, g): return len(self.mem[g]) + sum(2 if x.kind == "trans" else 1 for x in self.va[g])
    def cost(self, g): return self.vcost(g) + len(self.sc[g])
    def fits(self, g, ins):
        c = 2 if ins.kind == "trans" else 1
        if ins.kind in ("valu", "trans", "ds", "vmem"):
            if self.vcost(g) + c > self.cap: return False
            if ins.kind in ("ds", "vmem") and self.va[g]: return False
            return self.vcost(g) + c + len(self.sc[g]) <= self.cap + 1
        return self.cost(g) + 1 <= 3
    def put(self, g, ins):
        if ins.kind in ("ds", "vmem"): self.mem[g].append(ins)
        elif ins.kind in ("valu", "trans"): self.va[g].append(ins)
        else: self.sc[g].append(ins)
    def place(self, g, text, tag=None):
        ins = Ins(text, tag)
        while not self.fits(g, ins): g += 1
        self.put(g, ins); return g
    def place2(self, g, t1, t2):
        while self.cost(g) + 2 > 3: g += 1
        self.put(g, Ins(t1)); self.put(g, Ins(t2)); return g
    def fill(self, queue, g0=0, g1=None):
        g1 = self.n if g1 is None else g1
        g = g0; i = 0; last = -1; lastkind = None
        while i < len(queue):
            t, e, ng, tag = (list(queue[i]) + [0, False, None])[:4] if not isinstance(queue[i], str) else (queue[i], 0, False, None)
            ins = Ins(t, tag)
            g = max(g, e)
            order = {"salu": 0, "wait": 0, "ds": 1, "vmem": 1, "valu": 2, "trans": 2}
            if last >= 0 and (ng or order[ins.kind] < order[lastkind] or (lastkind == "salu" and "m0" in queue_prev and ins.kind == "vmem")): g = max(g, last + 1)
            while g < g1 and not self.fits(g, ins): g += 1
            if g >= g1: break
            self.put(g, ins); last = g; lastkind = ins.kind; queue_prev = t; i += 1
        return queue[i:]
    def emit(self):
        out = []
        for g, m in enumerate(self.m):
            out.append(m); out += self.sc[g] + self.mem[g] + self.va[g]
        return out

def spread(G, lst, g0, g1):
    nv = max(1, sum(1 for x in lst if isinstance(x, tuple)))
    k = 0; g = g0
    for x in lst:
        t, tag = x if isinstance(x, tuple) else (x, None)
        if tag:
            tgt = g0 + 1 + int((g1 - g0 - 1) * k / nv); k += 1
            g = G.place(max(g, tgt), t, tag) + 1
        else:
            g = G.place(g, t)
            if " m0," in t: g += 1
    return g

def straight(A, lst):
    prev_m0 = False
    for x in lst:
        if isinstance(x, str): t, tag = x, None
        elif len(x) == 2: t, tag = x
        else:
            t = x[0]; tag = x[3] if len(x) > 3 else None
            if len(x) > 2 and x[2]: A("s_nop 1")
        if prev_m0 and "lds" in t: A("s_nop 0")
        A(t, tag); prev_m0 = " m0," in t

def srd(A, d, lo, size, add=None):
    if add is None:
        A(f"s_mov_b32 s{d}, s{lo}\ns_and_b32 s{d+1}, s{lo+1}, 0xffff")
    else:
        A(f"s_add_u32 s{d}, s{lo}, {add}\ns_addc_u32 s{d+1}, s{lo+1}, 0\ns_and_b32 s{d+1}, s{d+1}, 0xffff")
    A(f"s_mov_b32 s{d+2}, {size}\ns_mov_b32 s{d+3}, 0x20000")

def kread(buf, kb, ks):
    d = KV + 24 * buf + 4 * ks
    return f"ds_read_b128 {vr(d)}, v{KA[ks & 1]} offset:{(ks >> 1) * 128 + kb * 6144}"
def vread(db, e, half):
    d = KV + 8 * (db % 6) + 4 * e + 2 * half
    return f"ds_read_b64_tr_b16 {vr(d,2)}, v{VA[db & 3]} offset:{(db >> 2) * 128 + e * 12288 + half * 6144}"

def qk_mfmas(cinit):
    out = []
    for kb in range(4):
        for qb in range(4):
            for n, ks in enumerate(snk(6, qb)):
                a = KV + 24 * (kb & 1) + 4 * ks
                c = (vr(NREF + 4 * qb) if kb in cinit else "0") if n == 0 else vr(S(kb, qb))
                out.append(Ins(f"{MF} {vr(S(kb,qb))}, {vr(a)}, {qfrag(qb,ks)}, {c}"))
    return out
def pv_mfmas(par, first=False):
    out = []
    for db in range(12):
        for qb in range(4):
            for n, e in enumerate(snk(2, qb)):
                a = KV + 8 * (db % 6) + 4 * e
                c = "0" if (first and n == 0) else ar(O(db, qb))
                out.append(Ins(f"{MF} {ar(O(db,qb))}, {vr(a)}, {vr(P(par,qb,e))}, {c}"))
    return out
def sm_ops(par):
    out = []
    for kb in range(4):
        for qb in range(4):
            s = S(kb, qb); p = P(par, qb, kb >> 1) + 2 * (kb & 1)
            out.append(([f"v_exp_f32 v{s+r}, v{s+r}" for r in range(4)],
                        [f"v_add_f32 v{LS[qb]}, v{LS[qb]}, v{s+r}" for r in range(4)],
                        [f"v_cvt_pk_bf16_f32 v{p+r}, v{s+2*r}, v{s+2*r+1}" for r in range(2)]))
    return out
def qk_reads(G, base, vpre=True):
    for kb in range(3):
        for ks in range(6): G.place(base + 24 * kb + 1 + 3 * ks, kread((kb + 1) & 1, kb + 1, ks))
    if vpre:
        n = 0
        for db in range(3):
            for e in range(2):
                for h in range(2):
                    G.place(base + 73 + (n * 3) // 2, vread(db, e, h)); n += 1
    for ks in (2, 4): G.put(base + ks - 1, lgw(rs(KV + 4 * ks, 8)))
    for kb in range(1, 4): G.put(base + 24 * kb - 1, lgw(rs(KV + 24 * (kb & 1), 24)))
def pv_reads(G, B, first_wait=True):
    for db in range(9):
        n = 0
        for e in range(2):
            for h in range(2):
                G.place(B + 8 * db + 2 * n, vread(db + 3, e, h)); n += 1
    for db in range(12):
        if B + 8 * db - 1 >= 0: G.put(B + 8 * db - 1, lgw(rs(KV + 8 * (db % 6), 8)))

def gen_step(par, first=False, extra=()):
    G = Gaps(qk_mfmas({0, 1, 2, 3}) + pv_mfmas(par, first))
    qk_reads(G, 0)
    B = 96
    pv_reads(G, B)
    gb = B + 80
    G.put(gb, Ins("s_waitcnt vmcnt(12) lgkmcnt(0)")); G.put(gb, Ins("s_barrier"))
    for (g_, t_) in extra: G.place(g_, t_)
    for ks in range(6): G.place(gb + 1 + 2 * ks, kread(0, 0, ks))
    G.put(191, lgw(rs(KV, 8)))
    G.place(0, f"s_add_u32 s{sM}, s{sSlot}, s{sWb}")
    G.place(2, f"s_add_u32 s{sKo2}, s{sKo}, 3072")
    G.place(4, f"s_sub_u32 s{sVo}, s{sKo}, {STG}")
    G.place(5, f"s_sub_u32 s{sVo2}, s{sKo}, {STG - 3072}")
    G.place2(6, f"s_cmp_eq_u32 s{sSlot}, {STG}", f"s_cselect_b32 s{sInc}, s{sNeg}, {STG}")
    dm = [(sK, sKo, 0), (sK, sKo2, 3072), (sV, sVo, VRING), (sV, sVo2, VRING + 3072)]
    g = 8
    for (srd_, so, mo) in dm:
        G.place(g, f"s_add_u32 m0, s{sM}, {mo}" if mo else f"s_mov_b32 m0, s{sM}")
        for j in range(3):
            g2 = G.place(g + 3 + 12 * j, f"buffer_load_dwordx4 v{DSR[j]}, {sr(srd_)}, s{so} offen offset:{1024*j} lds")
        g = g2 + 9
    G.place(g, f"s_add_u32 s{sKo}, s{sKo}, {STG}")
    g = G.place(g + 1, f"s_add_u32 s{sSlot}, s{sSlot}, {STG}")
    g = G.place2(g + 1, f"s_cmp_eq_u32 s{sSlot}, {3 * STG}", f"s_cselect_b32 s{sSlot}, 0, s{sSlot}")
    for i, r in enumerate(KA): G.place(B + 10 + 2 * i, f"v_add_u32 v{r}, s{sInc}, v{r}")
    for i, r in enumerate(VA): G.place(B + 82 + 2 * i, f"v_add_u32 v{r}, s{sInc}, v{r}")
    ops = sm_ops(par ^ 1)
    first_g, last_g = 10, 186
    pend = []
    exps = [(i, r) for i in range(16) for r in range(4)]
    ei = 0
    for g in range(192):
        if ei < 64:
            i, r = exps[ei]
            target = first_g + (last_g - first_g) * ei / 64.0
            if g >= 6 * i + 5 + 4 and g >= target and G.vcost(g) == 0 and len(G.sc[g]) <= 1:
                G.put(g, Ins(ops[i][0][r])); ei += 1
                pend.append((g + 1, ops[i][1][r]))
                if r & 1: pend.append((g + 1, ops[i][2][r >> 1]))
                continue
        while pend and pend[0][0] <= g and G.fits(g, Ins(pend[0][1])):
            G.put(g, Ins(pend.pop(0)[1]))
    assert ei == 64 and not pend, (ei, pend)
    return G


def poll(A, lab, voff, srd_, soff, cond, sleep=2, precheck=False):
    if precheck:
        cond(); A(f"s_cbranch_scc0 {lab}_ok")
    A(f"s_mov_b32 s{sE}, {SPIN}")
    A(f"{lab}:")
    A(f"buffer_load_dwordx2 {vr(T0,2)}, v{voff}, {sr(srd_)}, {soff} offen sc1")
    A("s_waitcnt vmcnt(0)")
    cond()
    A(f"s_cbranch_scc0 {lab}_ok")
    A(f"s_sleep {sleep}\ns_sub_u32 s{sE}, s{sE}, 1\ns_cmp_lg_u32 s{sE}, 0\ns_cbranch_scc1 {lab}")
    A(f"{lab}_ok:")
def cond_nonce(A, mask):
    def f():
        A(f"v_cmp_ne_u32 vcc, s{sN0}, v{T0}\nv_cmp_ne_u32 s[{sA}:{sA+1}], s{sN1}, v{T1}\ns_nop 0")
        A(f"s_or_b32 s{sA}, vcc_lo, s{sA}\ns_and_b32 s{sA}, s{sA}, {mask}\ns_cmp_lg_u32 s{sA}, 0")
    return f
assert sA % 2 == 0 and sC % 2 == 0

def gelu_ops(x, y, pk, store):
    q = []
    for r in range(4): q.append(f"v_mul_f32 v{y+r}, v{x+r}, v{x+r}")
    for r in range(4): q.append(f"v_fma_f32 v{y+r}, v{y+r}, s{sB}, v{T0}")
    for r in range(4): q.append(f"v_mul_f32 v{y+r}, v{y+r}, v{x+r}")
    for r in range(4): q.append(f"v_exp_f32 v{y+r}, v{y+r}")
    for r in range(4): q.append(f"v_fma_f32 v{y+r}, v{y+r}, s{sA}, s{sA}")
    for r in range(4): q.append(f"v_rcp_f32 v{y+r}, v{y+r}")
    for r in range(4): q.append(f"v_mul_f32 v{y+r}, v{y+r}, v{x+r}")
    for r in range(2): q.append(f"v_cvt_pk_bf16_f32 v{pk+r}, v{y+2*r}, v{y+2*r+1}")
    return [(t, 0, False, None) for t in q] + store

def gelu_pk(x, y, pk, store):
    q = []
    for k in range(2): q.append(f"v_pk_mul_f32 {vr(y+2*k,2)}, {vr(x+2*k,2)}, {vr(x+2*k,2)}")
    for k in range(2): q.append(f"v_pk_fma_f32 {vr(y+2*k,2)}, {vr(y+2*k,2)}, s[{sA}:{sA+1}], {vr(T0,2)} op_sel:[0,1,0] op_sel_hi:[1,1,0]")
    for k in range(2): q.append(f"v_pk_mul_f32 {vr(y+2*k,2)}, {vr(y+2*k,2)}, {vr(x+2*k,2)}")
    for r in range(4): q.append(f"v_exp_f32 v{y+r}, v{y+r}")
    q.append("s_nop 0")
    for k in range(2): q.append(f"v_pk_fma_f32 {vr(y+2*k,2)}, {vr(y+2*k,2)}, s[{sA}:{sA+1}], s[{sA}:{sA+1}] op_sel_hi:[1,0,0]")
    for r in range(4): q.append(f"v_rcp_f32 v{y+r}, v{y+r}")
    q.append("s_nop 0")
    for k in range(2): q.append(f"v_pk_mul_f32 {vr(y+2*k,2)}, {vr(y+2*k,2)}, {vr(x+2*k,2)}")
    for r in range(2): q.append(f"v_cvt_pk_bf16_f32 v{pk+r}, v{y+2*r}, v{y+2*r+1}")
    return [(t, 0, False, None) for t in q] + store
def pkify(q):
    out = []; i = 0
    while i < len(q):
        t = q[i][0] if isinstance(q[i], tuple) else q[i]
        n = (q[i + 1][0] if isinstance(q[i + 1], tuple) else q[i + 1]) if i + 1 < len(q) else ""
        m1 = re.match(r"v_(mul|add)_f32 v(\d+), v(\d+), v(\d+)$", t); m2 = re.match(r"v_(mul|add)_f32 v(\d+), v(\d+), v(\d+)$", n)
        if opt["pk"] and m1 and m2 and m1.group(1) == m2.group(1):
            d1, a1, b1 = map(int, m1.groups()[1:]); d2, a2, b2 = map(int, m2.groups()[1:])
            if d1 % 2 == 0 and a1 % 2 == 0 and d2 == d1 + 1 and a2 == a1 + 1:
                if b1 == b2 and b1 not in (d1, d2):
                    h = b1 & 1
                    out.append((f"v_pk_{m1.group(1)}_f32 {vr(d1,2)}, {vr(a1,2)}, {vr(b1-h,2)} op_sel:[0,{h}] op_sel_hi:[1,{h}]", 0, False, None)); i += 2; continue
                if b1 % 2 == 0 and b2 == b1 + 1:
                    out.append((f"v_pk_{m1.group(1)}_f32 {vr(d1,2)}, {vr(a1,2)}, {vr(b1,2)}", 0, False, None)); i += 2; continue
        out.append(q[i]); i += 1
    return out

def b_wdma(srd_, tag, slot_imm):
    o = [f"s_add_u32 s{sInc}, s{sM}, {slot_imm}", f"s_add_u32 s{sVo2}, s{sVo}, {16*1280}"]
    for hf, so in enumerate((sVo, sVo2)):
        o.append(f"s_add_u32 m0, s{sInc}, {5120*hf}")
        o += [(f"buffer_load_dwordx4 v{DS5[j]}, {sr(srd_)}, s{so} offen offset:{1024*j} lds", tag) for j in range(4)]
        o.append(f"s_add_u32 m0, s{sInc}, {5120*hf + 4096}")
        o.append((f"buffer_load_dwordx4 v{DS5[4]}, {sr(srd_)}, s{so} offen lds", tag))
    o.append(f"s_add_u32 s{sVo}, s{sVo}, {64*1280}")
    return o
def oload(buf, tag):
    o = [(f"buffer_load_dwordx4 {vr(OB[buf] + 4*(r*2+e))}, v{OV[r]}, {sr(sWS)}, s{sKo} offen offset:{1024*e} sc1", tag) for r in range(4) for e in range(2)]
    o.append(f"s_add_u32 s{sKo}, s{sKo}, 2048")
    return o
def b_scalars():
    o = [f"s_lshl_b32 s{sA}, s{sSP}, 1", f"s_add_u32 s{sA}, s{sA}, s{sKH}"]
    o += [f"s_mul_i32 s{sB}, s{sQH}, {32*1280}", f"s_mul_i32 s{sC}, s{sNT}, 320", f"s_add_u32 s{sB}, s{sB}, s{sC}"]
    o += [f"s_mul_i32 s{sVo}, s{sA}, {192*1280}", f"s_add_u32 s{sVo}, s{sVo}, s{sB}", f"s_mul_i32 s{sH}, s{sA}, {768*1280}", f"s_add_u32 s{sH}, s{sH}, s{sB}"]
    o += [f"s_mul_i32 s{sB}, s{sFL}, {4*240*4}", f"s_add_u32 s{sB}, s{sB}, {OH_OFF}"]
    o += [f"s_mul_i32 s{sKo}, s{sA}, {6*1024}", f"s_add_u32 s{sKo}, s{sKo}, s{sB}", f"s_add_u32 s{sKo}, s{sKo}, {192*1024}"]
    o += [f"s_mul_i32 s{sF}, s{sA}, {24*1024}", f"s_add_u32 s{sF}, s{sF}, s{sB}"]
    o += [f"s_mul_i32 s{sM}, s{sW}, 10240"]
    o += [f"s_lshr_b32 s{sD}, s2, 3", f"s_lshl_b32 s{sD}, s{sD}, 2", f"s_add_u32 s{sD}, s{sD}, s{sW}", f"s_mul_i32 s{sD}, s{sD}, 15360",
          f"s_mul_i32 s{sKo2}, s{sSP}, {1536*1280}", f"s_add_u32 s{sKo2}, s{sKo2}, s{sD}"]
    return o
def b_warm():
    o = []
    for i in range(4):
        o.append((f"buffer_load_dword v7, v{PFV}, {sr(sWO)}, s{sKo2} offen", "PF"))
        if i < 3: o.append(f"s_add_u32 s{sKo2}, s{sKo2}, 4096")
    return o
def b_addr_ops():
    q = []
    t0, t1, t2, t3 = 255, 253, 254, 255
    for j in range(5):
        q += [f"v_add_u32 v{t0}, {64*j}, v0", f"v_mul_u32_u24 v{t1}, 3277, v{t0}", f"v_lshrrev_b32 v{t1}, 16, v{t1}",
              f"v_mul_u32_u24 v{t2}, 20, v{t1}", f"v_sub_u32 v{t2}, v{t0}, v{t2}", f"v_lshrrev_b32 v{t3}, 1, v{t1}", f"v_and_b32 v{t3}, 2, v{t3}",
              f"v_xor_b32 v{t2}, v{t2}, v{t3}", f"v_mul_u32_u24 v{t3}, 80, v{t1}", f"v_add_u32 v{t3}, v{t3}, v{t2}"]
        q += [f"v_lshlrev_b32 v{DS5[j]}, 4, v{t3}"]
        if 0 < j < 4: q += [f"v_subrev_u32 v{DS5[j]}, {1024*j}, v{DS5[j]}"]
    q += [f"v_and_b32 v{FLV}, 31, v0", f"v_lshlrev_b32 v{FLV}, 3, v{FLV}"]
    p = []
    p += [f"v_lshlrev_b32 v{t0}, 4, v0"]
    for r in range(4):
        p += [f"s_add_u32 s{sF}, s{sSP}, {r}", f"s_and_b32 s{sF}, s{sF}, 3", f"s_mul_i32 s{sF}, s{sF}, {240*1024}", f"v_add_u32 v{OV[r]}, s{sF}, v{t0}"]
    p += [f"v_lshlrev_b32 v{PFV}, {6 if opt['pst'] == 64 else 7}, v0", f"v_mov_b32 v{ZV}, 0"]
    if opt["pst"] == 128: p += [f"v_min_u32 v{PFV}, {47*128}, v{PFV}"] if False else []
    return p, q

def b_ra_ops():
    t0, t1, t2 = NREF + 8, NREF + 9, NREF + 10
    lo, hi = (NREF + 11, NREF + 12), (NREF + 13, NREF + 14)
    q = [f"s_mul_i32 s{sE}, s{sKH}, 20480", f"v_lshrrev_b32 v{t0}, 2, v0", f"v_mul_u32_u24 v{t0}, 320, v{t0}", f"v_and_b32 v{t1}, 3, v0", f"v_lshl_add_u32 v{t0}, v{t1}, 3, v{t0}",
         f"v_add_u32 v{t0}, s{sE}, v{t0}", f"v_bfe_u32 v{t1}, v0, 4, 1", f"v_xor_b32 v{t2}, 1, v{t1}",
         f"v_lshl_add_u32 v{lo[0]}, v{t1}, 5, v{t0}", f"v_lshl_add_u32 v{lo[1]}, v{t2}, 5, v{t0}",
         f"v_add_u32 v{hi[0]}, 128, v{lo[1]}", f"v_add_u32 v{hi[1]}, 192, v{lo[0]}",
         f"s_cmp_eq_u32 s{sKH}, 0", f"s_cselect_b64 vcc, -1, 0", "s_nop 0"]
    for k in range(2):
        q += [f"v_cndmask_b32 v{RA[k]}, v{lo[k]}, v{hi[k]}, vcc", f"v_cndmask_b32 v{RA[2+k]}, v{hi[k]}, v{lo[k]}, vcc"]
    return q
def lred(A):
    for sw in ("v_permlane32_swap_b32", "v_permlane16_swap_b32"):
        for qb in range(4): A(f"v_mov_b32 v{NREF+qb}, v{LS[qb]}")
        for qb in range(4): A(f"{sw} v{LS[qb]}, v{NREF+qb}")
        for qb in range(4): A(f"v_add_f32 v{LS[qb]}, v{LS[qb]}, v{NREF+qb}")
NEARLY = 24
def oepi_ops():
    q = []; late = []; n = 0
    so = [sA, sB, sC, sD]
    for m in range(6):
        for qb in range(4):
            x = 144 + 8 * (n & 1); d = PK + 4 * (n % 16)
            e = 16 * m + 8 + 2 * qb + 1 + 5
            for p in range(2):
                for r in range(4): q.append((f"v_accvgpr_read_b32 v{x+4*p+r}, a{O(2*m+p,qb)+r}", e, False, None))
            for i in range(8): q.append((f"v_mul_f32 v{x+i}, v{x+i}, v{LS[qb]}", 0, False, None))
            for i in range(4): q.append((f"v_cvt_pk_bf16_f32 v{d+i}, v{x+2*i}, v{x+2*i+1}", 0, False, None))
            v, off = (T1, 1024 * m) if m < 4 else (T0, 1024 * (m - 4))
            st = f"buffer_store_dwordx4 {vr(d)}, v{v}, {sr(sWS)}, s{so[qb]} offen offset:{off} sc1"
            if n < NEARLY: q.append((st, 0, False, "OST"))
            else: late.append((st, "OST"))
            n += 1
    return q, late
def oepi_pre():
    return [f"s_mul_i32 s{sA}, s{sQB0}, {240*1024}", f"s_mul_i32 s{sB}, s{sHEAD}, {6*1024}", f"s_add_u32 s{sA}, s{sA}, s{sB}", f"s_add_u32 s{sA}, s{sA}, {OH_OFF}",
            f"s_add_u32 s{sB}, s{sA}, {240*1024}", f"s_add_u32 s{sC}, s{sA}, {480*1024}", f"s_add_u32 s{sD}, s{sA}, {720*1024}",
            f"v_lshlrev_b32 v{T1}, 4, v0", f"v_add_u32 v{T0}, 4096, v{T1}"]
def BA(nb, r): return (192 + 16 * nb if nb < 4 else 16 * (nb - 4)) + 4 * r
def bread(u, nb, e, h):
    d = WF + 8 * ((10 * u + nb) % 6) + 4 * e + 2 * h
    j = nb % 5
    return f"ds_read_b64_tr_b16 {vr(d,2)}, v{RA[2 * (nb // 5) + (j & 1)]} offset:{64*(j >> 1) + e*10240 + h*5120}"
ORDR = [(i, r) for r in (1, 2, 3, 0) for i in range(5)]
def xchg_reads(E, tr):
    for (i, r) in ORDR: E(f"ds_read_b128 {vr(tr(i, r))}, v3 offset:{1024*(4*i+r)}")
def xchg_sum(E, tr, PKS, so, emit):
    st = []; RING = 150
    for n, (i, r) in enumerate(ORDR):
        t = RING + 4 * (n & 1); x = tr(i, r)
        for k in range(4): E(f"v_accvgpr_read_b32 v{t+k}, a{BA(5+i, r)+k}")
        if n % 5 == 0 and emit: E(f"s_waitcnt lgkmcnt({15 - n})")
        for k in range(2): E(f"v_pk_add_f32 {vr(x+2*k,2)}, {vr(x+2*k,2)}, {vr(t+2*k,2)}")
        if r:
            for k in range(2): E(f"v_cvt_pk_bf16_f32 v{PKS+10*(r-1)+2*i+k}, v{x+2*k}, v{x+2*k+1}")
            if i == 4:
                p = PKS + 10 * (r - 1)
                ss = [f"buffer_store_dwordx4 {vr(p)}, v4, {sr(sWS)}, s{so[r]} offen sc1",
                      f"buffer_store_dwordx4 {vr(p+4)}, v4, {sr(sWS)}, s{so[r]} offen offset:1024 sc1",
                      f"buffer_store_dwordx2 {vr(p+8,2)}, v1, {sr(sWS)}, s{so[r]} offen sc1"]
                if emit:
                    for t_ in ss: E(t_)
                else: st += [(t_, "YST") for t_ in ss]
    return st
def slot_scalars(off, so, cons):
    o = [f"s_mul_i32 s{sA}, s{sH}, {64*3072}", f"s_mul_i32 s{sE}, s{sW}, 3072", f"s_add_u32 s{sA}, s{sA}, s{sE}", f"s_add_u32 s{sA}, s{sA}, {off}",
         f"s_mul_i32 s{sE}, s{sSP}, {16*3072}", f"s_add_u32 s{cons}, s{sA}, s{sE}", f"s_mul_i32 s{sE}, s{sSP}, {4*3072}", f"s_add_u32 s{sA}, s{sA}, s{sE}"]
    for r in (1, 2, 3):
        d = so[r]
        o += [f"s_add_u32 s{d}, s{sSP}, {r}", f"s_and_b32 s{d}, s{d}, 3", f"s_mul_i32 s{d}, s{d}, {16*3072}", f"s_add_u32 s{d}, s{d}, s{sA}"]
    return o
def inbox_loads(cons, P0, tag):
    o = []
    for r in (1, 2, 3):
        p = P0 + 10 * (r - 1)
        o += [f"s_add_u32 s{sA}, s{sSP}, {r}", f"s_and_b32 s{sA}, s{sA}, 3", f"s_mul_i32 s{sA}, s{sA}, {4*3072}", f"s_add_u32 s{sA}, s{sA}, s{cons}"]
        o += [(f"buffer_load_dwordx4 {vr(p)}, v4, {sr(sWS)}, s{sA} offen sc1", tag), (f"buffer_load_dwordx4 {vr(p+4)}, v4, {sr(sWS)}, s{sA} offen offset:1024 sc1", tag),
              (f"buffer_load_dwordx2 {vr(p+8,2)}, v1, {sr(sWS)}, s{sA} offen sc1", tag)]
    return o
def merge(a, b):
    out = []; k = 0
    na = sum(1 for x in a if isinstance(x, tuple)); seen = 0
    for x in a:
        out.append(x)
        if isinstance(x, tuple):
            seen += 1
            while k < len(b) and (k + 1) * na <= seen * len(b) and " m0," not in out[-1][0]:
                out.append(b[k]); k += 1
    return out + b[k:]
def b_chunk(u, lst, wtags, otags, czero=False, after_barrier=None, first_gap=(), last_gap=(), fillq=None, nxt=True, lim=None, xw=False, af=None, puts=()):
    mf = []
    for nb in range(10):
        for r in range(4):
            for n, e in enumerate(snk(2, r)):
                acc = ar(BA(nb, r))
                mf.append(Ins(f"{MF} {acc}, {vr(WF + 8*((10*u+nb)%6) + 4*e)}, {vr(OB[u] + 4*(r*2+e))}, {'0' if czero and n == 0 else acc}"))
    G = Gaps(mf)
    for nb in range(7):
        n = 0
        for e in range(2):
            for h in range(2):
                G.place(8 * nb + 2 * n, bread(u, nb + 3, e, h)); n += 1
    for nb in range(1, 10): G.put(8 * nb - 1, lgw(rs(WF + 8 * ((10 * u + nb) % 6), 8)))
    gb = 62
    if nxt:
        G.put(gb, vmw(wtags, " lgkmcnt(0)")); G.put(gb, Ins("s_barrier"))
        inc = STB if u < 2 else -2 * STB
        for i, r in enumerate(RA): G.place((30 + 2 * i) if i < 2 else (gb - 6 + i), f"v_add_u32 v{r}, {inc & 0xffffffff}, v{r}")
        if after_barrier: G.place(gb + 1, after_barrier, "FLAG")
        n = 0
        for nb in range(3):
            for e in range(2):
                for h in range(2):
                    G.place(gb + 1 + n + n // 4, bread((u + 1) % 3, nb, e, h)); n += 1
        G.put(79, lgw(rs(WF + 8 * ((10 * ((u + 1) % 3)) % 6), 8)))
    if otags: G.put(78, vmw(otags))
    if af is not None:
        G.put(af, vmw({"OST"})); G.place(af, f"buffer_store_dwordx2 v[254:255], v{ZV}, {sr(sWS)}, s17 offen sc1", "FLAG")
    for (g_, t_, tag_) in puts: G.place(g_, t_, tag_)
    if xw:
        for n, (i, r) in enumerate(ORDR): G.place(44 + (n * 7) // 4, f"ds_write_b128 v2, {ar(BA(i, r))} offset:{1024*(4*i+r)}")
    for t in first_gap: G.put(0, Ins(t))
    g = spread(G, lst, 1 if first_gap else 0, lim or (76 if otags else 60)) if lst else 70
    assert g <= 79, g
    for t in last_gap: G.place(g, t)
    if fillq is not None:
        G.cap = opt["dense"]
        left = G.fill(fillq, 0)
        return G.emit(), left
    return G.emit()

def gen():
    global problems
    A = Asm()
    A("s_cmp_ge_u32 s2, 256\ns_cbranch_scc1 L_done")
    A("s_load_dwordx16 s[76:91], s[0:1], 0\ns_load_dwordx8 s[92:99], s[0:1], 64\ns_load_dwordx2 s[100:101], s[0:1], 96")
    pX, pK, pV, pWQ, pWO, pW1, pB1, pW2, pB2, pOUT, pDBG, pWS = 76, 78, 80, 82, 84, 88, 90, 92, 94, 96, 98, 100
    A(f"s_memrealtime s[{sN0}:{sN1}]")
    if opt["stamp"]: A(f"s_memtime s[{sInc}:{sInc+1}]")
    if opt["pf"]:
        A(f"s_getpc_b64 s[{sA}:{sA+1}]\nL_pc:\ns_bfe_u32 s{sC}, s2, 0x10003\ns_lshl_b32 s{sC}, s{sC}, 15\nv_lshlrev_b32 v98, 7, v0\nv_add_u32 v98, s{sC}, v98")
        A(f"global_load_dword v99, v98, s[{sA}:{sA+1}]")
    A("v_lshrrev_b32 v14, 6, v0\nv_and_b32 v0, 63, v0")
    A(f"v_readfirstlane_b32 s{sW}, v14")
    A(f"s_and_b32 s{sA}, s2, 7\ns_lshr_b32 s{sB}, s2, 3\ns_and_b32 s{sC}, s{sB}, 3\ns_lshl_b32 s{sA}, s{sA}, 2\ns_add_u32 s{sHEAD}, s{sA}, s{sC}")
    A(f"s_lshr_b32 s{sQT}, s{sB}, 2\ns_lshl_b32 s{sB}, s{sQT}, 4\ns_lshl_b32 s{sC}, s{sW}, 2\ns_add_u32 s{sQB0}, s{sB}, s{sC}")
    A(f"s_lshr_b32 s{sC}, s{sHEAD}, 1\ns_add_u32 s{sD}, s{sB}, s{sC}\ns_mul_i32 s{sE}, s{sD}, 20480")
    A("v_and_b32 v3, 15, v0\nv_lshrrev_b32 v4, 4, v0\nv_mul_u32_u24 v5, 1280, v3\nv_mul_u32_u24 v6, 320, v14\nv_lshlrev_b32 v7, 3, v4\nv_add3_u32 v5, v5, v6, v7")
    A("v_mov_b32 v96, 0\nv_mov_b32 v94, 0")
    A(f"s_or_b32 s{sKo}, s2, s{sW}")
    A("s_waitcnt lgkmcnt(0)")
    srd(A, sX, pX, 2621440)
    srd(A, sDBG, pDBG, 256)
    A(f"s_cmp_lg_u32 s{sKo}, 0\ns_cbranch_scc1 L_nonc")
    A(f"s_or_b32 s{sKo}, s{sN0}, 1\nv_mov_b32 v80, s{sKo}\nv_mov_b32 v81, s{sN1}")
    A(f"buffer_store_dwordx2 v[80:81], v96, {sr(sDBG)}, 0 offen sc1")
    A("L_nonc:")
    A(f"s_bitcmp1_b32 s{sHEAD}, 0\ns_cbranch_scc1 L_nox")
    for i in range(5):
        A(f"buffer_load_dwordx2 {vr(100+4*i,2)}, v5, {sr(sX)}, s{sE} offen offset:{64*i}", "LX")
        A(f"buffer_load_dwordx2 {vr(102+4*i,2)}, v5, {sr(sX)}, s{sE} offen offset:{64*i+32}", "LX")
    A("L_nox:")
    for j in range(3):
        A(f"v_add_u32 v82, {64*j}, v0\nv_mul_u32_u24 v83, 2731, v82\nv_lshrrev_b32 v83, 16, v83")
        A(f"v_mul_u32_u24 v97, 24, v83\nv_sub_u32 v82, v82, v97\nv_and_b32 v97, 6, v83\nv_xor_b32 v82, v82, v97\nv_lshlrev_b32 v82, 4, v82")
        A(f"v_mul_u32_u24 v97, 12288, v83\nv_add_u32 v97, v97, v82\nv_add_u32 v{DW[j]}, {(-1024*j) & 0xffffffff}, v97")
        A(f"v_mul_u32_u24 v97, 384, v83\nv_add_u32 v97, v97, v82\nv_add_u32 v{84+j}, {(128 - 1024*j) & 0xffffffff}, v97")
    A(f"v_lshrrev_b32 v83, 3, v0\nv_and_b32 v82, 7, v0\nv_and_b32 v97, 6, v83\nv_xor_b32 v82, v82, v97\nv_lshlrev_b32 v82, 4, v82\nv_mul_u32_u24 v97, 3072, v83\nv_add_u32 v{DW1}, v97, v82")
    A(f"s_mul_i32 s{sA}, s{sHEAD}, 384")
    A(f"s_add_u32 s{sWQ}, s{pWQ}, s{sA}\ns_addc_u32 s{sWQ+1}, s{pWQ+1}, 0\ns_and_b32 s{sWQ+1}, s{sWQ+1}, 0xffff\ns_sub_u32 s{sWQ+2}, {640*12288}, s{sA}\ns_mov_b32 s{sWQ+3}, 0x20000")
    A(f"s_mul_i32 s{sF}, s{sHEAD}, 96")
    A(f"s_add_u32 s{sW1}, s{pW1}, s{sF}\ns_addc_u32 s{sW1+1}, s{pW1+1}, 0\ns_and_b32 s{sW1+1}, s{sW1+1}, 0xffff\ns_sub_u32 s{sW1+2}, {640*3072}, s{sF}\ns_mov_b32 s{sW1+3}, 0x20000")
    A(f"s_mul_i32 s{sWb}, s{sW}, 6144")
    A(f"s_mul_i32 s{sA}, s{sW}, {16*12288}\ns_mul_i32 s{sB}, s{sW}, {16*3072}\ns_mul_i32 s{sC}, s{sQB0}, 20480\ns_lshl_b32 s{sM}, s{sW}, 11")
    XB = [SB, SB + 32, PB[0]]
    def wdma(ch):
        sl = ch % 3; o = []
        o.append(f"s_add_u32 m0, s{sWb}, {VRING + sl*STG}")
        o += [(f"buffer_load_dwordx4 v{DW[j]}, {sr(sWQ)}, s{sA} offen offset:{1024*j} lds", f"W{ch}") for j in range(3)]
        o.append(f"s_add_u32 s{sA}, s{sA}, {8*12288}")
        o.append(f"s_add_u32 m0, s{sWb}, {VRING + sl*STG + 3072}")
        o += [(f"buffer_load_dwordx4 v{DW[j]}, {sr(sWQ)}, s{sA} offen offset:{1024*j} lds", f"W{ch}") for j in range(3)]
        o.append(f"s_add_u32 s{sA}, s{sA}, {56*12288}")
        o.append(f"s_add_u32 m0, s{sM}, {W1RING + sl*8192}")
        o.append((f"buffer_load_dwordx4 v{DW1}, {sr(sW1)}, s{sB} offen lds", f"W{ch}"))
        o.append(f"s_add_u32 s{sB}, s{sB}, {8*3072 - 1024}")
        o.append((f"buffer_load_dwordx4 v{DW1}, {sr(sW1)}, s{sB} offen offset:1024 lds", f"W{ch}"))
        o.append(f"s_add_u32 s{sB}, s{sB}, {56*3072 + 1024}")
        return o
    def xload(ch):
        o = [(f"buffer_load_dwordx4 {vr(XB[ch%3] + 4*(qb*2+e))}, v{XV[qb]}, {sr(sWS)}, s{sC} offen offset:{1024*e} sc1", f"X{ch}") for qb in range(4) for e in range(2)]
        o.append(f"s_add_u32 s{sC}, s{sC}, 2048")
        return o
    def kvdma(srd_, slotbase, t, tag):
        o = []
        for hf in range(2):
            o.append(f"s_add_u32 s{sKo2}, s{sWb}, {t*STG + 3072*hf}")
            o.append(f"s_add_u32 m0, s{sWb}, {slotbase + 3072*hf}")
            o += [(f"buffer_load_dwordx4 v{DSR[j]}, {sr(srd_)}, s{sKo2} offen offset:{1024*j} lds", tag) for j in range(3)]
        return o
    straight(A, wdma(0))
    srd(A, sB1, pB1, 3072)
    for ct in range(3): A(f"buffer_load_dwordx2 {vr(88 + 2*ct, 2)}, v7, {sr(sB1)}, s{sF} offen offset:{32*ct}", "B1")
    straight(A, wdma(1))
    A(f"s_mul_i32 s{sKo}, s{sHEAD}, 786432")
    for (d, lo) in ((sK, pK), (sV, pV)):
        A(f"s_add_u32 s{d}, s{lo}, s{sKo}\ns_addc_u32 s{d+1}, s{lo+1}, 0\ns_sub_u32 s{d}, s{d}, 128\ns_subb_u32 s{d+1}, s{d+1}, 0\ns_and_b32 s{d+1}, s{d+1}, 0xffff")
        A(f"s_mov_b32 s{d+2}, {786432 + 128}\ns_mov_b32 s{d+3}, 0x20000")
    srd(A, sWS, pWS, WS_SZ)
    srd(A, sOUT, pOUT, 2621440)
    srd(A, sB2, pB2, 1280)
    srd(A, sWO, pWO, 6144 * 1280)
    srd(A, sW2, pW2, 1536 * 1280)
    if opt["stamp"]:
        A(f"s_mov_b32 s78, s{sN0}\ns_mov_b32 s79, s{sInc}"); NST[0] = 1
    A(f"s_and_b32 s{sSP}, s2, 3\ns_bfe_u32 s{sKo}, s2, 0x10002\ns_lshl_b32 s{sKo}, s{sKo}, 3\ns_bfe_u32 s{sMT}, s2, 0x30003\ns_add_u32 s{sMT}, s{sMT}, s{sKo}\ns_lshr_b32 s{sNT}, s2, 6")
    A(f"s_lshr_b32 s{sKH}, s{sW}, 1\ns_and_b32 s{sQH}, s{sW}, 1")
    A(f"s_lshl_b32 s{sVo}, s{sQT}, 7\ns_add_u32 s{sVo}, s{sVo}, {LF_OFF}")
    A(f"s_bitcmp1_b32 s{sHEAD}, 0\ns_cbranch_scc1 L_noln")
    A(f"v_lshlrev_b32 v8, 6, v3\nv_add_u32 v8, {LDS_LN}, v8\nv_lshl_add_u32 v9, v14, 2, v4\nv_lshl_add_u32 v9, v9, 2, v8")
    A("v_mul_u32_u24 v10, 5120, v14\nv_lshl_add_u32 v10, v0, 4, v10")
    A(f"s_mov_b32 s{sKo}, 0x3f803f80\ns_mov_b32 s{sKo2}, 0x3f80\ns_mov_b32 s{sSlot}, 0x3f800000")
    A("s_waitcnt vmcnt(19)")
    A(f"v_dot2_f32_bf16 v11, v100, s{sKo}, 0\nv_dot2_f32_bf16 v12, v101, s{sKo}, 0")
    for i in range(2, 20): A(f"v_dot2_f32_bf16 v{11+(i&1)}, v{100+i}, s{sKo}, v{11+(i&1)}")
    A("s_nop 2\nv_add_f32 v11, v11, v12")
    def xsum(off):
        A(f"ds_write_b32 v9, v11 offset:{off}\ns_waitcnt lgkmcnt(0)\ns_barrier")
        for i in range(4): A(f"ds_read_b128 {vr(16+4*i)}, v8 offset:{off+16*i}")
        A("s_waitcnt lgkmcnt(0)")
        for i in range(4): A(f"v_pk_add_f32 {vr(16+2*i,2)}, {vr(16+2*i,2)}, {vr(24+2*i,2)}")
        for i in range(2): A(f"v_pk_add_f32 {vr(16+2*i,2)}, {vr(16+2*i,2)}, {vr(20+2*i,2)}")
        A("v_pk_add_f32 v[16:17], v[16:17], v[18:19]\nv_add_f32 v16, v16, v17")
    xsum(0)
    A(f"v_mul_f32 v13, {fh(-1/640)}, v16")
    for i in range(20): A(f"v_dot2_f32_bf16 v{40+2*i}, v{100+i}, s{sKo2}, v13\nv_dot2_f32_bf16 v{41+2*i}, v{100+i}, s{sSlot}, v13")
    A("v_pk_mul_f32 v[36:37], v[40:41], v[40:41]\nv_pk_mul_f32 v[38:39], v[42:43], v[42:43]")
    for i in range(2, 20): A(f"v_pk_fma_f32 {vr(36+2*(i&1),2)}, {vr(40+2*i,2)}, {vr(40+2*i,2)}, {vr(36+2*(i&1),2)}")
    A("v_pk_add_f32 v[36:37], v[36:37], v[38:39]\nv_add_f32 v11, v36, v37")
    xsum(1024)
    A(f"v_mov_b32 v12, {fh(1e-5)}\nv_fmac_f32 v12, {fh(1/640)}, v16\nv_rsq_f32 v12, v12\ns_nop 0\nv_mul_f32 v12, {fh(CSC)}, v12")
    for i in range(5):
        for k in range(4): A(f"v_pk_mul_f32 {vr(40+8*i+2*k,2)}, {vr(40+8*i+2*k,2)}, v[12:13] op_sel_hi:[1,0]")
        for k in range(4): A(f"v_cvt_pk_bf16_f32 v{16+4*i+k}, v{40+8*i+2*k}, v{41+8*i+2*k}")
        if i == 4: A(f"s_add_u32 s{sE}, s{sE}, 4096")
        A(f"buffer_store_dwordx4 {vr(16+4*i)}, v10, {sr(sWS)}, s{sE} offen offset:{1024*i if i < 4 else 0} sc1")
    A(f"s_cmp_lg_u32 s{sW}, 0\ns_cbranch_scc1 L_ln2")
    A(f"buffer_load_dwordx2 v[94:95], v96, {sr(sDBG)}, 0 offen sc1")
    A("L_ln2:")
    A("s_waitcnt vmcnt(0)\ns_barrier")
    A("L_noln:")
    A(f"s_cmp_lg_u32 s{sW}, 0\ns_cbranch_scc1 L_w0a")
    A(f"v_mov_b32 v{T0}, v94\nv_mov_b32 v{T1}, v95\ns_nop 0")
    def cond_non():
        A(f"v_readfirstlane_b32 s{sN0}, v{T0}\nv_readfirstlane_b32 s{sN1}, v{T1}\ns_nop 0\ns_cmp_eq_u32 s{sN0}, 0")
    poll(A, "L_pnon", 96, sDBG, "0", cond_non, sleep=8, precheck=True)
    A(f"s_bitcmp1_b32 s{sHEAD}, 0\ns_cbranch_scc1 L_w0a")
    A(f"s_lshl_b32 s{sKo}, s{sHEAD}, 2\ns_add_u32 s{sKo}, s{sKo}, s{sVo}")
    A(f"buffer_store_dwordx2 {vr(T0,2)}, v96, {sr(sWS)}, s{sKo} offen sc1")
    A("L_w0a:")
    stamp(A, 1)
    for j in range(3): A(f"v_mov_b32 v{DSR[j]}, v{84+j}")
    for qb in range(4): A(f"v_lshlrev_b32 v17, 4, v0\nv_add_u32 v{XV[qb]}, {XS_OFF + qb*20480}, v17")
    A("v_lshrrev_b32 v16, 2, v0\nv_and_b32 v17, 6, v16\nv_and_b32 v18, 3, v0")
    A("v_lshrrev_b32 v19, 1, v18\nv_and_b32 v20, 1, v18\nv_lshlrev_b32 v20, 3, v20")
    A(f"v_mul_u32_u24 v21, 384, v16\nv_add_u32 v21, {VRING}, v21")
    for m in range(4):
        A(f"v_add_u32 v22, {2*m}, v19\nv_xor_b32 v22, v22, v17\nv_lshlrev_b32 v22, 4, v22\nv_add3_u32 v{VA[m]}, v21, v22, v20\nv_add_u32 v{VA[m]}, {STG}, v{VA[m]}")
    for e in range(2):
        A(f"v_add_u32 v22, {4*e}, v18\nv_xor_b32 v22, v22, v17\nv_lshlrev_b32 v22, 4, v22\nv_add_u32 v{WA[e]}, v21, v22\nv_add_u32 v{WA2[e]}, {2*STG}, v{WA[e]}")
    A(f"v_lshlrev_b32 v21, 7, v16\nv_add_u32 v21, {W1RING}, v21")
    for ct in range(3):
        A(f"v_add_u32 v22, {2*ct}, v19\nv_xor_b32 v22, v22, v17\nv_lshlrev_b32 v22, 4, v22\nv_add3_u32 v{W1A[ct]}, v21, v22, v20")
    A("v_and_b32 v16, 15, v0\nv_and_b32 v17, 6, v16\nv_lshrrev_b32 v18, 4, v0\nv_mul_u32_u24 v21, 384, v16")
    for e in range(2):
        A(f"v_add_u32 v22, {4*e}, v18\nv_xor_b32 v22, v22, v17\nv_lshlrev_b32 v22, 4, v22\nv_add_u32 v{KA[e]}, v21, v22")
    A(f"v_lshlrev_b32 v40, 3, v16\nv_mov_b32 v41, {LDS_FL}")
    HACC = {12: PB[1], 13: PB[1] + 16, 14: NREF}
    A("s_waitcnt vmcnt(0)")
    if opt["wqpf"]:
        sPFa = sSlot
        A(f"s_movk_i32 s{sPFa}, {12288-384}\ns_bitcmp1_b32 s{sHEAD}, 0\ns_cbranch_scc0 L_nopf")
        A(f"s_lshl_b32 s{sKo}, s{sQT}, 2\ns_add_u32 s{sKo}, s{sKo}, s{sW}\ns_lshl_b32 s{sKo}, s{sKo}, 4\ns_add_u32 s{sKo}, s{sKo}, 127")
        A(f"s_mul_i32 s{sKo2}, s{sKo}, 3072\ns_mul_i32 s{sKo}, s{sKo}, 12288")
        A(f"v_lshrrev_b32 v120, 2, v0\nv_and_b32 v121, 3, v0\nv_min_u32 v121, 2, v121\nv_lshlrev_b32 v121, 7, v121\nv_mul_u32_u24 v122, 12288, v120\nv_add3_u32 v122, v122, v121, s{sPFa}")
        A(f"v_and_b32 v121, 3, v0\nv_lshlrev_b32 v121, 6, v121\nv_min_u32 v121, 188, v121\nv_mul_u32_u24 v123, 3072, v120\nv_add_u32 v123, v123, v121\nv_add_u32 v123, {3072-96}, v123")
        A(f"buffer_load_dword v121, v122, {sr(sWQ)}, s{sKo} offen\nbuffer_load_dword v121, v122, {sr(sWQ)}, s{sKo} offen offset:384\nbuffer_load_dword v121, v123, {sr(sW1)}, s{sKo2} offen")
        A("L_nopf:")
    for ct in range(3):
        h = HACC[12 + ct]
        for r in range(2):
            A(f"v_lshlrev_b32 v{h+2*r}, 16, v{88+2*ct+r}\nv_and_b32 v{h+2*r+1}, 0xffff0000, v{88+2*ct+r}")
        for r in range(4): A(f"v_mul_f32 v{h+r}, {fh(CSC)}, v{h+r}")
        for qb in range(1, 4):
            for r in range(4): A(f"v_mov_b32 v{h+4*qb+r}, v{h+r}")
    A(f"s_cmp_lg_u32 s{sW}, 0\ns_cbranch_scc1 L_w0b")
    A(f"s_mov_b32 s{sKo}, s{sA}\ns_mov_b32 s{sKo2}, s{sB}")
    poll(A, "L_pln", 40, sWS, f"s{sVo}", cond_nonce(A, "0xffff"), sleep=2)
    A(f"s_mov_b32 s{sA}, s{sKo}\ns_mov_b32 s{sB}, s{sKo2}")
    A(f"v_mov_b32 v42, s{sN0}\nv_mov_b32 v43, s{sN1}\nds_write_b64 v41, v[42:43]\ns_waitcnt lgkmcnt(0)")
    A("L_w0b:")
    A("s_barrier")
    stamp(A, 2)
    straight(A, xload(0) + xload(1))
    A("ds_read_b64 v[42:43], v41")
    order = [list(range(15))] * 9 + [[14, 12, 13] + list(range(12))]
    def wread(ch, pos, e, h):
        ct = order[ch][pos]
        n = 15 * ch + pos; d = KV + 8 * (n % 6) + 4 * e + 2 * h; sl = ch % 3
        if ct < 12:
            ks, p = ct >> 1, ct & 1
            a, o = (WA[ks & 1], sl * STG) if sl < 2 else (WA2[ks & 1], 0)
            return f"ds_read_b64_tr_b16 {vr(d,2)}, v{a} offset:{o + (ks >> 1)*128 + 8*p + e*12288 + h*6144}"
        return f"ds_read_b64_tr_b16 {vr(d,2)}, v{W1A[ct-12]} offset:{sl*8192 + e*4096 + h*2048}"
    mf = []
    for ch in range(10):
        for pos in range(15):
            ct = order[ch][pos]; n = 15 * ch + pos
            for qb in range(4):
                for i_, e in enumerate(snk(2, qb)):
                    acc = ar(4 * (ct * 4 + qb)) if ct < 12 else vr(HACC[ct] + 4 * qb)
                    c = "0" if (ch == 0 and i_ == 0 and ct < 12) else acc
                    mf.append(Ins(f"{MF} {acc}, {vr(KV + 8*(n%6) + 4*e)}, {vr(XB[ch%3] + 4*(qb*2+e))}, {c}"))
    G = Gaps(mf)
    for pos in range(3):
        for e in range(2):
            for h in range(2): A(wread(0, pos, e, h))
    A.l.append(lgw(rs(KV, 8)))
    A(f"v_readfirstlane_b32 s{sN0}, v42\nv_readfirstlane_b32 s{sN1}, v43")
    A.l.append(vmw({"X0"}))
    stamp(A, 3)
    for ch in range(10):
        b = 120 * ch
        for pos in range(12):
            n = 0
            for e in range(2):
                for h in range(2):
                    G.place(b + 8 * pos + (2 * n if ch < 9 else 4 * (n >> 1)), wread(ch, pos + 3, e, h)); n += 1
        gb = b + 102
        G.put(gb, vmw({f"W{ch+1}"} if ch < 9 else {"K0", "V0"}, " lgkmcnt(0)")); G.put(gb, Ins("s_barrier"))
        if ch < 9:
            n = 0
            for pos in range(3):
                for e in range(2):
                    for h in range(2):
                        G.place(gb + 1 + n + n // 4, wread(ch + 1, pos, e, h)); n += 1
            G.put(b + 118, vmw({f"X{ch+1}"}))
        else:
            for ks in range(6): G.place(gb + 1 + 2 * ks, kread(0, 0, ks))
        for pos in range(15):
            n = 15 * ch + pos
            if b + 8 * pos - 1 >= 0: G.put(b + 8 * pos - 1, lgw(rs(KV + 8 * (n % 6), 8)))
        if ch + 2 < 10: lst = wdma(ch + 2) + xload(ch + 2)
        elif ch == 8: lst = kvdma(sK, KRING, 0, "K0") + kvdma(sV, VRING + STG, 0, "V0")
        else: lst = kvdma(sK, KRING + STG, 1, "K1") + kvdma(sV, VRING + 2 * STG, 1, "V1")
        g = spread(G, lst, b, b + (117 if ch < 9 else 100))
        assert g <= b + 120, g
    b = 1080
    spread(G, kvdma(sK, KRING + 2 * STG, 2, "K2"), b + 103, b + 119)
    k0 = -2.0 * LOG2E * math.sqrt(2.0 / math.pi) / CSC; k1 = k0 * 0.044715 / (CSC * CSC)
    HS = {14: sVo, 12: sVo2, 13: sInc}
    pre = [f"s_mov_b32 s{sA}, {fh(CSC)}", f"s_mov_b32 s{sB}, {fh(k1)}", f"s_mul_i32 s{sC}, s{sQB0}, {240*1024}", f"s_add_u32 s{sC}, s{sC}, {OH_OFF + 192*1024}", f"s_mul_i32 s{sD}, s{sHEAD}, 3"]
    for ct in (14, 12, 13):
        s_ = HS[ct]
        pre += [f"s_add_u32 s{s_}, s{sD}, {ct-12}", f"s_lshr_b32 s{sE}, s{s_}, 1", f"s_lshl_b32 s{sE}, s{sE}, 10", f"s_and_b32 s{s_}, s{s_}, 1", f"s_lshl_b32 s{s_}, s{s_}, 3",
                f"s_add_u32 s{s_}, s{s_}, s{sE}", f"s_add_u32 s{s_}, s{s_}, s{sC}"]
    pre += [f"s_lshl_b32 s{sFL}, s{sMT}, 1", f"s_add_u32 s{sFL}, s{sFL}, s{sQH}", f"s_lshl_b32 s{sFL}, s{sFL}, 8", f"s_add_u32 s{sG}, s{sFL}, {HF_OFF}",
            f"s_lshl_b32 s{sE}, s{sSP}, 1", f"s_add_u32 s{sE}, s{sE}, s{sKH}", f"s_lshl_b32 s{sE}, s{sE}, 2", f"s_lshl_b32 s{sMSK}, 15, s{sE}",
            f"s_lshl_b32 s{sE}, s{sQB0}, 6", f"s_and_b32 s{sE}, s{sE}, 0xffffff00", f"s_lshl_b32 s{sD}, s{sHEAD}, 3", f"s_add_u32 s{sQT}, s{sE}, s{sD}"]
    g = b - 118
    for t in pre: g = G.place(g, t) + 1
    assert g < b
    G.place(b - 30, f"v_mov_b32 v{T0}, {fh(k0)}"); G.place(b - 28, f"v_lshlrev_b32 v{T1}, 4, v0")
    def gelu_q(ct, tmp):
        q = []
        for qb in range(4):
            y = tmp + 8 * (qb & 1); pk = y + 4
            so_ = (sE, sF)[qb & 1]
            st = [(f"s_add_u32 s{so_}, s{HS[ct]}, {qb*240*1024}", 0, False, None), (f"buffer_store_dwordx2 {vr(pk,2)}, v{T1}, {sr(sWS)}, s{so_} offen sc1", 0, False, "H")]
            q.append((gelu_ops(HACC[ct] + 4 * qb, y, pk, st), gelu_pk(HACC[ct] + 4 * qb, y, pk, st)))
        return q
    g14 = gelu_q(14, XB[1])
    def two_streams(G, tiles, g0, e0, partial=False):
        import copy
        best = None
        for nfit in range(len(tiles), -1, -1):
            G2 = copy.deepcopy(G); ok = True
            for par in range(2):
                q_ = [x for t_ in tiles[par:nfit:2] for x in t_[0]]
                if q_: q_[0] = (q_[0][0], e0, False, None)
                if G2.fill(q_, g0): ok = False
            if ok: break
        part = []
        np_ = nfit + 1 if (partial and nfit < len(tiles)) else nfit
        for par in ((nfit + 1) & 1, nfit & 1):
            q_ = [x for t_ in tiles[par:np_:2] for x in t_[0]]
            if q_: q_[0] = (q_[0][0], e0, False, None)
            part += G.fill(q_, g0)
        print("gelu tiles hidden:", nfit, "of", len(tiles), "partial left", len(part), file=sys.stderr)
        return part + [x for t_ in tiles[np_:] for x in t_[1 if opt["pk"] else 0]]
    left14 = two_streams(G, g14, b, b + 12)
    q = []
    n = 0
    for ks in range(6):
        for qb in range(4):
            f = qb * 6 + ks; x = PB[0] + 16 * (n & 1); n += 1
            e = b + 24 + 16 * ks + 8 + 2 * qb + 1 + 5
            for p in range(2):
                for r in range(4): q.append((f"v_accvgpr_read_b32 v{x+4*p+r}, a{4*((2*ks+p)*4+qb)+r}", e, False, None))
            d = (x + 8) if f < 16 else QV + 4 * (f - 16)
            for i in range(4): q.append((f"v_cvt_pk_bf16_f32 v{d+i}, v{x+2*i}, v{x+2*i+1}", 0, False, None))
            if f < 16:
                for i in range(4): q.append((f"v_accvgpr_write_b32 a{192+4*f+i}, v{d+i}", 0, False, None))
    left = left14 + G.fill(q, b)
    print("Q conversion ops exposed:", len(left) - len(left14), file=sys.stderr)
    A.ext(G.emit())
    stamp(A, 4); zst(A, 5, 1)
    A("s_nop 7")
    straight(A, left)
    zst(A, 5, 2)
    for i in range(4): A(f"ds_read_b64 {vr(244+2*i,2)}, v{VA[i]} offset:{6144*i}")
    A.l.append(lgw(rs(244, 8)))
    for i in range(8): A(f"v_and_b32 v{244+i}, 0x7fff7fff, v{244+i}")
    for i in range(4): A(f"v_pk_max_u16 v{244+i}, v{244+i}, v{248+i}")
    A("v_pk_max_u16 v244, v244, v245\nv_pk_max_u16 v246, v246, v247\nv_pk_max_u16 v244, v244, v246\nv_lshlrev_b32 v245, 16, v244\nv_max_u32 v244, v244, v245")
    A(f"v_cmp_le_u32 vcc, {fh(2.0**-6)}, v244\ns_mov_b32 s{sBI}, {fh(-BIAS_LO)}\ns_mov_b32 s{sLM}, {fh(2.0**(112-BIAS_LO))}\ns_cmp_lg_u64 vcc, 0")
    A(f"s_cselect_b32 s{sBI}, {fh(-BIAS)}, s{sBI}\ns_cselect_b32 s{sLM}, {fh(2.0**(112-BIAS))}, s{sLM}")
    zst(A, 5, 3)
    G = Gaps(qk_mfmas(set())); qk_reads(G, 0, vpre=False)
    gq = gelu_q(12, 240) + gelu_q(13, 240)
    for kb in range(4):
        mq = []
        for qb in range(4):
            m = NREF + 4 * qb; s_ = S(kb, qb); e = 6 * (4 * kb + qb) + 5 + 8
            if kb == 0: mq += [(f"v_max3_f32 v{m}, v{s_}, v{s_+1}, v{s_+2}", e, False, None), (f"v_max_f32 v{m}, v{m}, v{s_+3}", e, False, None)]
            else: mq += [(f"v_max3_f32 v{m}, v{m}, v{s_}, v{s_+1}", e, False, None), (f"v_max3_f32 v{m}, v{m}, v{s_+2}, v{s_+3}", e, False, None)]
        mleft = G.fill(mq, 0)
        assert kb == 3 or not mleft
    left = two_streams(G, gq, 0, 0, partial=True)
    A.ext(G.emit())
    zst(A, 5, 4)
    A.l.append(vmw({"K1"})); A("s_barrier")
    zst(A, 5, 5)
    for r in KA: A(f"v_add_u32 v{r}, {STG}, v{r}")
    A("s_nop 4")
    for ks in range(6): A(kread(0, 0, ks))
    straight(A, mleft)
    for sw in ("v_permlane32_swap_b32", "v_permlane16_swap_b32"):
        for qb in range(4): A(f"v_mov_b32 v{NREF+4*qb+1}, v{NREF+4*qb}")
        for qb in range(4): A(f"{sw} v{NREF+4*qb}, v{NREF+4*qb+1}")
        for qb in range(4): A(f"v_max_f32 v{NREF+4*qb}, v{NREF+4*qb}, v{NREF+4*qb+1}")
    for qb in range(4): A(f"v_sub_f32 v{NREF+4*qb}, s{sBI}, v{NREF+4*qb}")
    for qb in range(4):
        for r in range(1, 4): A(f"v_mov_b32 v{NREF+4*qb+r}, v{NREF+4*qb}")
    zst(A, 5, 6)
    straight(A, left)
    zst(A, 5, 7)
    sm = sm_ops(0)
    L2 = 240
    for i in range(17):
        kb, qb = (i >> 2) & 3, i & 3
        if i < 16:
            for k in range(2): A(f"v_pk_add_f32 {vr(S(kb,qb)+2*k,2)}, {vr(S(kb,qb)+2*k,2)}, {vr(NREF+4*qb,2)}")
            for t in sm[i][0]: A(t)
        else: A("s_nop 0")
        if i > 0:
            j = i - 1; s_ = S(j >> 2, j & 3); l_ = L2 + 2 * (j & 3)
            if j < 4: A(f"v_pk_add_f32 {vr(l_,2)}, {vr(s_,2)}, {vr(s_+2,2)}")
            else:
                for k in range(2): A(f"v_pk_add_f32 {vr(l_,2)}, {vr(l_,2)}, {vr(s_+2*k,2)}")
            for t in sm[j][2]: A(t)
    for qb in range(4): A(f"v_add_f32 v{LS[qb]}, v{L2+2*qb}, v{L2+2*qb+1}")
    A(f"s_mov_b32 s{sNeg}, {-2 * STG & 0xffffffff}\ns_mov_b32 s{sSlot}, 0\ns_add_u32 s{sKo}, s{sWb}, {3*STG}\ns_mov_b32 s{sCnt}, 15")
    A(f"s_add_u32 s{sE}, s{sQT}, {HF_OFF}")
    A(f"v_mov_b32 v{T0}, s{sN0}\nv_mov_b32 v{T1}, s{sN1}")
    bp, bq = b_addr_ops()
    for t in bp: A(t)
    stamp(A, 5); zst(A, 5, 8)
    A("s_waitcnt lgkmcnt(0)")
    Gf = gen_step(0, first=True)
    Gf.place(177, f"buffer_store_dwordx2 {vr(T0,2)}, v{ZV}, {sr(sWS)}, s{sE} offen sc1")
    assert not Gf.fill(bq, 0, 192)
    sf = Gf.emit()
    ex = [(177, f"buffer_load_dwordx2 {vr(T0,2)}, v{FLV}, {sr(sWS)}, s{sG} offen sc1")]
    A(f"s_getpc_b64 s[16:17]\nL_pc2:\ns_lshr_b32 s19, s2, 3\ns_lshl_b32 s19, s19, 2\ns_add_u32 s19, s19, s{sW}\ns_lshl_b32 s18, s{sW}, 13")
    A("s_add_u32 s18, s18, L_tail-L_pc2\ns_add_u32 s16, s16, s18\ns_addc_u32 s17, s17, 0")
    A(f"s_mul_i32 s18, s19, 15360\ns_mul_i32 s24, s{sSP}, {1536*1280}\ns_add_u32 s18, s18, s24\ns_add_u32 s26, s18, 8192")
    A(f"s_mul_i32 s19, s19, 3840\ns_mul_i32 s24, s{sSP}, {384*1280}\ns_add_u32 s19, s19, s24\ns_brev_b32 s27, 1")
    ex.append((181, f"global_load_dword v254, v{PFV}, s[16:17]"))
    ex.append((185, f"buffer_load_dword v254, v{PFV}, {sr(sWO)}, s24 offen"))
    G1 = gen_step(1, extra=[(179, f"buffer_load_dword v254, v{PFV}, {sr(sWO)}, s24 offen"), (185, f"buffer_load_dword v254, v{PFV}, {sr(sW2)}, s25 offen")])
    G0 = gen_step(0, extra=ex)
    G1.place2(150, f"s_cmp_eq_u32 s{sCnt}, 3", "s_cselect_b32 s24, s18, s27")
    G1.place2(160, f"s_cmp_eq_u32 s{sCnt}, 2", "s_cselect_b32 s25, s19, s27")
    G0.place2(150, f"s_cmp_eq_u32 s{sCnt}, 2", "s_cselect_b32 s24, s26, s27")
    G1.place(186, f"s_sub_u32 s{sCnt}, s{sCnt}, 1")
    G0.place(186, f"s_cmp_lg_u32 s{sCnt}, 0")
    s1 = G1.emit(); s0 = G0.emit()
    pro = list(A.l)
    auto_vm(pro); auto_lgkm(pro)
    auto_lgkm(sf); auto_lgkm(s1, pre=s0); auto_lgkm(s0, pre=s1)
    A.ext(sf)
    A(".p2align 6\nL_loop:")
    A.ext(s1); A.ext(s0); A("s_cbranch_scc1 L_loop")
    T = Asm()
    T("L_tail:")
    zst(T, 1, 1)
    stamp(T, 6)
    for db in range(3):
        for e in range(2):
            for h in range(2): T(vread(db, e, h))
    lred(T)
    T(f"v_cmp_nge_f32 vcc, s{sLM}, v{LS[0]}")
    for qb in range(1, 4): T(f"v_cmp_nge_f32 s[{sC}:{sC+1}], s{sLM}, v{LS[qb]}\ns_nop 0\ns_or_b64 vcc, vcc, s[{sC}:{sC+1}]")
    T(f"s_cmp_lg_u64 vcc, 0\ns_cselect_b32 s{sA}, 1, {opt['forcesafe']}\ns_lshl_b32 s{sB}, s{sW}, 2\ns_add_u32 s{sB}, s{sB}, {LDS_FL}")
    T(f"v_mov_b32 v{NREF}, s{sA}\nv_mov_b32 v{NREF+1}, s{sB}\nv_mov_b32 v{NREF+2}, {LDS_FL}")
    T(f"ds_write_b32 v{NREF+1}, v{NREF}")
    for qb in range(4): T(f"v_rcp_f32 v{LS[qb]}, v{LS[qb]}")
    for t in b_scalars(): T(t)
    ra = [t.replace(f"v_cndmask_b32 v{RA[2]},", "v_cndmask_b32 v254,").replace(f"v_cndmask_b32 v{RA[3]},", "v_cndmask_b32 v255,") for t in b_ra_ops()]
    b_ra_fin = [f"v_mov_b32 v{RA[2]}, v254", f"v_mov_b32 v{RA[3]}, v255", f"v_mov_b32 v254, s{sN0}", f"v_mov_b32 v255, s{sN1}"]
    T("s_waitcnt vmcnt(0) lgkmcnt(0)\ns_barrier")
    for t in ra: T(t)
    T(f"ds_read_b128 {vr(NREF+4)}, v{NREF+2}")
    poll(T, "L_ph", FLV, sWS, f"s{sG}", cond_nonce(T, f"s{sMSK}"), sleep=8, precheck=True)
    for t in oepi_pre(): T(t)
    if opt["tst"] == 1: stamp(T, 7)
    G = Gaps(pv_mfmas(1)); pv_reads(G, 0)
    G.put(3, lgw(rs(NREF + 4, 4)))
    G.place(4, f"v_or3_b32 v{NREF}, v{NREF+4}, v{NREF+5}, v{NREF+6}"); G.place(5, f"v_or_b32 v{NREF}, v{NREF}, v{NREF+7}")
    G.place(7, f"v_readfirstlane_b32 s{sE}, v{NREF}")
    gck = G.place2(9, f"s_cmp_lg_u32 s{sE}, 0", "s_cbranch_scc1 L_safe")
    ylo = b_wdma(sW2, "W0", 0) + oload(0, "O0") + b_wdma(sW2, "W1", STB) + oload(1, "O1")
    g = spread(G, ylo, gck + 1, 94)
    oq, _ = oepi_ops()
    items = []; cur = []
    for x in oq:
        if x[3] == "OST": items.append((cur, x)); cur = []
        else: cur.append(x)
    pc = [int(x) for x in opt["pace"].split(",")]; assert sum(pc) == 24
    first = []
    for n in range(12):
        first += items[n][0]
        if n < pc[0]: first.append(items[n][1])
    left = G.fill(first, 12)
    T.ext(G.emit())
    if opt["tst"] == 2: stamp(T, 7)
    zst(T, 1, 2)
    T("s_nop 7")
    straight(T, pkify(left))
    T("L_join:")
    zst(T, 1, 3)
    if opt["tst"] == 0: stamp(T, 7)
    for t in b_ra_fin: T(t)
    T.l.append(vmw({"W0", "O0"})); T("s_barrier")
    for nb in range(3):
        for e in range(2):
            for h in range(2): T(bread(0, nb, e, h))
    T(f"s_add_u32 s17, s{sQT}, {AF_OFF}")
    T("s_waitcnt lgkmcnt(0)")
    zst(T, 1, 4)
    def paced(k, lim=78):
        n0 = sum(pc[:k + 1]); q = []
        for j in range(pc[k + 1]):
            n = n0 + j; g = 2 + (lim - 2) * j // pc[k + 1]
            if n >= 12: q += [(t, max(0, g - 7), ng, tag) for (t, e, ng, tag) in items[n][0]]
            q.append((items[n][1][0], g, False, "OST"))
        return q
    c0, late = b_chunk(0, b_wdma(sW2, "W2", 2 * STB) + oload(2, "O2"), {"W1"}, {"O1"}, czero=True, fillq=paced(0))
    T.ext(c0); straight(T, late); print("y0 leftover", len(late), file=sys.stderr)
    zst(T, 1, 5)
    so = {1: 18, 2: 19, 3: 16}; sYC, sXC, sYF, sXF = 26, 27, 24, 25
    a1 = [f"v_lshlrev_b32 v4, 4, v0", f"s_mul_i32 s{sE}, s{sW}, 20480", f"v_add_u32 v2, s{sE}, v4", f"s_xor_b32 s{sE}, s{sW}, 2", f"s_mul_i32 s{sE}, s{sE}, 20480", f"v_add_u32 v3, s{sE}, v4",
          "v_lshlrev_b32 v1, 3, v0", "v_add_u32 v1, 2048, v1", f"s_mov_b32 s{sVo}, s{sH}", f"s_lshl_b32 s{sH}, s{sMT}, 2", f"s_add_u32 s{sH}, s{sH}, s{sNT}"]
    c1, left = b_chunk(1, [], {"W2"}, {"O2"}, fillq=a1 + paced(1, opt["lim1"]), af=opt["afg"] if opt["afc"] == 1 else None)
    T.ext(c1); straight(T, left); print("y1 leftover", len(left), file=sys.stderr)
    zst(T, 1, 6)
    a2 = [t.replace(f"s{sA}", f"s{sInc}") for t in slot_scalars(YC_OFF, so, sYC)]
    a2 += [f"s_lshl_b32 s{sE}, s{sH}, 2", f"s_add_u32 s{sE}, s{sE}, s{sW}", f"s_lshl_b32 s{sE}, s{sE}, 6", f"s_add_u32 s{sYF}, s{sE}, {YF_OFF}", f"s_add_u32 s{sXF}, s{sE}, {XF_OFF}",
           f"s_add_u32 s{sG}, s{sFL}, {AF_OFF}", f"s_mov_b32 s{sKo}, s{sF}"]
    c2, left = b_chunk(2, a2, None, None, nxt=False, xw=True, fillq=paced(2, 60), af=opt["afg"] if opt["afc"] == 2 else None,
                       puts=[(opt["aflg"], f"buffer_load_dwordx2 {vr(T0,2)}, v{FLV}, {sr(sWS)}, s{sG} offen sc1", "AFL")])
    assert pc[3] == 0
    T.ext(c2); straight(T, left); print("y2 leftover", len(left), file=sys.stderr)
    zst(T, 1, 7); stamp(T, 8)
    YO = 80; YP = 100
    try_ = lambda i, r: (YO + 4 * i, 48 + 4 * i, 130 + 4 * i, 192 + 4 * i if i < 4 else 232)[r]
    T.l.append(vmw({"AFL"}))
    poll(T, "L_pat", FLV, sWS, f"s{sG}", cond_nonce(T, f"s{sMSK}"), sleep=4, precheck=True)
    stamp(T, 9); zst(T, 1, 8); zst(T, 2, 1)
    straight(T, oload(2, "O2"))
    T("s_waitcnt lgkmcnt(0)\ns_barrier")
    straight(T, b_wdma(sWO, "W2", 2 * STB))
    xchg_reads(T, try_)
    straight(T, oload(0, "O0"))
    T("s_waitcnt lgkmcnt(0)")
    yst = xchg_sum(T, try_, YP, so, False)
    T.l.append(vmw({"W2"})); T("s_barrier")
    for nb in range(3):
        for e in range(2):
            for h in range(2): T(bread(2, nb, e, h))
    straight(T, b_wdma(sWO, "W0", 0))
    T(f"s_mov_b32 s{sCnt}, 2\ns_lshl_b32 s{sE}, s{sSP}, 3\ns_add_u32 s{sG}, s{sYF}, s{sE}")
    zst(T, 1, 9)
    T.l.append(vmw({"O2"}, " lgkmcnt(0)"))
    zst(T, 1, 10); zst(T, 2, 2)
    def sl(u): return b_wdma(sWO, f"W{(u+2)%3}", ((u + 2) % 3) * STB) + oload((u + 2) % 3, f"O{(u+2)%3}")
    def nx(k, u): return {f"{k}{(u+1)%3}"}
    for n, u in enumerate((2, 0, 1)):
        T.ext(b_chunk(u, merge(sl(u), yst[5 * n: 5 * n + 5]), nx("W", u), nx("O", u), czero=(n == 0)))
        zst(T, 2, 3 + n)
    zst(T, 1, 11)
    tail = list(T.l)
    auto_lgkm(tail, pre=s0); auto_vm(tail)
    A.ext(tail)
    steps = [b_chunk(2, sl(2), nx("W", 2), nx("O", 2), first_gap=[f"s_sub_u32 s{sCnt}, s{sCnt}, 1"]),
             b_chunk(0, sl(0), nx("W", 0), nx("O", 0), after_barrier=f"buffer_store_dwordx2 v[254:255], v{ZV}, {sr(sWS)}, s{sG} offen sc1"),
             b_chunk(1, sl(1), nx("W", 1), nx("O", 1), last_gap=[f"s_cmp_lg_u32 s{sCnt}, 0"])]
    for u in range(3):
        auto_lgkm(steps[u], pre=steps[(u + 2) % 3]); auto_vm(steps[u], pre=steps[(u + 1) % 3] + steps[(u + 2) % 3])
    A(".p2align 6\nL_bloop:")
    for u in range(3): A.ext(steps[u])
    A("s_cbranch_scc1 L_bloop")
    PKS = 48; XL = 16; B2L = 26
    E = Asm()
    zst(E, 2, 6)
    E(f"v_and_b32 v6, 3, v0\nv_lshlrev_b32 v6, 3, v6\ns_lshl_b32 s{sMSK}, 1, s{sSP}\ns_xor_b32 s{sMSK}, s{sMSK}, 15")
    a3 = [f"s_mul_i32 s{sE}, s{sKH}, 40960", f"v_add_u32 v2, s{sE}, v2", f"s_sub_u32 s{sE}, 40960, s{sE}", f"v_add_u32 v3, s{sE}, v3",
          "v_lshrrev_b32 v7, 4, v0", "v_lshlrev_b32 v7, 3, v7", "v_and_b32 v5, 15, v0", "v_mul_u32_u24 v5, 1280, v5", "v_add_u32 v5, v5, v7"]
    c, left = b_chunk(2, [(f"buffer_load_dwordx2 {vr(T0,2)}, v6, {sr(sWS)}, s{sYF} offen sc1", "YF")] + sl(2), nx("W", 2), nx("O", 2), fillq=a3); assert not left
    E.ext(c)
    E.l.append(vmw({"YF"}))
    poll(E, "L_py", 6, sWS, f"s{sYF}", cond_nonce(E, f"s{sMSK}"), sleep=4, precheck=True)
    zst(E, 2, 7)
    a4 = [f"s_lshr_b32 s{sC}, s{sFL}, 6", f"s_add_u32 s{sC}, s{sC}, s{sSP}", f"s_mul_i32 s{sKo}, s{sC}, 20480",
          f"s_mul_i32 s{sC}, s{sNT}, 320", f"s_mul_i32 s{sB}, s{sKH}, 160", f"s_add_u32 s{sC}, s{sC}, s{sB}", f"s_add_u32 s{sKo}, s{sKo}, s{sC}"]
    E.ext(b_chunk(0, inbox_loads(sYC, YP, "YL") + a4, nx("W", 0), nx("O", 0), lim=50))
    zst(E, 2, 8)
    l2 = [(f"buffer_load_dwordx2 {vr(B2L+2*i,2)}, v7, {sr(sB2)}, s{sC} offen offset:{32*i}", "YL") for i in range(5)]
    l2 += [(f"buffer_load_dwordx2 {vr(XL+2*i,2)}, v5, {sr(sX)}, s{sKo} offen offset:{32*i}", "YL") for i in range(5)]
    a5 = slot_scalars(XC_OFF, so, sXC) + [f"s_lshl_b32 s{sE}, s{sSP}, 3", f"s_add_u32 s{sG}, s{sXF}, s{sE}"]
    c, left = b_chunk(1, l2, None, None, nxt=False, xw=True, lim=36, fillq=a5); assert not left
    E.ext(c)
    stamp(E, 10); zst(E, 2, 9); zst(E, 3, 1)
    auto_lgkm(E.l, pre=steps[2]); auto_vm(E.l, pre=steps[1] + steps[2])
    trs = lambda i, r: 160 + 20 * r + 4 * i
    E("s_waitcnt lgkmcnt(0)\ns_barrier")
    xchg_reads(E, trs)
    xchg_sum(E, trs, PKS, so, True)
    zst(E, 2, 10); zst(E, 3, 2)
    E("s_waitcnt vmcnt(9)")
    E(f"s_mov_b32 s{sC}, 0x3f80\ns_mov_b32 s{sD}, 0x3f800000")
    def dacc(x, src):
        for k in range(2): E(f"v_dot2_f32_bf16 v{x+2*k}, v{src+k}, s{sC}, v{x+2*k}\nv_dot2_f32_bf16 v{x+2*k+1}, v{src+k}, s{sD}, v{x+2*k+1}")
    for p in range(4):
        for i in range(5): dacc(YO + 4 * i, (B2L + 2 * i) if p == 3 else (YP + 10 * p + 2 * i))
    zst(E, 3, 3)
    E("s_waitcnt vmcnt(0)")
    zst(E, 3, 4)
    E(f"buffer_store_dwordx2 v[254:255], v{ZV}, {sr(sWS)}, s{sG} offen sc1")
    for i in range(5):
        g_ = YO + 4 * i; t = 130 + 4 * i
        for k in range(4): E(f"v_mul_f32 v{t+k}, {fh(-LOG2E)}, v{g_+k}")
        for k in range(4): E(f"v_exp_f32 v{t+k}, v{t+k}")
        for k in range(4): E(f"v_add_f32 v{t+k}, 1.0, v{t+k}")
        for k in range(4): E(f"v_rcp_f32 v{t+k}, v{t+k}")
        for k in range(4): E(f"v_mul_f32 v{g_+k}, v{g_+k}, v{t+k}")
        for k in range(2): E(f"v_lshlrev_b32 v{t+2*k}, 16, v{XL+2*i+k}\nv_and_b32 v{t+2*k+1}, 0xffff0000, v{XL+2*i+k}")
    zst(E, 3, 5)
    poll(E, "L_pxc", 6, sWS, f"s{sXF}", cond_nonce(E, f"s{sMSK}"), sleep=1)
    stamp(E, 11); zst(E, 2, 11); zst(E, 3, 6)
    straight(E, inbox_loads(sXC, PKS, "XL"))
    for r in (1, 2, 3):
        E(f"s_waitcnt vmcnt({9-3*r})")
        for i in range(5): dacc(trs(i, 0), PKS + 10 * (r - 1) + 2 * i)
    for i in range(5):
        x = trs(i, 0)
        for k in range(2): E(f"v_pk_fma_f32 {vr(x+2*k,2)}, {vr(x+2*k,2)}, {vr(YO+4*i+2*k,2)}, {vr(130+4*i+2*k,2)}")
        for k in range(2): E(f"v_cvt_pk_bf16_f32 v{trs(i,2)+k}, v{x+2*k}, v{x+2*k+1}")
        E(f"buffer_store_dwordx2 {vr(trs(i,2),2)}, v5, {sr(sOUT)}, s{sKo} offen offset:{32*i}")
    if opt["stamp"]:
        E("s_waitcnt vmcnt(0)")
        E("s_memrealtime s[4:5]\ns_memtime s[6:7]\ns_load_dwordx2 s[8:9], s[0:1], 96\ns_waitcnt lgkmcnt(0)")
        E(f"s_add_u32 s8, s8, {ST_OFF}\ns_addc_u32 s9, s9, 0\ns_and_b32 s9, s9, 0xffff\ns_mov_b32 s10, 0x40000\ns_mov_b32 s11, 0x20000")
        E(f"s_lshl_b32 s12, s2, 2\ns_add_u32 s12, s12, s{sW}\ns_lshl_b32 s12, s12, 7\nv_mov_b32 v2, 0\ns_mov_b64 exec, 1")
        for i in range(NST[0] + 1):
            a, b_ = (78 + 2 * i, 79 + 2 * i) if i < NST[0] else (4, 6)
            E(f"v_mov_b32 v{16+2*i}, s{a}\nv_mov_b32 v{17+2*i}, s{b_}\nbuffer_store_dwordx2 v[{16+2*i}:{17+2*i}], v2, s[8:11], s12 offen offset:{8*i}")
    ec = list(E.l)
    A.ext(ec)
    A("L_done:\ns_endpgm")
    F = Asm()
    F("L_safe:")
    F("s_waitcnt vmcnt(0) lgkmcnt(0)\ns_nop 7")
    for r in KA: F(f"v_subrev_u32 v{r}, {2*STG}, v{r}")
    for r in VA: F(f"v_subrev_u32 v{r}, {2*STG}, v{r}")
    for i in range(192): F(f"v_accvgpr_write_b32 a{i}, 0")
    MX = PB[1]
    for qb in range(4): F(f"v_mov_b32 v{LS[qb]}, 0\nv_mov_b32 v{MX+qb}, 0xff7fffff")
    F(f"s_mov_b32 s{sSlot}, s{sWb}\ns_mov_b32 s{sCnt}, 32")
    Fp = list(F.l)
    L = Asm()
    L("L_sloop:")
    L("s_barrier")
    for srd_, base in ((sK, KRING), (sV, VRING)):
        for hf in range(2):
            L(f"s_add_u32 s{sInc}, s{sSlot}, {3072*hf}\ns_add_u32 m0, s{sWb}, {base + 3072*hf}\ns_nop 0")
            for j in range(3): L(f"buffer_load_dwordx4 v{DSR[j]}, {sr(srd_)}, s{sInc} offen offset:{1024*j} lds")
    L(f"s_add_u32 s{sSlot}, s{sSlot}, {STG}")
    L("s_waitcnt vmcnt(0)\ns_barrier")
    for ks in range(6): L(kread(0, 0, ks))
    L("s_waitcnt lgkmcnt(0)")
    G = Gaps(qk_mfmas(set())); qk_reads(G, 0, vpre=True)
    L.ext(G.emit())
    L("s_nop 7")
    for qb in range(4):
        m = NREF + 4 * qb
        v = [S(kb, qb) + r for kb in range(4) for r in range(4)]
        L(f"v_max3_f32 v{m}, v{v[0]}, v{v[1]}, v{MX+qb}")
        for i in range(2, 16, 2): L(f"v_max3_f32 v{m}, v{m}, v{v[i]}, v{v[i+1]}")
    for sw in ("v_permlane32_swap_b32", "v_permlane16_swap_b32"):
        for qb in range(4): L(f"v_mov_b32 v{NREF+4*qb+1}, v{NREF+4*qb}")
        for qb in range(4): L(f"{sw} v{NREF+4*qb}, v{NREF+4*qb+1}")
        for qb in range(4): L(f"v_max_f32 v{NREF+4*qb}, v{NREF+4*qb}, v{NREF+4*qb+1}")
    for qb in range(4): L(f"v_sub_f32 v{NREF+4*qb+1}, v{MX+qb}, v{NREF+4*qb}")
    for qb in range(4): L(f"v_exp_f32 v{NREF+4*qb+1}, v{NREF+4*qb+1}")
    for qb in range(4): L(f"v_mov_b32 v{MX+qb}, v{NREF+4*qb}")
    for qb in range(4): L(f"v_mul_f32 v{LS[qb]}, v{LS[qb]}, v{NREF+4*qb+1}")
    for db in range(12):
        for qb in range(4):
            t = PB[1] + 8 + 4 * ((db * 4 + qb) % 4)
            for r in range(4): L(f"v_accvgpr_read_b32 v{t+r}, a{O(db,qb)+r}")
            for r in range(4): L(f"v_mul_f32 v{t+r}, v{t+r}, v{NREF+4*qb+1}")
            for r in range(4): L(f"v_accvgpr_write_b32 a{O(db,qb)+r}, v{t+r}")
    for kb in range(4):
        for qb in range(4):
            for r in range(4): L(f"v_sub_f32 v{S(kb,qb)+r}, v{S(kb,qb)+r}, v{MX+qb}")
    for (ex, ad, cv) in sm_ops(0):
        for t in ex: L(t)
        L("s_nop 0")
        for t in ad + cv: L(t)
    L("s_waitcnt lgkmcnt(0)\ns_nop 1")
    G = Gaps(pv_mfmas(0)); pv_reads(G, 0)
    L.ext(G.emit())
    L(f"s_sub_u32 s{sCnt}, s{sCnt}, 1\ns_cmp_lg_u32 s{sCnt}, 0\ns_cbranch_scc1 L_sloop")
    auto_lgkm(L.l)
    X = Asm()
    X("s_waitcnt lgkmcnt(0)\ns_barrier")
    lred(X)
    for qb in range(4): X(f"v_rcp_f32 v{LS[qb]}, v{LS[qb]}")
    straight(X, ylo)
    straight(X, first)
    X("s_waitcnt vmcnt(0)\ns_branch L_join")
    A.ext(Fp); A.ext(L.l); A.ext(X.l)
    j = [i for i, x in enumerate(tail) if x.text == "L_join:"][0]
    ck = [i for i, x in enumerate(tail) if "L_safe" in x.text][0]
    bl = steps[0] + steps[1] + steps[2]
    main = pro + sf + s1 + s0 + s1 + s0 + tail + bl + bl + ec
    problems += check_hazards(main, "main"); problems += check_waits(main, "main")[0]
    safe = s0 + tail[:ck + 1] + Fp + L.l + L.l + X.l + tail[j:]
    problems += check_hazards(safe, "safe"); problems += check_waits(safe, "safe")[0]
    return A.text()

body = gen()
kn = NAME + "_kernel"
out = f"""; generated by gen/gen12.py (own generator): one persistent launch, 1 workgroup per CU
; @launch grid=(256,1,1) block=(256,1,1) lds={LDS_SZ}
.amdgcn_target "amdgcn-amd-amdhsa--gfx950"
.text
.globl {kn}
.p2align 8
.type {kn},@function
{kn}:
{body}
.section .rodata,"a"
.p2align 6
.amdhsa_kernel {kn}
  .amdhsa_next_free_vgpr 512
  .amdhsa_next_free_sgpr 102
  .amdhsa_accum_offset 256
  .amdhsa_group_segment_fixed_size 0
  .amdhsa_kernarg_size 104
  .amdhsa_user_sgpr_count 2
  .amdhsa_user_sgpr_kernarg_segment_ptr 1
  .amdhsa_system_sgpr_workgroup_id_x 1
.end_amdhsa_kernel
"""
if problems:
    for p in sorted(set(problems)): print(p, file=sys.stderr)
    print(f"{len(set(problems))} problems", file=sys.stderr)
sys.stdout.write(out)
```

```python
import sys, math, struct
from asmlib import *

NAME = "recurrent_scan__gqa_block_cached__dense_activation_gelu__prompt"
def f2u(x): return struct.unpack("<I", struct.pack("<f", x))[0]
def fh(x): return f"0x{f2u(x):08x}"
LOG2E = math.log2(math.e)
CSC = LOG2E / math.sqrt(192.0)
XS_OFF = 0
OH_OFF = 0x400000
YC_OFF = 0x2400000
XC_OFF = 0x3c00000
FL_OFF = 0x4800000
AF_OFF = FL_OFF; HF_OFF = FL_OFF + 0x4000; XF_OFF = FL_OFF + 0x8000; YF_OFF = FL_OFF + 0xc000; LF_OFF = FL_OFF + 0x10000
WS_SZ = 0x5000000
ST_OFF = 0x8000000
LDS_LN = 147456; LDS_FL = LDS_LN + 2048; LDS_SZ = LDS_FL + 64
SPIN = 1 << 18

opt = dict(stamp=0, forcesafe=0, pf=1, warm=0, pst=128, snake=1, bias=102, opf=0, dense=4, zoom=0, pace="5,10,9,0", afc=2, afg=25, lim1=78, wqpf=1, nearly=8, tst=0)
for a in sys.argv[1:]:
    k, v = a.split("="); opt[k] = type(opt.get(k, ""))(v)
problems = []
BIAS = opt["bias"]; BIAS_LO = 48
def snk(n, i): return list(range(n))[::-1] if (opt["snake"] and i & 1) else list(range(n))

def vr(b, n=4): return f"v[{b}:{b+n-1}]"
def ar(b, n=4): return f"a[{b}:{b+n-1}]"
def sr(b, n=4): return f"s[{b}:{b+n-1}]"
def rs(b, n): return {f"v{i}" for i in range(b, b + n)}
def lgw(regs): return Ins("s_waitcnt lgkmcnt(?)", ("lg", regs))
def vmw(tags, extra=""): return Ins("s_waitcnt vmcnt(?)" + extra, ("vm", set(tags)))
MF = "v_mfma_f32_16x16x32_bf16"

sK, sV, sWQ, sW1, sWS, sB1, sX, sDBG, sOUT, sWO, sB2, sW2 = 4, 8, 12, 16, 20, 24, 28, 32, 36, 40, 44, 48
sSP = 3
(sW, sHEAD, sQT, sQB0, sKo, sKo2, sVo, sVo2, sSlot, sM, sInc, sCnt, sA, sB, sC, sD, sWb, sNeg, sN0, sN1,
 sMT, sNT, sE, sF, sKH, sQH) = range(52, 78)
sMSK, sFL, sG, sH = 12, 13, 14, 15
sBI, sLM = 32, 33
KT = 76
NST = [0]
def zst(A, z, i):
    if opt["zoom"] == z: stamp(A, i, True)
def stamp(A, i, force=False):
    if opt["zoom"] and not force: return
    if opt["stamp"]:
        A(f"s_memrealtime vcc\ns_waitcnt lgkmcnt(0)\ns_mov_b32 s{78+2*i}, vcc_lo\ns_memtime vcc\ns_waitcnt lgkmcnt(0)\ns_mov_b32 s{79+2*i}, vcc_lo")
        NST[0] = max(NST[0], i + 1)

KA = [1, 2]; VA = [3, 4, 5, 6]; DSR = [7, 8, 9]; LS = [10, 11, 12, 13]; T0, T1 = 14, 15
NREF = 16; QV = 32; SB = 64; PB = [128, 160]; KV = 192
WA = [240, 241]; WA2 = [242, 243]; W1A = [244, 245, 246]; DW = [247, 248, 249]; DW1 = 250; XV = [251, 252, 253, 254]
KRING = 0; VRING = 73728; STG = 24576; W1RING = 49152
DS5 = [240, 241, 242, 243, 244]; RA = [245, 246, 8, 9]; RAT = [245, 246, 254, 255]; OV = [247, 248, 249, 250]; PFV = 251; ZV = 252; FLV = 253
OB = [16, 48, 160]; WF = 192; STB = 40960; PK = 80

def qfrag(qb, ks):
    f = qb * 6 + ks
    return ar(192 + 4 * f) if f < 16 else vr(QV + 4 * (f - 16))
def S(kb, qb): return SB + 4 * (kb * 4 + qb)
def P(par, qb, e): return PB[par] + 4 * (qb * 2 + e)
def O(db, qb): return 4 * (db * 4 + qb)

class Gaps:
    def __init__(self, mfmas):
        self.m = mfmas; n = len(mfmas); self.n = n; self.cap = 2
        self.sc = [[] for _ in range(n)]; self.mem = [[] for _ in range(n)]; self.va = [[] for _ in range(n)]
    def vcost(self, g): return len(self.mem[g]) + sum(2 if x.kind == "trans" else 1 for x in self.va[g])
    def cost(self, g): return self.vcost(g) + len(self.sc[g])
    def fits(self, g, ins):
        c = 2 if ins.kind == "trans" else 1
        if ins.kind in ("valu", "trans", "ds", "vmem"):
            if self.vcost(g) + c > self.cap: return False
            if ins.kind in ("ds", "vmem") and self.va[g]: return False
            return self.vcost(g) + c + len(self.sc[g]) <= self.cap + 1
        return self.cost(g) + 1 <= 3
    def put(self, g, ins):
        if ins.kind in ("ds", "vmem"): self.mem[g].append(ins)
        elif ins.kind in ("valu", "trans"): self.va[g].append(ins)
        else: self.sc[g].append(ins)
    def place(self, g, text, tag=None):
        ins = Ins(text, tag)
        while not self.fits(g, ins): g += 1
        self.put(g, ins); return g
    def place2(self, g, t1, t2):
        while self.cost(g) + 2 > 3: g += 1
        self.put(g, Ins(t1)); self.put(g, Ins(t2)); return g
    def fill(self, queue, g0=0, g1=None):
        g1 = self.n if g1 is None else g1
        g = g0; i = 0; last = -1; lastkind = None
        while i < len(queue):
            t, e, ng, tag = (list(queue[i]) + [0, False, None])[:4] if not isinstance(queue[i], str) else (queue[i], 0, False, None)
            ins = Ins(t, tag)
            g = max(g, e)
            order = {"salu": 0, "wait": 0, "ds": 1, "vmem": 1, "valu": 2, "trans": 2}
            if last >= 0 and (ng or order[ins.kind] < order[lastkind] or (lastkind == "salu" and "m0" in queue_prev and ins.kind == "vmem")): g = max(g, last + 1)
            while g < g1 and not self.fits(g, ins): g += 1
            if g >= g1: break
            self.put(g, ins); last = g; lastkind = ins.kind; queue_prev = t; i += 1
        return queue[i:]
    def emit(self):
        out = []
        for g, m in enumerate(self.m):
            out.append(m); out += self.sc[g] + self.mem[g] + self.va[g]
        return out

def spread(G, lst, g0, g1):
    nv = max(1, sum(1 for x in lst if isinstance(x, tuple)))
    k = 0; g = g0
    for x in lst:
        t, tag = x if isinstance(x, tuple) else (x, None)
        if tag:
            tgt = g0 + 1 + int((g1 - g0 - 1) * k / nv); k += 1
            g = G.place(max(g, tgt), t, tag) + 1
        else:
            g = G.place(g, t)
            if " m0," in t: g += 1
    return g

def straight(A, lst):
    prev_m0 = False
    for x in lst:
        if isinstance(x, str): t, tag = x, None
        elif len(x) == 2: t, tag = x
        else:
            t = x[0]; tag = x[3] if len(x) > 3 else None
            if len(x) > 2 and x[2]: A("s_nop 1")
        if prev_m0 and "lds" in t: A("s_nop 0")
        A(t, tag); prev_m0 = " m0," in t

def srd(A, d, lo, size, add=None):
    if add is None:
        A(f"s_mov_b32 s{d}, s{lo}\ns_and_b32 s{d+1}, s{lo+1}, 0xffff")
    else:
        A(f"s_add_u32 s{d}, s{lo}, {add}\ns_addc_u32 s{d+1}, s{lo+1}, 0\ns_and_b32 s{d+1}, s{d+1}, 0xffff")
    A(f"s_mov_b32 s{d+2}, {size}\ns_mov_b32 s{d+3}, 0x20000")

def kread(buf, kb, ks):
    d = KV + 24 * buf + 4 * ks
    return f"ds_read_b128 {vr(d)}, v{KA[ks & 1]} offset:{(ks >> 1) * 128 + kb * 6144}"
def vread(db, e, half):
    d = KV + 8 * (db % 6) + 4 * e + 2 * half
    return f"ds_read_b64_tr_b16 {vr(d,2)}, v{VA[db & 3]} offset:{(db >> 2) * 128 + e * 12288 + half * 6144}"

def qk_mfmas(cinit):
    out = []
    for kb in range(4):
        for qb in range(4):
            for n, ks in enumerate(snk(6, qb)):
                a = KV + 24 * (kb & 1) + 4 * ks
                c = (vr(NREF + 4 * qb) if kb in cinit else "0") if n == 0 else vr(S(kb, qb))
                out.append(Ins(f"{MF} {vr(S(kb,qb))}, {vr(a)}, {qfrag(qb,ks)}, {c}"))
    return out
def pv_mfmas(par, first=False):
    out = []
    for db in range(12):
        for qb in range(4):
            for n, e in enumerate(snk(2, qb)):
                a = KV + 8 * (db % 6) + 4 * e
                c = "0" if (first and n == 0) else ar(O(db, qb))
                out.append(Ins(f"{MF} {ar(O(db,qb))}, {vr(a)}, {vr(P(par,qb,e))}, {c}"))
    return out
def sm_ops(par):
    out = []
    for kb in range(4):
        for qb in range(4):
            s = S(kb, qb); p = P(par, qb, kb >> 1) + 2 * (kb & 1)
            out.append(([f"v_exp_f32 v{s+r}, v{s+r}" for r in range(4)],
                        [f"v_add_f32 v{LS[qb]}, v{LS[qb]}, v{s+r}" for r in range(4)],
                        [f"v_cvt_pk_bf16_f32 v{p+r}, v{s+2*r}, v{s+2*r+1}" for r in range(2)]))
    return out
def qk_reads(G, base, vpre=True):
    for kb in range(3):
        for ks in range(6): G.place(base + 24 * kb + 1 + 3 * ks, kread((kb + 1) & 1, kb + 1, ks))
    if vpre:
        n = 0
        for db in range(3):
            for e in range(2):
                for h in range(2):
                    G.place(base + 73 + (n * 3) // 2, vread(db, e, h)); n += 1
    for ks in (2, 4): G.put(base + ks - 1, lgw(rs(KV + 4 * ks, 8)))
    for kb in range(1, 4): G.put(base + 24 * kb - 1, lgw(rs(KV + 24 * (kb & 1), 24)))
def pv_reads(G, B, first_wait=True):
    for db in range(9):
        n = 0
        for e in range(2):
            for h in range(2):
                G.place(B + 8 * db + 2 * n, vread(db + 3, e, h)); n += 1
    for db in range(12):
        if B + 8 * db - 1 >= 0: G.put(B + 8 * db - 1, lgw(rs(KV + 8 * (db % 6), 8)))

def gen_step(par, first=False, extra=()):
    G = Gaps(qk_mfmas({0, 1, 2, 3}) + pv_mfmas(par, first))
    qk_reads(G, 0)
    B = 96
    pv_reads(G, B)
    gb = B + 80
    G.put(gb, Ins("s_waitcnt vmcnt(12) lgkmcnt(0)")); G.put(gb, Ins("s_barrier"))
    for (g_, t_) in extra: G.place(g_, t_)
    for ks in range(6): G.place(gb + 1 + 2 * ks, kread(0, 0, ks))
    G.put(191, lgw(rs(KV, 8)))
    G.place(0, f"s_add_u32 s{sM}, s{sSlot}, s{sWb}")
    G.place(2, f"s_add_u32 s{sKo2}, s{sKo}, 3072")
    G.place(4, f"s_sub_u32 s{sVo}, s{sKo}, {STG}")
    G.place(5, f"s_sub_u32 s{sVo2}, s{sKo}, {STG - 3072}")
    G.place2(6, f"s_cmp_eq_u32 s{sSlot}, {STG}", f"s_cselect_b32 s{sInc}, s{sNeg}, {STG}")
    dm = [(sK, sKo, 0), (sK, sKo2, 3072), (sV, sVo, VRING), (sV, sVo2, VRING + 3072)]
    g = 8
    for (srd_, so, mo) in dm:
        G.place(g, f"s_add_u32 m0, s{sM}, {mo}" if mo else f"s_mov_b32 m0, s{sM}")
        for j in range(3):
            g2 = G.place(g + 3 + 12 * j, f"buffer_load_dwordx4 v{DSR[j]}, {sr(srd_)}, s{so} offen offset:{1024*j} lds")
        g = g2 + 9
    G.place(g, f"s_add_u32 s{sKo}, s{sKo}, {STG}")
    g = G.place(g + 1, f"s_add_u32 s{sSlot}, s{sSlot}, {STG}")
    g = G.place2(g + 1, f"s_cmp_eq_u32 s{sSlot}, {3 * STG}", f"s_cselect_b32 s{sSlot}, 0, s{sSlot}")
    for i, r in enumerate(KA): G.place(B + 10 + 2 * i, f"v_add_u32 v{r}, s{sInc}, v{r}")
    for i, r in enumerate(VA): G.place(B + 82 + 2 * i, f"v_add_u32 v{r}, s{sInc}, v{r}")
    ops = sm_ops(par ^ 1)
    first_g, last_g = 10, 186
    pend = []
    exps = [(i, r) for i in range(16) for r in range(4)]
    ei = 0
    for g in range(192):
        if ei < 64:
            i, r = exps[ei]
            target = first_g + (last_g - first_g) * ei / 64.0
            if g >= 6 * i + 5 + 4 and g >= target and G.vcost(g) == 0 and len(G.sc[g]) <= 1:
                G.put(g, Ins(ops[i][0][r])); ei += 1
                pend.append((g + 1, ops[i][1][r]))
                if r & 1: pend.append((g + 1, ops[i][2][r >> 1]))
                continue
        while pend and pend[0][0] <= g and G.fits(g, Ins(pend[0][1])):
            G.put(g, Ins(pend.pop(0)[1]))
    assert ei == 64 and not pend, (ei, pend)
    return G


def poll(A, lab, voff, srd_, soff, cond, sleep=2, precheck=False):
    if precheck:
        cond(); A(f"s_cbranch_scc0 {lab}_ok")
    A(f"s_mov_b32 s{sE}, {SPIN}")
    A(f"{lab}:")
    A(f"buffer_load_dwordx2 {vr(T0,2)}, v{voff}, {sr(srd_)}, {soff} offen sc1")
    A("s_waitcnt vmcnt(0)")
    cond()
    A(f"s_cbranch_scc0 {lab}_ok")
    A(f"s_sleep {sleep}\ns_sub_u32 s{sE}, s{sE}, 1\ns_cmp_lg_u32 s{sE}, 0\ns_cbranch_scc1 {lab}")
    A(f"{lab}_ok:")
def cond_nonce(A, mask):
    def f():
        A(f"v_cmp_ne_u32 vcc, s{sN0}, v{T0}\nv_cmp_ne_u32 s[{sA}:{sA+1}], s{sN1}, v{T1}\ns_nop 0")
        A(f"s_or_b32 s{sA}, vcc_lo, s{sA}\ns_and_b32 s{sA}, s{sA}, {mask}\ns_cmp_lg_u32 s{sA}, 0")
    return f
assert sA % 2 == 0 and sC % 2 == 0

def gelu_ops(x, y, pk, store):
    q = []
    for r in range(4): q.append(f"v_mul_f32 v{y+r}, v{x+r}, v{x+r}")
    for r in range(4): q.append(f"v_fma_f32 v{y+r}, v{y+r}, s{sB}, v{T0}")
    for r in range(4): q.append(f"v_mul_f32 v{y+r}, v{y+r}, v{x+r}")
    for r in range(4): q.append(f"v_exp_f32 v{y+r}, v{y+r}")
    for r in range(4): q.append(f"v_fma_f32 v{y+r}, v{y+r}, s{sA}, s{sA}")
    for r in range(4): q.append(f"v_rcp_f32 v{y+r}, v{y+r}")
    for r in range(4): q.append(f"v_mul_f32 v{y+r}, v{y+r}, v{x+r}")
    for r in range(2): q.append(f"v_cvt_pk_bf16_f32 v{pk+r}, v{y+2*r}, v{y+2*r+1}")
    return [(t, 0, False, None) for t in q] + store

def b_wdma(srd_, tag, slot_imm):
    o = [f"s_add_u32 s{sInc}, s{sM}, {slot_imm}", f"s_add_u32 s{sVo2}, s{sVo}, {16*1280}"]
    for hf, so in enumerate((sVo, sVo2)):
        o.append(f"s_add_u32 m0, s{sInc}, {5120*hf}")
        o += [(f"buffer_load_dwordx4 v{DS5[j]}, {sr(srd_)}, s{so} offen offset:{1024*j} lds", tag) for j in range(4)]
        o.append(f"s_add_u32 m0, s{sInc}, {5120*hf + 4096}")
        o.append((f"buffer_load_dwordx4 v{DS5[4]}, {sr(srd_)}, s{so} offen lds", tag))
    o.append(f"s_add_u32 s{sVo}, s{sVo}, {64*1280}")
    return o
def oload(buf, tag):
    o = [(f"buffer_load_dwordx4 {vr(OB[buf] + 4*(r*2+e))}, v{OV[r]}, {sr(sWS)}, s{sKo} offen offset:{1024*e} sc1", tag) for r in range(4) for e in range(2)]
    o.append(f"s_add_u32 s{sKo}, s{sKo}, 2048")
    return o
def b_scalars():
    o = [f"s_lshl_b32 s{sA}, s{sSP}, 1", f"s_add_u32 s{sA}, s{sA}, s{sKH}"]
    o += [f"s_mul_i32 s{sB}, s{sQH}, {32*1280}", f"s_mul_i32 s{sC}, s{sNT}, 320", f"s_add_u32 s{sB}, s{sB}, s{sC}"]
    o += [f"s_mul_i32 s{sVo}, s{sA}, {192*1280}", f"s_add_u32 s{sVo}, s{sVo}, s{sB}", f"s_mul_i32 s{sH}, s{sA}, {768*1280}", f"s_add_u32 s{sH}, s{sH}, s{sB}"]
    o += [f"s_mul_i32 s{sB}, s{sFL}, {4*240*4}", f"s_add_u32 s{sB}, s{sB}, {OH_OFF}"]
    o += [f"s_mul_i32 s{sKo}, s{sA}, {6*1024}", f"s_add_u32 s{sKo}, s{sKo}, s{sB}", f"s_add_u32 s{sKo}, s{sKo}, {192*1024}"]
    o += [f"s_mul_i32 s{sF}, s{sA}, {24*1024}", f"s_add_u32 s{sF}, s{sF}, s{sB}"]
    o += [f"s_mul_i32 s{sM}, s{sW}, 10240"]
    o += [f"s_lshr_b32 s{sD}, s2, 3", f"s_lshl_b32 s{sD}, s{sD}, 2", f"s_add_u32 s{sD}, s{sD}, s{sW}", f"s_mul_i32 s{sD}, s{sD}, 15360",
          f"s_mul_i32 s{sKo2}, s{sSP}, {1536*1280}", f"s_add_u32 s{sKo2}, s{sKo2}, s{sD}"]
    return o
def b_warm():
    o = []
    for i in range(4):
        o.append((f"buffer_load_dword v7, v{PFV}, {sr(sWO)}, s{sKo2} offen", "PF"))
        if i < 3: o.append(f"s_add_u32 s{sKo2}, s{sKo2}, 4096")
    return o
def b_addr_ops():
    q = []
    t0, t1, t2, t3 = 255, 253, 254, 255
    for j in range(5):
        q += [f"v_add_u32 v{t0}, {64*j}, v0", f"v_mul_u32_u24 v{t1}, 3277, v{t0}", f"v_lshrrev_b32 v{t1}, 16, v{t1}",
              f"v_mul_u32_u24 v{t2}, 20, v{t1}", f"v_sub_u32 v{t2}, v{t0}, v{t2}", f"v_lshrrev_b32 v{t3}, 1, v{t1}", f"v_and_b32 v{t3}, 2, v{t3}",
              f"v_xor_b32 v{t2}, v{t2}, v{t3}", f"v_mul_u32_u24 v{t3}, 80, v{t1}", f"v_add_u32 v{t3}, v{t3}, v{t2}"]
        q += [f"v_lshlrev_b32 v{DS5[j]}, 4, v{t3}"]
        if 0 < j < 4: q += [f"v_subrev_u32 v{DS5[j]}, {1024*j}, v{DS5[j]}"]
    q += [f"v_and_b32 v{FLV}, 31, v0", f"v_lshlrev_b32 v{FLV}, 3, v{FLV}"]
    p = []
    p += [f"v_lshlrev_b32 v{t0}, 4, v0"]
    for r in range(4):
        p += [f"s_add_u32 s{sF}, s{sSP}, {r}", f"s_and_b32 s{sF}, s{sF}, 3", f"s_mul_i32 s{sF}, s{sF}, {240*1024}", f"v_add_u32 v{OV[r]}, s{sF}, v{t0}"]
    p += [f"v_lshlrev_b32 v{PFV}, {6 if opt['pst'] == 64 else 7}, v0", f"v_mov_b32 v{ZV}, 0"]
    if opt["pst"] == 128: p += [f"v_min_u32 v{PFV}, {47*128}, v{PFV}"] if False else []
    return p, q

def b_ra_ops():
    t0, t1, t2 = NREF + 8, NREF + 9, NREF + 10
    lo, hi = (NREF + 11, NREF + 12), (NREF + 13, NREF + 14)
    q = [f"s_mul_i32 s{sE}, s{sKH}, 20480", f"v_lshrrev_b32 v{t0}, 2, v0", f"v_mul_u32_u24 v{t0}, 320, v{t0}", f"v_and_b32 v{t1}, 3, v0", f"v_lshl_add_u32 v{t0}, v{t1}, 3, v{t0}",
         f"v_add_u32 v{t0}, s{sE}, v{t0}", f"v_bfe_u32 v{t1}, v0, 4, 1", f"v_xor_b32 v{t2}, 1, v{t1}",
         f"v_lshl_add_u32 v{lo[0]}, v{t1}, 5, v{t0}", f"v_lshl_add_u32 v{lo[1]}, v{t2}, 5, v{t0}",
         f"v_add_u32 v{hi[0]}, 128, v{lo[1]}", f"v_add_u32 v{hi[1]}, 192, v{lo[0]}",
         f"s_cmp_eq_u32 s{sKH}, 0", f"s_cselect_b64 vcc, -1, 0", "s_nop 0"]
    for k in range(2):
        q += [f"v_cndmask_b32 v{RA[k]}, v{lo[k]}, v{hi[k]}, vcc", f"v_cndmask_b32 v{RA[2+k]}, v{hi[k]}, v{lo[k]}, vcc"]
    return q
def lred(A):
    for sw in ("v_permlane32_swap_b32", "v_permlane16_swap_b32"):
        for qb in range(4): A(f"v_mov_b32 v{NREF+qb}, v{LS[qb]}")
        for qb in range(4): A(f"{sw} v{LS[qb]}, v{NREF+qb}")
        for qb in range(4): A(f"v_add_f32 v{LS[qb]}, v{LS[qb]}, v{NREF+qb}")
NEARLY = 24
def oepi_ops():
    q = []; late = []; n = 0
    so = [sA, sB, sC, sD]
    for m in range(6):
        for qb in range(4):
            x = 144 + 8 * (n & 1); d = PK + 4 * (n % 16)
            e = 16 * m + 8 + 2 * qb + 1 + 5
            for p in range(2):
                for r in range(4): q.append((f"v_accvgpr_read_b32 v{x+4*p+r}, a{O(2*m+p,qb)+r}", e, False, None))
            for i in range(8): q.append((f"v_mul_f32 v{x+i}, v{x+i}, v{LS[qb]}", 0, False, None))
            for i in range(4): q.append((f"v_cvt_pk_bf16_f32 v{d+i}, v{x+2*i}, v{x+2*i+1}", 0, False, None))
            v, off = (T1, 1024 * m) if m < 4 else (T0, 1024 * (m - 4))
            st = f"buffer_store_dwordx4 {vr(d)}, v{v}, {sr(sWS)}, s{so[qb]} offen offset:{off} sc1"
            if n < NEARLY: q.append((st, 0, False, "OST"))
            else: late.append((st, "OST"))
            n += 1
    return q, late
def oepi_pre():
    return [f"s_mul_i32 s{sA}, s{sQB0}, {240*1024}", f"s_mul_i32 s{sB}, s{sHEAD}, {6*1024}", f"s_add_u32 s{sA}, s{sA}, s{sB}", f"s_add_u32 s{sA}, s{sA}, {OH_OFF}",
            f"s_add_u32 s{sB}, s{sA}, {240*1024}", f"s_add_u32 s{sC}, s{sA}, {480*1024}", f"s_add_u32 s{sD}, s{sA}, {720*1024}",
            f"v_lshlrev_b32 v{T1}, 4, v0", f"v_add_u32 v{T0}, 4096, v{T1}"]
def BA(nb, r): return (192 + 16 * nb if nb < 4 else 16 * (nb - 4)) + 4 * r
def bread(u, nb, e, h):
    d = WF + 8 * ((10 * u + nb) % 6) + 4 * e + 2 * h
    j = nb % 5
    return f"ds_read_b64_tr_b16 {vr(d,2)}, v{RA[2 * (nb // 5) + (j & 1)]} offset:{64*(j >> 1) + e*10240 + h*5120}"
ORDR = [(i, r) for r in (1, 2, 3, 0) for i in range(5)]
def xchg_reads(E, tr):
    for (i, r) in ORDR: E(f"ds_read_b128 {vr(tr(i, r))}, v3 offset:{1024*(4*i+r)}")
def xchg_sum(E, tr, PKS, so, emit):
    st = []; RING = 150
    for n, (i, r) in enumerate(ORDR):
        t = RING + 4 * (n & 1); x = tr(i, r)
        for k in range(4): E(f"v_accvgpr_read_b32 v{t+k}, a{BA(5+i, r)+k}")
        if n % 5 == 0 and emit: E(f"s_waitcnt lgkmcnt({15 - n})")
        for k in range(4): E(f"v_add_f32 v{x+k}, v{x+k}, v{t+k}")
        if r:
            for k in range(2): E(f"v_cvt_pk_bf16_f32 v{PKS+10*(r-1)+2*i+k}, v{x+2*k}, v{x+2*k+1}")
            if i == 4:
                p = PKS + 10 * (r - 1)
                ss = [f"buffer_store_dwordx4 {vr(p)}, v4, {sr(sWS)}, s{so[r]} offen sc1",
                      f"buffer_store_dwordx4 {vr(p+4)}, v4, {sr(sWS)}, s{so[r]} offen offset:1024 sc1",
                      f"buffer_store_dwordx2 {vr(p+8,2)}, v1, {sr(sWS)}, s{so[r]} offen sc1"]
                if emit:
                    for t_ in ss: E(t_)
                else: st += [(t_, "YST") for t_ in ss]
    return st
def slot_scalars(off, so, cons):
    o = [f"s_mul_i32 s{sA}, s{sH}, {64*3072}", f"s_mul_i32 s{sE}, s{sW}, 3072", f"s_add_u32 s{sA}, s{sA}, s{sE}", f"s_add_u32 s{sA}, s{sA}, {off}",
         f"s_mul_i32 s{sE}, s{sSP}, {16*3072}", f"s_add_u32 s{cons}, s{sA}, s{sE}", f"s_mul_i32 s{sE}, s{sSP}, {4*3072}", f"s_add_u32 s{sA}, s{sA}, s{sE}"]
    for r in (1, 2, 3):
        d = so[r]
        o += [f"s_add_u32 s{d}, s{sSP}, {r}", f"s_and_b32 s{d}, s{d}, 3", f"s_mul_i32 s{d}, s{d}, {16*3072}", f"s_add_u32 s{d}, s{d}, s{sA}"]
    return o
def inbox_loads(cons, P0, tag):
    o = []
    for r in (1, 2, 3):
        p = P0 + 10 * (r - 1)
        o += [f"s_add_u32 s{sA}, s{sSP}, {r}", f"s_and_b32 s{sA}, s{sA}, 3", f"s_mul_i32 s{sA}, s{sA}, {4*3072}", f"s_add_u32 s{sA}, s{sA}, s{cons}"]
        o += [(f"buffer_load_dwordx4 {vr(p)}, v4, {sr(sWS)}, s{sA} offen sc1", tag), (f"buffer_load_dwordx4 {vr(p+4)}, v4, {sr(sWS)}, s{sA} offen offset:1024 sc1", tag),
              (f"buffer_load_dwordx2 {vr(p+8,2)}, v1, {sr(sWS)}, s{sA} offen sc1", tag)]
    return o
def merge(a, b):
    out = []; k = 0
    na = sum(1 for x in a if isinstance(x, tuple)); seen = 0
    for x in a:
        out.append(x)
        if isinstance(x, tuple):
            seen += 1
            while k < len(b) and (k + 1) * na <= seen * len(b) and " m0," not in out[-1][0]:
                out.append(b[k]); k += 1
    return out + b[k:]
def b_chunk(u, lst, wtags, otags, czero=False, after_barrier=None, first_gap=(), last_gap=(), fillq=None, nxt=True, lim=None, xw=False, af=None):
    mf = []
    for nb in range(10):
        for r in range(4):
            for n, e in enumerate(snk(2, r)):
                acc = ar(BA(nb, r))
                mf.append(Ins(f"{MF} {acc}, {vr(WF + 8*((10*u+nb)%6) + 4*e)}, {vr(OB[u] + 4*(r*2+e))}, {'0' if czero and n == 0 else acc}"))
    G = Gaps(mf)
    for nb in range(7):
        n = 0
        for e in range(2):
            for h in range(2):
                G.place(8 * nb + 2 * n, bread(u, nb + 3, e, h)); n += 1
    for nb in range(1, 10): G.put(8 * nb - 1, lgw(rs(WF + 8 * ((10 * u + nb) % 6), 8)))
    gb = 62
    if nxt:
        G.put(gb, vmw(wtags, " lgkmcnt(0)")); G.put(gb, Ins("s_barrier"))
        inc = STB if u < 2 else -2 * STB
        for i, r in enumerate(RA): G.place((30 + 2 * i) if i < 2 else (gb - 6 + i), f"v_add_u32 v{r}, {inc & 0xffffffff}, v{r}")
        if after_barrier: G.place(gb + 1, after_barrier, "FLAG")
        n = 0
        for nb in range(3):
            for e in range(2):
                for h in range(2):
                    G.place(gb + 1 + n + n // 4, bread((u + 1) % 3, nb, e, h)); n += 1
        G.put(79, lgw(rs(WF + 8 * ((10 * ((u + 1) % 3)) % 6), 8)))
    if otags: G.put(78, vmw(otags))
    if af is not None:
        G.put(af, vmw({"OST"})); G.place(af, f"buffer_store_dwordx2 v[254:255], v{ZV}, {sr(sWS)}, s17 offen sc1", "FLAG")
    if xw:
        for n, (i, r) in enumerate(ORDR): G.place(44 + (n * 7) // 4, f"ds_write_b128 v2, {ar(BA(i, r))} offset:{1024*(4*i+r)}")
    for t in first_gap: G.put(0, Ins(t))
    g = spread(G, lst, 1 if first_gap else 0, lim or (76 if otags else 60)) if lst else 70
    assert g <= 79, g
    for t in last_gap: G.place(g, t)
    if fillq is not None:
        G.cap = opt["dense"]
        left = G.fill(fillq, 0)
        return G.emit(), left
    return G.emit()

def gen():
    global problems
    A = Asm()
    A("s_cmp_ge_u32 s2, 256\ns_cbranch_scc1 L_done")
    A("s_load_dwordx16 s[76:91], s[0:1], 0\ns_load_dwordx8 s[92:99], s[0:1], 64\ns_load_dwordx2 s[100:101], s[0:1], 96")
    pX, pK, pV, pWQ, pWO, pW1, pB1, pW2, pB2, pOUT, pDBG, pWS = 76, 78, 80, 82, 84, 88, 90, 92, 94, 96, 98, 100
    A(f"s_memrealtime s[{sN0}:{sN1}]")
    if opt["stamp"]: A(f"s_memtime s[{sInc}:{sInc+1}]")
    if opt["pf"]:
        A(f"s_getpc_b64 s[{sA}:{sA+1}]\nL_pc:\ns_bfe_u32 s{sC}, s2, 0x10003\ns_lshl_b32 s{sC}, s{sC}, 15\nv_lshlrev_b32 v98, 7, v0\nv_add_u32 v98, s{sC}, v98")
        A(f"global_load_dword v99, v98, s[{sA}:{sA+1}]")
    A("v_lshrrev_b32 v14, 6, v0\nv_and_b32 v0, 63, v0")
    A(f"v_readfirstlane_b32 s{sW}, v14")
    A(f"s_and_b32 s{sA}, s2, 7\ns_lshr_b32 s{sB}, s2, 3\ns_and_b32 s{sC}, s{sB}, 3\ns_lshl_b32 s{sA}, s{sA}, 2\ns_add_u32 s{sHEAD}, s{sA}, s{sC}")
    A(f"s_lshr_b32 s{sQT}, s{sB}, 2\ns_lshl_b32 s{sB}, s{sQT}, 4\ns_lshl_b32 s{sC}, s{sW}, 2\ns_add_u32 s{sQB0}, s{sB}, s{sC}")
    A(f"s_lshr_b32 s{sC}, s{sHEAD}, 1\ns_add_u32 s{sD}, s{sB}, s{sC}\ns_mul_i32 s{sE}, s{sD}, 20480")
    A("v_and_b32 v3, 15, v0\nv_lshrrev_b32 v4, 4, v0\nv_mul_u32_u24 v5, 1280, v3\nv_mul_u32_u24 v6, 320, v14\nv_lshlrev_b32 v7, 3, v4\nv_add3_u32 v5, v5, v6, v7")
    A("v_mov_b32 v96, 0\nv_mov_b32 v94, 0")
    A(f"s_or_b32 s{sKo}, s2, s{sW}")
    A("s_waitcnt lgkmcnt(0)")
    srd(A, sX, pX, 2621440)
    srd(A, sDBG, pDBG, 256)
    A(f"s_cmp_lg_u32 s{sKo}, 0\ns_cbranch_scc1 L_nonc")
    A(f"s_or_b32 s{sKo}, s{sN0}, 1\nv_mov_b32 v80, s{sKo}\nv_mov_b32 v81, s{sN1}")
    A(f"buffer_store_dwordx2 v[80:81], v96, {sr(sDBG)}, 0 offen sc1")
    A("L_nonc:")
    A(f"s_bitcmp1_b32 s{sHEAD}, 0\ns_cbranch_scc1 L_nox")
    for i in range(5):
        A(f"buffer_load_dwordx2 {vr(16+4*i,2)}, v5, {sr(sX)}, s{sE} offen offset:{64*i}", "LX")
        A(f"buffer_load_dwordx2 {vr(18+4*i,2)}, v5, {sr(sX)}, s{sE} offen offset:{64*i+32}", "LX")
    A("L_nox:")
    for j in range(3):
        A(f"v_add_u32 v82, {64*j}, v0\nv_mul_u32_u24 v83, 2731, v82\nv_lshrrev_b32 v83, 16, v83")
        A(f"v_mul_u32_u24 v97, 24, v83\nv_sub_u32 v82, v82, v97\nv_and_b32 v97, 6, v83\nv_xor_b32 v82, v82, v97\nv_lshlrev_b32 v82, 4, v82")
        A(f"v_mul_u32_u24 v97, 12288, v83\nv_add_u32 v97, v97, v82\nv_add_u32 v{DW[j]}, {(-1024*j) & 0xffffffff}, v97")
        A(f"v_mul_u32_u24 v97, 384, v83\nv_add_u32 v97, v97, v82\nv_add_u32 v{84+j}, {(128 - 1024*j) & 0xffffffff}, v97")
    A(f"v_lshrrev_b32 v83, 3, v0\nv_and_b32 v82, 7, v0\nv_and_b32 v97, 6, v83\nv_xor_b32 v82, v82, v97\nv_lshlrev_b32 v82, 4, v82\nv_mul_u32_u24 v97, 3072, v83\nv_add_u32 v{DW1}, v97, v82")
    A(f"s_mul_i32 s{sA}, s{sHEAD}, 384")
    A(f"s_add_u32 s{sWQ}, s{pWQ}, s{sA}\ns_addc_u32 s{sWQ+1}, s{pWQ+1}, 0\ns_and_b32 s{sWQ+1}, s{sWQ+1}, 0xffff\ns_sub_u32 s{sWQ+2}, {640*12288}, s{sA}\ns_mov_b32 s{sWQ+3}, 0x20000")
    A(f"s_mul_i32 s{sF}, s{sHEAD}, 96")
    A(f"s_add_u32 s{sW1}, s{pW1}, s{sF}\ns_addc_u32 s{sW1+1}, s{pW1+1}, 0\ns_and_b32 s{sW1+1}, s{sW1+1}, 0xffff\ns_sub_u32 s{sW1+2}, {640*3072}, s{sF}\ns_mov_b32 s{sW1+3}, 0x20000")
    A(f"s_mul_i32 s{sWb}, s{sW}, 6144")
    A(f"s_mul_i32 s{sA}, s{sW}, {16*12288}\ns_mul_i32 s{sB}, s{sW}, {16*3072}\ns_mul_i32 s{sC}, s{sQB0}, 20480\ns_lshl_b32 s{sM}, s{sW}, 11")
    XB = [SB, SB + 32, PB[0]]
    def wdma(ch):
        sl = ch % 3; o = []
        o.append(f"s_add_u32 m0, s{sWb}, {VRING + sl*STG}")
        o += [(f"buffer_load_dwordx4 v{DW[j]}, {sr(sWQ)}, s{sA} offen offset:{1024*j} lds", f"W{ch}") for j in range(3)]
        o.append(f"s_add_u32 s{sA}, s{sA}, {8*12288}")
        o.append(f"s_add_u32 m0, s{sWb}, {VRING + sl*STG + 3072}")
        o += [(f"buffer_load_dwordx4 v{DW[j]}, {sr(sWQ)}, s{sA} offen offset:{1024*j} lds", f"W{ch}") for j in range(3)]
        o.append(f"s_add_u32 s{sA}, s{sA}, {56*12288}")
        o.append(f"s_add_u32 m0, s{sM}, {W1RING + sl*8192}")
        o.append((f"buffer_load_dwordx4 v{DW1}, {sr(sW1)}, s{sB} offen lds", f"W{ch}"))
        o.append(f"s_add_u32 s{sB}, s{sB}, {8*3072 - 1024}")
        o.append((f"buffer_load_dwordx4 v{DW1}, {sr(sW1)}, s{sB} offen offset:1024 lds", f"W{ch}"))
        o.append(f"s_add_u32 s{sB}, s{sB}, {56*3072 + 1024}")
        return o
    def xload(ch):
        o = [(f"buffer_load_dwordx4 {vr(XB[ch%3] + 4*(qb*2+e))}, v{XV[qb]}, {sr(sWS)}, s{sC} offen offset:{1024*e} sc1", f"X{ch}") for qb in range(4) for e in range(2)]
        o.append(f"s_add_u32 s{sC}, s{sC}, 2048")
        return o
    def kvdma(srd_, slotbase, t, tag):
        o = []
        for hf in range(2):
            o.append(f"s_add_u32 s{sKo2}, s{sWb}, {t*STG + 3072*hf}")
            o.append(f"s_add_u32 m0, s{sWb}, {slotbase + 3072*hf}")
            o += [(f"buffer_load_dwordx4 v{DSR[j]}, {sr(srd_)}, s{sKo2} offen offset:{1024*j} lds", tag) for j in range(3)]
        return o
    straight(A, wdma(0))
    srd(A, sB1, pB1, 3072)
    for ct in range(3): A(f"buffer_load_dwordx2 {vr(88 + 2*ct, 2)}, v7, {sr(sB1)}, s{sF} offen offset:{32*ct}", "B1")
    straight(A, wdma(1))
    A(f"s_mul_i32 s{sKo}, s{sHEAD}, 786432")
    for (d, lo) in ((sK, pK), (sV, pV)):
        A(f"s_add_u32 s{d}, s{lo}, s{sKo}\ns_addc_u32 s{d+1}, s{lo+1}, 0\ns_sub_u32 s{d}, s{d}, 128\ns_subb_u32 s{d+1}, s{d+1}, 0\ns_and_b32 s{d+1}, s{d+1}, 0xffff")
        A(f"s_mov_b32 s{d+2}, {786432 + 128}\ns_mov_b32 s{d+3}, 0x20000")
    srd(A, sWS, pWS, WS_SZ)
    srd(A, sOUT, pOUT, 2621440)
    srd(A, sB2, pB2, 1280)
    srd(A, sWO, pWO, 6144 * 1280)
    srd(A, sW2, pW2, 1536 * 1280)
    if opt["stamp"]:
        A(f"s_mov_b32 s78, s{sN0}\ns_mov_b32 s79, s{sInc}"); NST[0] = 1
    A(f"s_and_b32 s{sSP}, s2, 3\ns_bfe_u32 s{sKo}, s2, 0x10002\ns_lshl_b32 s{sKo}, s{sKo}, 3\ns_bfe_u32 s{sMT}, s2, 0x30003\ns_add_u32 s{sMT}, s{sMT}, s{sKo}\ns_lshr_b32 s{sNT}, s2, 6")
    A(f"s_lshr_b32 s{sKH}, s{sW}, 1\ns_and_b32 s{sQH}, s{sW}, 1")
    A(f"s_lshl_b32 s{sVo}, s{sQT}, 7\ns_add_u32 s{sVo}, s{sVo}, {LF_OFF}")
    A(f"s_bitcmp1_b32 s{sHEAD}, 0\ns_cbranch_scc1 L_noln")
    A(f"v_lshlrev_b32 v8, 6, v3\nv_add_u32 v8, {LDS_LN}, v8\nv_lshl_add_u32 v9, v14, 2, v4\nv_lshl_add_u32 v9, v9, 2, v8")
    A("v_mul_u32_u24 v10, 5120, v14\nv_lshl_add_u32 v10, v0, 4, v10")
    A("s_waitcnt vmcnt(19)")
    for i in range(20):
        A(f"v_lshlrev_b32 v{40+2*i}, 16, v{16+i}\nv_and_b32 v{41+2*i}, 0xffff0000, v{16+i}")
    A("v_add_f32 v11, v40, v41\nv_add_f32 v12, v42, v43")
    for i in range(4, 40, 2): A(f"v_add_f32 v11, v11, v{40+i}\nv_add_f32 v12, v12, v{41+i}")
    A("v_add_f32 v11, v11, v12")
    def xsum(off):
        A(f"ds_write_b32 v9, v11 offset:{off}\ns_waitcnt lgkmcnt(0)\ns_barrier")
        for i in range(4): A(f"ds_read_b128 {vr(16+4*i)}, v8 offset:{off+16*i}")
        A("s_waitcnt lgkmcnt(0)")
        for i in range(8): A(f"v_add_f32 v{16+i}, v{16+i}, v{24+i}")
        for i in range(4): A(f"v_add_f32 v{16+i}, v{16+i}, v{20+i}")
        A("v_add_f32 v16, v16, v18\nv_add_f32 v17, v17, v19\nv_add_f32 v16, v16, v17")
    xsum(0)
    A(f"v_mul_f32 v13, {fh(1/640)}, v16")
    for i in range(40): A(f"v_sub_f32 v{40+i}, v{40+i}, v13")
    A("v_mul_f32 v11, v40, v40\nv_mul_f32 v12, v41, v41")
    for i in range(2, 40, 2): A(f"v_fmac_f32 v11, v{40+i}, v{40+i}\nv_fmac_f32 v12, v{41+i}, v{41+i}")
    A("v_add_f32 v11, v11, v12")
    xsum(1024)
    A(f"v_mov_b32 v13, {fh(1e-5)}\nv_fmac_f32 v13, {fh(1/640)}, v16\nv_rsq_f32 v13, v13\ns_nop 0\nv_mul_f32 v13, {fh(CSC)}, v13")
    for i in range(5):
        for k in range(8): A(f"v_mul_f32 v{40+8*i+k}, v{40+8*i+k}, v13")
        for k in range(4): A(f"v_cvt_pk_bf16_f32 v{16+4*i+k}, v{40+8*i+2*k}, v{41+8*i+2*k}")
        if i == 4: A(f"s_add_u32 s{sE}, s{sE}, 4096")
        A(f"buffer_store_dwordx4 {vr(16+4*i)}, v10, {sr(sWS)}, s{sE} offen offset:{1024*i if i < 4 else 0} sc1")
    A(f"s_cmp_lg_u32 s{sW}, 0\ns_cbranch_scc1 L_ln2")
    A(f"buffer_load_dwordx2 v[94:95], v96, {sr(sDBG)}, 0 offen sc1")
    A("L_ln2:")
    A("s_waitcnt vmcnt(0)\ns_barrier")
    A("L_noln:")
    A(f"s_cmp_lg_u32 s{sW}, 0\ns_cbranch_scc1 L_w0a")
    A(f"v_mov_b32 v{T0}, v94\nv_mov_b32 v{T1}, v95\ns_nop 0")
    def cond_non():
        A(f"v_readfirstlane_b32 s{sN0}, v{T0}\nv_readfirstlane_b32 s{sN1}, v{T1}\ns_nop 0\ns_cmp_eq_u32 s{sN0}, 0")
    poll(A, "L_pnon", 96, sDBG, "0", cond_non, sleep=8, precheck=True)
    A(f"s_bitcmp1_b32 s{sHEAD}, 0\ns_cbranch_scc1 L_w0a")
    A(f"s_lshl_b32 s{sKo}, s{sHEAD}, 2\ns_add_u32 s{sKo}, s{sKo}, s{sVo}")
    A(f"buffer_store_dwordx2 {vr(T0,2)}, v96, {sr(sWS)}, s{sKo} offen sc1")
    A("L_w0a:")
    stamp(A, 1)
    for j in range(3): A(f"v_mov_b32 v{DSR[j]}, v{84+j}")
    for qb in range(4): A(f"v_lshlrev_b32 v17, 4, v0\nv_add_u32 v{XV[qb]}, {XS_OFF + qb*20480}, v17")
    A("v_lshrrev_b32 v16, 2, v0\nv_and_b32 v17, 6, v16\nv_and_b32 v18, 3, v0")
    A("v_lshrrev_b32 v19, 1, v18\nv_and_b32 v20, 1, v18\nv_lshlrev_b32 v20, 3, v20")
    A(f"v_mul_u32_u24 v21, 384, v16\nv_add_u32 v21, {VRING}, v21")
    for m in range(4):
        A(f"v_add_u32 v22, {2*m}, v19\nv_xor_b32 v22, v22, v17\nv_lshlrev_b32 v22, 4, v22\nv_add3_u32 v{VA[m]}, v21, v22, v20\nv_add_u32 v{VA[m]}, {STG}, v{VA[m]}")
    for e in range(2):
        A(f"v_add_u32 v22, {4*e}, v18\nv_xor_b32 v22, v22, v17\nv_lshlrev_b32 v22, 4, v22\nv_add_u32 v{WA[e]}, v21, v22\nv_add_u32 v{WA2[e]}, {2*STG}, v{WA[e]}")
    A(f"v_lshlrev_b32 v21, 7, v16\nv_add_u32 v21, {W1RING}, v21")
    for ct in range(3):
        A(f"v_add_u32 v22, {2*ct}, v19\nv_xor_b32 v22, v22, v17\nv_lshlrev_b32 v22, 4, v22\nv_add3_u32 v{W1A[ct]}, v21, v22, v20")
    A("v_and_b32 v16, 15, v0\nv_and_b32 v17, 6, v16\nv_lshrrev_b32 v18, 4, v0\nv_mul_u32_u24 v21, 384, v16")
    for e in range(2):
        A(f"v_add_u32 v22, {4*e}, v18\nv_xor_b32 v22, v22, v17\nv_lshlrev_b32 v22, 4, v22\nv_add_u32 v{KA[e]}, v21, v22")
    A(f"v_lshlrev_b32 v40, 3, v16\nv_mov_b32 v41, {LDS_FL}")
    for r in LS: A(f"v_mov_b32 v{r}, 0")
    HACC = {12: PB[1], 13: PB[1] + 16, 14: NREF}
    A("s_waitcnt vmcnt(0)")
    if opt["wqpf"]:
        sPFa = sSlot
        A(f"s_movk_i32 s{sPFa}, {12288-384}\ns_bitcmp1_b32 s{sHEAD}, 0\ns_cbranch_scc0 L_nopf")
        A(f"s_lshl_b32 s{sKo}, s{sQT}, 2\ns_add_u32 s{sKo}, s{sKo}, s{sW}\ns_lshl_b32 s{sKo}, s{sKo}, 4\ns_add_u32 s{sKo}, s{sKo}, 127")
        A(f"s_mul_i32 s{sKo2}, s{sKo}, 3072\ns_mul_i32 s{sKo}, s{sKo}, 12288")
        A(f"v_lshrrev_b32 v100, 2, v0\nv_and_b32 v101, 3, v0\nv_min_u32 v101, 2, v101\nv_lshlrev_b32 v101, 7, v101\nv_mul_u32_u24 v102, 12288, v100\nv_add3_u32 v102, v102, v101, s{sPFa}")
        A(f"v_and_b32 v101, 3, v0\nv_lshlrev_b32 v101, 6, v101\nv_min_u32 v101, 188, v101\nv_mul_u32_u24 v103, 3072, v100\nv_add_u32 v103, v103, v101\nv_add_u32 v103, {3072-96}, v103")
        A(f"buffer_load_dword v101, v102, {sr(sWQ)}, s{sKo} offen\nbuffer_load_dword v101, v102, {sr(sWQ)}, s{sKo} offen offset:384\nbuffer_load_dword v101, v103, {sr(sW1)}, s{sKo2} offen")
        A("L_nopf:")
    for ct in range(3):
        h = HACC[12 + ct]
        for r in range(2):
            A(f"v_lshlrev_b32 v{h+2*r}, 16, v{88+2*ct+r}\nv_and_b32 v{h+2*r+1}, 0xffff0000, v{88+2*ct+r}")
        for r in range(4): A(f"v_mul_f32 v{h+r}, {fh(CSC)}, v{h+r}")
        for qb in range(1, 4):
            for r in range(4): A(f"v_mov_b32 v{h+4*qb+r}, v{h+r}")
    A(f"s_cmp_lg_u32 s{sW}, 0\ns_cbranch_scc1 L_w0b")
    A(f"s_mov_b32 s{sKo}, s{sA}\ns_mov_b32 s{sKo2}, s{sB}")
    poll(A, "L_pln", 40, sWS, f"s{sVo}", cond_nonce(A, "0xffff"), sleep=2)
    A(f"s_mov_b32 s{sA}, s{sKo}\ns_mov_b32 s{sB}, s{sKo2}")
    A(f"v_mov_b32 v42, s{sN0}\nv_mov_b32 v43, s{sN1}\nds_write_b64 v41, v[42:43]\ns_waitcnt lgkmcnt(0)")
    A("L_w0b:")
    A("s_barrier")
    stamp(A, 2)
    straight(A, xload(0) + xload(1))
    A("ds_read_b64 v[42:43], v41")
    order = [list(range(15))] * 9 + [[14, 12, 13] + list(range(12))]
    def wread(ch, pos, e, h):
        ct = order[ch][pos]
        n = 15 * ch + pos; d = KV + 8 * (n % 6) + 4 * e + 2 * h; sl = ch % 3
        if ct < 12:
            ks, p = ct >> 1, ct & 1
            a, o = (WA[ks & 1], sl * STG) if sl < 2 else (WA2[ks & 1], 0)
            return f"ds_read_b64_tr_b16 {vr(d,2)}, v{a} offset:{o + (ks >> 1)*128 + 8*p + e*12288 + h*6144}"
        return f"ds_read_b64_tr_b16 {vr(d,2)}, v{W1A[ct-12]} offset:{sl*8192 + e*4096 + h*2048}"
    mf = []
    for ch in range(10):
        for pos in range(15):
            ct = order[ch][pos]; n = 15 * ch + pos
            for qb in range(4):
                for i_, e in enumerate(snk(2, qb)):
                    acc = ar(4 * (ct * 4 + qb)) if ct < 12 else vr(HACC[ct] + 4 * qb)
                    c = "0" if (ch == 0 and i_ == 0 and ct < 12) else acc
                    mf.append(Ins(f"{MF} {acc}, {vr(KV + 8*(n%6) + 4*e)}, {vr(XB[ch%3] + 4*(qb*2+e))}, {c}"))
    G = Gaps(mf)
    for pos in range(3):
        for e in range(2):
            for h in range(2): A(wread(0, pos, e, h))
    A.l.append(lgw(rs(KV, 8)))
    A(f"v_readfirstlane_b32 s{sN0}, v42\nv_readfirstlane_b32 s{sN1}, v43")
    A.l.append(vmw({"X0"}))
    stamp(A, 3)
    for ch in range(10):
        b = 120 * ch
        for pos in range(12):
            n = 0
            for e in range(2):
                for h in range(2):
                    G.place(b + 8 * pos + 2 * n, wread(ch, pos + 3, e, h)); n += 1
        gb = b + 102
        G.put(gb, vmw({f"W{ch+1}"} if ch < 9 else {"K0", "V0"}, " lgkmcnt(0)")); G.put(gb, Ins("s_barrier"))
        if ch < 9:
            n = 0
            for pos in range(3):
                for e in range(2):
                    for h in range(2):
                        G.place(gb + 1 + n + n // 4, wread(ch + 1, pos, e, h)); n += 1
            G.put(b + 118, vmw({f"X{ch+1}"}))
        else:
            for ks in range(6): G.place(gb + 1 + 2 * ks, kread(0, 0, ks))
        for pos in range(15):
            n = 15 * ch + pos
            if b + 8 * pos - 1 >= 0: G.put(b + 8 * pos - 1, lgw(rs(KV + 8 * (n % 6), 8)))
        if ch + 2 < 10: lst = wdma(ch + 2) + xload(ch + 2)
        elif ch == 8: lst = kvdma(sK, KRING, 0, "K0") + kvdma(sV, VRING + STG, 0, "V0")
        else: lst = kvdma(sK, KRING + STG, 1, "K1") + kvdma(sV, VRING + 2 * STG, 1, "V1")
        g = spread(G, lst, b, b + (117 if ch < 9 else 100))
        assert g <= b + 120, g
    b = 1080
    spread(G, kvdma(sK, KRING + 2 * STG, 2, "K2"), b + 103, b + 119)
    k0 = -2.0 * LOG2E * math.sqrt(2.0 / math.pi) / CSC; k1 = k0 * 0.044715 / (CSC * CSC)
    HS = {14: sVo, 12: sVo2, 13: sInc}
    pre = [f"s_mov_b32 s{sA}, {fh(CSC)}", f"s_mov_b32 s{sB}, {fh(k1)}", f"s_mul_i32 s{sC}, s{sQB0}, {240*1024}", f"s_add_u32 s{sC}, s{sC}, {OH_OFF + 192*1024}", f"s_mul_i32 s{sD}, s{sHEAD}, 3"]
    for ct in (14, 12, 13):
        s_ = HS[ct]
        pre += [f"s_add_u32 s{s_}, s{sD}, {ct-12}", f"s_lshr_b32 s{sE}, s{s_}, 1", f"s_lshl_b32 s{sE}, s{sE}, 10", f"s_and_b32 s{s_}, s{s_}, 1", f"s_lshl_b32 s{s_}, s{s_}, 3",
                f"s_add_u32 s{s_}, s{s_}, s{sE}", f"s_add_u32 s{s_}, s{s_}, s{sC}"]
    pre += [f"s_lshl_b32 s{sFL}, s{sMT}, 1", f"s_add_u32 s{sFL}, s{sFL}, s{sQH}", f"s_lshl_b32 s{sFL}, s{sFL}, 8", f"s_add_u32 s{sG}, s{sFL}, {HF_OFF}",
            f"s_lshl_b32 s{sE}, s{sSP}, 1", f"s_add_u32 s{sE}, s{sE}, s{sKH}", f"s_lshl_b32 s{sE}, s{sE}, 2", f"s_lshl_b32 s{sMSK}, 15, s{sE}",
            f"s_lshl_b32 s{sE}, s{sQB0}, 6", f"s_and_b32 s{sE}, s{sE}, 0xffffff00", f"s_lshl_b32 s{sD}, s{sHEAD}, 3", f"s_add_u32 s{sQT}, s{sE}, s{sD}"]
    g = b - 118
    for t in pre: g = G.place(g, t) + 1
    assert g < b
    G.place(b - 30, f"v_mov_b32 v{T0}, {fh(k0)}"); G.place(b - 28, f"v_lshlrev_b32 v{T1}, 4, v0")
    def gelu_q(ct, tmp):
        q = []
        for qb in range(4):
            y = tmp + 8 * (qb & 1); pk = y + 4
            st = [(f"buffer_store_dwordx2 {vr(pk,2)}, v{T1}, {sr(sWS)}, s{HS[ct]} offen sc1", 0, False, "H")]
            if qb < 3: st.append((f"s_add_u32 s{HS[ct]}, s{HS[ct]}, {240*1024}", 0, False, None))
            q += gelu_ops(HACC[ct] + 4 * qb, y, pk, st)
        return q
    q = gelu_q(14, XB[1])
    q[0] = (q[0][0], b + 8 + 4, False, None)
    n = 0
    for ks in range(6):
        for qb in range(4):
            f = qb * 6 + ks; x = PB[0] + 16 * (n & 1); n += 1
            e = b + 24 + 16 * ks + 8 + 2 * qb + 1 + 5
            for p in range(2):
                for r in range(4): q.append((f"v_accvgpr_read_b32 v{x+4*p+r}, a{4*((2*ks+p)*4+qb)+r}", e, False, None))
            d = (x + 8) if f < 16 else QV + 4 * (f - 16)
            for i in range(4): q.append((f"v_cvt_pk_bf16_f32 v{d+i}, v{x+2*i}, v{x+2*i+1}", 0, False, None))
            if f < 16:
                for i in range(4): q.append((f"v_accvgpr_write_b32 a{192+4*f+i}, v{d+i}", 0, False, None))
    left = G.fill(q, b)
    A.ext(G.emit())
    stamp(A, 4)
    A("s_nop 7")
    straight(A, left)
    for i in range(4): A(f"ds_read_b64 {vr(244+2*i,2)}, v{VA[i]} offset:{6144*i}")
    A.l.append(lgw(rs(244, 8)))
    for i in range(8): A(f"v_and_b32 v{244+i}, 0x7fff7fff, v{244+i}")
    for i in range(4): A(f"v_pk_max_u16 v{244+i}, v{244+i}, v{248+i}")
    A("v_pk_max_u16 v244, v244, v245\nv_pk_max_u16 v246, v246, v247\nv_pk_max_u16 v244, v244, v246\nv_lshlrev_b32 v245, 16, v244\nv_max_u32 v244, v244, v245")
    A(f"v_cmp_le_u32 vcc, {fh(2.0**-6)}, v244\ns_mov_b32 s{sBI}, {fh(-BIAS_LO)}\ns_mov_b32 s{sLM}, {fh(2.0**(112-BIAS_LO))}\ns_cmp_lg_u64 vcc, 0")
    A(f"s_cselect_b32 s{sBI}, {fh(-BIAS)}, s{sBI}\ns_cselect_b32 s{sLM}, {fh(2.0**(112-BIAS))}, s{sLM}")
    G = Gaps(qk_mfmas(set())); qk_reads(G, 0, vpre=False)
    q = gelu_q(12, 240) + gelu_q(13, 240)
    for kb in range(4):
        mq = []
        for qb in range(4):
            m = NREF + 4 * qb; s_ = S(kb, qb); e = 6 * (4 * kb + qb) + 5 + 5
            if kb == 0: mq += [(f"v_max3_f32 v{m}, v{s_}, v{s_+1}, v{s_+2}", e, False, None), (f"v_max_f32 v{m}, v{m}, v{s_+3}", e, False, None)]
            else: mq += [(f"v_max3_f32 v{m}, v{m}, v{s_}, v{s_+1}", e, False, None), (f"v_max3_f32 v{m}, v{m}, v{s_+2}, v{s_+3}", e, False, None)]
        mleft = G.fill(mq, 0)
        assert kb == 3 or not mleft
    left = G.fill(q, 0)
    A.ext(G.emit())
    A.l.append(vmw({"K1"})); A("s_barrier")
    for r in KA: A(f"v_add_u32 v{r}, {STG}, v{r}")
    A("s_nop 4")
    for ks in range(6): A(kread(0, 0, ks))
    straight(A, mleft)
    for sw in ("v_permlane32_swap_b32", "v_permlane16_swap_b32"):
        for qb in range(4): A(f"v_mov_b32 v{NREF+4*qb+1}, v{NREF+4*qb}")
        for qb in range(4): A(f"{sw} v{NREF+4*qb}, v{NREF+4*qb+1}")
        for qb in range(4): A(f"v_max_f32 v{NREF+4*qb}, v{NREF+4*qb}, v{NREF+4*qb+1}")
    for qb in range(4): A(f"v_sub_f32 v{NREF+4*qb}, s{sBI}, v{NREF+4*qb}")
    for qb in range(4):
        for r in range(1, 4): A(f"v_mov_b32 v{NREF+4*qb+r}, v{NREF+4*qb}")
    straight(A, left)
    sm = sm_ops(0)
    for i in range(16):
        kb, qb = i >> 2, i & 3
        for r in range(4): A(f"v_add_f32 v{S(kb,qb)+r}, v{S(kb,qb)+r}, v{NREF+4*qb}")
        for t in sm[i][0]: A(t)
        if i > 0:
            for t in sm[i - 1][1] + sm[i - 1][2]: A(t)
    A("s_nop 0")
    for t in sm[15][1] + sm[15][2]: A(t)
    A(f"s_mov_b32 s{sNeg}, {-2 * STG & 0xffffffff}\ns_mov_b32 s{sSlot}, 0\ns_add_u32 s{sKo}, s{sWb}, {3*STG}\ns_mov_b32 s{sCnt}, 15")
    A(f"s_add_u32 s{sE}, s{sQT}, {HF_OFF}")
    A(f"v_mov_b32 v{T0}, s{sN0}\nv_mov_b32 v{T1}, s{sN1}")
    bp, bq = b_addr_ops()
    for t in bp: A(t)
    stamp(A, 5)
    A("s_waitcnt lgkmcnt(0)")
    Gf = gen_step(0, first=True)
    Gf.place(177, f"buffer_store_dwordx2 {vr(T0,2)}, v{ZV}, {sr(sWS)}, s{sE} offen sc1")
    assert not Gf.fill(bq, 0, 192)
    sf = Gf.emit()
    ex = [(177, f"buffer_load_dwordx2 {vr(T0,2)}, v{FLV}, {sr(sWS)}, s{sG} offen sc1")]
    A(f"s_getpc_b64 s[16:17]\nL_pc2:\ns_lshr_b32 s19, s2, 3\ns_lshl_b32 s19, s19, 2\ns_add_u32 s19, s19, s{sW}\ns_lshl_b32 s18, s{sW}, 13")
    A("s_add_u32 s18, s18, L_tail-L_pc2\ns_add_u32 s16, s16, s18\ns_addc_u32 s17, s17, 0")
    A(f"s_mul_i32 s18, s19, 15360\ns_mul_i32 s24, s{sSP}, {1536*1280}\ns_add_u32 s18, s18, s24\ns_add_u32 s26, s18, 8192")
    A(f"s_mul_i32 s19, s19, 3840\ns_mul_i32 s24, s{sSP}, {384*1280}\ns_add_u32 s19, s19, s24\ns_brev_b32 s27, 1")
    ex.append((181, f"global_load_dword v254, v{PFV}, s[16:17]"))
    ex.append((185, f"buffer_load_dword v254, v{PFV}, {sr(sWO)}, s24 offen"))
    G1 = gen_step(1, extra=[(179, f"buffer_load_dword v254, v{PFV}, {sr(sWO)}, s24 offen"), (185, f"buffer_load_dword v254, v{PFV}, {sr(sW2)}, s25 offen")])
    G0 = gen_step(0, extra=ex)
    G1.place2(150, f"s_cmp_eq_u32 s{sCnt}, 3", "s_cselect_b32 s24, s18, s27")
    G1.place2(160, f"s_cmp_eq_u32 s{sCnt}, 2", "s_cselect_b32 s25, s19, s27")
    G0.place2(150, f"s_cmp_eq_u32 s{sCnt}, 2", "s_cselect_b32 s24, s26, s27")
    G1.place(186, f"s_sub_u32 s{sCnt}, s{sCnt}, 1")
    G0.place(186, f"s_cmp_lg_u32 s{sCnt}, 0")
    s1 = G1.emit(); s0 = G0.emit()
    pro = list(A.l)
    auto_vm(pro); auto_lgkm(pro)
    auto_lgkm(sf); auto_lgkm(s1, pre=s0); auto_lgkm(s0, pre=s1)
    A.ext(sf)
    A(".p2align 6\nL_loop:")
    A.ext(s1); A.ext(s0); A("s_cbranch_scc1 L_loop")
    T = Asm()
    T("L_tail:")
    zst(T, 1, 1)
    stamp(T, 6)
    for db in range(3):
        for e in range(2):
            for h in range(2): T(vread(db, e, h))
    lred(T)
    T(f"v_cmp_nge_f32 vcc, s{sLM}, v{LS[0]}")
    for qb in range(1, 4): T(f"v_cmp_nge_f32 s[{sC}:{sC+1}], s{sLM}, v{LS[qb]}\ns_nop 0\ns_or_b64 vcc, vcc, s[{sC}:{sC+1}]")
    T(f"s_cmp_lg_u64 vcc, 0\ns_cselect_b32 s{sA}, 1, {opt['forcesafe']}\ns_lshl_b32 s{sB}, s{sW}, 2\ns_add_u32 s{sB}, s{sB}, {LDS_FL}")
    T(f"v_mov_b32 v{NREF}, s{sA}\nv_mov_b32 v{NREF+1}, s{sB}\nv_mov_b32 v{NREF+2}, {LDS_FL}")
    T(f"ds_write_b32 v{NREF+1}, v{NREF}")
    for qb in range(4): T(f"v_rcp_f32 v{LS[qb]}, v{LS[qb]}")
    for t in b_scalars(): T(t)
    ra = [t.replace(f"v_cndmask_b32 v{RA[2]},", "v_cndmask_b32 v254,").replace(f"v_cndmask_b32 v{RA[3]},", "v_cndmask_b32 v255,") for t in b_ra_ops()]
    b_ra_fin = [f"v_mov_b32 v{RA[2]}, v254", f"v_mov_b32 v{RA[3]}, v255", f"v_mov_b32 v254, s{sN0}", f"v_mov_b32 v255, s{sN1}"]
    T("s_waitcnt vmcnt(0) lgkmcnt(0)\ns_barrier")
    for t in ra: T(t)
    T(f"ds_read_b128 {vr(NREF+4)}, v{NREF+2}")
    poll(T, "L_ph", FLV, sWS, f"s{sG}", cond_nonce(T, f"s{sMSK}"), sleep=8, precheck=True)
    for t in oepi_pre(): T(t)
    if opt["tst"] == 1: stamp(T, 7)
    G = Gaps(pv_mfmas(1)); pv_reads(G, 0)
    G.put(3, lgw(rs(NREF + 4, 4)))
    G.place(4, f"v_or3_b32 v{NREF}, v{NREF+4}, v{NREF+5}, v{NREF+6}"); G.place(5, f"v_or_b32 v{NREF}, v{NREF}, v{NREF+7}")
    G.place(7, f"v_readfirstlane_b32 s{sE}, v{NREF}")
    gck = G.place2(9, f"s_cmp_lg_u32 s{sE}, 0", "s_cbranch_scc1 L_safe")
    ylo = b_wdma(sW2, "W0", 0) + oload(0, "O0") + b_wdma(sW2, "W1", STB) + oload(1, "O1")
    g = spread(G, ylo, gck + 1, 94)
    oq, _ = oepi_ops()
    items = []; cur = []
    for x in oq:
        if x[3] == "OST": items.append((cur, x)); cur = []
        else: cur.append(x)
    pc = [int(x) for x in opt["pace"].split(",")]; assert sum(pc) == 24
    first = []
    for n in range(12):
        first += items[n][0]
        if n < pc[0]: first.append(items[n][1])
    left = G.fill(first, 12)
    T.ext(G.emit())
    if opt["tst"] == 2: stamp(T, 7)
    zst(T, 1, 2)
    T("s_nop 7")
    straight(T, left)
    T("L_join:")
    zst(T, 1, 3)
    if opt["tst"] == 0: stamp(T, 7)
    for t in b_ra_fin: T(t)
    T.l.append(vmw({"W0", "O0"})); T("s_barrier")
    for nb in range(3):
        for e in range(2):
            for h in range(2): T(bread(0, nb, e, h))
    T(f"s_add_u32 s17, s{sQT}, {AF_OFF}")
    T("s_waitcnt lgkmcnt(0)")
    zst(T, 1, 4)
    def paced(k, lim=78):
        n0 = sum(pc[:k + 1]); q = []
        for j in range(pc[k + 1]):
            n = n0 + j; g = 2 + (lim - 2) * j // pc[k + 1]
            if n >= 12: q += [(t, max(0, g - 7), ng, tag) for (t, e, ng, tag) in items[n][0]]
            q.append((items[n][1][0], g, False, "OST"))
        return q
    c0, late = b_chunk(0, b_wdma(sW2, "W2", 2 * STB) + oload(2, "O2"), {"W1"}, {"O1"}, czero=True, fillq=paced(0))
    T.ext(c0); straight(T, late); print("y0 leftover", len(late), file=sys.stderr)
    zst(T, 1, 5)
    so = {1: 18, 2: 19, 3: 16}; sYC, sXC, sYF, sXF = 26, 27, 24, 25
    a1 = [f"v_lshlrev_b32 v4, 4, v0", f"s_mul_i32 s{sE}, s{sW}, 20480", f"v_add_u32 v2, s{sE}, v4", f"s_xor_b32 s{sE}, s{sW}, 2", f"s_mul_i32 s{sE}, s{sE}, 20480", f"v_add_u32 v3, s{sE}, v4",
          "v_lshlrev_b32 v1, 3, v0", "v_add_u32 v1, 2048, v1", f"s_mov_b32 s{sVo}, s{sH}", f"s_lshl_b32 s{sH}, s{sMT}, 2", f"s_add_u32 s{sH}, s{sH}, s{sNT}"]
    c1, left = b_chunk(1, [], {"W2"}, {"O2"}, fillq=a1 + paced(1, opt["lim1"]), af=opt["afg"] if opt["afc"] == 1 else None)
    T.ext(c1); straight(T, left); print("y1 leftover", len(left), file=sys.stderr)
    zst(T, 1, 6)
    a2 = [t.replace(f"s{sA}", f"s{sInc}") for t in slot_scalars(YC_OFF, so, sYC)]
    a2 += [f"s_lshl_b32 s{sE}, s{sH}, 2", f"s_add_u32 s{sE}, s{sE}, s{sW}", f"s_lshl_b32 s{sE}, s{sE}, 6", f"s_add_u32 s{sYF}, s{sE}, {YF_OFF}", f"s_add_u32 s{sXF}, s{sE}, {XF_OFF}",
           f"s_add_u32 s{sG}, s{sFL}, {AF_OFF}", f"s_mov_b32 s{sKo}, s{sF}"]
    c2, left = b_chunk(2, a2, None, None, nxt=False, xw=True, fillq=paced(2, 60), af=opt["afg"] if opt["afc"] == 2 else None)
    T.ext(c2); straight(T, left); print("y2 leftover", len(left), file=sys.stderr)
    zst(T, 1, 7); stamp(T, 8)
    YO = 80; YP = 100
    try_ = lambda i, r: (YO + 4 * i, 48 + 4 * i, 130 + 4 * i, 192 + 4 * i if i < 4 else 232)[r]
    T("s_waitcnt lgkmcnt(0)\ns_barrier")
    xchg_reads(T, try_)
    straight(T, b_wdma(sWO, "W2", 2 * STB))
    if opt["afc"] == 3:
        T.l.append(vmw({"OST"}))
        T(f"buffer_store_dwordx2 v[254:255], v{ZV}, {sr(sWS)}, s17 offen sc1")
    poll(T, "L_pat", FLV, sWS, f"s{sG}", cond_nonce(T, f"s{sMSK}"), sleep=4)
    stamp(T, 9); zst(T, 1, 8); zst(T, 2, 1)
    straight(T, oload(2, "O2") + oload(0, "O0"))
    T("s_waitcnt lgkmcnt(0)\ns_barrier")
    straight(T, b_wdma(sWO, "W0", 0))
    for nb in range(3):
        for e in range(2):
            for h in range(2): T(bread(2, nb, e, h))
    yst = xchg_sum(T, try_, YP, so, False)
    T(f"s_mov_b32 s{sCnt}, 2\ns_lshl_b32 s{sE}, s{sSP}, 3\ns_add_u32 s{sG}, s{sYF}, s{sE}")
    zst(T, 1, 9)
    T.l.append(vmw({"O2"}, " lgkmcnt(0)"))
    zst(T, 1, 10); zst(T, 2, 2)
    def sl(u): return b_wdma(sWO, f"W{(u+2)%3}", ((u + 2) % 3) * STB) + oload((u + 2) % 3, f"O{(u+2)%3}")
    def nx(k, u): return {f"{k}{(u+1)%3}"}
    for n, u in enumerate((2, 0, 1)):
        T.ext(b_chunk(u, merge(sl(u), yst[5 * n: 5 * n + 5]), nx("W", u), nx("O", u), czero=(n == 0)))
        zst(T, 2, 3 + n)
    zst(T, 1, 11)
    tail = list(T.l)
    auto_lgkm(tail, pre=s0); auto_vm(tail)
    A.ext(tail)
    steps = [b_chunk(2, sl(2), nx("W", 2), nx("O", 2), first_gap=[f"s_sub_u32 s{sCnt}, s{sCnt}, 1"]),
             b_chunk(0, sl(0), nx("W", 0), nx("O", 0), after_barrier=f"buffer_store_dwordx2 v[254:255], v{ZV}, {sr(sWS)}, s{sG} offen sc1"),
             b_chunk(1, sl(1), nx("W", 1), nx("O", 1), last_gap=[f"s_cmp_lg_u32 s{sCnt}, 0"])]
    for u in range(3):
        auto_lgkm(steps[u], pre=steps[(u + 2) % 3]); auto_vm(steps[u], pre=steps[(u + 1) % 3] + steps[(u + 2) % 3])
    A(".p2align 6\nL_bloop:")
    for u in range(3): A.ext(steps[u])
    A("s_cbranch_scc1 L_bloop")
    PKS = 48; XL = 16; B2L = 26
    E = Asm()
    zst(E, 2, 6)
    E(f"v_and_b32 v6, 3, v0\nv_lshlrev_b32 v6, 3, v6\ns_lshl_b32 s{sMSK}, 1, s{sSP}\ns_xor_b32 s{sMSK}, s{sMSK}, 15")
    a3 = [f"s_mul_i32 s{sE}, s{sKH}, 40960", f"v_add_u32 v2, s{sE}, v2", f"s_sub_u32 s{sE}, 40960, s{sE}", f"v_add_u32 v3, s{sE}, v3",
          "v_lshrrev_b32 v7, 4, v0", "v_lshlrev_b32 v7, 3, v7", "v_and_b32 v5, 15, v0", "v_mul_u32_u24 v5, 1280, v5", "v_add_u32 v5, v5, v7"]
    c, left = b_chunk(2, [(f"buffer_load_dwordx2 {vr(T0,2)}, v6, {sr(sWS)}, s{sYF} offen sc1", "YF")] + sl(2), nx("W", 2), nx("O", 2), fillq=a3); assert not left
    E.ext(c)
    E.l.append(vmw({"YF"}))
    poll(E, "L_py", 6, sWS, f"s{sYF}", cond_nonce(E, f"s{sMSK}"), sleep=4, precheck=True)
    zst(E, 2, 7)
    a4 = [f"s_lshr_b32 s{sC}, s{sFL}, 6", f"s_add_u32 s{sC}, s{sC}, s{sSP}", f"s_mul_i32 s{sKo}, s{sC}, 20480",
          f"s_mul_i32 s{sC}, s{sNT}, 320", f"s_mul_i32 s{sB}, s{sKH}, 160", f"s_add_u32 s{sC}, s{sC}, s{sB}", f"s_add_u32 s{sKo}, s{sKo}, s{sC}"]
    E.ext(b_chunk(0, inbox_loads(sYC, YP, "YL") + a4, nx("W", 0), nx("O", 0), lim=50))
    zst(E, 2, 8)
    l2 = [(f"buffer_load_dwordx2 {vr(B2L+2*i,2)}, v7, {sr(sB2)}, s{sC} offen offset:{32*i}", "YL") for i in range(5)]
    l2 += [(f"buffer_load_dwordx2 {vr(XL+2*i,2)}, v5, {sr(sX)}, s{sKo} offen offset:{32*i}", "YL") for i in range(5)]
    a5 = slot_scalars(XC_OFF, so, sXC) + [f"s_lshl_b32 s{sE}, s{sSP}, 3", f"s_add_u32 s{sG}, s{sXF}, s{sE}"]
    c, left = b_chunk(1, l2, None, None, nxt=False, xw=True, lim=36, fillq=a5); assert not left
    E.ext(c)
    stamp(E, 10); zst(E, 2, 9); zst(E, 3, 1)
    auto_lgkm(E.l, pre=steps[2]); auto_vm(E.l, pre=steps[1] + steps[2])
    trs = lambda i, r: 160 + 20 * r + 4 * i
    E("s_waitcnt lgkmcnt(0)\ns_barrier")
    xchg_reads(E, trs)
    xchg_sum(E, trs, PKS, so, True)
    zst(E, 2, 10); zst(E, 3, 2)
    E("s_waitcnt vmcnt(9)")
    for i in range(5):
        g_ = YO + 4 * i
        for p in range(4):
            t = 130 + 4 * (p & 1); src = (B2L + 2 * i) if p == 3 else (YP + 10 * p + 2 * i)
            for k in range(2): E(f"v_lshlrev_b32 v{t+2*k}, 16, v{src+k}\nv_and_b32 v{t+2*k+1}, 0xffff0000, v{src+k}")
            for k in range(4): E(f"v_add_f32 v{g_+k}, v{g_+k}, v{t+k}")
    zst(E, 3, 3)
    E("s_waitcnt vmcnt(0)")
    zst(E, 3, 4)
    E(f"buffer_store_dwordx2 v[254:255], v{ZV}, {sr(sWS)}, s{sG} offen sc1")
    for i in range(5):
        g_ = YO + 4 * i; t = 130 + 4 * i
        for k in range(4): E(f"v_mul_f32 v{t+k}, {fh(-LOG2E)}, v{g_+k}")
        for k in range(4): E(f"v_exp_f32 v{t+k}, v{t+k}")
        for k in range(4): E(f"v_add_f32 v{t+k}, 1.0, v{t+k}")
        for k in range(4): E(f"v_rcp_f32 v{t+k}, v{t+k}")
        for k in range(4): E(f"v_mul_f32 v{g_+k}, v{g_+k}, v{t+k}")
        for k in range(2): E(f"v_lshlrev_b32 v{t+2*k}, 16, v{XL+2*i+k}\nv_and_b32 v{t+2*k+1}, 0xffff0000, v{XL+2*i+k}")
    zst(E, 3, 5)
    poll(E, "L_pxc", 6, sWS, f"s{sXF}", cond_nonce(E, f"s{sMSK}"), sleep=1)
    stamp(E, 11); zst(E, 2, 11); zst(E, 3, 6)
    straight(E, inbox_loads(sXC, PKS, "XL"))
    for r in (1, 2, 3):
        E(f"s_waitcnt vmcnt({9-3*r})")
        for i in range(5):
            x = trs(i, 0); t = trs(i, 1); p = PKS + 10 * (r - 1) + 2 * i
            for k in range(2): E(f"v_lshlrev_b32 v{t+2*k}, 16, v{p+k}\nv_and_b32 v{t+2*k+1}, 0xffff0000, v{p+k}")
            for k in range(4): E(f"v_add_f32 v{x+k}, v{x+k}, v{t+k}")
    for i in range(5):
        x = trs(i, 0)
        for k in range(4): E(f"v_fma_f32 v{x+k}, v{x+k}, v{YO+4*i+k}, v{130+4*i+k}")
        for k in range(2): E(f"v_cvt_pk_bf16_f32 v{trs(i,2)+k}, v{x+2*k}, v{x+2*k+1}")
        E(f"buffer_store_dwordx2 {vr(trs(i,2),2)}, v5, {sr(sOUT)}, s{sKo} offen offset:{32*i}")
    if opt["stamp"]:
        E("s_waitcnt vmcnt(0)")
        E("s_memrealtime s[4:5]\ns_memtime s[6:7]\ns_load_dwordx2 s[8:9], s[0:1], 96\ns_waitcnt lgkmcnt(0)")
        E(f"s_add_u32 s8, s8, {ST_OFF}\ns_addc_u32 s9, s9, 0\ns_and_b32 s9, s9, 0xffff\ns_mov_b32 s10, 0x40000\ns_mov_b32 s11, 0x20000")
        E(f"s_lshl_b32 s12, s2, 2\ns_add_u32 s12, s12, s{sW}\ns_lshl_b32 s12, s12, 7\nv_mov_b32 v2, 0\ns_mov_b64 exec, 1")
        for i in range(NST[0] + 1):
            a, b_ = (78 + 2 * i, 79 + 2 * i) if i < NST[0] else (4, 6)
            E(f"v_mov_b32 v{16+2*i}, s{a}\nv_mov_b32 v{17+2*i}, s{b_}\nbuffer_store_dwordx2 v[{16+2*i}:{17+2*i}], v2, s[8:11], s12 offen offset:{8*i}")
    ec = list(E.l)
    A.ext(ec)
    A("L_done:\ns_endpgm")
    F = Asm()
    F("L_safe:")
    F("s_waitcnt vmcnt(0) lgkmcnt(0)\ns_nop 7")
    for r in KA: F(f"v_subrev_u32 v{r}, {2*STG}, v{r}")
    for r in VA: F(f"v_subrev_u32 v{r}, {2*STG}, v{r}")
    for i in range(192): F(f"v_accvgpr_write_b32 a{i}, 0")
    MX = PB[1]
    for qb in range(4): F(f"v_mov_b32 v{LS[qb]}, 0\nv_mov_b32 v{MX+qb}, 0xff7fffff")
    F(f"s_mov_b32 s{sSlot}, s{sWb}\ns_mov_b32 s{sCnt}, 32")
    Fp = list(F.l)
    L = Asm()
    L("L_sloop:")
    L("s_barrier")
    for srd_, base in ((sK, KRING), (sV, VRING)):
        for hf in range(2):
            L(f"s_add_u32 s{sInc}, s{sSlot}, {3072*hf}\ns_add_u32 m0, s{sWb}, {base + 3072*hf}\ns_nop 0")
            for j in range(3): L(f"buffer_load_dwordx4 v{DSR[j]}, {sr(srd_)}, s{sInc} offen offset:{1024*j} lds")
    L(f"s_add_u32 s{sSlot}, s{sSlot}, {STG}")
    L("s_waitcnt vmcnt(0)\ns_barrier")
    for ks in range(6): L(kread(0, 0, ks))
    L("s_waitcnt lgkmcnt(0)")
    G = Gaps(qk_mfmas(set())); qk_reads(G, 0, vpre=True)
    L.ext(G.emit())
    L("s_nop 7")
    for qb in range(4):
        m = NREF + 4 * qb
        v = [S(kb, qb) + r for kb in range(4) for r in range(4)]
        L(f"v_max3_f32 v{m}, v{v[0]}, v{v[1]}, v{MX+qb}")
        for i in range(2, 16, 2): L(f"v_max3_f32 v{m}, v{m}, v{v[i]}, v{v[i+1]}")
    for sw in ("v_permlane32_swap_b32", "v_permlane16_swap_b32"):
        for qb in range(4): L(f"v_mov_b32 v{NREF+4*qb+1}, v{NREF+4*qb}")
        for qb in range(4): L(f"{sw} v{NREF+4*qb}, v{NREF+4*qb+1}")
        for qb in range(4): L(f"v_max_f32 v{NREF+4*qb}, v{NREF+4*qb}, v{NREF+4*qb+1}")
    for qb in range(4): L(f"v_sub_f32 v{NREF+4*qb+1}, v{MX+qb}, v{NREF+4*qb}")
    for qb in range(4): L(f"v_exp_f32 v{NREF+4*qb+1}, v{NREF+4*qb+1}")
    for qb in range(4): L(f"v_mov_b32 v{MX+qb}, v{NREF+4*qb}")
    for qb in range(4): L(f"v_mul_f32 v{LS[qb]}, v{LS[qb]}, v{NREF+4*qb+1}")
    for db in range(12):
        for qb in range(4):
            t = PB[1] + 8 + 4 * ((db * 4 + qb) % 4)
            for r in range(4): L(f"v_accvgpr_read_b32 v{t+r}, a{O(db,qb)+r}")
            for r in range(4): L(f"v_mul_f32 v{t+r}, v{t+r}, v{NREF+4*qb+1}")
            for r in range(4): L(f"v_accvgpr_write_b32 a{O(db,qb)+r}, v{t+r}")
    for kb in range(4):
        for qb in range(4):
            for r in range(4): L(f"v_sub_f32 v{S(kb,qb)+r}, v{S(kb,qb)+r}, v{MX+qb}")
    for (ex, ad, cv) in sm_ops(0):
        for t in ex: L(t)
        L("s_nop 0")
        for t in ad + cv: L(t)
    L("s_waitcnt lgkmcnt(0)\ns_nop 1")
    G = Gaps(pv_mfmas(0)); pv_reads(G, 0)
    L.ext(G.emit())
    L(f"s_sub_u32 s{sCnt}, s{sCnt}, 1\ns_cmp_lg_u32 s{sCnt}, 0\ns_cbranch_scc1 L_sloop")
    auto_lgkm(L.l)
    X = Asm()
    X("s_waitcnt lgkmcnt(0)\ns_barrier")
    lred(X)
    for qb in range(4): X(f"v_rcp_f32 v{LS[qb]}, v{LS[qb]}")
    straight(X, ylo)
    straight(X, first)
    X("s_waitcnt vmcnt(0)\ns_branch L_join")
    A.ext(Fp); A.ext(L.l); A.ext(X.l)
    j = [i for i, x in enumerate(tail) if x.text == "L_join:"][0]
    ck = [i for i, x in enumerate(tail) if "L_safe" in x.text][0]
    bl = steps[0] + steps[1] + steps[2]
    main = pro + sf + s1 + s0 + s1 + s0 + tail + bl + bl + ec
    problems += check_hazards(main, "main"); problems += check_waits(main, "main")[0]
    safe = s0 + tail[:ck + 1] + Fp + L.l + L.l + X.l + tail[j:]
    problems += check_hazards(safe, "safe"); problems += check_waits(safe, "safe")[0]
    return A.text()

body = gen()
kn = NAME + "_kernel"
out = f"""; generated by gen/gen6.py (own generator): one persistent launch, 1 workgroup per CU
; @launch grid=(256,1,1) block=(256,1,1) lds={LDS_SZ}
.amdgcn_target "amdgcn-amd-amdhsa--gfx950"
.text
.globl {kn}
.p2align 8
.type {kn},@function
{kn}:
{body}
.section .rodata,"a"
.p2align 6
.amdhsa_kernel {kn}
  .amdhsa_next_free_vgpr 512
  .amdhsa_next_free_sgpr 102
  .amdhsa_accum_offset 256
  .amdhsa_group_segment_fixed_size 0
  .amdhsa_kernarg_size 104
  .amdhsa_user_sgpr_count 2
  .amdhsa_user_sgpr_kernarg_segment_ptr 1
  .amdhsa_system_sgpr_workgroup_id_x 1
.end_amdhsa_kernel
"""
if problems:
    for p in sorted(set(problems)): print(p, file=sys.stderr)
    print(f"{len(set(problems))} problems", file=sys.stderr)
sys.stdout.write(out)
```

```python
import sys, math, struct, re
from asmlib import *

NAME = "recurrent_scan__gqa_block_cached__dense_activation_gelu__prompt"
def f2u(x): return struct.unpack("<I", struct.pack("<f", x))[0]
def fh(x): return f"0x{f2u(x):08x}"
LOG2E = math.log2(math.e)
CSC = LOG2E / math.sqrt(192.0)
XS_OFF = 0
OH_OFF = 0x400000
YC_OFF = 0x2400000
XC_OFF = 0x3c00000
FL_OFF = 0x4800000
AF_OFF = FL_OFF; HF_OFF = FL_OFF + 0x4000; XF_OFF = FL_OFF + 0x8000; YF_OFF = FL_OFF + 0xc000; LF_OFF = FL_OFF + 0x10000
WS_SZ = 0x5000000
ST_OFF = 0x8000000
LDS_LN = 147456; LDS_FL = LDS_LN + 2048; LDS_SZ = LDS_FL + 64
SPIN = 1 << 18

opt = dict(stamp=0, forcesafe=0, pf=1, warm=0, pst=128, snake=1, bias=102, opf=0, dense=4, zoom=0, pace="5,10,9,0", afc=2, afg=10, lim1=64, wqpf=1, aflg=60, pk=1, dbgst=0, nearly=8, tst=0)
for a in sys.argv[1:]:
    k, v = a.split("="); opt[k] = type(opt.get(k, ""))(v)
problems = []
BIAS = opt["bias"]; BIAS_LO = 48
def snk(n, i): return list(range(n))[::-1] if (opt["snake"] and i & 1) else list(range(n))

def vr(b, n=4): return f"v[{b}:{b+n-1}]"
def ar(b, n=4): return f"a[{b}:{b+n-1}]"
def sr(b, n=4): return f"s[{b}:{b+n-1}]"
def rs(b, n): return {f"v{i}" for i in range(b, b + n)}
def lgw(regs): return Ins("s_waitcnt lgkmcnt(?)", ("lg", regs))
def vmw(tags, extra=""): return Ins("s_waitcnt vmcnt(?)" + extra, ("vm", set(tags)))
MF = "v_mfma_f32_16x16x32_bf16"

sK, sV, sWQ, sW1, sWS, sB1, sX, sDBG, sOUT, sWO, sB2, sW2 = 4, 8, 12, 16, 20, 24, 28, 32, 36, 40, 44, 48
sSP = 3
(sW, sHEAD, sQT, sQB0, sKo, sKo2, sVo, sVo2, sSlot, sM, sInc, sCnt, sA, sB, sC, sD, sWb, sNeg, sN0, sN1,
 sMT, sNT, sE, sF, sKH, sQH) = range(52, 78)
sMSK, sFL, sG, sH = 12, 13, 14, 15
sBI, sLM = 32, 33
KT = 76
NST = [0]
def zst(A, z, i):
    if opt["zoom"] == z: stamp(A, i, True)
def stamp(A, i, force=False):
    if opt["zoom"] and not force: return
    if opt["stamp"]:
        A(f"s_memrealtime vcc\ns_waitcnt lgkmcnt(0)\ns_mov_b32 s{78+2*i}, vcc_lo\ns_memtime vcc\ns_waitcnt lgkmcnt(0)\ns_mov_b32 s{79+2*i}, vcc_lo")
        NST[0] = max(NST[0], i + 1)

KA = [1, 2]; VA = [3, 4, 5, 6]; DSR = [7, 8, 9]; LS = [10, 11, 12, 13]; T0, T1 = 14, 15
NREF = 16; QV = 32; SB = 64; PB = [128, 160]; KV = 192
WA = [240, 241]; WA2 = [242, 243]; W1A = [244, 245, 246]; DW = [247, 248, 249]; DW1 = 250; XV = [251, 252, 253, 254]
KRING = 0; VRING = 73728; STG = 24576; W1RING = 49152
DS5 = [240, 241, 242, 243, 244]; RA = [245, 246, 8, 9]; RAT = [245, 246, 254, 255]; OV = [247, 248, 249, 250]; PFV = 251; ZV = 252; FLV = 253
OB = [16, 48, 160]; WF = 192; STB = 40960; PK = 80

def qfrag(qb, ks):
    f = qb * 6 + ks
    return ar(192 + 4 * f) if f < 16 else vr(QV + 4 * (f - 16))
def S(kb, qb): return SB + 4 * (kb * 4 + qb)
def P(par, qb, e): return PB[par] + 4 * (qb * 2 + e)
def O(db, qb): return 4 * (db * 4 + qb)

class Gaps:
    def __init__(self, mfmas):
        self.m = mfmas; n = len(mfmas); self.n = n; self.cap = 2
        self.sc = [[] for _ in range(n)]; self.mem = [[] for _ in range(n)]; self.va = [[] for _ in range(n)]
    def vcost(self, g): return len(self.mem[g]) + sum(2 if x.kind == "trans" else 1 for x in self.va[g])
    def cost(self, g): return self.vcost(g) + len(self.sc[g])
    def fits(self, g, ins):
        c = 2 if ins.kind == "trans" else 1
        if ins.kind in ("valu", "trans", "ds", "vmem"):
            if self.vcost(g) + c > self.cap: return False
            if ins.kind in ("ds", "vmem") and self.va[g]: return False
            return self.vcost(g) + c + len(self.sc[g]) <= self.cap + 1
        return self.cost(g) + 1 <= 3
    def put(self, g, ins):
        if ins.kind in ("ds", "vmem"): self.mem[g].append(ins)
        elif ins.kind in ("valu", "trans"): self.va[g].append(ins)
        else: self.sc[g].append(ins)
    def place(self, g, text, tag=None):
        ins = Ins(text, tag)
        while not self.fits(g, ins): g += 1
        self.put(g, ins); return g
    def place2(self, g, t1, t2):
        while self.cost(g) + 2 > 3: g += 1
        self.put(g, Ins(t1)); self.put(g, Ins(t2)); return g
    def fill(self, queue, g0=0, g1=None):
        g1 = self.n if g1 is None else g1
        g = g0; i = 0; last = -1; lastkind = None
        while i < len(queue):
            t, e, ng, tag = (list(queue[i]) + [0, False, None])[:4] if not isinstance(queue[i], str) else (queue[i], 0, False, None)
            ins = Ins(t, tag)
            g = max(g, e)
            order = {"salu": 0, "wait": 0, "ds": 1, "vmem": 1, "valu": 2, "trans": 2}
            if last >= 0 and (ng or order[ins.kind] < order[lastkind] or (lastkind == "salu" and "m0" in queue_prev and ins.kind == "vmem")): g = max(g, last + 1)
            while g < g1 and not self.fits(g, ins): g += 1
            if g >= g1: break
            self.put(g, ins); last = g; lastkind = ins.kind; queue_prev = t; i += 1
        return queue[i:]
    def emit(self):
        out = []
        for g, m in enumerate(self.m):
            out.append(m); out += self.sc[g] + self.mem[g] + self.va[g]
        return out

def spread(G, lst, g0, g1):
    nv = max(1, sum(1 for x in lst if isinstance(x, tuple)))
    k = 0; g = g0
    for x in lst:
        t, tag = x if isinstance(x, tuple) else (x, None)
        if tag:
            tgt = g0 + 1 + int((g1 - g0 - 1) * k / nv); k += 1
            g = G.place(max(g, tgt), t, tag) + 1
        else:
            g = G.place(g, t)
            if " m0," in t: g += 1
    return g

def straight(A, lst):
    prev_m0 = False
    for x in lst:
        if isinstance(x, str): t, tag = x, None
        elif len(x) == 2: t, tag = x
        else:
            t = x[0]; tag = x[3] if len(x) > 3 else None
            if len(x) > 2 and x[2]: A("s_nop 1")
        if prev_m0 and "lds" in t: A("s_nop 0")
        A(t, tag); prev_m0 = " m0," in t

def srd(A, d, lo, size, add=None):
    if add is None:
        A(f"s_mov_b32 s{d}, s{lo}\ns_and_b32 s{d+1}, s{lo+1}, 0xffff")
    else:
        A(f"s_add_u32 s{d}, s{lo}, {add}\ns_addc_u32 s{d+1}, s{lo+1}, 0\ns_and_b32 s{d+1}, s{d+1}, 0xffff")
    A(f"s_mov_b32 s{d+2}, {size}\ns_mov_b32 s{d+3}, 0x20000")

def kread(buf, kb, ks):
    d = KV + 24 * buf + 4 * ks
    return f"ds_read_b128 {vr(d)}, v{KA[ks & 1]} offset:{(ks >> 1) * 128 + kb * 6144}"
def vread(db, e, half):
    d = KV + 8 * (db % 6) + 4 * e + 2 * half
    return f"ds_read_b64_tr_b16 {vr(d,2)}, v{VA[db & 3]} offset:{(db >> 2) * 128 + e * 12288 + half * 6144}"

def qk_mfmas(cinit):
    out = []
    for kb in range(4):
        for qb in range(4):
            for n, ks in enumerate(snk(6, qb)):
                a = KV + 24 * (kb & 1) + 4 * ks
                c = (vr(NREF + 4 * qb) if kb in cinit else "0") if n == 0 else vr(S(kb, qb))
                out.append(Ins(f"{MF} {vr(S(kb,qb))}, {vr(a)}, {qfrag(qb,ks)}, {c}"))
    return out
def pv_mfmas(par, first=False):
    out = []
    for db in range(12):
        for qb in range(4):
            for n, e in enumerate(snk(2, qb)):
                a = KV + 8 * (db % 6) + 4 * e
                c = "0" if (first and n == 0) else ar(O(db, qb))
                out.append(Ins(f"{MF} {ar(O(db,qb))}, {vr(a)}, {vr(P(par,qb,e))}, {c}"))
    return out
def sm_ops(par):
    out = []
    for kb in range(4):
        for qb in range(4):
            s = S(kb, qb); p = P(par, qb, kb >> 1) + 2 * (kb & 1)
            out.append(([f"v_exp_f32 v{s+r}, v{s+r}" for r in range(4)],
                        [f"v_add_f32 v{LS[qb]}, v{LS[qb]}, v{s+r}" for r in range(4)],
                        [f"v_cvt_pk_bf16_f32 v{p+r}, v{s+2*r}, v{s+2*r+1}" for r in range(2)]))
    return out
def qk_reads(G, base, vpre=True):
    for kb in range(3):
        for ks in range(6): G.place(base + 24 * kb + 1 + 3 * ks, kread((kb + 1) & 1, kb + 1, ks))
    if vpre:
        n = 0
        for db in range(3):
            for e in range(2):
                for h in range(2):
                    G.place(base + 73 + (n * 3) // 2, vread(db, e, h)); n += 1
    for ks in (2, 4): G.put(base + ks - 1, lgw(rs(KV + 4 * ks, 8)))
    for kb in range(1, 4): G.put(base + 24 * kb - 1, lgw(rs(KV + 24 * (kb & 1), 24)))
def pv_reads(G, B, first_wait=True):
    for db in range(9):
        n = 0
        for e in range(2):
            for h in range(2):
                G.place(B + 8 * db + 2 * n, vread(db + 3, e, h)); n += 1
    for db in range(12):
        if B + 8 * db - 1 >= 0: G.put(B + 8 * db - 1, lgw(rs(KV + 8 * (db % 6), 8)))

def gen_step(par, first=False, extra=()):
    G = Gaps(qk_mfmas({0, 1, 2, 3}) + pv_mfmas(par, first))
    qk_reads(G, 0)
    B = 96
    pv_reads(G, B)
    gb = B + 80
    G.put(gb, Ins("s_waitcnt vmcnt(12) lgkmcnt(0)")); G.put(gb, Ins("s_barrier"))
    for (g_, t_) in extra: G.place(g_, t_)
    for ks in range(6): G.place(gb + 1 + 2 * ks, kread(0, 0, ks))
    G.put(191, lgw(rs(KV, 8)))
    G.place(0, f"s_add_u32 s{sM}, s{sSlot}, s{sWb}")
    G.place(2, f"s_add_u32 s{sKo2}, s{sKo}, 3072")
    G.place(4, f"s_sub_u32 s{sVo}, s{sKo}, {STG}")
    G.place(5, f"s_sub_u32 s{sVo2}, s{sKo}, {STG - 3072}")
    G.place2(6, f"s_cmp_eq_u32 s{sSlot}, {STG}", f"s_cselect_b32 s{sInc}, s{sNeg}, {STG}")
    dm = [(sK, sKo, 0), (sK, sKo2, 3072), (sV, sVo, VRING), (sV, sVo2, VRING + 3072)]
    g = 8
    for (srd_, so, mo) in dm:
        G.place(g, f"s_add_u32 m0, s{sM}, {mo}" if mo else f"s_mov_b32 m0, s{sM}")
        for j in range(3):
            g2 = G.place(g + 3 + 12 * j, f"buffer_load_dwordx4 v{DSR[j]}, {sr(srd_)}, s{so} offen offset:{1024*j} lds")
        g = g2 + 9
    G.place(g, f"s_add_u32 s{sKo}, s{sKo}, {STG}")
    g = G.place(g + 1, f"s_add_u32 s{sSlot}, s{sSlot}, {STG}")
    g = G.place2(g + 1, f"s_cmp_eq_u32 s{sSlot}, {3 * STG}", f"s_cselect_b32 s{sSlot}, 0, s{sSlot}")
    for i, r in enumerate(KA): G.place(B + 10 + 2 * i, f"v_add_u32 v{r}, s{sInc}, v{r}")
    for i, r in enumerate(VA): G.place(B + 82 + 2 * i, f"v_add_u32 v{r}, s{sInc}, v{r}")
    ops = sm_ops(par ^ 1)
    first_g, last_g = 10, 186
    pend = []
    exps = [(i, r) for i in range(16) for r in range(4)]
    ei = 0
    for g in range(192):
        if ei < 64:
            i, r = exps[ei]
            target = first_g + (last_g - first_g) * ei / 64.0
            if g >= 6 * i + 5 + 4 and g >= target and G.vcost(g) == 0 and len(G.sc[g]) <= 1:
                G.put(g, Ins(ops[i][0][r])); ei += 1
                pend.append((g + 1, ops[i][1][r]))
                if r & 1: pend.append((g + 1, ops[i][2][r >> 1]))
                continue
        while pend and pend[0][0] <= g and G.fits(g, Ins(pend[0][1])):
            G.put(g, Ins(pend.pop(0)[1]))
    assert ei == 64 and not pend, (ei, pend)
    return G


def poll(A, lab, voff, srd_, soff, cond, sleep=2, precheck=False):
    if precheck:
        cond(); A(f"s_cbranch_scc0 {lab}_ok")
    A(f"s_mov_b32 s{sE}, {SPIN}")
    A(f"{lab}:")
    A(f"buffer_load_dwordx2 {vr(T0,2)}, v{voff}, {sr(srd_)}, {soff} offen sc1")
    A("s_waitcnt vmcnt(0)")
    cond()
    A(f"s_cbranch_scc0 {lab}_ok")
    A(f"s_sleep {sleep}\ns_sub_u32 s{sE}, s{sE}, 1\ns_cmp_lg_u32 s{sE}, 0\ns_cbranch_scc1 {lab}")
    A(f"{lab}_ok:")
def cond_nonce(A, mask):
    def f():
        A(f"v_cmp_ne_u32 vcc, s{sN0}, v{T0}\nv_cmp_ne_u32 s[{sA}:{sA+1}], s{sN1}, v{T1}\ns_nop 0")
        A(f"s_or_b32 s{sA}, vcc_lo, s{sA}\ns_and_b32 s{sA}, s{sA}, {mask}\ns_cmp_lg_u32 s{sA}, 0")
    return f
assert sA % 2 == 0 and sC % 2 == 0

def gelu_ops(x, y, pk, store):
    q = []
    for r in range(4): q.append(f"v_mul_f32 v{y+r}, v{x+r}, v{x+r}")
    for r in range(4): q.append(f"v_fma_f32 v{y+r}, v{y+r}, s{sB}, v{T0}")
    for r in range(4): q.append(f"v_mul_f32 v{y+r}, v{y+r}, v{x+r}")
    for r in range(4): q.append(f"v_exp_f32 v{y+r}, v{y+r}")
    for r in range(4): q.append(f"v_fma_f32 v{y+r}, v{y+r}, s{sA}, s{sA}")
    for r in range(4): q.append(f"v_rcp_f32 v{y+r}, v{y+r}")
    for r in range(4): q.append(f"v_mul_f32 v{y+r}, v{y+r}, v{x+r}")
    for r in range(2): q.append(f"v_cvt_pk_bf16_f32 v{pk+r}, v{y+2*r}, v{y+2*r+1}")
    return [(t, 0, False, None) for t in q] + store

def gelu_pk(x, y, pk, store):
    q = []
    for k in range(2): q.append(f"v_pk_mul_f32 {vr(y+2*k,2)}, {vr(x+2*k,2)}, {vr(x+2*k,2)}")
    for k in range(2): q.append(f"v_pk_fma_f32 {vr(y+2*k,2)}, {vr(y+2*k,2)}, s[{sA}:{sA+1}], {vr(T0,2)} op_sel:[0,1,0] op_sel_hi:[1,1,0]")
    for k in range(2): q.append(f"v_pk_mul_f32 {vr(y+2*k,2)}, {vr(y+2*k,2)}, {vr(x+2*k,2)}")
    for r in range(4): q.append(f"v_exp_f32 v{y+r}, v{y+r}")
    q.append("s_nop 0")
    for k in range(2): q.append(f"v_pk_fma_f32 {vr(y+2*k,2)}, {vr(y+2*k,2)}, s[{sA}:{sA+1}], s[{sA}:{sA+1}] op_sel_hi:[1,0,0]")
    for r in range(4): q.append(f"v_rcp_f32 v{y+r}, v{y+r}")
    q.append("s_nop 0")
    for k in range(2): q.append(f"v_pk_mul_f32 {vr(y+2*k,2)}, {vr(y+2*k,2)}, {vr(x+2*k,2)}")
    for r in range(2): q.append(f"v_cvt_pk_bf16_f32 v{pk+r}, v{y+2*r}, v{y+2*r+1}")
    return [(t, 0, False, None) for t in q] + store
def pkify(q):
    out = []; i = 0
    while i < len(q):
        t = q[i][0] if isinstance(q[i], tuple) else q[i]
        n = (q[i + 1][0] if isinstance(q[i + 1], tuple) else q[i + 1]) if i + 1 < len(q) else ""
        m1 = re.match(r"v_(mul|add)_f32 v(\d+), v(\d+), v(\d+)$", t); m2 = re.match(r"v_(mul|add)_f32 v(\d+), v(\d+), v(\d+)$", n)
        if opt["pk"] and m1 and m2 and m1.group(1) == m2.group(1):
            d1, a1, b1 = map(int, m1.groups()[1:]); d2, a2, b2 = map(int, m2.groups()[1:])
            if d1 % 2 == 0 and a1 % 2 == 0 and d2 == d1 + 1 and a2 == a1 + 1:
                if b1 == b2 and b1 not in (d1, d2):
                    h = b1 & 1
                    out.append((f"v_pk_{m1.group(1)}_f32 {vr(d1,2)}, {vr(a1,2)}, {vr(b1-h,2)} op_sel:[0,{h}] op_sel_hi:[1,{h}]", 0, False, None)); i += 2; continue
                if b1 % 2 == 0 and b2 == b1 + 1:
                    out.append((f"v_pk_{m1.group(1)}_f32 {vr(d1,2)}, {vr(a1,2)}, {vr(b1,2)}", 0, False, None)); i += 2; continue
        out.append(q[i]); i += 1
    return out

def b_wdma(srd_, tag, slot_imm):
    o = [f"s_add_u32 s{sInc}, s{sM}, {slot_imm}", f"s_add_u32 s{sVo2}, s{sVo}, {16*1280}"]
    for hf, so in enumerate((sVo, sVo2)):
        o.append(f"s_add_u32 m0, s{sInc}, {5120*hf}")
        o += [(f"buffer_load_dwordx4 v{DS5[j]}, {sr(srd_)}, s{so} offen offset:{1024*j} lds", tag) for j in range(4)]
        o.append(f"s_add_u32 m0, s{sInc}, {5120*hf + 4096}")
        o.append((f"buffer_load_dwordx4 v{DS5[4]}, {sr(srd_)}, s{so} offen lds", tag))
    o.append(f"s_add_u32 s{sVo}, s{sVo}, {64*1280}")
    return o
def oload(buf, tag):
    o = [(f"buffer_load_dwordx4 {vr(OB[buf] + 4*(r*2+e))}, v{OV[r]}, {sr(sWS)}, s{sKo} offen offset:{1024*e} sc1", tag) for r in range(4) for e in range(2)]
    o.append(f"s_add_u32 s{sKo}, s{sKo}, 2048")
    return o
def b_scalars():
    o = [f"s_lshl_b32 s{sA}, s{sSP}, 1", f"s_add_u32 s{sA}, s{sA}, s{sKH}"]
    o += [f"s_mul_i32 s{sB}, s{sQH}, {32*1280}", f"s_mul_i32 s{sC}, s{sNT}, 320", f"s_add_u32 s{sB}, s{sB}, s{sC}"]
    o += [f"s_mul_i32 s{sVo}, s{sA}, {192*1280}", f"s_add_u32 s{sVo}, s{sVo}, s{sB}", f"s_mul_i32 s{sH}, s{sA}, {768*1280}", f"s_add_u32 s{sH}, s{sH}, s{sB}"]
    o += [f"s_mul_i32 s{sB}, s{sFL}, {4*240*4}", f"s_add_u32 s{sB}, s{sB}, {OH_OFF}"]
    o += [f"s_mul_i32 s{sKo}, s{sA}, {6*1024}", f"s_add_u32 s{sKo}, s{sKo}, s{sB}", f"s_add_u32 s{sKo}, s{sKo}, {192*1024}"]
    o += [f"s_mul_i32 s{sF}, s{sA}, {24*1024}", f"s_add_u32 s{sF}, s{sF}, s{sB}"]
    o += [f"s_mul_i32 s{sM}, s{sW}, 10240"]
    o += [f"s_lshr_b32 s{sD}, s2, 3", f"s_lshl_b32 s{sD}, s{sD}, 2", f"s_add_u32 s{sD}, s{sD}, s{sW}", f"s_mul_i32 s{sD}, s{sD}, 15360",
          f"s_mul_i32 s{sKo2}, s{sSP}, {1536*1280}", f"s_add_u32 s{sKo2}, s{sKo2}, s{sD}"]
    return o
def b_warm():
    o = []
    for i in range(4):
        o.append((f"buffer_load_dword v7, v{PFV}, {sr(sWO)}, s{sKo2} offen", "PF"))
        if i < 3: o.append(f"s_add_u32 s{sKo2}, s{sKo2}, 4096")
    return o
def b_addr_ops():
    q = []
    t0, t1, t2, t3 = 255, 253, 254, 255
    for j in range(5):
        q += [f"v_add_u32 v{t0}, {64*j}, v0", f"v_mul_u32_u24 v{t1}, 3277, v{t0}", f"v_lshrrev_b32 v{t1}, 16, v{t1}",
              f"v_mul_u32_u24 v{t2}, 20, v{t1}", f"v_sub_u32 v{t2}, v{t0}, v{t2}", f"v_lshrrev_b32 v{t3}, 1, v{t1}", f"v_and_b32 v{t3}, 2, v{t3}",
              f"v_xor_b32 v{t2}, v{t2}, v{t3}", f"v_mul_u32_u24 v{t3}, 80, v{t1}", f"v_add_u32 v{t3}, v{t3}, v{t2}"]
        q += [f"v_lshlrev_b32 v{DS5[j]}, 4, v{t3}"]
        if 0 < j < 4: q += [f"v_subrev_u32 v{DS5[j]}, {1024*j}, v{DS5[j]}"]
    q += [f"v_and_b32 v{FLV}, 31, v0", f"v_lshlrev_b32 v{FLV}, 3, v{FLV}"]
    p = []
    p += [f"v_lshlrev_b32 v{t0}, 4, v0"]
    for r in range(4):
        p += [f"s_add_u32 s{sF}, s{sSP}, {r}", f"s_and_b32 s{sF}, s{sF}, 3", f"s_mul_i32 s{sF}, s{sF}, {240*1024}", f"v_add_u32 v{OV[r]}, s{sF}, v{t0}"]
    p += [f"v_lshlrev_b32 v{PFV}, {6 if opt['pst'] == 64 else 7}, v0", f"v_mov_b32 v{ZV}, 0"]
    if opt["pst"] == 128: p += [f"v_min_u32 v{PFV}, {47*128}, v{PFV}"] if False else []
    return p, q

def b_ra_ops():
    t0, t1, t2 = NREF + 8, NREF + 9, NREF + 10
    lo, hi = (NREF + 11, NREF + 12), (NREF + 13, NREF + 14)
    q = [f"s_mul_i32 s{sE}, s{sKH}, 20480", f"v_lshrrev_b32 v{t0}, 2, v0", f"v_mul_u32_u24 v{t0}, 320, v{t0}", f"v_and_b32 v{t1}, 3, v0", f"v_lshl_add_u32 v{t0}, v{t1}, 3, v{t0}",
         f"v_add_u32 v{t0}, s{sE}, v{t0}", f"v_bfe_u32 v{t1}, v0, 4, 1", f"v_xor_b32 v{t2}, 1, v{t1}",
         f"v_lshl_add_u32 v{lo[0]}, v{t1}, 5, v{t0}", f"v_lshl_add_u32 v{lo[1]}, v{t2}, 5, v{t0}",
         f"v_add_u32 v{hi[0]}, 128, v{lo[1]}", f"v_add_u32 v{hi[1]}, 192, v{lo[0]}",
         f"s_cmp_eq_u32 s{sKH}, 0", f"s_cselect_b64 vcc, -1, 0", "s_nop 0"]
    for k in range(2):
        q += [f"v_cndmask_b32 v{RA[k]}, v{lo[k]}, v{hi[k]}, vcc", f"v_cndmask_b32 v{RA[2+k]}, v{hi[k]}, v{lo[k]}, vcc"]
    return q
def lred(A):
    for sw in ("v_permlane32_swap_b32", "v_permlane16_swap_b32"):
        for qb in range(4): A(f"v_mov_b32 v{NREF+qb}, v{LS[qb]}")
        for qb in range(4): A(f"{sw} v{LS[qb]}, v{NREF+qb}")
        for qb in range(4): A(f"v_add_f32 v{LS[qb]}, v{LS[qb]}, v{NREF+qb}")
NEARLY = 24
def oepi_ops():
    q = []; late = []; n = 0
    so = [sA, sB, sC, sD]
    for m in range(6):
        for qb in range(4):
            x = 144 + 8 * (n & 1); d = PK + 4 * (n % 16)
            e = 16 * m + 8 + 2 * qb + 1 + 5
            for p in range(2):
                for r in range(4): q.append((f"v_accvgpr_read_b32 v{x+4*p+r}, a{O(2*m+p,qb)+r}", e, False, None))
            for i in range(8): q.append((f"v_mul_f32 v{x+i}, v{x+i}, v{LS[qb]}", 0, False, None))
            for i in range(4): q.append((f"v_cvt_pk_bf16_f32 v{d+i}, v{x+2*i}, v{x+2*i+1}", 0, False, None))
            v, off = (T1, 1024 * m) if m < 4 else (T0, 1024 * (m - 4))
            st = f"buffer_store_dwordx4 {vr(d)}, v{v}, {sr(sWS)}, s{so[qb]} offen offset:{off} sc1"
            if n < NEARLY: q.append((st, 0, False, "OST"))
            else: late.append((st, "OST"))
            n += 1
    return q, late
def oepi_pre():
    return [f"s_mul_i32 s{sA}, s{sQB0}, {240*1024}", f"s_mul_i32 s{sB}, s{sHEAD}, {6*1024}", f"s_add_u32 s{sA}, s{sA}, s{sB}", f"s_add_u32 s{sA}, s{sA}, {OH_OFF}",
            f"s_add_u32 s{sB}, s{sA}, {240*1024}", f"s_add_u32 s{sC}, s{sA}, {480*1024}", f"s_add_u32 s{sD}, s{sA}, {720*1024}",
            f"v_lshlrev_b32 v{T1}, 4, v0", f"v_add_u32 v{T0}, 4096, v{T1}"]
def BA(nb, r): return (192 + 16 * nb if nb < 4 else 16 * (nb - 4)) + 4 * r
def bread(u, nb, e, h):
    d = WF + 8 * ((10 * u + nb) % 6) + 4 * e + 2 * h
    j = nb % 5
    return f"ds_read_b64_tr_b16 {vr(d,2)}, v{RA[2 * (nb // 5) + (j & 1)]} offset:{64*(j >> 1) + e*10240 + h*5120}"
ORDR = [(i, r) for r in (1, 2, 3, 0) for i in range(5)]
def xchg_reads(E, tr):
    for (i, r) in ORDR: E(f"ds_read_b128 {vr(tr(i, r))}, v3 offset:{1024*(4*i+r)}")
def xchg_sum(E, tr, PKS, so, emit):
    st = []; RING = 150
    for n, (i, r) in enumerate(ORDR):
        t = RING + 4 * (n & 1); x = tr(i, r)
        for k in range(4): E(f"v_accvgpr_read_b32 v{t+k}, a{BA(5+i, r)+k}")
        if n % 5 == 0 and emit: E(f"s_waitcnt lgkmcnt({15 - n})")
        for k in range(2): E(f"v_pk_add_f32 {vr(x+2*k,2)}, {vr(x+2*k,2)}, {vr(t+2*k,2)}")
        if r:
            for k in range(2): E(f"v_cvt_pk_bf16_f32 v{PKS+10*(r-1)+2*i+k}, v{x+2*k}, v{x+2*k+1}")
            if i == 4:
                p = PKS + 10 * (r - 1)
                ss = [f"buffer_store_dwordx4 {vr(p)}, v4, {sr(sWS)}, s{so[r]} offen sc1",
                      f"buffer_store_dwordx4 {vr(p+4)}, v4, {sr(sWS)}, s{so[r]} offen offset:1024 sc1",
                      f"buffer_store_dwordx2 {vr(p+8,2)}, v1, {sr(sWS)}, s{so[r]} offen sc1"]
                if emit:
                    for t_ in ss: E(t_)
                else: st += [(t_, "YST") for t_ in ss]
    return st
def slot_scalars(off, so, cons):
    o = [f"s_mul_i32 s{sA}, s{sH}, {64*3072}", f"s_mul_i32 s{sE}, s{sW}, 3072", f"s_add_u32 s{sA}, s{sA}, s{sE}", f"s_add_u32 s{sA}, s{sA}, {off}",
         f"s_mul_i32 s{sE}, s{sSP}, {16*3072}", f"s_add_u32 s{cons}, s{sA}, s{sE}", f"s_mul_i32 s{sE}, s{sSP}, {4*3072}", f"s_add_u32 s{sA}, s{sA}, s{sE}"]
    for r in (1, 2, 3):
        d = so[r]
        o += [f"s_add_u32 s{d}, s{sSP}, {r}", f"s_and_b32 s{d}, s{d}, 3", f"s_mul_i32 s{d}, s{d}, {16*3072}", f"s_add_u32 s{d}, s{d}, s{sA}"]
    return o
def inbox_loads(cons, P0, tag):
    o = []
    for r in (1, 2, 3):
        p = P0 + 10 * (r - 1)
        o += [f"s_add_u32 s{sA}, s{sSP}, {r}", f"s_and_b32 s{sA}, s{sA}, 3", f"s_mul_i32 s{sA}, s{sA}, {4*3072}", f"s_add_u32 s{sA}, s{sA}, s{cons}"]
        o += [(f"buffer_load_dwordx4 {vr(p)}, v4, {sr(sWS)}, s{sA} offen sc1", tag), (f"buffer_load_dwordx4 {vr(p+4)}, v4, {sr(sWS)}, s{sA} offen offset:1024 sc1", tag),
              (f"buffer_load_dwordx2 {vr(p+8,2)}, v1, {sr(sWS)}, s{sA} offen sc1", tag)]
    return o
def merge(a, b):
    out = []; k = 0
    na = sum(1 for x in a if isinstance(x, tuple)); seen = 0
    for x in a:
        out.append(x)
        if isinstance(x, tuple):
            seen += 1
            while k < len(b) and (k + 1) * na <= seen * len(b) and " m0," not in out[-1][0]:
                out.append(b[k]); k += 1
    return out + b[k:]
def b_chunk(u, lst, wtags, otags, czero=False, after_barrier=None, first_gap=(), last_gap=(), fillq=None, nxt=True, lim=None, xw=False, af=None, puts=()):
    mf = []
    for nb in range(10):
        for r in range(4):
            for n, e in enumerate(snk(2, r)):
                acc = ar(BA(nb, r))
                mf.append(Ins(f"{MF} {acc}, {vr(WF + 8*((10*u+nb)%6) + 4*e)}, {vr(OB[u] + 4*(r*2+e))}, {'0' if czero and n == 0 else acc}"))
    G = Gaps(mf)
    for nb in range(7):
        n = 0
        for e in range(2):
            for h in range(2):
                G.place(8 * nb + 2 * n, bread(u, nb + 3, e, h)); n += 1
    for nb in range(1, 10): G.put(8 * nb - 1, lgw(rs(WF + 8 * ((10 * u + nb) % 6), 8)))
    gb = 62
    if nxt:
        G.put(gb, vmw(wtags, " lgkmcnt(0)")); G.put(gb, Ins("s_barrier"))
        inc = STB if u < 2 else -2 * STB
        for i, r in enumerate(RA): G.place((30 + 2 * i) if i < 2 else (gb - 6 + i), f"v_add_u32 v{r}, {inc & 0xffffffff}, v{r}")
        if after_barrier: G.place(gb + 1, after_barrier, "FLAG")
        n = 0
        for nb in range(3):
            for e in range(2):
                for h in range(2):
                    G.place(gb + 1 + n + n // 4, bread((u + 1) % 3, nb, e, h)); n += 1
        G.put(79, lgw(rs(WF + 8 * ((10 * ((u + 1) % 3)) % 6), 8)))
    if otags: G.put(78, vmw(otags))
    if af is not None:
        G.put(af, vmw({"OST"})); G.place(af, f"buffer_store_dwordx2 v[254:255], v{ZV}, {sr(sWS)}, s17 offen sc1", "FLAG")
    for (g_, t_, tag_) in puts: G.place(g_, t_, tag_)
    if xw:
        for n, (i, r) in enumerate(ORDR): G.place(44 + (n * 7) // 4, f"ds_write_b128 v2, {ar(BA(i, r))} offset:{1024*(4*i+r)}")
    for t in first_gap: G.put(0, Ins(t))
    g = spread(G, lst, 1 if first_gap else 0, lim or (76 if otags else 60)) if lst else 70
    assert g <= 79, g
    for t in last_gap: G.place(g, t)
    if fillq is not None:
        G.cap = opt["dense"]
        left = G.fill(fillq, 0)
        return G.emit(), left
    return G.emit()

def gen():
    global problems
    A = Asm()
    A("s_cmp_ge_u32 s2, 256\ns_cbranch_scc1 L_done")
    A("s_load_dwordx16 s[76:91], s[0:1], 0\ns_load_dwordx8 s[92:99], s[0:1], 64\ns_load_dwordx2 s[100:101], s[0:1], 96")
    pX, pK, pV, pWQ, pWO, pW1, pB1, pW2, pB2, pOUT, pDBG, pWS = 76, 78, 80, 82, 84, 88, 90, 92, 94, 96, 98, 100
    A(f"s_memrealtime s[{sN0}:{sN1}]")
    if opt["stamp"]: A(f"s_memtime s[{sInc}:{sInc+1}]")
    if opt["pf"]:
        A(f"s_getpc_b64 s[{sA}:{sA+1}]\nL_pc:\ns_bfe_u32 s{sC}, s2, 0x10003\ns_lshl_b32 s{sC}, s{sC}, 15\nv_lshlrev_b32 v98, 7, v0\nv_add_u32 v98, s{sC}, v98")
        A(f"global_load_dword v99, v98, s[{sA}:{sA+1}]")
    A("v_lshrrev_b32 v14, 6, v0\nv_and_b32 v0, 63, v0")
    A(f"v_readfirstlane_b32 s{sW}, v14")
    A(f"s_and_b32 s{sA}, s2, 7\ns_lshr_b32 s{sB}, s2, 3\ns_and_b32 s{sC}, s{sB}, 3\ns_lshl_b32 s{sA}, s{sA}, 2\ns_add_u32 s{sHEAD}, s{sA}, s{sC}")
    A(f"s_lshr_b32 s{sQT}, s{sB}, 2\ns_lshl_b32 s{sB}, s{sQT}, 4\ns_lshl_b32 s{sC}, s{sW}, 2\ns_add_u32 s{sQB0}, s{sB}, s{sC}")
    A(f"s_lshr_b32 s{sC}, s{sHEAD}, 1\ns_add_u32 s{sD}, s{sB}, s{sC}\ns_mul_i32 s{sE}, s{sD}, 20480")
    A("v_and_b32 v3, 15, v0\nv_lshrrev_b32 v4, 4, v0\nv_mul_u32_u24 v5, 1280, v3\nv_mul_u32_u24 v6, 320, v14\nv_lshlrev_b32 v7, 3, v4\nv_add3_u32 v5, v5, v6, v7")
    A("v_mov_b32 v96, 0\nv_mov_b32 v94, 0")
    A(f"s_or_b32 s{sKo}, s2, s{sW}")
    A("s_waitcnt lgkmcnt(0)")
    srd(A, sX, pX, 2621440)
    srd(A, sDBG, pDBG, 256)
    A(f"s_cmp_lg_u32 s{sKo}, 0\ns_cbranch_scc1 L_nonc")
    A(f"s_or_b32 s{sKo}, s{sN0}, 1\nv_mov_b32 v80, s{sKo}\nv_mov_b32 v81, s{sN1}")
    A(f"buffer_store_dwordx2 v[80:81], v96, {sr(sDBG)}, 0 offen sc1")
    A("L_nonc:")
    A(f"s_bitcmp1_b32 s{sHEAD}, 0\ns_cbranch_scc1 L_nox")
    for i in range(5):
        A(f"buffer_load_dwordx2 {vr(100+4*i,2)}, v5, {sr(sX)}, s{sE} offen offset:{64*i}", "LX")
        A(f"buffer_load_dwordx2 {vr(102+4*i,2)}, v5, {sr(sX)}, s{sE} offen offset:{64*i+32}", "LX")
    A("L_nox:")
    for j in range(3):
        A(f"v_add_u32 v82, {64*j}, v0\nv_mul_u32_u24 v83, 2731, v82\nv_lshrrev_b32 v83, 16, v83")
        A(f"v_mul_u32_u24 v97, 24, v83\nv_sub_u32 v82, v82, v97\nv_and_b32 v97, 6, v83\nv_xor_b32 v82, v82, v97\nv_lshlrev_b32 v82, 4, v82")
        A(f"v_mul_u32_u24 v97, 12288, v83\nv_add_u32 v97, v97, v82\nv_add_u32 v{DW[j]}, {(-1024*j) & 0xffffffff}, v97")
        A(f"v_mul_u32_u24 v97, 384, v83\nv_add_u32 v97, v97, v82\nv_add_u32 v{84+j}, {(128 - 1024*j) & 0xffffffff}, v97")
    A(f"v_lshrrev_b32 v83, 3, v0\nv_and_b32 v82, 7, v0\nv_and_b32 v97, 6, v83\nv_xor_b32 v82, v82, v97\nv_lshlrev_b32 v82, 4, v82\nv_mul_u32_u24 v97, 3072, v83\nv_add_u32 v{DW1}, v97, v82")
    A(f"s_mul_i32 s{sA}, s{sHEAD}, 384")
    A(f"s_add_u32 s{sWQ}, s{pWQ}, s{sA}\ns_addc_u32 s{sWQ+1}, s{pWQ+1}, 0\ns_and_b32 s{sWQ+1}, s{sWQ+1}, 0xffff\ns_sub_u32 s{sWQ+2}, {640*12288}, s{sA}\ns_mov_b32 s{sWQ+3}, 0x20000")
    A(f"s_mul_i32 s{sF}, s{sHEAD}, 96")
    A(f"s_add_u32 s{sW1}, s{pW1}, s{sF}\ns_addc_u32 s{sW1+1}, s{pW1+1}, 0\ns_and_b32 s{sW1+1}, s{sW1+1}, 0xffff\ns_sub_u32 s{sW1+2}, {640*3072}, s{sF}\ns_mov_b32 s{sW1+3}, 0x20000")
    A(f"s_mul_i32 s{sWb}, s{sW}, 6144")
    A(f"s_mul_i32 s{sA}, s{sW}, {16*12288}\ns_mul_i32 s{sB}, s{sW}, {16*3072}\ns_mul_i32 s{sC}, s{sQB0}, 20480\ns_lshl_b32 s{sM}, s{sW}, 11")
    XB = [SB, SB + 32, PB[0]]
    def wdma(ch):
        sl = ch % 3; o = []
        o.append(f"s_add_u32 m0, s{sWb}, {VRING + sl*STG}")
        o += [(f"buffer_load_dwordx4 v{DW[j]}, {sr(sWQ)}, s{sA} offen offset:{1024*j} lds", f"W{ch}") for j in range(3)]
        o.append(f"s_add_u32 s{sA}, s{sA}, {8*12288}")
        o.append(f"s_add_u32 m0, s{sWb}, {VRING + sl*STG + 3072}")
        o += [(f"buffer_load_dwordx4 v{DW[j]}, {sr(sWQ)}, s{sA} offen offset:{1024*j} lds", f"W{ch}") for j in range(3)]
        o.append(f"s_add_u32 s{sA}, s{sA}, {56*12288}")
        o.append(f"s_add_u32 m0, s{sM}, {W1RING + sl*8192}")
        o.append((f"buffer_load_dwordx4 v{DW1}, {sr(sW1)}, s{sB} offen lds", f"W{ch}"))
        o.append(f"s_add_u32 s{sB}, s{sB}, {8*3072 - 1024}")
        o.append((f"buffer_load_dwordx4 v{DW1}, {sr(sW1)}, s{sB} offen offset:1024 lds", f"W{ch}"))
        o.append(f"s_add_u32 s{sB}, s{sB}, {56*3072 + 1024}")
        return o
    def xload(ch):
        o = [(f"buffer_load_dwordx4 {vr(XB[ch%3] + 4*(qb*2+e))}, v{XV[qb]}, {sr(sWS)}, s{sC} offen offset:{1024*e} sc1", f"X{ch}") for qb in range(4) for e in range(2)]
        o.append(f"s_add_u32 s{sC}, s{sC}, 2048")
        return o
    def kvdma(srd_, slotbase, t, tag):
        o = []
        for hf in range(2):
            o.append(f"s_add_u32 s{sKo2}, s{sWb}, {t*STG + 3072*hf}")
            o.append(f"s_add_u32 m0, s{sWb}, {slotbase + 3072*hf}")
            o += [(f"buffer_load_dwordx4 v{DSR[j]}, {sr(srd_)}, s{sKo2} offen offset:{1024*j} lds", tag) for j in range(3)]
        return o
    straight(A, wdma(0))
    srd(A, sB1, pB1, 3072)
    for ct in range(3): A(f"buffer_load_dwordx2 {vr(88 + 2*ct, 2)}, v7, {sr(sB1)}, s{sF} offen offset:{32*ct}", "B1")
    straight(A, wdma(1))
    A(f"s_mul_i32 s{sKo}, s{sHEAD}, 786432")
    for (d, lo) in ((sK, pK), (sV, pV)):
        A(f"s_add_u32 s{d}, s{lo}, s{sKo}\ns_addc_u32 s{d+1}, s{lo+1}, 0\ns_sub_u32 s{d}, s{d}, 128\ns_subb_u32 s{d+1}, s{d+1}, 0\ns_and_b32 s{d+1}, s{d+1}, 0xffff")
        A(f"s_mov_b32 s{d+2}, {786432 + 128}\ns_mov_b32 s{d+3}, 0x20000")
    srd(A, sWS, pWS, WS_SZ)
    srd(A, sOUT, pOUT, 2621440)
    srd(A, sB2, pB2, 1280)
    srd(A, sWO, pWO, 6144 * 1280)
    srd(A, sW2, pW2, 1536 * 1280)
    if opt["stamp"]:
        A(f"s_mov_b32 s78, s{sN0}\ns_mov_b32 s79, s{sInc}"); NST[0] = 1
    A(f"s_and_b32 s{sSP}, s2, 3\ns_bfe_u32 s{sKo}, s2, 0x10002\ns_lshl_b32 s{sKo}, s{sKo}, 3\ns_bfe_u32 s{sMT}, s2, 0x30003\ns_add_u32 s{sMT}, s{sMT}, s{sKo}\ns_lshr_b32 s{sNT}, s2, 6")
    A(f"s_lshr_b32 s{sKH}, s{sW}, 1\ns_and_b32 s{sQH}, s{sW}, 1")
    A(f"s_lshl_b32 s{sVo}, s{sQT}, 7\ns_add_u32 s{sVo}, s{sVo}, {LF_OFF}")
    A(f"s_bitcmp1_b32 s{sHEAD}, 0\ns_cbranch_scc1 L_noln")
    A(f"v_lshlrev_b32 v8, 6, v3\nv_add_u32 v8, {LDS_LN}, v8\nv_lshl_add_u32 v9, v14, 2, v4\nv_lshl_add_u32 v9, v9, 2, v8")
    A("v_mul_u32_u24 v10, 5120, v14\nv_lshl_add_u32 v10, v0, 4, v10")
    A(f"s_mov_b32 s{sKo}, 0x3f803f80\ns_mov_b32 s{sKo2}, 0x3f80\ns_mov_b32 s{sSlot}, 0x3f800000")
    A("s_waitcnt vmcnt(19)")
    A(f"v_dot2_f32_bf16 v11, v100, s{sKo}, 0\nv_dot2_f32_bf16 v12, v101, s{sKo}, 0")
    for i in range(2, 20): A(f"v_dot2_f32_bf16 v{11+(i&1)}, v{100+i}, s{sKo}, v{11+(i&1)}")
    A("s_nop 2\nv_add_f32 v11, v11, v12")
    def xsum(off):
        A(f"ds_write_b32 v9, v11 offset:{off}\ns_waitcnt lgkmcnt(0)\ns_barrier")
        for i in range(4): A(f"ds_read_b128 {vr(16+4*i)}, v8 offset:{off+16*i}")
        A("s_waitcnt lgkmcnt(0)")
        for i in range(4): A(f"v_pk_add_f32 {vr(16+2*i,2)}, {vr(16+2*i,2)}, {vr(24+2*i,2)}")
        for i in range(2): A(f"v_pk_add_f32 {vr(16+2*i,2)}, {vr(16+2*i,2)}, {vr(20+2*i,2)}")
        A("v_pk_add_f32 v[16:17], v[16:17], v[18:19]\nv_add_f32 v16, v16, v17")
    xsum(0)
    A(f"v_mul_f32 v13, {fh(-1/640)}, v16")
    for i in range(20): A(f"v_dot2_f32_bf16 v{40+2*i}, v{100+i}, s{sKo2}, v13\nv_dot2_f32_bf16 v{41+2*i}, v{100+i}, s{sSlot}, v13")
    A("v_pk_mul_f32 v[36:37], v[40:41], v[40:41]\nv_pk_mul_f32 v[38:39], v[42:43], v[42:43]")
    for i in range(2, 20): A(f"v_pk_fma_f32 {vr(36+2*(i&1),2)}, {vr(40+2*i,2)}, {vr(40+2*i,2)}, {vr(36+2*(i&1),2)}")
    A("v_pk_add_f32 v[36:37], v[36:37], v[38:39]\nv_add_f32 v11, v36, v37")
    xsum(1024)
    A(f"v_mov_b32 v12, {fh(1e-5)}\nv_fmac_f32 v12, {fh(1/640)}, v16\nv_rsq_f32 v12, v12\ns_nop 0\nv_mul_f32 v12, {fh(CSC)}, v12")
    for i in range(5):
        for k in range(4): A(f"v_pk_mul_f32 {vr(40+8*i+2*k,2)}, {vr(40+8*i+2*k,2)}, v[12:13] op_sel_hi:[1,0]")
        for k in range(4): A(f"v_cvt_pk_bf16_f32 v{16+4*i+k}, v{40+8*i+2*k}, v{41+8*i+2*k}")
        if i == 4: A(f"s_add_u32 s{sE}, s{sE}, 4096")
        A(f"buffer_store_dwordx4 {vr(16+4*i)}, v10, {sr(sWS)}, s{sE} offen offset:{1024*i if i < 4 else 0} sc1")
    A(f"s_cmp_lg_u32 s{sW}, 0\ns_cbranch_scc1 L_ln2")
    A(f"buffer_load_dwordx2 v[94:95], v96, {sr(sDBG)}, 0 offen sc1")
    A("L_ln2:")
    A("s_waitcnt vmcnt(0)\ns_barrier")
    A("L_noln:")
    A(f"s_cmp_lg_u32 s{sW}, 0\ns_cbranch_scc1 L_w0a")
    A(f"v_mov_b32 v{T0}, v94\nv_mov_b32 v{T1}, v95\ns_nop 0")
    def cond_non():
        A(f"v_readfirstlane_b32 s{sN0}, v{T0}\nv_readfirstlane_b32 s{sN1}, v{T1}\ns_nop 0\ns_cmp_eq_u32 s{sN0}, 0")
    poll(A, "L_pnon", 96, sDBG, "0", cond_non, sleep=8, precheck=True)
    A(f"s_bitcmp1_b32 s{sHEAD}, 0\ns_cbranch_scc1 L_w0a")
    A(f"s_lshl_b32 s{sKo}, s{sHEAD}, 2\ns_add_u32 s{sKo}, s{sKo}, s{sVo}")
    A(f"buffer_store_dwordx2 {vr(T0,2)}, v96, {sr(sWS)}, s{sKo} offen sc1")
    A("L_w0a:")
    stamp(A, 1)
    for j in range(3): A(f"v_mov_b32 v{DSR[j]}, v{84+j}")
    for qb in range(4): A(f"v_lshlrev_b32 v17, 4, v0\nv_add_u32 v{XV[qb]}, {XS_OFF + qb*20480}, v17")
    A("v_lshrrev_b32 v16, 2, v0\nv_and_b32 v17, 6, v16\nv_and_b32 v18, 3, v0")
    A("v_lshrrev_b32 v19, 1, v18\nv_and_b32 v20, 1, v18\nv_lshlrev_b32 v20, 3, v20")
    A(f"v_mul_u32_u24 v21, 384, v16\nv_add_u32 v21, {VRING}, v21")
    for m in range(4):
        A(f"v_add_u32 v22, {2*m}, v19\nv_xor_b32 v22, v22, v17\nv_lshlrev_b32 v22, 4, v22\nv_add3_u32 v{VA[m]}, v21, v22, v20\nv_add_u32 v{VA[m]}, {STG}, v{VA[m]}")
    for e in range(2):
        A(f"v_add_u32 v22, {4*e}, v18\nv_xor_b32 v22, v22, v17\nv_lshlrev_b32 v22, 4, v22\nv_add_u32 v{WA[e]}, v21, v22\nv_add_u32 v{WA2[e]}, {2*STG}, v{WA[e]}")
    A(f"v_lshlrev_b32 v21, 7, v16\nv_add_u32 v21, {W1RING}, v21")
    for ct in range(3):
        A(f"v_add_u32 v22, {2*ct}, v19\nv_xor_b32 v22, v22, v17\nv_lshlrev_b32 v22, 4, v22\nv_add3_u32 v{W1A[ct]}, v21, v22, v20")
    A("v_and_b32 v16, 15, v0\nv_and_b32 v17, 6, v16\nv_lshrrev_b32 v18, 4, v0\nv_mul_u32_u24 v21, 384, v16")
    for e in range(2):
        A(f"v_add_u32 v22, {4*e}, v18\nv_xor_b32 v22, v22, v17\nv_lshlrev_b32 v22, 4, v22\nv_add_u32 v{KA[e]}, v21, v22")
    A(f"v_lshlrev_b32 v40, 3, v16\nv_mov_b32 v41, {LDS_FL}")
    HACC = {12: PB[1], 13: PB[1] + 16, 14: NREF}
    A("s_waitcnt vmcnt(0)")
    if opt["wqpf"]:
        sPFa = sSlot
        A(f"s_movk_i32 s{sPFa}, {12288-384}\ns_bitcmp1_b32 s{sHEAD}, 0\ns_cbranch_scc0 L_nopf")
        A(f"s_lshl_b32 s{sKo}, s{sQT}, 2\ns_add_u32 s{sKo}, s{sKo}, s{sW}\ns_lshl_b32 s{sKo}, s{sKo}, 4\ns_add_u32 s{sKo}, s{sKo}, 127")
        A(f"s_mul_i32 s{sKo2}, s{sKo}, 3072\ns_mul_i32 s{sKo}, s{sKo}, 12288")
        A(f"v_lshrrev_b32 v120, 2, v0\nv_and_b32 v121, 3, v0\nv_min_u32 v121, 2, v121\nv_lshlrev_b32 v121, 7, v121\nv_mul_u32_u24 v122, 12288, v120\nv_add3_u32 v122, v122, v121, s{sPFa}")
        A(f"v_and_b32 v121, 3, v0\nv_lshlrev_b32 v121, 6, v121\nv_min_u32 v121, 188, v121\nv_mul_u32_u24 v123, 3072, v120\nv_add_u32 v123, v123, v121\nv_add_u32 v123, {3072-96}, v123")
        A(f"buffer_load_dword v121, v122, {sr(sWQ)}, s{sKo} offen\nbuffer_load_dword v121, v122, {sr(sWQ)}, s{sKo} offen offset:384\nbuffer_load_dword v121, v123, {sr(sW1)}, s{sKo2} offen")
        A("L_nopf:")
    for ct in range(3):
        h = HACC[12 + ct]
        for r in range(2):
            A(f"v_lshlrev_b32 v{h+2*r}, 16, v{88+2*ct+r}\nv_and_b32 v{h+2*r+1}, 0xffff0000, v{88+2*ct+r}")
        for r in range(4): A(f"v_mul_f32 v{h+r}, {fh(CSC)}, v{h+r}")
        for qb in range(1, 4):
            for r in range(4): A(f"v_mov_b32 v{h+4*qb+r}, v{h+r}")
    A(f"s_cmp_lg_u32 s{sW}, 0\ns_cbranch_scc1 L_w0b")
    A(f"s_mov_b32 s{sKo}, s{sA}\ns_mov_b32 s{sKo2}, s{sB}")
    poll(A, "L_pln", 40, sWS, f"s{sVo}", cond_nonce(A, "0xffff"), sleep=2)
    A(f"s_mov_b32 s{sA}, s{sKo}\ns_mov_b32 s{sB}, s{sKo2}")
    A(f"v_mov_b32 v42, s{sN0}\nv_mov_b32 v43, s{sN1}\nds_write_b64 v41, v[42:43]\ns_waitcnt lgkmcnt(0)")
    A("L_w0b:")
    A("s_barrier")
    stamp(A, 2)
    straight(A, xload(0) + xload(1))
    A("ds_read_b64 v[42:43], v41")
    order = [list(range(15))] * 9 + [[14, 12, 13] + list(range(12))]
    def wread(ch, pos, e, h):
        ct = order[ch][pos]
        n = 15 * ch + pos; d = KV + 8 * (n % 6) + 4 * e + 2 * h; sl = ch % 3
        if ct < 12:
            ks, p = ct >> 1, ct & 1
            a, o = (WA[ks & 1], sl * STG) if sl < 2 else (WA2[ks & 1], 0)
            return f"ds_read_b64_tr_b16 {vr(d,2)}, v{a} offset:{o + (ks >> 1)*128 + 8*p + e*12288 + h*6144}"
        return f"ds_read_b64_tr_b16 {vr(d,2)}, v{W1A[ct-12]} offset:{sl*8192 + e*4096 + h*2048}"
    mf = []
    for ch in range(10):
        for pos in range(15):
            ct = order[ch][pos]; n = 15 * ch + pos
            for qb in range(4):
                for i_, e in enumerate(snk(2, qb)):
                    acc = ar(4 * (ct * 4 + qb)) if ct < 12 else vr(HACC[ct] + 4 * qb)
                    c = "0" if (ch == 0 and i_ == 0 and ct < 12) else acc
                    mf.append(Ins(f"{MF} {acc}, {vr(KV + 8*(n%6) + 4*e)}, {vr(XB[ch%3] + 4*(qb*2+e))}, {c}"))
    G = Gaps(mf)
    for pos in range(3):
        for e in range(2):
            for h in range(2): A(wread(0, pos, e, h))
    A.l.append(lgw(rs(KV, 8)))
    A(f"v_readfirstlane_b32 s{sN0}, v42\nv_readfirstlane_b32 s{sN1}, v43")
    A.l.append(vmw({"X0"}))
    stamp(A, 3)
    for ch in range(10):
        b = 120 * ch
        for pos in range(12):
            n = 0
            for e in range(2):
                for h in range(2):
                    G.place(b + 8 * pos + (2 * n if ch < 9 else 4 * (n >> 1)), wread(ch, pos + 3, e, h)); n += 1
        gb = b + 102
        G.put(gb, vmw({f"W{ch+1}"} if ch < 9 else {"K0", "V0"}, " lgkmcnt(0)")); G.put(gb, Ins("s_barrier"))
        if ch < 9:
            n = 0
            for pos in range(3):
                for e in range(2):
                    for h in range(2):
                        G.place(gb + 1 + n + n // 4, wread(ch + 1, pos, e, h)); n += 1
            G.put(b + 118, vmw({f"X{ch+1}"}))
        else:
            for ks in range(6): G.place(gb + 1 + 2 * ks, kread(0, 0, ks))
        for pos in range(15):
            n = 15 * ch + pos
            if b + 8 * pos - 1 >= 0: G.put(b + 8 * pos - 1, lgw(rs(KV + 8 * (n % 6), 8)))
        if ch + 2 < 10: lst = wdma(ch + 2) + xload(ch + 2)
        elif ch == 8: lst = kvdma(sK, KRING, 0, "K0") + kvdma(sV, VRING + STG, 0, "V0")
        else: lst = kvdma(sK, KRING + STG, 1, "K1") + kvdma(sV, VRING + 2 * STG, 1, "V1")
        g = spread(G, lst, b, b + (117 if ch < 9 else 100))
        assert g <= b + 120, g
    b = 1080
    spread(G, kvdma(sK, KRING + 2 * STG, 2, "K2"), b + 103, b + 119)
    k0 = -2.0 * LOG2E * math.sqrt(2.0 / math.pi) / CSC; k1 = k0 * 0.044715 / (CSC * CSC)
    HS = {14: sVo, 12: sVo2, 13: sInc}
    pre = [f"s_mov_b32 s{sA}, {fh(CSC)}", f"s_mov_b32 s{sB}, {fh(k1)}", f"s_mul_i32 s{sC}, s{sQB0}, {240*1024}", f"s_add_u32 s{sC}, s{sC}, {OH_OFF + 192*1024}", f"s_mul_i32 s{sD}, s{sHEAD}, 3"]
    for ct in (14, 12, 13):
        s_ = HS[ct]
        pre += [f"s_add_u32 s{s_}, s{sD}, {ct-12}", f"s_lshr_b32 s{sE}, s{s_}, 1", f"s_lshl_b32 s{sE}, s{sE}, 10", f"s_and_b32 s{s_}, s{s_}, 1", f"s_lshl_b32 s{s_}, s{s_}, 3",
                f"s_add_u32 s{s_}, s{s_}, s{sE}", f"s_add_u32 s{s_}, s{s_}, s{sC}"]
    pre += [f"s_lshl_b32 s{sFL}, s{sMT}, 1", f"s_add_u32 s{sFL}, s{sFL}, s{sQH}", f"s_lshl_b32 s{sFL}, s{sFL}, 8", f"s_add_u32 s{sG}, s{sFL}, {HF_OFF}",
            f"s_lshl_b32 s{sE}, s{sSP}, 1", f"s_add_u32 s{sE}, s{sE}, s{sKH}", f"s_lshl_b32 s{sE}, s{sE}, 2", f"s_lshl_b32 s{sMSK}, 15, s{sE}",
            f"s_lshl_b32 s{sE}, s{sQB0}, 6", f"s_and_b32 s{sE}, s{sE}, 0xffffff00", f"s_lshl_b32 s{sD}, s{sHEAD}, 3", f"s_add_u32 s{sQT}, s{sE}, s{sD}"]
    g = b - 118
    for t in pre: g = G.place(g, t) + 1
    assert g < b
    G.place(b - 30, f"v_mov_b32 v{T0}, {fh(k0)}"); G.place(b - 28, f"v_lshlrev_b32 v{T1}, 4, v0")
    def gelu_q(ct, tmp):
        q = []
        for qb in range(4):
            y = tmp + 8 * (qb & 1); pk = y + 4
            so_ = (sE, sF)[qb & 1]
            st = [(f"s_add_u32 s{so_}, s{HS[ct]}, {qb*240*1024}", 0, False, None), (f"buffer_store_dwordx2 {vr(pk,2)}, v{T1}, {sr(sWS)}, s{so_} offen sc1", 0, False, "H")]
            q.append((gelu_ops(HACC[ct] + 4 * qb, y, pk, st), gelu_pk(HACC[ct] + 4 * qb, y, pk, st)))
        return q
    g14 = gelu_q(14, XB[1])
    def two_streams(G, tiles, g0, e0, partial=False):
        import copy
        best = None
        for nfit in range(len(tiles), -1, -1):
            G2 = copy.deepcopy(G); ok = True
            for par in range(2):
                q_ = [x for t_ in tiles[par:nfit:2] for x in t_[0]]
                if q_: q_[0] = (q_[0][0], e0, False, None)
                if G2.fill(q_, g0): ok = False
            if ok: break
        part = []
        np_ = nfit + 1 if (partial and nfit < len(tiles)) else nfit
        for par in ((nfit + 1) & 1, nfit & 1):
            q_ = [x for t_ in tiles[par:np_:2] for x in t_[0]]
            if q_: q_[0] = (q_[0][0], e0, False, None)
            part += G.fill(q_, g0)
        print("gelu tiles hidden:", nfit, "of", len(tiles), "partial left", len(part), file=sys.stderr)
        return part + [x for t_ in tiles[np_:] for x in t_[1 if opt["pk"] else 0]]
    left14 = two_streams(G, g14, b, b + 12)
    q = []
    n = 0
    for ks in range(6):
        for qb in range(4):
            f = qb * 6 + ks; x = PB[0] + 16 * (n & 1); n += 1
            e = b + 24 + 16 * ks + 8 + 2 * qb + 1 + 5
            for p in range(2):
                for r in range(4): q.append((f"v_accvgpr_read_b32 v{x+4*p+r}, a{4*((2*ks+p)*4+qb)+r}", e, False, None))
            d = (x + 8) if f < 16 else QV + 4 * (f - 16)
            for i in range(4): q.append((f"v_cvt_pk_bf16_f32 v{d+i}, v{x+2*i}, v{x+2*i+1}", 0, False, None))
            if f < 16:
                for i in range(4): q.append((f"v_accvgpr_write_b32 a{192+4*f+i}, v{d+i}", 0, False, None))
    left = left14 + G.fill(q, b)
    print("Q conversion ops exposed:", len(left) - len(left14), file=sys.stderr)
    A.ext(G.emit())
    stamp(A, 4); zst(A, 5, 1)
    A("s_nop 7")
    straight(A, left)
    zst(A, 5, 2)
    for i in range(4): A(f"ds_read_b64 {vr(244+2*i,2)}, v{VA[i]} offset:{6144*i}")
    A.l.append(lgw(rs(244, 8)))
    for i in range(8): A(f"v_and_b32 v{244+i}, 0x7fff7fff, v{244+i}")
    for i in range(4): A(f"v_pk_max_u16 v{244+i}, v{244+i}, v{248+i}")
    A("v_pk_max_u16 v244, v244, v245\nv_pk_max_u16 v246, v246, v247\nv_pk_max_u16 v244, v244, v246\nv_lshlrev_b32 v245, 16, v244\nv_max_u32 v244, v244, v245")
    A(f"v_cmp_le_u32 vcc, {fh(2.0**-6)}, v244\ns_mov_b32 s{sBI}, {fh(-BIAS_LO)}\ns_mov_b32 s{sLM}, {fh(2.0**(112-BIAS_LO))}\ns_cmp_lg_u64 vcc, 0")
    A(f"s_cselect_b32 s{sBI}, {fh(-BIAS)}, s{sBI}\ns_cselect_b32 s{sLM}, {fh(2.0**(112-BIAS))}, s{sLM}")
    zst(A, 5, 3)
    G = Gaps(qk_mfmas(set())); qk_reads(G, 0, vpre=False)
    gq = gelu_q(12, 240) + gelu_q(13, 240)
    for kb in range(4):
        mq = []
        for qb in range(4):
            m = NREF + 4 * qb; s_ = S(kb, qb); e = 6 * (4 * kb + qb) + 5 + 8
            if kb == 0: mq += [(f"v_max3_f32 v{m}, v{s_}, v{s_+1}, v{s_+2}", e, False, None), (f"v_max_f32 v{m}, v{m}, v{s_+3}", e, False, None)]
            else: mq += [(f"v_max3_f32 v{m}, v{m}, v{s_}, v{s_+1}", e, False, None), (f"v_max3_f32 v{m}, v{m}, v{s_+2}, v{s_+3}", e, False, None)]
        mleft = G.fill(mq, 0)
        assert kb == 3 or not mleft
    left = two_streams(G, gq, 0, 0, partial=True)
    A.ext(G.emit())
    zst(A, 5, 4)
    A.l.append(vmw({"K1"})); A("s_barrier")
    zst(A, 5, 5)
    for r in KA: A(f"v_add_u32 v{r}, {STG}, v{r}")
    A("s_nop 4")
    for ks in range(6): A(kread(0, 0, ks))
    straight(A, mleft)
    for sw in ("v_permlane32_swap_b32", "v_permlane16_swap_b32"):
        for qb in range(4): A(f"v_mov_b32 v{NREF+4*qb+1}, v{NREF+4*qb}")
        for qb in range(4): A(f"{sw} v{NREF+4*qb}, v{NREF+4*qb+1}")
        for qb in range(4): A(f"v_max_f32 v{NREF+4*qb}, v{NREF+4*qb}, v{NREF+4*qb+1}")
    for qb in range(4): A(f"v_sub_f32 v{NREF+4*qb}, s{sBI}, v{NREF+4*qb}")
    for qb in range(4):
        for r in range(1, 4): A(f"v_mov_b32 v{NREF+4*qb+r}, v{NREF+4*qb}")
    zst(A, 5, 6)
    straight(A, left)
    zst(A, 5, 7)
    sm = sm_ops(0)
    L2 = 240
    for i in range(17):
        kb, qb = (i >> 2) & 3, i & 3
        if i < 16:
            for k in range(2): A(f"v_pk_add_f32 {vr(S(kb,qb)+2*k,2)}, {vr(S(kb,qb)+2*k,2)}, {vr(NREF+4*qb,2)}")
            for t in sm[i][0]: A(t)
        else: A("s_nop 0")
        if i > 0:
            j = i - 1; s_ = S(j >> 2, j & 3); l_ = L2 + 2 * (j & 3)
            if j < 4: A(f"v_pk_add_f32 {vr(l_,2)}, {vr(s_,2)}, {vr(s_+2,2)}")
            else:
                for k in range(2): A(f"v_pk_add_f32 {vr(l_,2)}, {vr(l_,2)}, {vr(s_+2*k,2)}")
            for t in sm[j][2]: A(t)
    for qb in range(4): A(f"v_add_f32 v{LS[qb]}, v{L2+2*qb}, v{L2+2*qb+1}")
    A(f"s_mov_b32 s{sNeg}, {-2 * STG & 0xffffffff}\ns_mov_b32 s{sSlot}, 0\ns_add_u32 s{sKo}, s{sWb}, {3*STG}\ns_mov_b32 s{sCnt}, 15")
    A(f"s_add_u32 s{sE}, s{sQT}, {HF_OFF}")
    A(f"v_mov_b32 v{T0}, s{sN0}\nv_mov_b32 v{T1}, s{sN1}")
    bp, bq = b_addr_ops()
    for t in bp: A(t)
    stamp(A, 5); zst(A, 5, 8)
    A("s_waitcnt lgkmcnt(0)")
    Gf = gen_step(0, first=True)
    Gf.place(177, f"buffer_store_dwordx2 {vr(T0,2)}, v{ZV}, {sr(sWS)}, s{sE} offen sc1")
    assert not Gf.fill(bq, 0, 192)
    sf = Gf.emit()
    ex = [(177, f"buffer_load_dwordx2 {vr(T0,2)}, v{FLV}, {sr(sWS)}, s{sG} offen sc1")]
    A(f"s_getpc_b64 s[16:17]\nL_pc2:\ns_lshr_b32 s19, s2, 3\ns_lshl_b32 s19, s19, 2\ns_add_u32 s19, s19, s{sW}\ns_lshl_b32 s18, s{sW}, 13")
    A("s_add_u32 s18, s18, L_tail-L_pc2\ns_add_u32 s16, s16, s18\ns_addc_u32 s17, s17, 0")
    A(f"s_mul_i32 s18, s19, 15360\ns_mul_i32 s24, s{sSP}, {1536*1280}\ns_add_u32 s18, s18, s24\ns_add_u32 s26, s18, 8192")
    A(f"s_mul_i32 s19, s19, 3840\ns_mul_i32 s24, s{sSP}, {384*1280}\ns_add_u32 s19, s19, s24\ns_brev_b32 s27, 1")
    ex.append((181, f"global_load_dword v254, v{PFV}, s[16:17]"))
    ex.append((185, f"buffer_load_dword v254, v{PFV}, {sr(sWO)}, s24 offen"))
    G1 = gen_step(1, extra=[(179, f"buffer_load_dword v254, v{PFV}, {sr(sWO)}, s24 offen"), (185, f"buffer_load_dword v254, v{PFV}, {sr(sW2)}, s25 offen")])
    G0 = gen_step(0, extra=ex)
    G1.place2(150, f"s_cmp_eq_u32 s{sCnt}, 3", "s_cselect_b32 s24, s18, s27")
    G1.place2(160, f"s_cmp_eq_u32 s{sCnt}, 2", "s_cselect_b32 s25, s19, s27")
    G0.place2(150, f"s_cmp_eq_u32 s{sCnt}, 2", "s_cselect_b32 s24, s26, s27")
    G1.place(186, f"s_sub_u32 s{sCnt}, s{sCnt}, 1")
    G0.place(186, f"s_cmp_lg_u32 s{sCnt}, 0")
    s1 = G1.emit(); s0 = G0.emit()
    pro = list(A.l)
    auto_vm(pro); auto_lgkm(pro)
    auto_lgkm(sf); auto_lgkm(s1, pre=s0); auto_lgkm(s0, pre=s1)
    A.ext(sf)
    A(".p2align 6\nL_loop:")
    A.ext(s1); A.ext(s0); A("s_cbranch_scc1 L_loop")
    T = Asm()
    T("L_tail:")
    zst(T, 1, 1)
    stamp(T, 6)
    for db in range(3):
        for e in range(2):
            for h in range(2): T(vread(db, e, h))
    lred(T)
    T(f"v_cmp_nge_f32 vcc, s{sLM}, v{LS[0]}")
    for qb in range(1, 4): T(f"v_cmp_nge_f32 s[{sC}:{sC+1}], s{sLM}, v{LS[qb]}\ns_nop 0\ns_or_b64 vcc, vcc, s[{sC}:{sC+1}]")
    T(f"s_cmp_lg_u64 vcc, 0\ns_cselect_b32 s{sA}, 1, {opt['forcesafe']}\ns_lshl_b32 s{sB}, s{sW}, 2\ns_add_u32 s{sB}, s{sB}, {LDS_FL}")
    T(f"v_mov_b32 v{NREF}, s{sA}\nv_mov_b32 v{NREF+1}, s{sB}\nv_mov_b32 v{NREF+2}, {LDS_FL}")
    T(f"ds_write_b32 v{NREF+1}, v{NREF}")
    for qb in range(4): T(f"v_rcp_f32 v{LS[qb]}, v{LS[qb]}")
    for t in b_scalars(): T(t)
    ra = [t.replace(f"v_cndmask_b32 v{RA[2]},", "v_cndmask_b32 v254,").replace(f"v_cndmask_b32 v{RA[3]},", "v_cndmask_b32 v255,") for t in b_ra_ops()]
    b_ra_fin = [f"v_mov_b32 v{RA[2]}, v254", f"v_mov_b32 v{RA[3]}, v255", f"v_mov_b32 v254, s{sN0}", f"v_mov_b32 v255, s{sN1}"]
    T("s_waitcnt vmcnt(0) lgkmcnt(0)\ns_barrier")
    for t in ra: T(t)
    T(f"ds_read_b128 {vr(NREF+4)}, v{NREF+2}")
    poll(T, "L_ph", FLV, sWS, f"s{sG}", cond_nonce(T, f"s{sMSK}"), sleep=8, precheck=True)
    for t in oepi_pre(): T(t)
    if opt["tst"] == 1: stamp(T, 7)
    G = Gaps(pv_mfmas(1)); pv_reads(G, 0)
    G.put(3, lgw(rs(NREF + 4, 4)))
    G.place(4, f"v_or3_b32 v{NREF}, v{NREF+4}, v{NREF+5}, v{NREF+6}"); G.place(5, f"v_or_b32 v{NREF}, v{NREF}, v{NREF+7}")
    G.place(7, f"v_readfirstlane_b32 s{sE}, v{NREF}")
    gck = G.place2(9, f"s_cmp_lg_u32 s{sE}, 0", "s_cbranch_scc1 L_safe")
    ylo = b_wdma(sW2, "W0", 0) + oload(0, "O0") + b_wdma(sW2, "W1", STB) + oload(1, "O1")
    g = spread(G, ylo, gck + 1, 94)
    oq, _ = oepi_ops()
    items = []; cur = []
    for x in oq:
        if x[3] == "OST": items.append((cur, x)); cur = []
        else: cur.append(x)
    pc = [int(x) for x in opt["pace"].split(",")]; assert sum(pc) == 24
    first = []
    for n in range(12):
        first += items[n][0]
        if n < pc[0]: first.append(items[n][1])
    left = G.fill(first, 12)
    T.ext(G.emit())
    if opt["tst"] == 2: stamp(T, 7)
    zst(T, 1, 2)
    T("s_nop 7")
    straight(T, pkify(left))
    T("L_join:")
    zst(T, 1, 3)
    if opt["tst"] == 0: stamp(T, 7)
    for t in b_ra_fin: T(t)
    T.l.append(vmw({"W0", "O0"})); T("s_barrier")
    for nb in range(3):
        for e in range(2):
            for h in range(2): T(bread(0, nb, e, h))
    T(f"s_add_u32 s17, s{sQT}, {AF_OFF}")
    T("s_waitcnt lgkmcnt(0)")
    zst(T, 1, 4)
    def paced(k, lim=78):
        n0 = sum(pc[:k + 1]); q = []
        for j in range(pc[k + 1]):
            n = n0 + j; g = 2 + (lim - 2) * j // pc[k + 1]
            if n >= 12: q += [(t, max(0, g - 7), ng, tag) for (t, e, ng, tag) in items[n][0]]
            q.append((items[n][1][0], g, False, "OST"))
        return q
    c0, late = b_chunk(0, b_wdma(sW2, "W2", 2 * STB) + oload(2, "O2"), {"W1"}, {"O1"}, czero=True, fillq=paced(0))
    T.ext(c0); straight(T, late); print("y0 leftover", len(late), file=sys.stderr)
    zst(T, 1, 5)
    so = {1: 18, 2: 19, 3: 16}; sYC, sXC, sYF, sXF = 26, 27, 24, 25
    a1 = [f"v_lshlrev_b32 v4, 4, v0", f"s_mul_i32 s{sE}, s{sW}, 20480", f"v_add_u32 v2, s{sE}, v4", f"s_xor_b32 s{sE}, s{sW}, 2", f"s_mul_i32 s{sE}, s{sE}, 20480", f"v_add_u32 v3, s{sE}, v4",
          "v_lshlrev_b32 v1, 3, v0", "v_add_u32 v1, 2048, v1", f"s_mov_b32 s{sVo}, s{sH}", f"s_lshl_b32 s{sH}, s{sMT}, 2", f"s_add_u32 s{sH}, s{sH}, s{sNT}"]
    c1, left = b_chunk(1, [], {"W2"}, {"O2"}, fillq=a1 + paced(1, opt["lim1"]), af=opt["afg"] if opt["afc"] == 1 else None)
    T.ext(c1); straight(T, left); print("y1 leftover", len(left), file=sys.stderr)
    zst(T, 1, 6)
    a2 = [t.replace(f"s{sA}", f"s{sInc}") for t in slot_scalars(YC_OFF, so, sYC)]
    a2 += [f"s_lshl_b32 s{sE}, s{sH}, 2", f"s_add_u32 s{sE}, s{sE}, s{sW}", f"s_lshl_b32 s{sE}, s{sE}, 6", f"s_add_u32 s{sYF}, s{sE}, {YF_OFF}", f"s_add_u32 s{sXF}, s{sE}, {XF_OFF}",
           f"s_add_u32 s{sG}, s{sFL}, {AF_OFF}", f"s_mov_b32 s{sKo}, s{sF}"]
    c2, left = b_chunk(2, a2, None, None, nxt=False, xw=True, fillq=paced(2, 60), af=opt["afg"] if opt["afc"] == 2 else None,
                       puts=[(opt["aflg"], f"buffer_load_dwordx2 {vr(T0,2)}, v{FLV}, {sr(sWS)}, s{sG} offen sc1", "AFL")])
    assert pc[3] == 0
    T.ext(c2); straight(T, left); print("y2 leftover", len(left), file=sys.stderr)
    zst(T, 1, 7); stamp(T, 8)
    YO = 80; YP = 100
    try_ = lambda i, r: (YO + 4 * i, 48 + 4 * i, 130 + 4 * i, 192 + 4 * i if i < 4 else 232)[r]
    T.l.append(vmw({"AFL"}))
    poll(T, "L_pat", FLV, sWS, f"s{sG}", cond_nonce(T, f"s{sMSK}"), sleep=4, precheck=True)
    stamp(T, 9); zst(T, 1, 8); zst(T, 2, 1)
    straight(T, oload(2, "O2"))
    T("s_waitcnt lgkmcnt(0)\ns_barrier")
    straight(T, b_wdma(sWO, "W2", 2 * STB))
    xchg_reads(T, try_)
    straight(T, oload(0, "O0"))
    T("s_waitcnt lgkmcnt(0)")
    yst = xchg_sum(T, try_, YP, so, False)
    T.l.append(vmw({"W2"})); T("s_barrier")
    for nb in range(3):
        for e in range(2):
            for h in range(2): T(bread(2, nb, e, h))
    straight(T, b_wdma(sWO, "W0", 0))
    T(f"s_mov_b32 s{sCnt}, 2\ns_lshl_b32 s{sE}, s{sSP}, 3\ns_add_u32 s{sG}, s{sYF}, s{sE}")
    zst(T, 1, 9)
    T.l.append(vmw({"O2"}, " lgkmcnt(0)"))
    zst(T, 1, 10); zst(T, 2, 2)
    def sl(u): return b_wdma(sWO, f"W{(u+2)%3}", ((u + 2) % 3) * STB) + oload((u + 2) % 3, f"O{(u+2)%3}")
    def nx(k, u): return {f"{k}{(u+1)%3}"}
    for n, u in enumerate((2, 0, 1)):
        T.ext(b_chunk(u, merge(sl(u), yst[5 * n: 5 * n + 5]), nx("W", u), nx("O", u), czero=(n == 0)))
        zst(T, 2, 3 + n)
    zst(T, 1, 11)
    tail = list(T.l)
    auto_lgkm(tail, pre=s0); auto_vm(tail)
    A.ext(tail)
    steps = [b_chunk(2, sl(2), nx("W", 2), nx("O", 2), first_gap=[f"s_sub_u32 s{sCnt}, s{sCnt}, 1"]),
             b_chunk(0, sl(0), nx("W", 0), nx("O", 0), after_barrier=f"buffer_store_dwordx2 v[254:255], v{ZV}, {sr(sWS)}, s{sG} offen sc1"),
             b_chunk(1, sl(1), nx("W", 1), nx("O", 1), last_gap=[f"s_cmp_lg_u32 s{sCnt}, 0"])]
    for u in range(3):
        auto_lgkm(steps[u], pre=steps[(u + 2) % 3]); auto_vm(steps[u], pre=steps[(u + 1) % 3] + steps[(u + 2) % 3])
    A(".p2align 6\nL_bloop:")
    for u in range(3): A.ext(steps[u])
    A("s_cbranch_scc1 L_bloop")
    PKS = 48; XL = 16; B2L = 26
    E = Asm()
    zst(E, 2, 6)
    E(f"v_and_b32 v6, 3, v0\nv_lshlrev_b32 v6, 3, v6\ns_lshl_b32 s{sMSK}, 1, s{sSP}\ns_xor_b32 s{sMSK}, s{sMSK}, 15")
    a3 = [f"s_mul_i32 s{sE}, s{sKH}, 40960", f"v_add_u32 v2, s{sE}, v2", f"s_sub_u32 s{sE}, 40960, s{sE}", f"v_add_u32 v3, s{sE}, v3",
          "v_lshrrev_b32 v7, 4, v0", "v_lshlrev_b32 v7, 3, v7", "v_and_b32 v5, 15, v0", "v_mul_u32_u24 v5, 1280, v5", "v_add_u32 v5, v5, v7"]
    c, left = b_chunk(2, [(f"buffer_load_dwordx2 {vr(T0,2)}, v6, {sr(sWS)}, s{sYF} offen sc1", "YF")] + sl(2), nx("W", 2), nx("O", 2), fillq=a3); assert not left
    E.ext(c)
    E.l.append(vmw({"YF"}))
    poll(E, "L_py", 6, sWS, f"s{sYF}", cond_nonce(E, f"s{sMSK}"), sleep=4, precheck=True)
    zst(E, 2, 7)
    a4 = [f"s_lshr_b32 s{sC}, s{sFL}, 6", f"s_add_u32 s{sC}, s{sC}, s{sSP}", f"s_mul_i32 s{sKo}, s{sC}, 20480",
          f"s_mul_i32 s{sC}, s{sNT}, 320", f"s_mul_i32 s{sB}, s{sKH}, 160", f"s_add_u32 s{sC}, s{sC}, s{sB}", f"s_add_u32 s{sKo}, s{sKo}, s{sC}"]
    E.ext(b_chunk(0, inbox_loads(sYC, YP, "YL") + a4, nx("W", 0), nx("O", 0), lim=50))
    zst(E, 2, 8)
    l2 = [(f"buffer_load_dwordx2 {vr(B2L+2*i,2)}, v7, {sr(sB2)}, s{sC} offen offset:{32*i}", "YL") for i in range(5)]
    l2 += [(f"buffer_load_dwordx2 {vr(XL+2*i,2)}, v5, {sr(sX)}, s{sKo} offen offset:{32*i}", "YL") for i in range(5)]
    a5 = slot_scalars(XC_OFF, so, sXC) + [f"s_lshl_b32 s{sE}, s{sSP}, 3", f"s_add_u32 s{sG}, s{sXF}, s{sE}"]
    c, left = b_chunk(1, l2, None, None, nxt=False, xw=True, lim=36, fillq=a5); assert not left
    E.ext(c)
    stamp(E, 10); zst(E, 2, 9); zst(E, 3, 1)
    auto_lgkm(E.l, pre=steps[2]); auto_vm(E.l, pre=steps[1] + steps[2])
    trs = lambda i, r: 160 + 20 * r + 4 * i
    E("s_waitcnt lgkmcnt(0)\ns_barrier")
    xchg_reads(E, trs)
    xchg_sum(E, trs, PKS, so, True)
    zst(E, 2, 10); zst(E, 3, 2)
    E("s_waitcnt vmcnt(9)")
    E(f"s_mov_b32 s{sC}, 0x3f80\ns_mov_b32 s{sD}, 0x3f800000")
    def dacc(x, src):
        for k in range(2): E(f"v_dot2_f32_bf16 v{x+2*k}, v{src+k}, s{sC}, v{x+2*k}\nv_dot2_f32_bf16 v{x+2*k+1}, v{src+k}, s{sD}, v{x+2*k+1}")
    for p in range(4):
        for i in range(5): dacc(YO + 4 * i, (B2L + 2 * i) if p == 3 else (YP + 10 * p + 2 * i))
    zst(E, 3, 3)
    E("s_waitcnt vmcnt(0)")
    zst(E, 3, 4)
    E(f"buffer_store_dwordx2 v[254:255], v{ZV}, {sr(sWS)}, s{sG} offen sc1")
    for i in range(5):
        g_ = YO + 4 * i; t = 130 + 4 * i
        for k in range(4): E(f"v_mul_f32 v{t+k}, {fh(-LOG2E)}, v{g_+k}")
        for k in range(4): E(f"v_exp_f32 v{t+k}, v{t+k}")
        for k in range(4): E(f"v_add_f32 v{t+k}, 1.0, v{t+k}")
        for k in range(4): E(f"v_rcp_f32 v{t+k}, v{t+k}")
        for k in range(4): E(f"v_mul_f32 v{g_+k}, v{g_+k}, v{t+k}")
        for k in range(2): E(f"v_lshlrev_b32 v{t+2*k}, 16, v{XL+2*i+k}\nv_and_b32 v{t+2*k+1}, 0xffff0000, v{XL+2*i+k}")
    zst(E, 3, 5)
    poll(E, "L_pxc", 6, sWS, f"s{sXF}", cond_nonce(E, f"s{sMSK}"), sleep=1)
    stamp(E, 11); zst(E, 2, 11); zst(E, 3, 6)
    straight(E, inbox_loads(sXC, PKS, "XL"))
    for r in (1, 2, 3):
        E(f"s_waitcnt vmcnt({9-3*r})")
        for i in range(5): dacc(trs(i, 0), PKS + 10 * (r - 1) + 2 * i)
    for i in range(5):
        x = trs(i, 0)
        for k in range(2): E(f"v_pk_fma_f32 {vr(x+2*k,2)}, {vr(x+2*k,2)}, {vr(YO+4*i+2*k,2)}, {vr(130+4*i+2*k,2)}")
        for k in range(2): E(f"v_cvt_pk_bf16_f32 v{trs(i,2)+k}, v{x+2*k}, v{x+2*k+1}")
        E(f"buffer_store_dwordx2 {vr(trs(i,2),2)}, v5, {sr(sOUT)}, s{sKo} offen offset:{32*i}")
    if opt["stamp"]:
        E("s_waitcnt vmcnt(0)")
        E("s_memrealtime s[4:5]\ns_memtime s[6:7]\ns_load_dwordx2 s[8:9], s[0:1], 96\ns_waitcnt lgkmcnt(0)")
        E(f"s_add_u32 s8, s8, {ST_OFF}\ns_addc_u32 s9, s9, 0\ns_and_b32 s9, s9, 0xffff\ns_mov_b32 s10, 0x40000\ns_mov_b32 s11, 0x20000")
        E(f"s_lshl_b32 s12, s2, 2\ns_add_u32 s12, s12, s{sW}\ns_lshl_b32 s12, s12, 7\nv_mov_b32 v2, 0\ns_mov_b64 exec, 1")
        for i in range(NST[0] + 1):
            a, b_ = (78 + 2 * i, 79 + 2 * i) if i < NST[0] else (4, 6)
            E(f"v_mov_b32 v{16+2*i}, s{a}\nv_mov_b32 v{17+2*i}, s{b_}\nbuffer_store_dwordx2 v[{16+2*i}:{17+2*i}], v2, s[8:11], s12 offen offset:{8*i}")
    if opt["stamp"] and opt["dbgst"]:
        E("s_load_dwordx2 s[8:9], s[0:1], 88\ns_waitcnt lgkmcnt(0)\ns_and_b32 s9, s9, 0xffff\ns_mov_b32 s10, 256\ns_mov_b32 s11, 0x20000")
        E("s_not_b32 s78, s78")
        for i in range(NST[0] + 1):
            a_ = 78 + 2 * i if i < NST[0] else 4
            E(f"v_mov_b32 v{16+i}, s{a_}\nbuffer_atomic_umax v{16+i}, v2, s[8:11], 0 offen offset:{8+4*i} sc1")
    ec = list(E.l)
    A.ext(ec)
    A("L_done:\ns_endpgm")
    F = Asm()
    F("L_safe:")
    F("s_waitcnt vmcnt(0) lgkmcnt(0)\ns_nop 7")
    for r in KA: F(f"v_subrev_u32 v{r}, {2*STG}, v{r}")
    for r in VA: F(f"v_subrev_u32 v{r}, {2*STG}, v{r}")
    for i in range(192): F(f"v_accvgpr_write_b32 a{i}, 0")
    MX = PB[1]
    for qb in range(4): F(f"v_mov_b32 v{LS[qb]}, 0\nv_mov_b32 v{MX+qb}, 0xff7fffff")
    F(f"s_mov_b32 s{sSlot}, s{sWb}\ns_mov_b32 s{sCnt}, 32")
    Fp = list(F.l)
    L = Asm()
    L("L_sloop:")
    L("s_barrier")
    for srd_, base in ((sK, KRING), (sV, VRING)):
        for hf in range(2):
            L(f"s_add_u32 s{sInc}, s{sSlot}, {3072*hf}\ns_add_u32 m0, s{sWb}, {base + 3072*hf}\ns_nop 0")
            for j in range(3): L(f"buffer_load_dwordx4 v{DSR[j]}, {sr(srd_)}, s{sInc} offen offset:{1024*j} lds")
    L(f"s_add_u32 s{sSlot}, s{sSlot}, {STG}")
    L("s_waitcnt vmcnt(0)\ns_barrier")
    for ks in range(6): L(kread(0, 0, ks))
    L("s_waitcnt lgkmcnt(0)")
    G = Gaps(qk_mfmas(set())); qk_reads(G, 0, vpre=True)
    L.ext(G.emit())
    L("s_nop 7")
    for qb in range(4):
        m = NREF + 4 * qb
        v = [S(kb, qb) + r for kb in range(4) for r in range(4)]
        L(f"v_max3_f32 v{m}, v{v[0]}, v{v[1]}, v{MX+qb}")
        for i in range(2, 16, 2): L(f"v_max3_f32 v{m}, v{m}, v{v[i]}, v{v[i+1]}")
    for sw in ("v_permlane32_swap_b32", "v_permlane16_swap_b32"):
        for qb in range(4): L(f"v_mov_b32 v{NREF+4*qb+1}, v{NREF+4*qb}")
        for qb in range(4): L(f"{sw} v{NREF+4*qb}, v{NREF+4*qb+1}")
        for qb in range(4): L(f"v_max_f32 v{NREF+4*qb}, v{NREF+4*qb}, v{NREF+4*qb+1}")
    for qb in range(4): L(f"v_sub_f32 v{NREF+4*qb+1}, v{MX+qb}, v{NREF+4*qb}")
    for qb in range(4): L(f"v_exp_f32 v{NREF+4*qb+1}, v{NREF+4*qb+1}")
    for qb in range(4): L(f"v_mov_b32 v{MX+qb}, v{NREF+4*qb}")
    for qb in range(4): L(f"v_mul_f32 v{LS[qb]}, v{LS[qb]}, v{NREF+4*qb+1}")
    for db in range(12):
        for qb in range(4):
            t = PB[1] + 8 + 4 * ((db * 4 + qb) % 4)
            for r in range(4): L(f"v_accvgpr_read_b32 v{t+r}, a{O(db,qb)+r}")
            for r in range(4): L(f"v_mul_f32 v{t+r}, v{t+r}, v{NREF+4*qb+1}")
            for r in range(4): L(f"v_accvgpr_write_b32 a{O(db,qb)+r}, v{t+r}")
    for kb in range(4):
        for qb in range(4):
            for r in range(4): L(f"v_sub_f32 v{S(kb,qb)+r}, v{S(kb,qb)+r}, v{MX+qb}")
    for (ex, ad, cv) in sm_ops(0):
        for t in ex: L(t)
        L("s_nop 0")
        for t in ad + cv: L(t)
    L("s_waitcnt lgkmcnt(0)\ns_nop 1")
    G = Gaps(pv_mfmas(0)); pv_reads(G, 0)
    L.ext(G.emit())
    L(f"s_sub_u32 s{sCnt}, s{sCnt}, 1\ns_cmp_lg_u32 s{sCnt}, 0\ns_cbranch_scc1 L_sloop")
    auto_lgkm(L.l)
    X = Asm()
    X("s_waitcnt lgkmcnt(0)\ns_barrier")
    lred(X)
    for qb in range(4): X(f"v_rcp_f32 v{LS[qb]}, v{LS[qb]}")
    straight(X, ylo)
    straight(X, first)
    X("s_waitcnt vmcnt(0)\ns_branch L_join")
    A.ext(Fp); A.ext(L.l); A.ext(X.l)
    j = [i for i, x in enumerate(tail) if x.text == "L_join:"][0]
    ck = [i for i, x in enumerate(tail) if "L_safe" in x.text][0]
    bl = steps[0] + steps[1] + steps[2]
    main = pro + sf + s1 + s0 + s1 + s0 + tail + bl + bl + ec
    problems += check_hazards(main, "main"); problems += check_waits(main, "main")[0]
    safe = s0 + tail[:ck + 1] + Fp + L.l + L.l + X.l + tail[j:]
    problems += check_hazards(safe, "safe"); problems += check_waits(safe, "safe")[0]
    return A.text()

body = gen()
kn = NAME + "_kernel"
out = f"""; generated by gen/gen12.py (own generator): one persistent launch, 1 workgroup per CU
; @launch grid=(256,1,1) block=(256,1,1) lds={LDS_SZ}
.amdgcn_target "amdgcn-amd-amdhsa--gfx950"
.text
.globl {kn}
.p2align 8
.type {kn},@function
{kn}:
{body}
.section .rodata,"a"
.p2align 6
.amdhsa_kernel {kn}
  .amdhsa_next_free_vgpr 512
  .amdhsa_next_free_sgpr 102
  .amdhsa_accum_offset 256
  .amdhsa_group_segment_fixed_size 0
  .amdhsa_kernarg_size 104
  .amdhsa_user_sgpr_count 2
  .amdhsa_user_sgpr_kernarg_segment_ptr 1
  .amdhsa_system_sgpr_workgroup_id_x 1
.end_amdhsa_kernel
"""
if problems:
    for p in sorted(set(problems)): print(p, file=sys.stderr)
    print(f"{len(set(problems))} problems", file=sys.stderr)
sys.stdout.write(out)
```

```python
import sys, math, struct, re
from asmlib import *

NAME = "recurrent_scan__gqa_block_cached__dense_activation_gelu__prompt"
def f2u(x): return struct.unpack("<I", struct.pack("<f", x))[0]
def fh(x): return f"0x{f2u(x):08x}"
LOG2E = math.log2(math.e)
CSC = LOG2E / math.sqrt(192.0)
XS_OFF = 0
OH_OFF = 0x400000
YC_OFF = 0x2400000
XC_OFF = 0x3c00000
FL_OFF = 0x4800000
AF_OFF = FL_OFF; HF_OFF = FL_OFF + 0x4000; XF_OFF = FL_OFF + 0x8000; YF_OFF = FL_OFF + 0xc000; LF_OFF = FL_OFF + 0x10000
WS_SZ = 0x5000000
ST_OFF = 0x8000000
LDS_LN = 147456; LDS_FL = LDS_LN + 2048; LDS_SZ = LDS_FL + 64
SPIN = 1 << 18

opt = dict(stamp=0, forcesafe=0, pf=1, warm=0, pst=128, snake=1, bias=102, opf=0, dense=4, zoom=0, pace="5,10,9,0", afc=2, afg=10, lim1=64, wqpf=1, aflg=60, pk=1, dbgst=0, warmh=0, jit=0, yin=0, kvw=0, pfm=6, kearly=1, noh=0, jl=60, nearly=8, tst=0)
for a in sys.argv[1:]:
    k, v = a.split("="); opt[k] = type(opt.get(k, ""))(v)
problems = []
BIAS = opt["bias"]; BIAS_LO = 48
def snk(n, i): return list(range(n))[::-1] if (opt["snake"] and i & 1) else list(range(n))

def vr(b, n=4): return f"v[{b}:{b+n-1}]"
def ar(b, n=4): return f"a[{b}:{b+n-1}]"
def sr(b, n=4): return f"s[{b}:{b+n-1}]"
def rs(b, n): return {f"v{i}" for i in range(b, b + n)}
def lgw(regs): return Ins("s_waitcnt lgkmcnt(?)", ("lg", regs))
def vmw(tags, extra=""): return Ins("s_waitcnt vmcnt(?)" + extra, ("vm", set(tags)))
MF = "v_mfma_f32_16x16x32_bf16"

sK, sV, sWQ, sW1, sWS, sB1, sX, sDBG, sOUT, sWO, sB2, sW2 = 4, 8, 12, 16, 20, 24, 28, 32, 36, 40, 44, 48
sSP = 3
(sW, sHEAD, sQT, sQB0, sKo, sKo2, sVo, sVo2, sSlot, sM, sInc, sCnt, sA, sB, sC, sD, sWb, sNeg, sN0, sN1,
 sMT, sNT, sE, sF, sKH, sQH) = range(52, 78)
sMSK, sFL, sG, sH = 12, 13, 14, 15
sBI, sLM = 32, 33
KT = 76
NST = [0]
def zst(A, z, i):
    if opt["zoom"] == z: stamp(A, i, True)
def stamp(A, i, force=False):
    if opt["zoom"] and not force: return
    if opt["stamp"]:
        A(f"s_memrealtime vcc\ns_waitcnt lgkmcnt(0)\ns_mov_b32 s{78+2*i}, vcc_lo\ns_memtime vcc\ns_waitcnt lgkmcnt(0)\ns_mov_b32 s{79+2*i}, vcc_lo")
        NST[0] = max(NST[0], i + 1)

KA = [1, 2]; VA = [3, 4, 5, 6]; DSR = [7, 8, 9]; LS = [10, 11, 12, 13]; T0, T1 = 14, 15
NREF = 16; QV = 32; SB = 64; PB = [128, 160]; KV = 192
WA = [240, 241]; WA2 = [242, 243]; W1A = [244, 245, 246]; DW = [247, 248, 249]; DW1 = 250; XV = [251, 252, 253, 254]
KRING = 0; VRING = 73728; STG = 24576; W1RING = 49152
DS5 = [240, 241, 242, 243, 244]; RA = [245, 246, 8, 9]; RAT = [245, 246, 254, 255]; OV = [247, 248, 249, 250]; PFV = 251; ZV = 252; FLV = 253
OB = [16, 48, 160]; WF = 192; STB = 40960; PK = 80

def qfrag(qb, ks):
    f = qb * 6 + ks
    return ar(192 + 4 * f) if f < 16 else vr(QV + 4 * (f - 16))
def S(kb, qb): return SB + 4 * (kb * 4 + qb)
def P(par, qb, e): return PB[par] + 4 * (qb * 2 + e)
def O(db, qb): return 4 * (db * 4 + qb)

class Gaps:
    def __init__(self, mfmas):
        self.m = mfmas; n = len(mfmas); self.n = n; self.cap = 2; self.blk = {}
        self.sc = [[] for _ in range(n)]; self.mem = [[] for _ in range(n)]; self.va = [[] for _ in range(n)]
    def vcost(self, g): return len(self.mem[g]) + sum(2 if x.kind == "trans" else 1 for x in self.va[g])
    def cost(self, g): return self.vcost(g) + len(self.sc[g])
    def fits(self, g, ins):
        c = 2 if ins.kind == "trans" else 1
        if ins.kind in ("valu", "trans", "ds", "vmem"):
            if self.vcost(g) + c > self.cap: return False
            if ins.kind in ("ds", "vmem") and self.va[g]: return False
            return self.vcost(g) + c + len(self.sc[g]) <= self.cap + 1
        return self.cost(g) + 1 <= 3
    def put(self, g, ins):
        if ins.kind in ("ds", "vmem"): self.mem[g].append(ins)
        elif ins.kind in ("valu", "trans"): self.va[g].append(ins)
        else: self.sc[g].append(ins)
    def place(self, g, text, tag=None):
        ins = Ins(text, tag)
        while not self.fits(g, ins): g += 1
        self.put(g, ins); return g
    def place2(self, g, t1, t2):
        while self.cost(g) + 2 > 3: g += 1
        self.put(g, Ins(t1)); self.put(g, Ins(t2)); return g
    def fill(self, queue, g0=0, g1=None):
        g1 = self.n if g1 is None else g1
        g = g0; i = 0; last = -1; lastkind = None
        while i < len(queue):
            t, e, ng, tag = (list(queue[i]) + [0, False, None])[:4] if not isinstance(queue[i], str) else (queue[i], 0, False, None)
            ins = Ins(t, tag)
            g = max(g, e)
            order = {"salu": 0, "wait": 0, "ds": 1, "vmem": 1, "valu": 2, "trans": 2}
            if last >= 0 and (ng or order[ins.kind] < order[lastkind] or (lastkind == "salu" and "m0" in queue_prev and ins.kind == "vmem")): g = max(g, last + 1)
            while g < g1 and not self.fits(g, ins): g += 1
            if g >= g1: break
            self.put(g, ins); last = g; lastkind = ins.kind; queue_prev = t; i += 1
        return queue[i:]
    def emit(self):
        out = []
        for g, m in enumerate(self.m):
            out.append(m); out += self.sc[g] + self.mem[g] + self.va[g] + self.blk.get(g, [])
        return out

def spread(G, lst, g0, g1):
    nv = max(1, sum(1 for x in lst if isinstance(x, tuple)))
    k = 0; g = g0
    for x in lst:
        t, tag = x if isinstance(x, tuple) else (x, None)
        if tag:
            tgt = g0 + 1 + int((g1 - g0 - 1) * k / nv); k += 1
            g = G.place(max(g, tgt), t, tag) + 1
        else:
            g = G.place(g, t)
            if " m0," in t: g += 1
    return g

def straight(A, lst):
    prev_m0 = False
    for x in lst:
        if isinstance(x, str): t, tag = x, None
        elif len(x) == 2: t, tag = x
        else:
            t = x[0]; tag = x[3] if len(x) > 3 else None
            if len(x) > 2 and x[2]: A("s_nop 1")
        if prev_m0 and "lds" in t: A("s_nop 0")
        A(t, tag); prev_m0 = " m0," in t

def srd(A, d, lo, size, add=None):
    if add is None:
        A(f"s_mov_b32 s{d}, s{lo}\ns_and_b32 s{d+1}, s{lo+1}, 0xffff")
    else:
        A(f"s_add_u32 s{d}, s{lo}, {add}\ns_addc_u32 s{d+1}, s{lo+1}, 0\ns_and_b32 s{d+1}, s{d+1}, 0xffff")
    A(f"s_mov_b32 s{d+2}, {size}\ns_mov_b32 s{d+3}, 0x20000")

def kread(buf, kb, ks):
    d = KV + 24 * buf + 4 * ks
    return f"ds_read_b128 {vr(d)}, v{KA[ks & 1]} offset:{(ks >> 1) * 128 + kb * 6144}"
def vread(db, e, half):
    d = KV + 8 * (db % 6) + 4 * e + 2 * half
    return f"ds_read_b64_tr_b16 {vr(d,2)}, v{VA[db & 3]} offset:{(db >> 2) * 128 + e * 12288 + half * 6144}"

def qk_mfmas(cinit):
    out = []
    for kb in range(4):
        for qb in range(4):
            for n, ks in enumerate(snk(6, qb)):
                a = KV + 24 * (kb & 1) + 4 * ks
                c = (vr(NREF + 4 * qb) if kb in cinit else "0") if n == 0 else vr(S(kb, qb))
                out.append(Ins(f"{MF} {vr(S(kb,qb))}, {vr(a)}, {qfrag(qb,ks)}, {c}"))
    return out
def pv_mfmas(par, first=False):
    out = []
    for db in range(12):
        for qb in range(4):
            for n, e in enumerate(snk(2, qb)):
                a = KV + 8 * (db % 6) + 4 * e
                c = "0" if (first and n == 0) else ar(O(db, qb))
                out.append(Ins(f"{MF} {ar(O(db,qb))}, {vr(a)}, {vr(P(par,qb,e))}, {c}"))
    return out
def sm_ops(par):
    out = []
    for kb in range(4):
        for qb in range(4):
            s = S(kb, qb); p = P(par, qb, kb >> 1) + 2 * (kb & 1)
            out.append(([f"v_exp_f32 v{s+r}, v{s+r}" for r in range(4)],
                        [f"v_add_f32 v{LS[qb]}, v{LS[qb]}, v{s+r}" for r in range(4)],
                        [f"v_cvt_pk_bf16_f32 v{p+r}, v{s+2*r}, v{s+2*r+1}" for r in range(2)]))
    return out
def qk_reads(G, base, vpre=True):
    for kb in range(3):
        for ks in range(6): G.place(base + 24 * kb + 1 + 3 * ks, kread((kb + 1) & 1, kb + 1, ks))
    if vpre:
        n = 0
        for db in range(3):
            for e in range(2):
                for h in range(2):
                    G.place(base + 73 + (n * 3) // 2, vread(db, e, h)); n += 1
    for ks in (2, 4): G.put(base + ks - 1, lgw(rs(KV + 4 * ks, 8)))
    for kb in range(1, 4): G.put(base + 24 * kb - 1, lgw(rs(KV + 24 * (kb & 1), 24)))
def pv_reads(G, B, first_wait=True):
    for db in range(9):
        n = 0
        for e in range(2):
            for h in range(2):
                G.place(B + 8 * db + 2 * n, vread(db + 3, e, h)); n += 1
    for db in range(12):
        if B + 8 * db - 1 >= 0: G.put(B + 8 * db - 1, lgw(rs(KV + 8 * (db % 6), 8)))

def gen_step(par, slot, first=False, extra=()):
    G = Gaps(qk_mfmas({0, 1, 2, 3}) + pv_mfmas(par, first))
    qk_reads(G, 0)
    B = 96
    pv_reads(G, B)
    gb = B + 80
    G.put(gb, Ins("s_waitcnt vmcnt(12) lgkmcnt(0)")); G.put(gb, Ins("s_barrier"))
    for (g_, t_) in extra: G.place(g_, t_)
    for ks in range(6): G.place(gb + 1 + 2 * ks, kread(0, 0, ks))
    G.put(191, lgw(rs(KV, 8)))
    G.place(2, f"s_add_u32 s{sKo2}, s{sKo}, 3072")
    G.place(4, f"s_sub_u32 s{sVo}, s{sKo}, {STG}")
    G.place(5, f"s_sub_u32 s{sVo2}, s{sKo}, {STG - 3072}")
    dm = [(sK, sKo, 0), (sK, sKo2, 3072), (sV, sVo, VRING), (sV, sVo2, VRING + 3072)]
    g = 8
    for (srd_, so, mo) in dm:
        G.place(g, f"s_add_u32 m0, s{sWb}, {slot * STG + mo}")
        for j in range(3):
            g2 = G.place(g + 3 + 12 * j, f"buffer_load_dwordx4 v{DSR[j]}, {sr(srd_)}, s{so} offen offset:{1024*j} lds")
        g = g2 + 9
    G.place(g, f"s_add_u32 s{sKo}, s{sKo}, {STG}")
    inc = (-2 * STG if slot == 1 else STG) & 0xffffffff
    for i, r in enumerate(KA): G.place(B + 10 + 2 * i, f"v_add_u32 v{r}, {inc}, v{r}")
    for i, r in enumerate(VA): G.place(B + 82 + 2 * i, f"v_add_u32 v{r}, {inc}, v{r}")
    ops = sm_ops(par ^ 1)
    first_g, last_g = 10, 186
    pend = []
    exps = [(i, r) for i in range(16) for r in range(4)]
    ei = 0
    for g in range(192):
        if ei < 64:
            i, r = exps[ei]
            target = first_g + (last_g - first_g) * ei / 64.0
            if g >= 6 * i + 5 + 4 and g >= target and G.vcost(g) == 0 and len(G.sc[g]) <= 1:
                G.put(g, Ins(ops[i][0][r])); ei += 1
                pend.append((g + 1, ops[i][1][r]))
                if r & 1: pend.append((g + 1, ops[i][2][r >> 1]))
                continue
        while pend and pend[0][0] <= g and G.fits(g, Ins(pend[0][1])):
            G.put(g, Ins(pend.pop(0)[1]))
    assert ei == 64 and not pend, (ei, pend)
    return G


def poll(A, lab, voff, srd_, soff, cond, sleep=2, precheck=False):
    if precheck:
        cond(); A(f"s_cbranch_scc0 {lab}_ok")
    A(f"s_mov_b32 s{sE}, {SPIN}")
    A(f"{lab}:")
    A(f"buffer_load_dwordx2 {vr(T0,2)}, v{voff}, {sr(srd_)}, {soff} offen sc1")
    A("s_waitcnt vmcnt(0)")
    cond()
    A(f"s_cbranch_scc0 {lab}_ok")
    A(f"s_sleep {sleep}\ns_sub_u32 s{sE}, s{sE}, 1\ns_cmp_lg_u32 s{sE}, 0\ns_cbranch_scc1 {lab}")
    A(f"{lab}_ok:")
def cond_nonce(A, mask):
    def f():
        A(f"v_cmp_ne_u32 vcc, s{sN0}, v{T0}\nv_cmp_ne_u32 s[{sA}:{sA+1}], s{sN1}, v{T1}\ns_nop 0")
        A(f"s_or_b32 s{sA}, vcc_lo, s{sA}\ns_and_b32 s{sA}, s{sA}, {mask}\ns_cmp_lg_u32 s{sA}, 0")
    return f
assert sA % 2 == 0 and sC % 2 == 0

def gelu_ops(x, y, pk, store):
    q = []
    for r in range(4): q.append(f"v_mul_f32 v{y+r}, v{x+r}, v{x+r}")
    for r in range(4): q.append(f"v_fma_f32 v{y+r}, v{y+r}, s{sB}, v{T0}")
    for r in range(4): q.append(f"v_mul_f32 v{y+r}, v{y+r}, v{x+r}")
    for r in range(4): q.append(f"v_exp_f32 v{y+r}, v{y+r}")
    for r in range(4): q.append(f"v_fma_f32 v{y+r}, v{y+r}, s{sA}, s{sA}")
    for r in range(4): q.append(f"v_rcp_f32 v{y+r}, v{y+r}")
    for r in range(4): q.append(f"v_mul_f32 v{y+r}, v{y+r}, v{x+r}")
    for r in range(2): q.append(f"v_cvt_pk_bf16_f32 v{pk+r}, v{y+2*r}, v{y+2*r+1}")
    return [(t, 0, False, None) for t in q] + store

def gelu_pk(x, y, pk, store):
    q = []
    for k in range(2): q.append(f"v_pk_mul_f32 {vr(y+2*k,2)}, {vr(x+2*k,2)}, {vr(x+2*k,2)}")
    for k in range(2): q.append(f"v_pk_fma_f32 {vr(y+2*k,2)}, {vr(y+2*k,2)}, s[{sA}:{sA+1}], {vr(T0,2)} op_sel:[0,1,0] op_sel_hi:[1,1,0]")
    for k in range(2): q.append(f"v_pk_mul_f32 {vr(y+2*k,2)}, {vr(y+2*k,2)}, {vr(x+2*k,2)}")
    for r in range(4): q.append(f"v_exp_f32 v{y+r}, v{y+r}")
    q.append("s_nop 0")
    for k in range(2): q.append(f"v_pk_fma_f32 {vr(y+2*k,2)}, {vr(y+2*k,2)}, s[{sA}:{sA+1}], s[{sA}:{sA+1}] op_sel_hi:[1,0,0]")
    for r in range(4): q.append(f"v_rcp_f32 v{y+r}, v{y+r}")
    q.append("s_nop 0")
    for k in range(2): q.append(f"v_pk_mul_f32 {vr(y+2*k,2)}, {vr(y+2*k,2)}, {vr(x+2*k,2)}")
    for r in range(2): q.append(f"v_cvt_pk_bf16_f32 v{pk+r}, v{y+2*r}, v{y+2*r+1}")
    return [(t, 0, False, None) for t in q] + store
def pkify(q):
    out = []; i = 0
    while i < len(q):
        t = q[i][0] if isinstance(q[i], tuple) else q[i]
        n = (q[i + 1][0] if isinstance(q[i + 1], tuple) else q[i + 1]) if i + 1 < len(q) else ""
        m1 = re.match(r"v_(mul|add)_f32 v(\d+), v(\d+), v(\d+)$", t); m2 = re.match(r"v_(mul|add)_f32 v(\d+), v(\d+), v(\d+)$", n)
        if opt["pk"] and m1 and m2 and m1.group(1) == m2.group(1):
            d1, a1, b1 = map(int, m1.groups()[1:]); d2, a2, b2 = map(int, m2.groups()[1:])
            if d1 % 2 == 0 and a1 % 2 == 0 and d2 == d1 + 1 and a2 == a1 + 1:
                if b1 == b2 and b1 not in (d1, d2):
                    h = b1 & 1
                    out.append((f"v_pk_{m1.group(1)}_f32 {vr(d1,2)}, {vr(a1,2)}, {vr(b1-h,2)} op_sel:[0,{h}] op_sel_hi:[1,{h}]", 0, False, None)); i += 2; continue
                if b1 % 2 == 0 and b2 == b1 + 1:
                    out.append((f"v_pk_{m1.group(1)}_f32 {vr(d1,2)}, {vr(a1,2)}, {vr(b1,2)}", 0, False, None)); i += 2; continue
        out.append(q[i]); i += 1
    return out

def b_wdma(srd_, tag, slot_imm, second=16, step=64):
    o = [f"s_add_u32 s{sInc}, s{sM}, {slot_imm}", f"s_add_u32 s{sVo2}, s{sVo}, {second*1280}"]
    for hf, so in enumerate((sVo, sVo2)):
        o.append(f"s_add_u32 m0, s{sInc}, {5120*hf}")
        o += [(f"buffer_load_dwordx4 v{DS5[j]}, {sr(srd_)}, s{so} offen offset:{1024*j} lds", tag) for j in range(4)]
        o.append(f"s_add_u32 m0, s{sInc}, {5120*hf + 4096}")
        o.append((f"buffer_load_dwordx4 v{DS5[4]}, {sr(srd_)}, s{so} offen lds", tag))
    o.append(f"s_add_u32 s{sVo}, s{sVo}, {step*1280}" if isinstance(step, int) else f"s_mov_b32 s{sVo}, s{step[0]}")
    return o
def oload(buf, tag):
    o = [(f"buffer_load_dwordx4 {vr(OB[buf] + 4*(r*2+e))}, v{OV[r]}, {sr(sWS)}, s{sKo} offen offset:{1024*e} sc1", tag) for r in range(4) for e in range(2)]
    o.append(f"s_add_u32 s{sKo}, s{sKo}, 2048")
    return o
def hload(buf, tag):
    if buf < 2:
        return [(f"buffer_load_dwordx4 {vr(OB[buf] + 4*(r*2+e))}, v{OV[r]}, {sr(sWS)}, s{sKo} offen offset:{2048*buf + 1024*e} sc1", tag) for r in range(4) for e in range(2)]
    o = []
    for r in range(4):
        o.append(f"s_add_u32 s{sE}, s{sKo2}, s{24+r}")
        o += [(f"buffer_load_dwordx2 {vr(OB[buf] + 4*(r*2+e) + 2*h, 2)}, v{PFV}, {sr(sWS)}, s{sE} offen offset:{1024*e + 512*h} sc1", tag) for e in range(2) for h in range(2)]
    return o
def b_scalars():
    o = [f"s_lshl_b32 s{sA}, s{sSP}, 1", f"s_add_u32 s{sA}, s{sA}, s{sKH}"]
    o += [f"s_mul_i32 s{sC}, s{sNT}, 320", f"s_mul_i32 s{sB}, s{sQH}, {32*1280}", f"s_add_u32 s{sB}, s{sB}, s{sC}", f"s_mul_i32 s{sH}, s{sA}, {768*1280}", f"s_add_u32 s{sH}, s{sH}, s{sB}"]
    o += [f"s_mul_i32 s{sB}, s{sA}, {192*1280}", f"s_add_u32 s{sC}, s{sC}, s{sB}", f"s_mul_i32 s{sB}, s{sQH}, {48*1280}", f"s_add_u32 s{sVo}, s{sC}, s{sB}",
          f"s_add_u32 s{sNeg}, s{sVo}, s{sB}", f"s_add_u32 s{sNeg}, s{sNeg}, {32*1280}"]
    o += [f"s_mul_i32 s{sB}, s{sFL}, {4*240*4}", f"s_add_u32 s{sB}, s{sB}, {OH_OFF}"]
    o += [f"s_lshl_b32 s{sKo}, s{sA}, 12", f"s_add_u32 s{sKo}, s{sKo}, s{sB}", f"s_add_u32 s{sKo}, s{sKo}, {192*1024}"]
    o += [f"s_lshl_b32 s{sKo2}, s{sA}, 11", f"s_add_u32 s{sKo2}, s{sKo2}, s{sB}", f"s_add_u32 s{sKo2}, s{sKo2}, {192*1024 + 32768}"]
    o += [f"s_mul_i32 s{sF}, s{sA}, {24*1024}", f"s_add_u32 s{sF}, s{sF}, s{sB}"]
    o += [f"s_mul_i32 s{sM}, s{sW}, 10240", f"v_lshlrev_b32 v{PFV}, 3, v0"]
    for r in range(4): o += [f"s_add_u32 s{24+r}, s{sSP}, {r}", f"s_and_b32 s{24+r}, s{24+r}, 3", f"s_mul_i32 s{24+r}, s{24+r}, {240*1024}"]
    return o
def b_warm():
    o = []
    for i in range(4):
        o.append((f"buffer_load_dword v7, v{PFV}, {sr(sWO)}, s{sKo2} offen", "PF"))
        if i < 3: o.append(f"s_add_u32 s{sKo2}, s{sKo2}, 4096")
    return o
def b_addr_ops():
    q = []
    t0, t1, t2, t3 = 255, 253, 254, 255
    for j in range(5):
        q += [f"v_add_u32 v{t0}, {64*j}, v0", f"v_mul_u32_u24 v{t1}, 3277, v{t0}", f"v_lshrrev_b32 v{t1}, 16, v{t1}",
              f"v_mul_u32_u24 v{t2}, 20, v{t1}", f"v_sub_u32 v{t2}, v{t0}, v{t2}", f"v_lshrrev_b32 v{t3}, 1, v{t1}", f"v_and_b32 v{t3}, 2, v{t3}",
              f"v_xor_b32 v{t2}, v{t2}, v{t3}", f"v_mul_u32_u24 v{t3}, 80, v{t1}", f"v_add_u32 v{t3}, v{t3}, v{t2}"]
        q += [f"v_lshlrev_b32 v{DS5[j]}, 4, v{t3}"]
        if 0 < j < 4: q += [f"v_subrev_u32 v{DS5[j]}, {1024*j}, v{DS5[j]}"]
    q += [f"v_and_b32 v{FLV}, 31, v0", f"v_lshlrev_b32 v{FLV}, 3, v{FLV}"]
    p = []
    p += [f"v_lshlrev_b32 v{t0}, 4, v0"]
    for r in range(4):
        p += [f"s_add_u32 s{sF}, s{sSP}, {r}", f"s_and_b32 s{sF}, s{sF}, 3", f"s_mul_i32 s{sF}, s{sF}, {240*1024}", f"v_add_u32 v{OV[r]}, s{sF}, v{t0}"]
    p += [f"v_lshlrev_b32 v{PFV}, {6 if opt['pst'] == 64 else 7}, v0", f"v_mov_b32 v{ZV}, 0"]
    if opt["pst"] == 128: p += [f"v_min_u32 v{PFV}, {47*128}, v{PFV}"] if False else []
    return p, q

def b_ra_ops():
    t0, t1, t2 = NREF + 8, NREF + 9, NREF + 10
    lo, hi = (NREF + 11, NREF + 12), (NREF + 13, NREF + 14)
    q = [f"s_mul_i32 s{sE}, s{sKH}, 20480", f"v_lshrrev_b32 v{t0}, 2, v0", f"v_mul_u32_u24 v{t0}, 320, v{t0}", f"v_and_b32 v{t1}, 3, v0", f"v_lshl_add_u32 v{t0}, v{t1}, 3, v{t0}",
         f"v_add_u32 v{t0}, s{sE}, v{t0}", f"v_bfe_u32 v{t1}, v0, 4, 1", f"v_xor_b32 v{t2}, 1, v{t1}",
         f"v_lshl_add_u32 v{lo[0]}, v{t1}, 5, v{t0}", f"v_lshl_add_u32 v{lo[1]}, v{t2}, 5, v{t0}",
         f"v_add_u32 v{hi[0]}, 128, v{lo[1]}", f"v_add_u32 v{hi[1]}, 192, v{lo[0]}",
         f"s_cmp_eq_u32 s{sKH}, 0", f"s_cselect_b64 vcc, -1, 0", "s_nop 0"]
    for k in range(2):
        q += [f"v_cndmask_b32 v{RA[k]}, v{lo[k]}, v{hi[k]}, vcc", f"v_cndmask_b32 v{RA[2+k]}, v{hi[k]}, v{lo[k]}, vcc"]
    return q
def lred(A):
    for sw in ("v_permlane32_swap_b32", "v_permlane16_swap_b32"):
        for qb in range(4): A(f"v_mov_b32 v{NREF+qb}, v{LS[qb]}")
        for qb in range(4): A(f"{sw} v{LS[qb]}, v{NREF+qb}")
        for qb in range(4): A(f"v_add_f32 v{LS[qb]}, v{LS[qb]}, v{NREF+qb}")
NEARLY = 24
def oepi_ops():
    q = []; late = []; n = 0
    so = [sA, sB, sC, sD]
    for m in range(6):
        for qb in range(4):
            x = 144 + 8 * (n & 1); d = PK + 4 * (n % 16)
            e = 16 * m + 8 + 2 * qb + 1 + 5
            for p in range(2):
                for r in range(4): q.append((f"v_accvgpr_read_b32 v{x+4*p+r}, a{O(2*m+p,qb)+r}", e, False, None))
            for i in range(8): q.append((f"v_mul_f32 v{x+i}, v{x+i}, v{LS[qb]}", 0, False, None))
            for i in range(4): q.append((f"v_cvt_pk_bf16_f32 v{d+i}, v{x+2*i}, v{x+2*i+1}", 0, False, None))
            v, off = (T1, 1024 * m) if m < 4 else (T0, 1024 * (m - 4))
            st = f"buffer_store_dwordx4 {vr(d)}, v{v}, {sr(sWS)}, s{so[qb]} offen offset:{off} sc1"
            if n < NEARLY: q.append((st, 0, False, "OST"))
            else: late.append((st, "OST"))
            n += 1
    return q, late
def oepi_pre():
    return [f"s_mul_i32 s{sA}, s{sQB0}, {240*1024}", f"s_mul_i32 s{sB}, s{sHEAD}, {6*1024}", f"s_add_u32 s{sA}, s{sA}, s{sB}", f"s_add_u32 s{sA}, s{sA}, {OH_OFF}",
            f"s_add_u32 s{sB}, s{sA}, {240*1024}", f"s_add_u32 s{sC}, s{sA}, {480*1024}", f"s_add_u32 s{sD}, s{sA}, {720*1024}",
            f"v_lshlrev_b32 v{T1}, 4, v0", f"v_add_u32 v{T0}, 4096, v{T1}"]
def BA(nb, r): return (192 + 16 * nb if nb < 4 else 16 * (nb - 4)) + 4 * r
def bread(u, nb, e, h):
    d = WF + 8 * ((10 * u + nb) % 6) + 4 * e + 2 * h
    j = nb % 5
    return f"ds_read_b64_tr_b16 {vr(d,2)}, v{RA[2 * (nb // 5) + (j & 1)]} offset:{64*(j >> 1) + e*10240 + h*5120}"
ORDR = [(i, r) for r in (1, 2, 3, 0) for i in range(5)]
def xchg_reads(E, tr):
    for (i, r) in ORDR: E(f"ds_read_b128 {vr(tr(i, r))}, v3 offset:{1024*(4*i+r)}")
def xchg_sum(E, tr, PKS, so, emit):
    st = []; RING = 150
    for n, (i, r) in enumerate(ORDR):
        t = RING + 4 * (n & 1); x = tr(i, r)
        for k in range(4): E(f"v_accvgpr_read_b32 v{t+k}, a{BA(5+i, r)+k}")
        if n % 5 == 0 and emit: E(f"s_waitcnt lgkmcnt({15 - n})")
        for k in range(2): E(f"v_pk_add_f32 {vr(x+2*k,2)}, {vr(x+2*k,2)}, {vr(t+2*k,2)}")
        if r:
            for k in range(2): E(f"v_cvt_pk_bf16_f32 v{PKS+10*(r-1)+2*i+k}, v{x+2*k}, v{x+2*k+1}")
            if i == 4:
                p = PKS + 10 * (r - 1)
                ss = [f"buffer_store_dwordx4 {vr(p)}, v4, {sr(sWS)}, s{so[r]} offen sc1",
                      f"buffer_store_dwordx4 {vr(p+4)}, v4, {sr(sWS)}, s{so[r]} offen offset:1024 sc1",
                      f"buffer_store_dwordx2 {vr(p+8,2)}, v1, {sr(sWS)}, s{so[r]} offen sc1"]
                if emit:
                    for t_ in ss: E(t_)
                elif r <= opt["yin"]:
                    for t_ in ss: E(t_, "YST")
                else: st += [(t_, "YST") for t_ in ss]
    return st
def slot_scalars(off, so, cons):
    o = [f"s_mul_i32 s{sA}, s{sH}, {64*3072}", f"s_mul_i32 s{sE}, s{sW}, 3072", f"s_add_u32 s{sA}, s{sA}, s{sE}", f"s_add_u32 s{sA}, s{sA}, {off}",
         f"s_mul_i32 s{sE}, s{sSP}, {16*3072}", f"s_add_u32 s{cons}, s{sA}, s{sE}", f"s_mul_i32 s{sE}, s{sSP}, {4*3072}", f"s_add_u32 s{sA}, s{sA}, s{sE}"]
    for r in (1, 2, 3):
        d = so[r]
        o += [f"s_add_u32 s{d}, s{sSP}, {r}", f"s_and_b32 s{d}, s{d}, 3", f"s_mul_i32 s{d}, s{d}, {16*3072}", f"s_add_u32 s{d}, s{d}, s{sA}"]
    return o
def inbox_loads(cons, P0, tag):
    o = []
    for r in (1, 2, 3):
        p = P0 + 10 * (r - 1)
        o += [f"s_add_u32 s{sA}, s{sSP}, {r}", f"s_and_b32 s{sA}, s{sA}, 3", f"s_mul_i32 s{sA}, s{sA}, {4*3072}", f"s_add_u32 s{sA}, s{sA}, s{cons}"]
        o += [(f"buffer_load_dwordx4 {vr(p)}, v4, {sr(sWS)}, s{sA} offen sc1", tag), (f"buffer_load_dwordx4 {vr(p+4)}, v4, {sr(sWS)}, s{sA} offen offset:1024 sc1", tag),
              (f"buffer_load_dwordx2 {vr(p+8,2)}, v1, {sr(sWS)}, s{sA} offen sc1", tag)]
    return o
def merge(a, b):
    out = []; k = 0
    na = sum(1 for x in a if isinstance(x, tuple)); seen = 0
    for x in a:
        out.append(x)
        if isinstance(x, tuple):
            seen += 1
            while k < len(b) and (k + 1) * na <= seen * len(b) and " m0," not in out[-1][0]:
                out.append(b[k]); k += 1
    return out + b[k:]
def b_chunk(u, lst, wtags, otags, czero=False, after_barrier=None, first_gap=(), last_gap=(), fillq=None, nxt=True, lim=None, xw=False, af=None, puts=()):
    mf = []
    for nb in range(10):
        for r in range(4):
            for n, e in enumerate(snk(2, r)):
                acc = ar(BA(nb, r))
                mf.append(Ins(f"{MF} {acc}, {vr(WF + 8*((10*u+nb)%6) + 4*e)}, {vr(OB[u] + 4*(r*2+e))}, {'0' if czero and n == 0 else acc}"))
    G = Gaps(mf)
    for nb in range(7):
        n = 0
        for e in range(2):
            for h in range(2):
                G.place(8 * nb + 2 * n, bread(u, nb + 3, e, h)); n += 1
    for nb in range(1, 10): G.put(8 * nb - 1, lgw(rs(WF + 8 * ((10 * u + nb) % 6), 8)))
    gb = 62
    if nxt:
        G.put(gb, vmw(wtags, " lgkmcnt(0)")); G.put(gb, Ins("s_barrier"))
        inc = STB if u < 2 else -2 * STB
        for i, r in enumerate(RA): G.place((30 + 2 * i) if i < 2 else (gb - 6 + i), f"v_add_u32 v{r}, {inc & 0xffffffff}, v{r}")
        if after_barrier: G.place(gb + 1, after_barrier, "FLAG")
        n = 0
        for nb in range(3):
            for e in range(2):
                for h in range(2):
                    G.place(gb + 1 + n + n // 4, bread((u + 1) % 3, nb, e, h)); n += 1
        G.put(79, lgw(rs(WF + 8 * ((10 * ((u + 1) % 3)) % 6), 8)))
    if otags: G.put(78, vmw(otags))
    if af is not None:
        G.put(af, vmw({"OST"})); G.place(af, f"buffer_store_dwordx2 v[254:255], v{ZV}, {sr(sWS)}, s17 offen sc1", "FLAG")
    for (g_, t_, tag_) in puts: G.place(g_, t_, tag_)
    if xw:
        for n, (i, r) in enumerate(ORDR): G.place(44 + (n * 7) // 4, f"ds_write_b128 v2, {ar(BA(i, r))} offset:{1024*(4*i+r)}")
    for t in first_gap: G.put(0, Ins(t))
    g = spread(G, lst, 1 if first_gap else 0, lim or (76 if otags else 60)) if lst else 70
    assert g <= 79, g
    for t in last_gap: G.place(g, t)
    if fillq is not None:
        G.cap = opt["dense"]
        left = G.fill(fillq, 0)
        return G.emit(), left
    return G.emit()

def gen():
    global problems
    A = Asm()
    A("s_cmp_ge_u32 s2, 256\ns_cbranch_scc1 L_done")
    A("s_load_dwordx16 s[76:91], s[0:1], 0\ns_load_dwordx8 s[92:99], s[0:1], 64\ns_load_dwordx2 s[100:101], s[0:1], 96")
    pX, pK, pV, pWQ, pWO, pW1, pB1, pW2, pB2, pOUT, pDBG, pWS = 76, 78, 80, 82, 84, 88, 90, 92, 94, 96, 98, 100
    A(f"s_memrealtime s[{sN0}:{sN1}]")
    if opt["stamp"]: A(f"s_memtime s[{sInc}:{sInc+1}]")
    if opt["pf"]:
        A(f"s_getpc_b64 s[{sA}:{sA+1}]\nL_pc:\ns_bfe_u32 s{sC}, s2, 0x10003\ns_lshl_b32 s{sC}, s{sC}, 15\nv_lshlrev_b32 v98, 7, v0\nv_add_u32 v98, s{sC}, v98")
        A(f"global_load_dword v99, v98, s[{sA}:{sA+1}]")
    A("v_lshrrev_b32 v14, 6, v0\nv_and_b32 v0, 63, v0")
    A(f"v_readfirstlane_b32 s{sW}, v14")
    A(f"s_and_b32 s{sA}, s2, 7\ns_lshr_b32 s{sB}, s2, 3\ns_and_b32 s{sC}, s{sB}, 3\ns_lshl_b32 s{sA}, s{sA}, 2\ns_add_u32 s{sHEAD}, s{sA}, s{sC}")
    A(f"s_lshr_b32 s{sQT}, s{sB}, 2\ns_lshl_b32 s{sB}, s{sQT}, 4\ns_lshl_b32 s{sC}, s{sW}, 2\ns_add_u32 s{sQB0}, s{sB}, s{sC}")
    A(f"s_lshr_b32 s{sC}, s{sHEAD}, 1\ns_add_u32 s{sD}, s{sB}, s{sC}\ns_mul_i32 s{sE}, s{sD}, 20480")
    A("v_and_b32 v3, 15, v0\nv_lshrrev_b32 v4, 4, v0\nv_mul_u32_u24 v5, 1280, v3\nv_mul_u32_u24 v6, 320, v14\nv_lshlrev_b32 v7, 3, v4\nv_add3_u32 v5, v5, v6, v7")
    A("v_mov_b32 v96, 0\nv_mov_b32 v94, 0")
    A(f"s_or_b32 s{sKo}, s2, s{sW}")
    A("s_waitcnt lgkmcnt(0)")
    srd(A, sX, pX, 2621440)
    srd(A, sDBG, pDBG, 256)
    A(f"s_cmp_lg_u32 s{sKo}, 0\ns_cbranch_scc1 L_nonc")
    A(f"s_or_b32 s{sKo}, s{sN0}, 1\nv_mov_b32 v80, s{sKo}\nv_mov_b32 v81, s{sN1}")
    A(f"buffer_store_dwordx2 v[80:81], v96, {sr(sDBG)}, 0 offen sc1")
    A("L_nonc:")
    A(f"s_bitcmp1_b32 s{sHEAD}, 0\ns_cbranch_scc1 L_nox")
    for i in range(5):
        A(f"buffer_load_dwordx2 {vr(100+4*i,2)}, v5, {sr(sX)}, s{sE} offen offset:{64*i}", "LX")
        A(f"buffer_load_dwordx2 {vr(102+4*i,2)}, v5, {sr(sX)}, s{sE} offen offset:{64*i+32}", "LX")
    A("L_nox:")
    for j in range(3):
        A(f"v_add_u32 v82, {64*j}, v0\nv_mul_u32_u24 v83, 2731, v82\nv_lshrrev_b32 v83, 16, v83")
        A(f"v_mul_u32_u24 v97, 24, v83\nv_sub_u32 v82, v82, v97\nv_and_b32 v97, 6, v83\nv_xor_b32 v82, v82, v97\nv_lshlrev_b32 v82, 4, v82")
        A(f"v_mul_u32_u24 v97, 12288, v83\nv_add_u32 v97, v97, v82\nv_add_u32 v{DW[j]}, {(-1024*j) & 0xffffffff}, v97")
        A(f"v_mul_u32_u24 v97, 384, v83\nv_add_u32 v97, v97, v82\nv_add_u32 v{84+j}, {(128 - 1024*j) & 0xffffffff}, v97")
    A(f"v_lshrrev_b32 v83, 3, v0\nv_and_b32 v82, 7, v0\nv_and_b32 v97, 6, v83\nv_xor_b32 v82, v82, v97\nv_lshlrev_b32 v82, 4, v82\nv_mul_u32_u24 v97, 3072, v83\nv_add_u32 v{DW1}, v97, v82")
    A(f"s_mul_i32 s{sA}, s{sHEAD}, 384")
    A(f"s_add_u32 s{sWQ}, s{pWQ}, s{sA}\ns_addc_u32 s{sWQ+1}, s{pWQ+1}, 0\ns_and_b32 s{sWQ+1}, s{sWQ+1}, 0xffff\ns_sub_u32 s{sWQ+2}, {640*12288}, s{sA}\ns_mov_b32 s{sWQ+3}, 0x20000")
    A(f"s_mul_i32 s{sF}, s{sHEAD}, 96")
    A(f"s_add_u32 s{sW1}, s{pW1}, s{sF}\ns_addc_u32 s{sW1+1}, s{pW1+1}, 0\ns_and_b32 s{sW1+1}, s{sW1+1}, 0xffff\ns_sub_u32 s{sW1+2}, {640*3072}, s{sF}\ns_mov_b32 s{sW1+3}, 0x20000")
    A(f"s_mul_i32 s{sWb}, s{sW}, 6144")
    A(f"s_mul_i32 s{sA}, s{sW}, {16*12288}\ns_mul_i32 s{sB}, s{sW}, {16*3072}\ns_mul_i32 s{sC}, s{sQB0}, 20480\ns_lshl_b32 s{sM}, s{sW}, 11")
    XB = [SB, SB + 32, PB[0]]
    def wdma(ch):
        sl = ch % 3; o = []
        o.append(f"s_add_u32 m0, s{sWb}, {VRING + sl*STG}")
        o += [(f"buffer_load_dwordx4 v{DW[j]}, {sr(sWQ)}, s{sA} offen offset:{1024*j} lds", f"W{ch}") for j in range(3)]
        o.append(f"s_add_u32 s{sA}, s{sA}, {8*12288}")
        o.append(f"s_add_u32 m0, s{sWb}, {VRING + sl*STG + 3072}")
        o += [(f"buffer_load_dwordx4 v{DW[j]}, {sr(sWQ)}, s{sA} offen offset:{1024*j} lds", f"W{ch}") for j in range(3)]
        o.append(f"s_add_u32 s{sA}, s{sA}, {56*12288}")
        o.append(f"s_add_u32 m0, s{sM}, {W1RING + sl*8192}")
        o.append((f"buffer_load_dwordx4 v{DW1}, {sr(sW1)}, s{sB} offen lds", f"W{ch}"))
        o.append(f"s_add_u32 s{sB}, s{sB}, {8*3072 - 1024}")
        o.append((f"buffer_load_dwordx4 v{DW1}, {sr(sW1)}, s{sB} offen offset:1024 lds", f"W{ch}"))
        o.append(f"s_add_u32 s{sB}, s{sB}, {56*3072 + 1024}")
        return o
    def xload(ch):
        o = [(f"buffer_load_dwordx4 {vr(XB[ch%3] + 4*(qb*2+e))}, v{XV[qb]}, {sr(sWS)}, s{sC} offen offset:{1024*e} sc1", f"X{ch}") for qb in range(4) for e in range(2)]
        o.append(f"s_add_u32 s{sC}, s{sC}, 2048")
        return o
    def kvdma(srd_, slotbase, t, tag):
        o = []
        for hf in range(2):
            o.append(f"s_add_u32 s{sKo2}, s{sWb}, {t*STG + 3072*hf}")
            o.append(f"s_add_u32 m0, s{sWb}, {slotbase + 3072*hf}")
            o += [(f"buffer_load_dwordx4 v{DSR[j]}, {sr(srd_)}, s{sKo2} offen offset:{1024*j} lds", tag) for j in range(3)]
        return o
    straight(A, wdma(0))
    srd(A, sB1, pB1, 3072)
    for ct in range(3): A(f"buffer_load_dwordx2 {vr(88 + 2*ct, 2)}, v7, {sr(sB1)}, s{sF} offen offset:{32*ct}", "B1")
    straight(A, wdma(1))
    A(f"s_mul_i32 s{sKo}, s{sHEAD}, 786432")
    for (d, lo) in ((sK, pK), (sV, pV)):
        A(f"s_add_u32 s{d}, s{lo}, s{sKo}\ns_addc_u32 s{d+1}, s{lo+1}, 0\ns_sub_u32 s{d}, s{d}, 128\ns_subb_u32 s{d+1}, s{d+1}, 0\ns_and_b32 s{d+1}, s{d+1}, 0xffff")
        A(f"s_mov_b32 s{d+2}, {786432 + 128}\ns_mov_b32 s{d+3}, 0x20000")
    srd(A, sWS, pWS, WS_SZ)
    srd(A, sOUT, pOUT, 2621440)
    srd(A, sB2, pB2, 1280)
    srd(A, sWO, pWO, 6144 * 1280)
    srd(A, sW2, pW2, 1536 * 1280)
    if opt["stamp"]:
        A(f"s_mov_b32 s78, s{sN0}\ns_mov_b32 s79, s{sInc}"); NST[0] = 1
    A(f"s_and_b32 s{sSP}, s2, 3\ns_bfe_u32 s{sKo}, s2, 0x10002\ns_lshl_b32 s{sKo}, s{sKo}, 3\ns_bfe_u32 s{sMT}, s2, 0x30003\ns_add_u32 s{sMT}, s{sMT}, s{sKo}\ns_lshr_b32 s{sNT}, s2, 6")
    A(f"s_lshr_b32 s{sKH}, s{sW}, 1\ns_and_b32 s{sQH}, s{sW}, 1")
    A(f"s_lshl_b32 s{sVo}, s{sQT}, 7\ns_add_u32 s{sVo}, s{sVo}, {LF_OFF}")
    A(f"s_bitcmp1_b32 s{sHEAD}, 0\ns_cbranch_scc1 L_noln")
    A(f"v_lshlrev_b32 v8, 6, v3\nv_add_u32 v8, {LDS_LN}, v8\nv_lshl_add_u32 v9, v14, 2, v4\nv_lshl_add_u32 v9, v9, 2, v8")
    A("v_mul_u32_u24 v10, 5120, v14\nv_lshl_add_u32 v10, v0, 4, v10")
    A(f"s_mov_b32 s{sKo}, 0x3f803f80\ns_mov_b32 s{sKo2}, 0x3f80\ns_mov_b32 s{sSlot}, 0x3f800000")
    A("s_waitcnt vmcnt(19)")
    A(f"v_dot2_f32_bf16 v11, v100, s{sKo}, 0\nv_dot2_f32_bf16 v12, v101, s{sKo}, 0")
    for i in range(2, 20): A(f"v_dot2_f32_bf16 v{11+(i&1)}, v{100+i}, s{sKo}, v{11+(i&1)}")
    A("s_nop 2\nv_add_f32 v11, v11, v12")
    def xsum(off):
        A(f"ds_write_b32 v9, v11 offset:{off}\ns_waitcnt lgkmcnt(0)\ns_barrier")
        for i in range(4): A(f"ds_read_b128 {vr(16+4*i)}, v8 offset:{off+16*i}")
        A("s_waitcnt lgkmcnt(0)")
        for i in range(4): A(f"v_pk_add_f32 {vr(16+2*i,2)}, {vr(16+2*i,2)}, {vr(24+2*i,2)}")
        for i in range(2): A(f"v_pk_add_f32 {vr(16+2*i,2)}, {vr(16+2*i,2)}, {vr(20+2*i,2)}")
        A("v_pk_add_f32 v[16:17], v[16:17], v[18:19]\nv_add_f32 v16, v16, v17")
    xsum(0)
    A(f"v_mul_f32 v13, {fh(-1/640)}, v16")
    for i in range(20): A(f"v_dot2_f32_bf16 v{40+2*i}, v{100+i}, s{sKo2}, v13\nv_dot2_f32_bf16 v{41+2*i}, v{100+i}, s{sSlot}, v13")
    A("v_pk_mul_f32 v[36:37], v[40:41], v[40:41]\nv_pk_mul_f32 v[38:39], v[42:43], v[42:43]")
    for i in range(2, 20): A(f"v_pk_fma_f32 {vr(36+2*(i&1),2)}, {vr(40+2*i,2)}, {vr(40+2*i,2)}, {vr(36+2*(i&1),2)}")
    A("v_pk_add_f32 v[36:37], v[36:37], v[38:39]\nv_add_f32 v11, v36, v37")
    xsum(1024)
    A(f"v_mov_b32 v12, {fh(1e-5)}\nv_fmac_f32 v12, {fh(1/640)}, v16\nv_rsq_f32 v12, v12\ns_nop 0\nv_mul_f32 v12, {fh(CSC)}, v12")
    for i in range(5):
        for k in range(4): A(f"v_pk_mul_f32 {vr(40+8*i+2*k,2)}, {vr(40+8*i+2*k,2)}, v[12:13] op_sel_hi:[1,0]")
        for k in range(4): A(f"v_cvt_pk_bf16_f32 v{16+4*i+k}, v{40+8*i+2*k}, v{41+8*i+2*k}")
        if i == 4: A(f"s_add_u32 s{sE}, s{sE}, 4096")
        A(f"buffer_store_dwordx4 {vr(16+4*i)}, v10, {sr(sWS)}, s{sE} offen offset:{1024*i if i < 4 else 0} sc1")
    A(f"s_cmp_lg_u32 s{sW}, 0\ns_cbranch_scc1 L_ln2")
    A(f"buffer_load_dwordx2 v[94:95], v96, {sr(sDBG)}, 0 offen sc1")
    A("L_ln2:")
    A("s_waitcnt vmcnt(0)\ns_barrier")
    A("L_noln:")
    A(f"s_cmp_lg_u32 s{sW}, 0\ns_cbranch_scc1 L_w0a")
    A(f"v_mov_b32 v{T0}, v94\nv_mov_b32 v{T1}, v95\ns_nop 0")
    def cond_non():
        A(f"v_readfirstlane_b32 s{sN0}, v{T0}\nv_readfirstlane_b32 s{sN1}, v{T1}\ns_nop 0\ns_cmp_eq_u32 s{sN0}, 0")
    poll(A, "L_pnon", 96, sDBG, "0", cond_non, sleep=8, precheck=True)
    A(f"s_bitcmp1_b32 s{sHEAD}, 0\ns_cbranch_scc1 L_w0a")
    A(f"s_lshl_b32 s{sKo}, s{sHEAD}, 2\ns_add_u32 s{sKo}, s{sKo}, s{sVo}")
    A(f"buffer_store_dwordx2 {vr(T0,2)}, v96, {sr(sWS)}, s{sKo} offen sc1")
    A("L_w0a:")
    stamp(A, 1)
    for j in range(3): A(f"v_mov_b32 v{DSR[j]}, v{84+j}")
    for qb in range(4): A(f"v_lshlrev_b32 v17, 4, v0\nv_add_u32 v{XV[qb]}, {XS_OFF + qb*20480}, v17")
    A("v_lshrrev_b32 v16, 2, v0\nv_and_b32 v17, 6, v16\nv_and_b32 v18, 3, v0")
    A("v_lshrrev_b32 v19, 1, v18\nv_and_b32 v20, 1, v18\nv_lshlrev_b32 v20, 3, v20")
    A(f"v_mul_u32_u24 v21, 384, v16\nv_add_u32 v21, {VRING}, v21")
    for m in range(4):
        A(f"v_add_u32 v22, {2*m}, v19\nv_xor_b32 v22, v22, v17\nv_lshlrev_b32 v22, 4, v22\nv_add3_u32 v{VA[m]}, v21, v22, v20\nv_add_u32 v{VA[m]}, {STG}, v{VA[m]}")
    for e in range(2):
        A(f"v_add_u32 v22, {4*e}, v18\nv_xor_b32 v22, v22, v17\nv_lshlrev_b32 v22, 4, v22\nv_add_u32 v{WA[e]}, v21, v22\nv_add_u32 v{WA2[e]}, {2*STG}, v{WA[e]}")
    A(f"v_lshlrev_b32 v21, 7, v16\nv_add_u32 v21, {W1RING}, v21")
    for ct in range(3):
        A(f"v_add_u32 v22, {2*ct}, v19\nv_xor_b32 v22, v22, v17\nv_lshlrev_b32 v22, 4, v22\nv_add3_u32 v{W1A[ct]}, v21, v22, v20")
    A("v_and_b32 v16, 15, v0\nv_and_b32 v17, 6, v16\nv_lshrrev_b32 v18, 4, v0\nv_mul_u32_u24 v21, 384, v16")
    for e in range(2):
        A(f"v_add_u32 v22, {4*e}, v18\nv_xor_b32 v22, v22, v17\nv_lshlrev_b32 v22, 4, v22\nv_add_u32 v{KA[e]}, v21, v22")
    A(f"v_lshlrev_b32 v40, 3, v16\nv_mov_b32 v41, {LDS_FL}")
    HACC = {12: PB[1], 13: PB[1] + 16, 14: NREF}
    A("s_waitcnt vmcnt(0)")
    if opt["wqpf"]:
        sPFa = sSlot
        A(f"s_movk_i32 s{sPFa}, {12288-384}\ns_bitcmp1_b32 s{sHEAD}, 0\ns_cbranch_scc0 L_nopf")
        A(f"s_lshl_b32 s{sKo}, s{sQT}, 2\ns_add_u32 s{sKo}, s{sKo}, s{sW}\ns_lshl_b32 s{sKo}, s{sKo}, 4\ns_add_u32 s{sKo}, s{sKo}, 127")
        A(f"s_mul_i32 s{sKo2}, s{sKo}, 3072\ns_mul_i32 s{sKo}, s{sKo}, 12288")
        A(f"v_lshrrev_b32 v120, 2, v0\nv_and_b32 v121, 3, v0\nv_min_u32 v121, 2, v121\nv_lshlrev_b32 v121, 7, v121\nv_mul_u32_u24 v122, 12288, v120\nv_add3_u32 v122, v122, v121, s{sPFa}")
        A(f"v_and_b32 v121, 3, v0\nv_lshlrev_b32 v121, 6, v121\nv_min_u32 v121, 188, v121\nv_mul_u32_u24 v123, 3072, v120\nv_add_u32 v123, v123, v121\nv_add_u32 v123, {3072-96}, v123")
        A(f"buffer_load_dword v121, v122, {sr(sWQ)}, s{sKo} offen\nbuffer_load_dword v121, v122, {sr(sWQ)}, s{sKo} offen offset:384\nbuffer_load_dword v121, v123, {sr(sW1)}, s{sKo2} offen")
        A("L_nopf:")
    for ct in range(3):
        h = HACC[12 + ct]
        for r in range(2):
            A(f"v_lshlrev_b32 v{h+2*r}, 16, v{88+2*ct+r}\nv_and_b32 v{h+2*r+1}, 0xffff0000, v{88+2*ct+r}")
        for r in range(4): A(f"v_mul_f32 v{h+r}, {fh(CSC)}, v{h+r}")
        for qb in range(1, 4):
            for r in range(4): A(f"v_mov_b32 v{h+4*qb+r}, v{h+r}")
    A(f"s_cmp_lg_u32 s{sW}, 0\ns_cbranch_scc1 L_w0b")
    A(f"s_mov_b32 s{sKo}, s{sA}\ns_mov_b32 s{sKo2}, s{sB}")
    poll(A, "L_pln", 40, sWS, f"s{sVo}", cond_nonce(A, "0xffff"), sleep=2)
    A(f"s_mov_b32 s{sA}, s{sKo}\ns_mov_b32 s{sB}, s{sKo2}")
    A(f"v_mov_b32 v42, s{sN0}\nv_mov_b32 v43, s{sN1}\nds_write_b64 v41, v[42:43]\ns_waitcnt lgkmcnt(0)")
    A("L_w0b:")
    A("s_barrier")
    stamp(A, 2)
    straight(A, xload(0) + xload(1))
    A("ds_read_b64 v[42:43], v41")
    order = [list(range(15))] * 9 + [[14, 12, 13] + list(range(12))]
    def wread(ch, pos, e, h):
        ct = order[ch][pos]
        n = 15 * ch + pos; d = KV + 8 * (n % 6) + 4 * e + 2 * h; sl = ch % 3
        if ct < 12:
            ks, p = ct >> 1, ct & 1
            a, o = (WA[ks & 1], sl * STG) if sl < 2 else (WA2[ks & 1], 0)
            return f"ds_read_b64_tr_b16 {vr(d,2)}, v{a} offset:{o + (ks >> 1)*128 + 8*p + e*12288 + h*6144}"
        return f"ds_read_b64_tr_b16 {vr(d,2)}, v{W1A[ct-12]} offset:{sl*8192 + e*4096 + h*2048}"
    mf = []
    for ch in range(10):
        for pos in range(15):
            ct = order[ch][pos]; n = 15 * ch + pos
            for qb in range(4):
                for i_, e in enumerate(snk(2, qb)):
                    acc = ar(4 * (ct * 4 + qb)) if ct < 12 else vr(HACC[ct] + 4 * qb)
                    c = "0" if (ch == 0 and i_ == 0 and ct < 12) else acc
                    mf.append(Ins(f"{MF} {acc}, {vr(KV + 8*(n%6) + 4*e)}, {vr(XB[ch%3] + 4*(qb*2+e))}, {c}"))
    G = Gaps(mf)
    for pos in range(3):
        for e in range(2):
            for h in range(2): A(wread(0, pos, e, h))
    A.l.append(lgw(rs(KV, 8)))
    A(f"v_readfirstlane_b32 s{sN0}, v42\nv_readfirstlane_b32 s{sN1}, v43")
    A.l.append(vmw({"X0"}))
    stamp(A, 3); zst(A, 6, 1)
    if opt["zoom"] == 6:
        for ch in range(10):
            Z = Asm(); zst(Z, 6, 2 + ch); G.blk[120 * ch + 119] = Z.l
    late_fill = []
    for ch in range(10):
        b = 120 * ch
        for pos in range(12):
            n = 0
            for e in range(2):
                for h in range(2):
                    G.place(b + 8 * pos + (2 * n if ch < 9 else 4 * (n >> 1)), wread(ch, pos + 3, e, h)); n += 1
        gb = b + 102
        G.put(gb, vmw({f"W{ch+1}"} if ch < 9 else {"K0", "V0"}, " lgkmcnt(0)")); G.put(gb, Ins("s_barrier"))
        if ch < 9:
            n = 0
            for pos in range(3):
                for e in range(2):
                    for h in range(2):
                        G.place(gb + 1 + n + n // 4, wread(ch + 1, pos, e, h)); n += 1
            G.put(b + 118, vmw({f"X{ch+1}"}))
        else:
            for ks in range(6): G.place(gb + 1 + 2 * ks, kread(0, 0, ks))
        for pos in range(15):
            n = 15 * ch + pos
            if b + 8 * pos - 1 >= 0: G.put(b + 8 * pos - 1, lgw(rs(KV + 8 * (n % 6), 8)))
        ke = opt["kearly"]
        if ch + 2 < 10:
            lst = wdma(ch + 2) + xload(ch + 2)
            if ke == 1 and ch in (6, 7): lst += kvdma(sK, KRING + (ch - 6) * STG, ch - 6, f"K{ch-6}")
            if ke == 2 and ch in (4, 5, 6, 7): lst += kvdma(sK, KRING + ((ch - 4) >> 1) * STG, (ch - 4) >> 1, f"K{(ch-4)>>1}")[5 * (ch & 1): 5 * (ch & 1) + 5]
        elif ch == 8: lst = ([] if ke else kvdma(sK, KRING, 0, "K0")) + kvdma(sV, VRING + STG, 0, "V0")
        else: lst = ([] if ke else kvdma(sK, KRING + STG, 1, "K1")) + kvdma(sV, VRING + 2 * STG, 1, "V1")
        if ch == opt["kvw"] and ch:
            q_ = [f"s_lshr_b32 s{sE}, s{sQB0}, 2", f"s_mul_i32 s{sKo}, s{sE}, 2304", f"s_mul_i32 s{sE}, s{sE}, 1536", "v_lshlrev_b32 v60, 7, v0", "v_add_u32 v60, 128, v60",
                  f"v_min_u32 v61, {128 + 17*128}, v60", f"v_min_u32 v60, {128 + 11*128}, v60",
                  (f"buffer_load_dword v62, v61, {sr(sK)}, s{sKo} offen", 0, False, "PF"), (f"buffer_load_dword v62, v60, {sr(sV)}, s{sE} offen", b + 40, False, "PF")]
            late_fill.append((q_, b + 2))
        g = spread(G, lst, b, b + (117 if ch < 9 else 100))
        assert g <= b + 120, g
    if opt["pfm"]:
        b_ = 120 * opt["pfm"]
        G.blk[b_ + 3] = [Ins("s_getpc_b64 s[34:35]"), Ins("L_pc3:"), Ins(f"s_lshl_b32 s{sE}, s{sW}, 13"), Ins(f"s_add_u32 s{sE}, s{sE}, L_mid-L_pc3"),
                         Ins(f"s_add_u32 s34, s34, s{sE}"), Ins("s_addc_u32 s35, s35, 0")]
        late_fill.append((["v_lshlrev_b32 v63, 7, v0", ("global_load_dword v63, v63, s[34:35]", b_ + 9, False, "PF")], b_ + 5))
    for q_, g_ in late_fill: assert not G.fill(q_, g_)
    b = 1080
    spread(G, kvdma(sK, KRING + 2 * STG, 2, "K2"), b + 103, b + 119)
    k0 = -2.0 * LOG2E * math.sqrt(2.0 / math.pi) / CSC; k1 = k0 * 0.044715 / (CSC * CSC)
    HS = {14: sVo, 12: sVo2}
    pre = [f"s_mov_b32 s{sA}, {fh(CSC)}", f"s_mov_b32 s{sB}, {fh(k1)}", f"s_mul_i32 s{sC}, s{sQB0}, {240*1024}", f"s_add_u32 s{sC}, s{sC}, {OH_OFF + 192*1024}",
           f"s_lshl_b32 s{sD}, s{sHEAD}, 10", f"s_add_u32 s{sVo2}, s{sC}, s{sD}", f"s_lshl_b32 s{sD}, s{sHEAD}, 9", f"s_add_u32 s{sVo}, s{sC}, s{sD}", f"s_add_u32 s{sVo}, s{sVo}, 32768"]
    pre += [f"s_lshl_b32 s{sFL}, s{sMT}, 1", f"s_add_u32 s{sFL}, s{sFL}, s{sQH}", f"s_lshl_b32 s{sFL}, s{sFL}, 8", f"s_add_u32 s{sG}, s{sFL}, {HF_OFF}",
            f"s_lshl_b32 s{sE}, s{sSP}, 1", f"s_add_u32 s{sE}, s{sE}, s{sKH}", f"s_lshl_b32 s{sE}, s{sE}, 2", f"s_lshl_b32 s{sMSK}, 15, s{sE}",
            f"s_lshl_b32 s{sE}, s{sQB0}, 6", f"s_and_b32 s{sE}, s{sE}, 0xffffff00", f"s_lshl_b32 s{sD}, s{sHEAD}, 3", f"s_add_u32 s{sQT}, s{sE}, s{sD}"]
    g = b - 118
    for t in pre: g = G.place(g, t) + 1
    assert g < b
    G.place(b - 30, f"v_mov_b32 v{T0}, {fh(k0)}"); G.place(b - 28, f"v_lshlrev_b32 v{T1}, 3, v0"); G.place(b - 26, "v_lshlrev_b32 v10, 4, v0")
    def gelu_q(ct, tmp):
        q = []
        for qb in range(4):
            y = tmp + 8 * (qb & 1); pk = y + 4; so_ = (sE, sF)[qb & 1]
            ad = (f"s_add_u32 s{so_}, s{HS[ct]}, {qb*240*1024}", 0, False, None)
            if ct == 14:
                st = [ad, (f"buffer_store_dwordx2 {vr(pk,2)}, v{T1}, {sr(sWS)}, s{so_} offen sc1", 0, False, "H")]
                q.append(tuple(f(HACC[14] + 4 * qb, y, pk, st) for f in (gelu_ops, gelu_pk)))
            else:
                st = [ad, (f"buffer_store_dwordx4 {vr(pk)}, v10, {sr(sWS)}, s{so_} offen sc1", 0, False, "H")]
                q.append(tuple(f(HACC[12] + 4 * qb, y, pk, []) + f(HACC[13] + 4 * qb, y, pk + 2, st) for f in (gelu_ops, gelu_pk)))
        return q
    g14 = gelu_q(14, XB[1])
    def two_streams(G, tiles, g0, e0, partial=False):
        import copy
        best = None
        for nfit in range(len(tiles), -1, -1):
            G2 = copy.deepcopy(G); ok = True
            for par in range(2):
                q_ = [x for t_ in tiles[par:nfit:2] for x in t_[0]]
                if q_: q_[0] = (q_[0][0], e0, False, None)
                if G2.fill(q_, g0): ok = False
            if ok: break
        part = []
        np_ = nfit + 1 if (partial and nfit < len(tiles)) else nfit
        for par in ((nfit + 1) & 1, nfit & 1):
            q_ = [x for t_ in tiles[par:np_:2] for x in t_[0]]
            if q_: q_[0] = (q_[0][0], e0, False, None)
            part += G.fill(q_, g0)
        print("gelu tiles hidden:", nfit, "of", len(tiles), "partial left", len(part), file=sys.stderr)
        return part + [x for t_ in tiles[np_:] for x in t_[1 if opt["pk"] else 0]]
    left14 = two_streams(G, g14, b, b + 12)
    q = []
    n = 0
    for ks in range(6):
        for qb in range(4):
            f = qb * 6 + ks; x = PB[0] + 16 * (n & 1); n += 1
            e = b + 24 + 16 * ks + 8 + 2 * qb + 1 + 5
            for p in range(2):
                for r in range(4): q.append((f"v_accvgpr_read_b32 v{x+4*p+r}, a{4*((2*ks+p)*4+qb)+r}", e, False, None))
            d = (x + 8) if f < 16 else QV + 4 * (f - 16)
            for i in range(4): q.append((f"v_cvt_pk_bf16_f32 v{d+i}, v{x+2*i}, v{x+2*i+1}", 0, False, None))
            if f < 16:
                for i in range(4): q.append((f"v_accvgpr_write_b32 a{192+4*f+i}, v{d+i}", 0, False, None))
    left = left14 + G.fill(q, b)
    print("Q conversion ops exposed:", len(left) - len(left14), file=sys.stderr)
    A.ext(G.emit())
    A("L_mid:")
    stamp(A, 4); zst(A, 5, 1)
    A("s_nop 7")
    straight(A, left)
    zst(A, 5, 2)
    for i in range(4): A(f"ds_read_b64 {vr(244+2*i,2)}, v{VA[i]} offset:{6144*i}")
    A.l.append(lgw(rs(244, 8)))
    for i in range(8): A(f"v_and_b32 v{244+i}, 0x7fff7fff, v{244+i}")
    for i in range(4): A(f"v_pk_max_u16 v{244+i}, v{244+i}, v{248+i}")
    A("v_pk_max_u16 v244, v244, v245\nv_pk_max_u16 v246, v246, v247\nv_pk_max_u16 v244, v244, v246\nv_lshlrev_b32 v245, 16, v244\nv_max_u32 v244, v244, v245")
    A(f"v_cmp_le_u32 vcc, {fh(2.0**-6)}, v244\ns_mov_b32 s{sBI}, {fh(-BIAS_LO)}\ns_mov_b32 s{sLM}, {fh(2.0**(112-BIAS_LO))}\ns_cmp_lg_u64 vcc, 0")
    A(f"s_cselect_b32 s{sBI}, {fh(-BIAS)}, s{sBI}\ns_cselect_b32 s{sLM}, {fh(2.0**(112-BIAS))}, s{sLM}")
    zst(A, 5, 3)
    G = Gaps(qk_mfmas(set())); qk_reads(G, 0, vpre=False)
    gq = gelu_q(12, 240)
    for kb in range(4):
        mq = []
        for qb in range(4):
            m = NREF + 4 * qb; s_ = S(kb, qb); e = 6 * (4 * kb + qb) + 5 + 8
            if kb == 0: mq += [(f"v_max3_f32 v{m}, v{s_}, v{s_+1}, v{s_+2}", e, False, None), (f"v_max_f32 v{m}, v{m}, v{s_+3}", e, False, None)]
            else: mq += [(f"v_max3_f32 v{m}, v{m}, v{s_}, v{s_+1}", e, False, None), (f"v_max3_f32 v{m}, v{m}, v{s_+2}, v{s_+3}", e, False, None)]
        mleft = G.fill(mq, 0)
        assert kb == 3 or not mleft
    left = two_streams(G, gq, 0, 0, partial=True)
    A.ext(G.emit())
    zst(A, 5, 4)
    A.l.append(vmw({"K1"})); A("s_barrier")
    zst(A, 5, 5)
    for r in KA: A(f"v_add_u32 v{r}, {STG}, v{r}")
    A("s_nop 4")
    for ks in range(6): A(kread(0, 0, ks))
    straight(A, mleft)
    for sw in ("v_permlane32_swap_b32", "v_permlane16_swap_b32"):
        for qb in range(4): A(f"v_mov_b32 v{NREF+4*qb+1}, v{NREF+4*qb}")
        for qb in range(4): A(f"{sw} v{NREF+4*qb}, v{NREF+4*qb+1}")
        for qb in range(4): A(f"v_max_f32 v{NREF+4*qb}, v{NREF+4*qb}, v{NREF+4*qb+1}")
    for qb in range(4): A(f"v_sub_f32 v{NREF+4*qb}, s{sBI}, v{NREF+4*qb}")
    for qb in range(4):
        for r in range(1, 4): A(f"v_mov_b32 v{NREF+4*qb+r}, v{NREF+4*qb}")
    zst(A, 5, 6)
    straight(A, left)
    zst(A, 5, 7)
    sm = sm_ops(0)
    L2 = 240
    for i in range(17):
        kb, qb = (i >> 2) & 3, i & 3
        if i < 16:
            for k in range(2): A(f"v_pk_add_f32 {vr(S(kb,qb)+2*k,2)}, {vr(S(kb,qb)+2*k,2)}, {vr(NREF+4*qb,2)}")
            for t in sm[i][0]: A(t)
        else: A("s_nop 0")
        if i > 0:
            j = i - 1; s_ = S(j >> 2, j & 3); l_ = L2 + 2 * (j & 3)
            if j < 4: A(f"v_pk_add_f32 {vr(l_,2)}, {vr(s_,2)}, {vr(s_+2,2)}")
            else:
                for k in range(2): A(f"v_pk_add_f32 {vr(l_,2)}, {vr(l_,2)}, {vr(s_+2*k,2)}")
            for t in sm[j][2]: A(t)
    for qb in range(4): A(f"v_add_f32 v{LS[qb]}, v{L2+2*qb}, v{L2+2*qb+1}")
    A(f"s_add_u32 s{sKo}, s{sWb}, {3*STG}\ns_mov_b32 s{sCnt}, 5")
    A(f"s_add_u32 s{sE}, s{sQT}, {HF_OFF}")
    A(f"v_mov_b32 v{T0}, s{sN0}\nv_mov_b32 v{T1}, s{sN1}")
    bp, bq = b_addr_ops()
    for t in bp: A(t)
    stamp(A, 5); zst(A, 5, 8); zst(A, 7, 1)
    A("s_waitcnt lgkmcnt(0)")
    Gf = gen_step(0, 0, first=True)
    Gf.place(177, f"buffer_store_dwordx2 {vr(T0,2)}, v{ZV}, {sr(sWS)}, s{sE} offen sc1")
    assert not Gf.fill(bq, 0, 192)
    sf = Gf.emit()
    A(f"s_getpc_b64 s[16:17]\nL_pc2:\ns_lshr_b32 s19, s2, 3\ns_lshl_b32 s19, s19, 2\ns_add_u32 s19, s19, s{sW}\ns_lshl_b32 s18, s{sW}, 13")
    A("s_add_u32 s18, s18, L_tail-L_pc2\ns_add_u32 s16, s16, s18\ns_addc_u32 s17, s17, 0")
    A(f"s_mul_i32 s18, s19, 15360\ns_mul_i32 s24, s{sSP}, {1536*1280}\ns_add_u32 s18, s18, s24\ns_add_u32 s26, s18, 8192")
    A(f"s_mul_i32 s19, s19, 3840\ns_mul_i32 s24, s{sSP}, {384*1280}\ns_add_u32 s19, s19, s24\ns_brev_b32 s27, 1")
    ex = {1: [(179, f"buffer_load_dword v254, v{PFV}, {sr(sWO)}, s24 offen")], 2: [(179, f"buffer_load_dword v254, v{PFV}, {sr(sWO)}, s24 offen")],
          3: [(179, f"buffer_load_dword v254, v{PFV}, {sr(sW2)}, s24 offen")], 4: [(179, f"global_load_dword v254, v{PFV}, s[16:17]")],
          5: [(177, f"buffer_load_dwordx2 {vr(T0,2)}, v{FLV}, {sr(sWS)}, s{sG} offen sc1")]}
    st = []
    for k in range(6):
        Gk = gen_step((k + 1) & 1, (k + 1) % 3, extra=ex.get(k, []))
        if k in (1, 2, 3): Gk.place2(150, f"s_cmp_eq_u32 s{sCnt}, 0", f"s_cselect_b32 s24, s{(0, 18, 26, 19)[k]}, s27")
        if k == 0: Gk.place(186, f"s_sub_u32 s{sCnt}, s{sCnt}, 1")
        if k == 5: Gk.place(186, f"s_cmp_lg_u32 s{sCnt}, 0")
        st.append(Gk.emit())
    pro = list(A.l)
    auto_vm(pro); auto_lgkm(pro)
    auto_lgkm(sf)
    for k in range(6): auto_lgkm(st[k], pre=st[k - 1])
    s0 = st[5]; s1 = [x for k in range(5) for x in st[k]]
    A.ext(sf)
    zst(A, 7, 2)
    A(".p2align 6\nL_loop:")
    A.ext(s1); A.ext(s0)
    if opt["zoom"] == 7: A(f"s_mov_b32 m0, s{sCnt}\ns_memrealtime vcc\ns_waitcnt lgkmcnt(0)\nv_writelane_b32 v245, vcc_lo, m0\ns_memtime vcc\ns_waitcnt lgkmcnt(0)\nv_writelane_b32 v246, vcc_lo, m0")
    A("s_cbranch_scc1 L_loop")
    if opt["zoom"] == 7:
        for i in range(5): A(f"v_readlane_b32 s{78+2*(3+i)}, v245, {4-i}\nv_readlane_b32 s{79+2*(3+i)}, v246, {4-i}")
        NST[0] = 8
    T = Asm()
    T("L_tail:")
    zst(T, 1, 1)
    stamp(T, 6)
    for db in range(3):
        for e in range(2):
            for h in range(2): T(vread(db, e, h))
    lred(T)
    T(f"v_cmp_nge_f32 vcc, s{sLM}, v{LS[0]}")
    for qb in range(1, 4): T(f"v_cmp_nge_f32 s[{sC}:{sC+1}], s{sLM}, v{LS[qb]}\ns_nop 0\ns_or_b64 vcc, vcc, s[{sC}:{sC+1}]")
    T(f"s_cmp_lg_u64 vcc, 0\ns_cselect_b32 s{sA}, 1, {opt['forcesafe']}\ns_lshl_b32 s{sB}, s{sW}, 2\ns_add_u32 s{sB}, s{sB}, {LDS_FL}")
    T(f"v_mov_b32 v{NREF}, s{sA}\nv_mov_b32 v{NREF+1}, s{sB}\nv_mov_b32 v{NREF+2}, {LDS_FL}")
    T(f"ds_write_b32 v{NREF+1}, v{NREF}")
    for qb in range(4): T(f"v_rcp_f32 v{LS[qb]}, v{LS[qb]}")
    for t in b_scalars(): T(t)
    ra = [t.replace(f"v_cndmask_b32 v{RA[2]},", "v_cndmask_b32 v254,").replace(f"v_cndmask_b32 v{RA[3]},", "v_cndmask_b32 v255,") for t in b_ra_ops()]
    b_ra_fin = [f"v_mov_b32 v{RA[2]}, v254", f"v_mov_b32 v{RA[3]}, v255", f"v_mov_b32 v254, s{sN0}", f"v_mov_b32 v255, s{sN1}"]
    T("s_waitcnt vmcnt(0) lgkmcnt(0)\ns_barrier")
    for t in ra: T(t)
    T(f"ds_read_b128 {vr(NREF+4)}, v{NREF+2}")
    poll(T, "L_ph", FLV, sWS, f"s{sG}", cond_nonce(T, f"s{sMSK}"), sleep=8, precheck=True)
    for t in oepi_pre(): T(t)
    if opt["tst"] == 1: stamp(T, 7)
    G = Gaps(pv_mfmas(1)); pv_reads(G, 0)
    G.put(3, lgw(rs(NREF + 4, 4)))
    G.place(4, f"v_or3_b32 v{NREF}, v{NREF+4}, v{NREF+5}, v{NREF+6}"); G.place(5, f"v_or_b32 v{NREF}, v{NREF}, v{NREF+7}")
    G.place(7, f"v_readfirstlane_b32 s{sE}, v{NREF}")
    gck = G.place2(9, f"s_cmp_lg_u32 s{sE}, 0", "s_cbranch_scc1 L_safe")
    y1l = b_wdma(sW2, "W1", STB, step=(sNeg,)) + hload(1, "O1"); y2l = b_wdma(sW2, "W2", 2 * STB, second=48) + hload(2, "O2")
    if opt["jit"] == 0: ylo, l0_, l1_ = y1l, y2l, []
    elif opt["jit"] == 1: ylo, l0_, l1_ = [], y1l, y2l
    else: ylo, l0_, l1_ = y1l[:17], y1l[17:] + y2l[:17], y2l[17:]
    ylo = b_wdma(sW2, "W0", 0, step=96) + hload(0, "O0") + ylo
    g = spread(G, ylo, gck + 1, 94)
    oq, _ = oepi_ops()
    items = []; cur = []
    for x in oq:
        if x[3] == "OST": items.append((cur, x)); cur = []
        else: cur.append(x)
    pc = [int(x) for x in opt["pace"].split(",")]; assert sum(pc) == 24
    first = []
    for n in range(12):
        first += items[n][0]
        if n < pc[0]: first.append(items[n][1])
    left = G.fill(first, 12)
    T.ext(G.emit())
    if opt["tst"] == 2: stamp(T, 7)
    zst(T, 1, 2)
    T("s_nop 7")
    straight(T, pkify(left))
    T("L_join:")
    zst(T, 1, 3)
    if opt["tst"] == 0: stamp(T, 7)
    for t in b_ra_fin: T(t)
    T.l.append(vmw({"W0", "O0"})); T("s_barrier")
    for nb in range(3):
        for e in range(2):
            for h in range(2): T(bread(0, nb, e, h))
    T(f"s_add_u32 s17, s{sQT}, {AF_OFF}")
    T("s_waitcnt lgkmcnt(0)")
    zst(T, 1, 4)
    def paced(k, lim=78):
        n0 = sum(pc[:k + 1]); q = []
        for j in range(pc[k + 1]):
            n = n0 + j; g = 2 + (lim - 2) * j // pc[k + 1]
            if n >= 12: q += [(t, max(0, g - 7), ng, tag) for (t, e, ng, tag) in items[n][0]]
            q.append((items[n][1][0], g, False, "OST"))
        return q
    c0, late = b_chunk(0, l0_, {"W1"}, {"O1"}, czero=True, fillq=paced(0), lim=opt["jl"] if opt["jit"] else None)
    T.ext(c0); straight(T, late); print("y0 leftover", len(late), file=sys.stderr)
    zst(T, 1, 5)
    so = {1: 18, 2: 19, 3: 16}; sYC, sXC, sYF, sXF = 26, 27, 24, 25
    a1 = [f"v_lshlrev_b32 v4, 4, v0", f"s_mul_i32 s{sE}, s{sW}, 20480", f"v_add_u32 v2, s{sE}, v4", f"s_xor_b32 s{sE}, s{sW}, 2", f"s_mul_i32 s{sE}, s{sE}, 20480", f"v_add_u32 v3, s{sE}, v4",
          "v_lshlrev_b32 v1, 3, v0", "v_add_u32 v1, 2048, v1"]
    c1, left = b_chunk(1, l1_, {"W2"}, {"O2"}, lim=opt["jl"], fillq=a1 + paced(1, opt["lim1"]), af=opt["afg"] if opt["afc"] == 1 else None)
    T.ext(c1); straight(T, left); print("y1 leftover", len(left), file=sys.stderr)
    zst(T, 1, 6)
    a2 = [f"s_mov_b32 s{sVo}, s{sH}", f"s_lshl_b32 s{sH}, s{sMT}, 2", f"s_add_u32 s{sH}, s{sH}, s{sNT}"] + [t.replace(f"s{sA}", f"s{sInc}") for t in slot_scalars(YC_OFF, so, sYC)]
    a2 += [f"s_lshl_b32 s{sE}, s{sH}, 2", f"s_add_u32 s{sE}, s{sE}, s{sW}", f"s_lshl_b32 s{sE}, s{sE}, 6", f"s_add_u32 s{sYF}, s{sE}, {YF_OFF}", f"s_add_u32 s{sXF}, s{sE}, {XF_OFF}",
           f"s_add_u32 s{sG}, s{sFL}, {AF_OFF}", f"s_mov_b32 s{sKo}, s{sF}"]
    c2, left = b_chunk(2, a2, None, None, nxt=False, xw=True, fillq=paced(2, 60), af=opt["afg"] if opt["afc"] == 2 else None,
                       puts=[(opt["aflg"], f"buffer_load_dwordx2 {vr(T0,2)}, v{FLV}, {sr(sWS)}, s{sG} offen sc1", "AFL")])
    assert pc[3] == 0
    T.ext(c2); straight(T, left); print("y2 leftover", len(left), file=sys.stderr)
    zst(T, 1, 7); stamp(T, 8)
    YO = 80; YP = 100
    try_ = lambda i, r: (YO + 4 * i, 48 + 4 * i, 130 + 4 * i, 192 + 4 * i if i < 4 else 232)[r]
    T.l.append(vmw({"AFL"}))
    poll(T, "L_pat", FLV, sWS, f"s{sG}", cond_nonce(T, f"s{sMSK}"), sleep=4, precheck=True)
    stamp(T, 9); zst(T, 1, 8); zst(T, 2, 1)
    straight(T, oload(2, "O2"))
    T("s_waitcnt lgkmcnt(0)\ns_barrier")
    straight(T, b_wdma(sWO, "W2", 2 * STB))
    xchg_reads(T, try_)
    straight(T, oload(0, "O0"))
    T("s_waitcnt lgkmcnt(0)")
    yst = xchg_sum(T, try_, YP, so, False)
    T.l.append(vmw({"W2"})); T("s_barrier")
    for nb in range(3):
        for e in range(2):
            for h in range(2): T(bread(2, nb, e, h))
    straight(T, b_wdma(sWO, "W0", 0))
    T(f"s_mov_b32 s{sCnt}, 2\ns_lshl_b32 s{sE}, s{sSP}, 3\ns_add_u32 s{sG}, s{sYF}, s{sE}")
    zst(T, 1, 9)
    T.l.append(vmw({"O2"}, " lgkmcnt(0)"))
    zst(T, 1, 10); zst(T, 2, 2)
    def sl(u): return b_wdma(sWO, f"W{(u+2)%3}", ((u + 2) % 3) * STB) + oload((u + 2) % 3, f"O{(u+2)%3}")
    def nx(k, u): return {f"{k}{(u+1)%3}"}
    for n, u in enumerate((2, 0, 1)):
        T.ext(b_chunk(u, merge(sl(u), yst[5 * n: 5 * n + 5]), nx("W", u), nx("O", u), czero=(n == 0)))
        zst(T, 2, 3 + n)
    zst(T, 1, 11)
    tail = list(T.l)
    auto_lgkm(tail, pre=s0); auto_vm(tail)
    A.ext(tail)
    steps = [b_chunk(2, sl(2), nx("W", 2), nx("O", 2), first_gap=[f"s_sub_u32 s{sCnt}, s{sCnt}, 1"]),
             b_chunk(0, sl(0), nx("W", 0), nx("O", 0), after_barrier=f"buffer_store_dwordx2 v[254:255], v{ZV}, {sr(sWS)}, s{sG} offen sc1"),
             b_chunk(1, sl(1), nx("W", 1), nx("O", 1), last_gap=[f"s_cmp_lg_u32 s{sCnt}, 0"])]
    for u in range(3):
        auto_lgkm(steps[u], pre=steps[(u + 2) % 3]); auto_vm(steps[u], pre=steps[(u + 1) % 3] + steps[(u + 2) % 3])
    A(".p2align 6\nL_bloop:")
    for u in range(3): A.ext(steps[u])
    A("s_cbranch_scc1 L_bloop")
    PKS = 48; XL = 16; B2L = 26
    E = Asm()
    zst(E, 2, 6)
    E(f"v_and_b32 v6, 3, v0\nv_lshlrev_b32 v6, 3, v6\ns_lshl_b32 s{sMSK}, 1, s{sSP}\ns_xor_b32 s{sMSK}, s{sMSK}, 15")
    a3 = [f"s_mul_i32 s{sE}, s{sKH}, 40960", f"v_add_u32 v2, s{sE}, v2", f"s_sub_u32 s{sE}, 40960, s{sE}", f"v_add_u32 v3, s{sE}, v3",
          "v_lshrrev_b32 v7, 4, v0", "v_lshlrev_b32 v7, 3, v7", "v_and_b32 v5, 15, v0", "v_mul_u32_u24 v5, 1280, v5", "v_add_u32 v5, v5, v7"]
    c, left = b_chunk(2, [(f"buffer_load_dwordx2 {vr(T0,2)}, v6, {sr(sWS)}, s{sYF} offen sc1", "YF")] + sl(2), nx("W", 2), nx("O", 2), fillq=a3); assert not left
    E.ext(c)
    E.l.append(vmw({"YF"}))
    poll(E, "L_py", 6, sWS, f"s{sYF}", cond_nonce(E, f"s{sMSK}"), sleep=4, precheck=True)
    zst(E, 2, 7)
    a4 = [f"s_lshr_b32 s{sC}, s{sFL}, 6", f"s_add_u32 s{sC}, s{sC}, s{sSP}", f"s_mul_i32 s{sKo}, s{sC}, 20480",
          f"s_mul_i32 s{sC}, s{sNT}, 320", f"s_mul_i32 s{sB}, s{sKH}, 160", f"s_add_u32 s{sC}, s{sC}, s{sB}", f"s_add_u32 s{sKo}, s{sKo}, s{sC}"]
    E.ext(b_chunk(0, inbox_loads(sYC, YP, "YL") + a4, nx("W", 0), nx("O", 0), lim=50))
    zst(E, 2, 8)
    l2 = [(f"buffer_load_dwordx2 {vr(B2L+2*i,2)}, v7, {sr(sB2)}, s{sC} offen offset:{32*i}", "YL") for i in range(5)]
    l2 += [(f"buffer_load_dwordx2 {vr(XL+2*i,2)}, v5, {sr(sX)}, s{sKo} offen offset:{32*i}", "YL") for i in range(5)]
    a5 = slot_scalars(XC_OFF, so, sXC) + [f"s_lshl_b32 s{sE}, s{sSP}, 3", f"s_add_u32 s{sG}, s{sXF}, s{sE}"]
    c, left = b_chunk(1, l2, None, None, nxt=False, xw=True, lim=36, fillq=a5); assert not left
    E.ext(c)
    stamp(E, 10); zst(E, 2, 9); zst(E, 3, 1)
    auto_lgkm(E.l, pre=steps[2]); auto_vm(E.l, pre=steps[1] + steps[2])
    trs = lambda i, r: 160 + 20 * r + 4 * i
    E("s_waitcnt lgkmcnt(0)\ns_barrier")
    xchg_reads(E, trs)
    xchg_sum(E, trs, PKS, so, True)
    zst(E, 2, 10); zst(E, 3, 2)
    E("s_waitcnt vmcnt(9)")
    E(f"s_mov_b32 s{sC}, 0x3f80\ns_mov_b32 s{sD}, 0x3f800000")
    def dacc(x, src):
        for k in range(2): E(f"v_dot2_f32_bf16 v{x+2*k}, v{src+k}, s{sC}, v{x+2*k}\nv_dot2_f32_bf16 v{x+2*k+1}, v{src+k}, s{sD}, v{x+2*k+1}")
    for p in range(4):
        for i in range(5): dacc(YO + 4 * i, (B2L + 2 * i) if p == 3 else (YP + 10 * p + 2 * i))
    zst(E, 3, 3)
    E("s_waitcnt vmcnt(0)")
    zst(E, 3, 4)
    E(f"buffer_store_dwordx2 v[254:255], v{ZV}, {sr(sWS)}, s{sG} offen sc1")
    for i in range(5):
        g_ = YO + 4 * i; t = 130 + 4 * i
        for k in range(4): E(f"v_mul_f32 v{t+k}, {fh(-LOG2E)}, v{g_+k}")
        for k in range(4): E(f"v_exp_f32 v{t+k}, v{t+k}")
        for k in range(4): E(f"v_add_f32 v{t+k}, 1.0, v{t+k}")
        for k in range(4): E(f"v_rcp_f32 v{t+k}, v{t+k}")
        for k in range(4): E(f"v_mul_f32 v{g_+k}, v{g_+k}, v{t+k}")
        for k in range(2): E(f"v_lshlrev_b32 v{t+2*k}, 16, v{XL+2*i+k}\nv_and_b32 v{t+2*k+1}, 0xffff0000, v{XL+2*i+k}")
    zst(E, 3, 5)
    poll(E, "L_pxc", 6, sWS, f"s{sXF}", cond_nonce(E, f"s{sMSK}"), sleep=1)
    stamp(E, 11); zst(E, 2, 11); zst(E, 3, 6)
    straight(E, inbox_loads(sXC, PKS, "XL"))
    for r in (1, 2, 3):
        E(f"s_waitcnt vmcnt({9-3*r})")
        for i in range(5): dacc(trs(i, 0), PKS + 10 * (r - 1) + 2 * i)
    for i in range(5):
        x = trs(i, 0)
        for k in range(2): E(f"v_pk_fma_f32 {vr(x+2*k,2)}, {vr(x+2*k,2)}, {vr(YO+4*i+2*k,2)}, {vr(130+4*i+2*k,2)}")
        for k in range(2): E(f"v_cvt_pk_bf16_f32 v{trs(i,2)+k}, v{x+2*k}, v{x+2*k+1}")
        E(f"buffer_store_dwordx2 {vr(trs(i,2),2)}, v5, {sr(sOUT)}, s{sKo} offen offset:{32*i}")
    if opt["stamp"]:
        E("s_waitcnt vmcnt(0)")
        E("s_memrealtime s[4:5]\ns_memtime s[6:7]\ns_load_dwordx2 s[8:9], s[0:1], 96\ns_waitcnt lgkmcnt(0)")
        E(f"s_add_u32 s8, s8, {ST_OFF}\ns_addc_u32 s9, s9, 0\ns_and_b32 s9, s9, 0xffff\ns_mov_b32 s10, 0x40000\ns_mov_b32 s11, 0x20000")
        E(f"s_lshl_b32 s12, s2, 2\ns_add_u32 s12, s12, s{sW}\ns_lshl_b32 s12, s12, 7\nv_mov_b32 v2, 0\ns_mov_b64 exec, 1")
        for i in range(NST[0] + 1):
            a, b_ = (78 + 2 * i, 79 + 2 * i) if i < NST[0] else (4, 6)
            E(f"v_mov_b32 v{16+2*i}, s{a}\nv_mov_b32 v{17+2*i}, s{b_}\nbuffer_store_dwordx2 v[{16+2*i}:{17+2*i}], v2, s[8:11], s12 offen offset:{8*i}")
    if opt["stamp"] and opt["dbgst"]:
        E("s_load_dwordx2 s[8:9], s[0:1], 88\ns_waitcnt lgkmcnt(0)\ns_and_b32 s9, s9, 0xffff\ns_mov_b32 s10, 256\ns_mov_b32 s11, 0x20000")
        E("s_not_b32 s78, s78")
        for i in range(NST[0] + 1):
            a_ = 78 + 2 * i if i < NST[0] else 4
            E(f"v_mov_b32 v{16+i}, s{a_}\nbuffer_atomic_umax v{16+i}, v2, s[8:11], 0 offen offset:{8+4*i} sc1")
    ec = list(E.l)
    A.ext(ec)
    A("L_done:\ns_endpgm")
    F = Asm()
    F("L_safe:")
    F("s_waitcnt vmcnt(0) lgkmcnt(0)\ns_nop 7")
    for r in KA: F(f"v_subrev_u32 v{r}, {2*STG}, v{r}")
    for r in VA: F(f"v_subrev_u32 v{r}, {2*STG}, v{r}")
    for i in range(192): F(f"v_accvgpr_write_b32 a{i}, 0")
    MX = PB[1]
    for qb in range(4): F(f"v_mov_b32 v{LS[qb]}, 0\nv_mov_b32 v{MX+qb}, 0xff7fffff")
    F(f"s_mov_b32 s{sSlot}, s{sWb}\ns_mov_b32 s{sCnt}, 32")
    Fp = list(F.l)
    L = Asm()
    L("L_sloop:")
    L("s_barrier")
    for srd_, base in ((sK, KRING), (sV, VRING)):
        for hf in range(2):
            L(f"s_add_u32 s{sInc}, s{sSlot}, {3072*hf}\ns_add_u32 m0, s{sWb}, {base + 3072*hf}\ns_nop 0")
            for j in range(3): L(f"buffer_load_dwordx4 v{DSR[j]}, {sr(srd_)}, s{sInc} offen offset:{1024*j} lds")
    L(f"s_add_u32 s{sSlot}, s{sSlot}, {STG}")
    L("s_waitcnt vmcnt(0)\ns_barrier")
    for ks in range(6): L(kread(0, 0, ks))
    L("s_waitcnt lgkmcnt(0)")
    G = Gaps(qk_mfmas(set())); qk_reads(G, 0, vpre=True)
    L.ext(G.emit())
    L("s_nop 7")
    for qb in range(4):
        m = NREF + 4 * qb
        v = [S(kb, qb) + r for kb in range(4) for r in range(4)]
        L(f"v_max3_f32 v{m}, v{v[0]}, v{v[1]}, v{MX+qb}")
        for i in range(2, 16, 2): L(f"v_max3_f32 v{m}, v{m}, v{v[i]}, v{v[i+1]}")
    for sw in ("v_permlane32_swap_b32", "v_permlane16_swap_b32"):
        for qb in range(4): L(f"v_mov_b32 v{NREF+4*qb+1}, v{NREF+4*qb}")
        for qb in range(4): L(f"{sw} v{NREF+4*qb}, v{NREF+4*qb+1}")
        for qb in range(4): L(f"v_max_f32 v{NREF+4*qb}, v{NREF+4*qb}, v{NREF+4*qb+1}")
    for qb in range(4): L(f"v_sub_f32 v{NREF+4*qb+1}, v{MX+qb}, v{NREF+4*qb}")
    for qb in range(4): L(f"v_exp_f32 v{NREF+4*qb+1}, v{NREF+4*qb+1}")
    for qb in range(4): L(f"v_mov_b32 v{MX+qb}, v{NREF+4*qb}")
    for qb in range(4): L(f"v_mul_f32 v{LS[qb]}, v{LS[qb]}, v{NREF+4*qb+1}")
    for db in range(12):
        for qb in range(4):
            t = PB[1] + 8 + 4 * ((db * 4 + qb) % 4)
            for r in range(4): L(f"v_accvgpr_read_b32 v{t+r}, a{O(db,qb)+r}")
            for r in range(4): L(f"v_mul_f32 v{t+r}, v{t+r}, v{NREF+4*qb+1}")
            for r in range(4): L(f"v_accvgpr_write_b32 a{O(db,qb)+r}, v{t+r}")
    for kb in range(4):
        for qb in range(4):
            for r in range(4): L(f"v_sub_f32 v{S(kb,qb)+r}, v{S(kb,qb)+r}, v{MX+qb}")
    for (ex, ad, cv) in sm_ops(0):
        for t in ex: L(t)
        L("s_nop 0")
        for t in ad + cv: L(t)
    L("s_waitcnt lgkmcnt(0)\ns_nop 1")
    G = Gaps(pv_mfmas(0)); pv_reads(G, 0)
    L.ext(G.emit())
    L(f"s_sub_u32 s{sCnt}, s{sCnt}, 1\ns_cmp_lg_u32 s{sCnt}, 0\ns_cbranch_scc1 L_sloop")
    auto_lgkm(L.l)
    X = Asm()
    X("s_waitcnt lgkmcnt(0)\ns_barrier")
    lred(X)
    for qb in range(4): X(f"v_rcp_f32 v{LS[qb]}, v{LS[qb]}")
    straight(X, ylo)
    straight(X, first)
    X("s_waitcnt vmcnt(0)\ns_branch L_join")
    A.ext(Fp); A.ext(L.l); A.ext(X.l)
    j = [i for i, x in enumerate(tail) if x.text == "L_join:"][0]
    ck = [i for i, x in enumerate(tail) if "L_safe" in x.text][0]
    bl = steps[0] + steps[1] + steps[2]
    main = pro + sf + s1 + s0 + s1 + s0 + tail + bl + bl + ec
    problems += check_hazards(main, "main"); problems += check_waits(main, "main")[0]
    safe = s0 + tail[:ck + 1] + Fp + L.l + L.l + X.l + tail[j:]
    problems += check_hazards(safe, "safe"); problems += check_waits(safe, "safe")[0]
    return A.text()

body = gen()
kn = NAME + "_kernel"
out = f"""; generated by gen/gen14.py (own generator): one persistent launch, 1 workgroup per CU
; @launch grid=(256,1,1) block=(256,1,1) lds={LDS_SZ}
.amdgcn_target "amdgcn-amd-amdhsa--gfx950"
.text
.globl {kn}
.p2align 8
.type {kn},@function
{kn}:
{body}
.section .rodata,"a"
.p2align 6
.amdhsa_kernel {kn}
  .amdhsa_next_free_vgpr 512
  .amdhsa_next_free_sgpr 102
  .amdhsa_accum_offset 256
  .amdhsa_group_segment_fixed_size 0
  .amdhsa_kernarg_size 104
  .amdhsa_user_sgpr_count 2
  .amdhsa_user_sgpr_kernarg_segment_ptr 1
  .amdhsa_system_sgpr_workgroup_id_x 1
.end_amdhsa_kernel
"""
if problems:
    for p in sorted(set(problems)): print(p, file=sys.stderr)
    print(f"{len(set(problems))} problems", file=sys.stderr)
sys.stdout.write(out)
```

```python
import sys, math, struct, re
from asmlib import *

NAME = "recurrent_scan__gqa_block_cached__dense_activation_gelu__prompt"
def f2u(x): return struct.unpack("<I", struct.pack("<f", x))[0]
def fh(x): return f"0x{f2u(x):08x}"
LOG2E = math.log2(math.e)
CSC = LOG2E / math.sqrt(192.0)
XS_OFF = 0
OH_OFF = 0x400000
YC_OFF = 0x2400000
XC_OFF = 0x3c00000
FL_OFF = 0x4800000
AF_OFF = FL_OFF; HF_OFF = FL_OFF + 0x4000; XF_OFF = FL_OFF + 0x8000; YF_OFF = FL_OFF + 0xc000; LF_OFF = FL_OFF + 0x10000
WS_SZ = 0x5000000
ST_OFF = 0x8000000
LDS_LN = 147456; LDS_FL = LDS_LN + 2048; LDS_SZ = 163840
SPIN = 1 << 18

opt = dict(stamp=0, forcesafe=0, pf=1, warm=0, pst=128, snake=1, bias=102, opf=0, dense=4, zoom=0, pace="10,14,0,0", afc=1, afg=40, lim1=64, wqpf=1, aflg=56, xws=33, ost="", opre=0, xw0=11, pk=1, dbgst=0, warmh=0, jit=0, yin=0, kvw=0, pfm=6, hl=92, w2t=1, kearly=1, noh=0, jl=60, nearly=8, tst=0)
for a in sys.argv[1:]:
    k, v = a.split("="); opt[k] = type(opt.get(k, ""))(v)
problems = []
BIAS = opt["bias"]; BIAS_LO = 48
def snk(n, i): return list(range(n))[::-1] if (opt["snake"] and i & 1) else list(range(n))

def vr(b, n=4): return f"v[{b}:{b+n-1}]"
def ar(b, n=4): return f"a[{b}:{b+n-1}]"
def sr(b, n=4): return f"s[{b}:{b+n-1}]"
def rs(b, n): return {f"v{i}" for i in range(b, b + n)}
def lgw(regs): return Ins("s_waitcnt lgkmcnt(?)", ("lg", regs))
def vmw(tags, extra=""): return Ins("s_waitcnt vmcnt(?)" + extra, ("vm", set(tags)))
MF = "v_mfma_f32_16x16x32_bf16"

sK, sV, sWQ, sW1, sWS, sB1, sX, sDBG, sOUT, sWO, sB2, sW2 = 4, 8, 12, 16, 20, 24, 28, 32, 36, 40, 44, 48
sSP = 3
(sW, sHEAD, sQT, sQB0, sKo, sKo2, sVo, sVo2, sSlot, sM, sInc, sCnt, sA, sB, sC, sD, sWb, sNeg, sN0, sN1,
 sMT, sNT, sE, sF, sKH, sQH) = range(52, 78)
sMSK, sFL, sG, sH = 12, 13, 14, 15
sBI, sLM = 32, 33
KT = 76
NST = [0]
def zst(A, z, i):
    if opt["zoom"] == z: stamp(A, i, True)
def stamp(A, i, force=False):
    if opt["zoom"] and not force: return
    if opt["stamp"]:
        A(f"s_memrealtime vcc\ns_waitcnt lgkmcnt(0)\ns_mov_b32 s{78+2*i}, vcc_lo\ns_memtime vcc\ns_waitcnt lgkmcnt(0)\ns_mov_b32 s{79+2*i}, vcc_lo")
        NST[0] = max(NST[0], i + 1)

KA = [1, 2]; VA = [3, 4, 5, 6]; DSR = [7, 8, 9]; LS = [10, 11, 12, 13]; T0, T1 = 14, 15
NREF = 16; QV = 32; SB = 64; PB = [128, 160]; KV = 192
WA = [240, 241]; WA2 = [242, 243]; W1A = [244, 245, 246]; DW = [247, 248, 249]; DW1 = 250; XV = [251, 252, 253, 254]
KRING = 0; VRING = 73728; STG = 24576; W1RING = 49152
DS5 = [240, 241, 242, 243, 244]; RA = [245, 246, 8, 9]; RAT = [245, 246, 254, 255]; OV = [247, 248, 249, 250]; PFV = 251; ZV = 252; FLV = 253
OB = [16, 48, 160]; WF = 192; STB = 40960; PK = 80

def qfrag(qb, ks):
    f = qb * 6 + ks
    return ar(192 + 4 * f) if f < 16 else vr(QV + 4 * (f - 16))
def S(kb, qb): return SB + 4 * (kb * 4 + qb)
def P(par, qb, e): return PB[par] + 4 * (qb * 2 + e)
def O(db, qb): return 4 * (db * 4 + qb)

class Gaps:
    def __init__(self, mfmas):
        self.m = mfmas; n = len(mfmas); self.n = n; self.cap = 2; self.blk = {}
        self.sc = [[] for _ in range(n)]; self.mem = [[] for _ in range(n)]; self.va = [[] for _ in range(n)]
    def vcost(self, g): return len(self.mem[g]) + sum(2 if x.kind == "trans" else 1 for x in self.va[g])
    def cost(self, g): return self.vcost(g) + len(self.sc[g])
    def fits(self, g, ins):
        c = 2 if ins.kind == "trans" else 1
        if ins.kind in ("valu", "trans", "ds", "vmem"):
            if self.vcost(g) + c > self.cap: return False
            if ins.kind in ("ds", "vmem") and self.va[g]: return False
            return self.vcost(g) + c + len(self.sc[g]) <= self.cap + 1
        return self.cost(g) + 1 <= 3
    def put(self, g, ins):
        if ins.kind in ("ds", "vmem"): self.mem[g].append(ins)
        elif ins.kind in ("valu", "trans"): self.va[g].append(ins)
        else: self.sc[g].append(ins)
    def place(self, g, text, tag=None):
        ins = Ins(text, tag)
        while not self.fits(g, ins): g += 1
        self.put(g, ins); return g
    def place2(self, g, t1, t2):
        while self.cost(g) + 2 > 3: g += 1
        self.put(g, Ins(t1)); self.put(g, Ins(t2)); return g
    def fill(self, queue, g0=0, g1=None):
        g1 = self.n if g1 is None else g1
        g = g0; i = 0; last = -1; lastkind = None
        while i < len(queue):
            t, e, ng, tag = (list(queue[i]) + [0, False, None])[:4] if not isinstance(queue[i], str) else (queue[i], 0, False, None)
            ins = Ins(t, tag)
            g = max(g, e)
            order = {"salu": 0, "wait": 0, "ds": 1, "vmem": 1, "valu": 2, "trans": 2}
            if last >= 0 and (ng or order[ins.kind] < order[lastkind] or (lastkind == "salu" and "m0" in queue_prev and ins.kind == "vmem")): g = max(g, last + 1)
            while g < g1 and not self.fits(g, ins): g += 1
            if g >= g1: break
            self.put(g, ins); last = g; lastkind = ins.kind; queue_prev = t; i += 1
        return queue[i:]
    def emit(self):
        out = []
        for g, m in enumerate(self.m):
            out.append(m); out += self.sc[g] + self.mem[g] + self.va[g] + self.blk.get(g, [])
        return out

def spread(G, lst, g0, g1):
    nv = max(1, sum(1 for x in lst if isinstance(x, tuple)))
    k = 0; g = g0
    for x in lst:
        t, tag = x if isinstance(x, tuple) else (x, None)
        if tag:
            tgt = g0 + 1 + int((g1 - g0 - 1) * k / nv); k += 1
            g = G.place(max(g, tgt), t, tag) + 1
        else:
            g = G.place(g, t)
            if " m0," in t: g += 1
    return g

def straight(A, lst):
    prev_m0 = False
    for x in lst:
        if isinstance(x, str): t, tag = x, None
        elif len(x) == 2: t, tag = x
        else:
            t = x[0]; tag = x[3] if len(x) > 3 else None
            if len(x) > 2 and x[2]: A("s_nop 1")
        if prev_m0 and "lds" in t: A("s_nop 0")
        A(t, tag); prev_m0 = " m0," in t

def srd(A, d, lo, size, add=None):
    if add is None:
        A(f"s_mov_b32 s{d}, s{lo}\ns_and_b32 s{d+1}, s{lo+1}, 0xffff")
    else:
        A(f"s_add_u32 s{d}, s{lo}, {add}\ns_addc_u32 s{d+1}, s{lo+1}, 0\ns_and_b32 s{d+1}, s{d+1}, 0xffff")
    A(f"s_mov_b32 s{d+2}, {size}\ns_mov_b32 s{d+3}, 0x20000")

def kread(buf, kb, ks):
    d = KV + 24 * buf + 4 * ks
    return f"ds_read_b128 {vr(d)}, v{KA[ks & 1]} offset:{(ks >> 1) * 128 + kb * 6144}"
def vread(db, e, half):
    d = KV + 8 * (db % 6) + 4 * e + 2 * half
    return f"ds_read_b64_tr_b16 {vr(d,2)}, v{VA[db & 3]} offset:{(db >> 2) * 128 + e * 12288 + half * 6144}"

def qk_mfmas(cinit):
    out = []
    for kb in range(4):
        for qb in range(4):
            for n, ks in enumerate(snk(6, qb)):
                a = KV + 24 * (kb & 1) + 4 * ks
                c = (vr(NREF + 4 * qb) if kb in cinit else "0") if n == 0 else vr(S(kb, qb))
                out.append(Ins(f"{MF} {vr(S(kb,qb))}, {vr(a)}, {qfrag(qb,ks)}, {c}"))
    return out
def pv_mfmas(par, first=False):
    out = []
    for db in range(12):
        for qb in range(4):
            for n, e in enumerate(snk(2, qb)):
                a = KV + 8 * (db % 6) + 4 * e
                c = "0" if (first and n == 0) else ar(O(db, qb))
                out.append(Ins(f"{MF} {ar(O(db,qb))}, {vr(a)}, {vr(P(par,qb,e))}, {c}"))
    return out
def sm_ops(par):
    out = []
    for kb in range(4):
        for qb in range(4):
            s = S(kb, qb); p = P(par, qb, kb >> 1) + 2 * (kb & 1)
            out.append(([f"v_exp_f32 v{s+r}, v{s+r}" for r in range(4)],
                        [f"v_add_f32 v{LS[qb]}, v{LS[qb]}, v{s+r}" for r in range(4)],
                        [f"v_cvt_pk_bf16_f32 v{p+r}, v{s+2*r}, v{s+2*r+1}" for r in range(2)]))
    return out
def qk_reads(G, base, vpre=True):
    for kb in range(3):
        for ks in range(6): G.place(base + 24 * kb + 1 + 3 * ks, kread((kb + 1) & 1, kb + 1, ks))
    if vpre:
        n = 0
        for db in range(3):
            for e in range(2):
                for h in range(2):
                    G.place(base + 73 + (n * 3) // 2, vread(db, e, h)); n += 1
    for ks in (2, 4): G.put(base + ks - 1, lgw(rs(KV + 4 * ks, 8)))
    for kb in range(1, 4): G.put(base + 24 * kb - 1, lgw(rs(KV + 24 * (kb & 1), 24)))
def pv_reads(G, B, first_wait=True):
    for db in range(9):
        n = 0
        for e in range(2):
            for h in range(2):
                G.place(B + 8 * db + 2 * n, vread(db + 3, e, h)); n += 1
    for db in range(12):
        if B + 8 * db - 1 >= 0: G.put(B + 8 * db - 1, lgw(rs(KV + 8 * (db % 6), 8)))

def gen_step(par, slot, first=False, extra=(), last=None):
    G = Gaps(qk_mfmas({0, 1, 2, 3}) + pv_mfmas(par, first))
    qk_reads(G, 0)
    B = 96
    pv_reads(G, B)
    if last:
        last(G)
    else:
        gb = B + 80
        G.put(gb, Ins("s_waitcnt vmcnt(12) lgkmcnt(0)")); G.put(gb, Ins("s_barrier"))
        for (g_, t_) in extra: G.place(g_, t_)
        for ks in range(6): G.place(gb + 1 + 2 * ks, kread(0, 0, ks))
        G.put(191, lgw(rs(KV, 8)))
        G.place(2, f"s_add_u32 s{sKo2}, s{sKo}, 3072")
        G.place(4, f"s_sub_u32 s{sVo}, s{sKo}, {STG}")
        G.place(5, f"s_sub_u32 s{sVo2}, s{sKo}, {STG - 3072}")
        dm = [(sK, sKo, 0), (sK, sKo2, 3072), (sV, sVo, VRING), (sV, sVo2, VRING + 3072)]
        g = 8
        for (srd_, so, mo) in dm:
            G.place(g, f"s_add_u32 m0, s{sWb}, {slot * STG + mo}")
            for j in range(3):
                g2 = G.place(g + 3 + 12 * j, f"buffer_load_dwordx4 v{DSR[j]}, {sr(srd_)}, s{so} offen offset:{1024*j} lds")
            g = g2 + 9
        G.place(g, f"s_add_u32 s{sKo}, s{sKo}, {STG}")
        inc = (-2 * STG if slot == 1 else STG) & 0xffffffff
        for i, r in enumerate(KA): G.place(B + 10 + 2 * i, f"v_add_u32 v{r}, {inc}, v{r}")
        for i, r in enumerate(VA): G.place(B + 82 + 2 * i, f"v_add_u32 v{r}, {inc}, v{r}")
    ops = sm_ops(par ^ 1)
    first_g, last_g = 10, (160 if last else 186)
    pend = []
    exps = [(i, r) for i in range(16) for r in range(4)]
    ei = 0
    for g in range(192):
        if ei < 64:
            i, r = exps[ei]
            target = first_g + (last_g - first_g) * ei / 64.0
            if g >= 6 * i + 5 + 4 and g >= target and G.vcost(g) == 0 and len(G.sc[g]) <= 1:
                G.put(g, Ins(ops[i][0][r])); ei += 1
                pend.append((g + 1, ops[i][1][r]))
                if r & 1: pend.append((g + 1, ops[i][2][r >> 1]))
                continue
        while pend and pend[0][0] <= g and G.fits(g, Ins(pend[0][1])):
            G.put(g, Ins(pend.pop(0)[1]))
    assert ei == 64 and not pend, (ei, pend)
    return G


def poll(A, lab, voff, srd_, soff, cond, sleep=2, precheck=False):
    if precheck:
        cond(); A(f"s_cbranch_scc0 {lab}_ok")
    A(f"s_mov_b32 s{sE}, {SPIN}")
    A(f"{lab}:")
    A(f"buffer_load_dwordx2 {vr(T0,2)}, v{voff}, {sr(srd_)}, {soff} offen sc1")
    A("s_waitcnt vmcnt(0)")
    cond()
    A(f"s_cbranch_scc0 {lab}_ok")
    A(f"s_sleep {sleep}\ns_sub_u32 s{sE}, s{sE}, 1\ns_cmp_lg_u32 s{sE}, 0\ns_cbranch_scc1 {lab}")
    A(f"{lab}_ok:")
def cond_nonce(A, mask):
    def f():
        A(f"v_cmp_ne_u32 vcc, s{sN0}, v{T0}\nv_cmp_ne_u32 s[{sA}:{sA+1}], s{sN1}, v{T1}\ns_nop 0")
        A(f"s_or_b32 s{sA}, vcc_lo, s{sA}\ns_and_b32 s{sA}, s{sA}, {mask}\ns_cmp_lg_u32 s{sA}, 0")
    return f
assert sA % 2 == 0 and sC % 2 == 0

def gelu_ops(x, y, pk, store):
    q = []
    for r in range(4): q.append(f"v_mul_f32 v{y+r}, v{x+r}, v{x+r}")
    for r in range(4): q.append(f"v_fma_f32 v{y+r}, v{y+r}, s{sB}, v{T0}")
    for r in range(4): q.append(f"v_mul_f32 v{y+r}, v{y+r}, v{x+r}")
    for r in range(4): q.append(f"v_exp_f32 v{y+r}, v{y+r}")
    for r in range(4): q.append(f"v_fma_f32 v{y+r}, v{y+r}, s{sA}, s{sA}")
    for r in range(4): q.append(f"v_rcp_f32 v{y+r}, v{y+r}")
    for r in range(4): q.append(f"v_mul_f32 v{y+r}, v{y+r}, v{x+r}")
    for r in range(2): q.append(f"v_cvt_pk_bf16_f32 v{pk+r}, v{y+2*r}, v{y+2*r+1}")
    return [(t, 0, False, None) for t in q] + store

def gelu_pk(x, y, pk, store):
    q = []
    for k in range(2): q.append(f"v_pk_mul_f32 {vr(y+2*k,2)}, {vr(x+2*k,2)}, {vr(x+2*k,2)}")
    for k in range(2): q.append(f"v_pk_fma_f32 {vr(y+2*k,2)}, {vr(y+2*k,2)}, s[{sA}:{sA+1}], {vr(T0,2)} op_sel:[0,1,0] op_sel_hi:[1,1,0]")
    for k in range(2): q.append(f"v_pk_mul_f32 {vr(y+2*k,2)}, {vr(y+2*k,2)}, {vr(x+2*k,2)}")
    for r in range(4): q.append(f"v_exp_f32 v{y+r}, v{y+r}")
    q.append("s_nop 0")
    for k in range(2): q.append(f"v_pk_fma_f32 {vr(y+2*k,2)}, {vr(y+2*k,2)}, s[{sA}:{sA+1}], s[{sA}:{sA+1}] op_sel_hi:[1,0,0]")
    for r in range(4): q.append(f"v_rcp_f32 v{y+r}, v{y+r}")
    q.append("s_nop 0")
    for k in range(2): q.append(f"v_pk_mul_f32 {vr(y+2*k,2)}, {vr(y+2*k,2)}, {vr(x+2*k,2)}")
    for r in range(2): q.append(f"v_cvt_pk_bf16_f32 v{pk+r}, v{y+2*r}, v{y+2*r+1}")
    return [(t, 0, False, None) for t in q] + store
def pkify(q):
    out = []; i = 0
    while i < len(q):
        t = q[i][0] if isinstance(q[i], tuple) else q[i]
        n = (q[i + 1][0] if isinstance(q[i + 1], tuple) else q[i + 1]) if i + 1 < len(q) else ""
        m1 = re.match(r"v_(mul|add)_f32 v(\d+), v(\d+), v(\d+)$", t); m2 = re.match(r"v_(mul|add)_f32 v(\d+), v(\d+), v(\d+)$", n)
        if opt["pk"] and m1 and m2 and m1.group(1) == m2.group(1):
            d1, a1, b1 = map(int, m1.groups()[1:]); d2, a2, b2 = map(int, m2.groups()[1:])
            if d1 % 2 == 0 and a1 % 2 == 0 and d2 == d1 + 1 and a2 == a1 + 1:
                if b1 == b2 and b1 not in (d1, d2):
                    h = b1 & 1
                    out.append((f"v_pk_{m1.group(1)}_f32 {vr(d1,2)}, {vr(a1,2)}, {vr(b1-h,2)} op_sel:[0,{h}] op_sel_hi:[1,{h}]", 0, False, None)); i += 2; continue
                if b1 % 2 == 0 and b2 == b1 + 1:
                    out.append((f"v_pk_{m1.group(1)}_f32 {vr(d1,2)}, {vr(a1,2)}, {vr(b1,2)}", 0, False, None)); i += 2; continue
        out.append(q[i]); i += 1
    return out

def b_wdma(srd_, tag, slot_imm, second=16, step=64):
    o = [f"s_add_u32 s{sInc}, s{sM}, {slot_imm}", f"s_add_u32 s{sVo2}, s{sVo}, {second*1280}"]
    for hf, so in enumerate((sVo, sVo2)):
        o.append(f"s_add_u32 m0, s{sInc}, {5120*hf}")
        o += [(f"buffer_load_dwordx4 v{DS5[j]}, {sr(srd_)}, s{so} offen offset:{1024*j} lds", tag) for j in range(4)]
        o.append(f"s_add_u32 m0, s{sInc}, {5120*hf + 4096}")
        o.append((f"buffer_load_dwordx4 v{DS5[4]}, {sr(srd_)}, s{so} offen lds", tag))
    o.append(f"s_add_u32 s{sVo}, s{sVo}, {step*1280}" if isinstance(step, int) else f"s_mov_b32 s{sVo}, s{step[0]}")
    return o
def oload(buf, tag):
    o = [(f"buffer_load_dwordx4 {vr(OB[buf] + 4*(r*2+e))}, v{OV[r]}, {sr(sWS)}, s{sKo} offen offset:{1024*e} sc1", tag) for r in range(4) for e in range(2)]
    o.append(f"s_add_u32 s{sKo}, s{sKo}, 2048")
    return o
def hload(buf, tag):
    if buf < 2:
        return [(f"buffer_load_dwordx4 {vr(OB[buf] + 4*(r*2+e))}, v{OV[r]}, {sr(sWS)}, s{sKo} offen offset:{2048*buf + 1024*e} sc1", tag) for r in range(4) for e in range(2)]
    o = []
    for r in range(4):
        o.append(f"s_add_u32 s{sE}, s{sKo2}, s{24+r}")
        o += [(f"buffer_load_dwordx2 {vr(OB[buf] + 4*(r*2+e) + 2*h, 2)}, v{PFV}, {sr(sWS)}, s{sE} offen offset:{1024*e + 512*h} sc1", tag) for e in range(2) for h in range(2)]
    return o
def b_scalars():
    o = [f"s_lshl_b32 s{sA}, s{sSP}, 1", f"s_add_u32 s{sA}, s{sA}, s{sKH}"]
    o += [f"s_mul_i32 s{sC}, s{sNT}, 320", f"s_mul_i32 s{sB}, s{sQH}, {32*1280}", f"s_add_u32 s{sB}, s{sB}, s{sC}", f"s_mul_i32 s{sH}, s{sA}, {768*1280}", f"s_add_u32 s{sH}, s{sH}, s{sB}"]
    o += [f"s_mul_i32 s{sB}, s{sA}, {192*1280}", f"s_add_u32 s{sC}, s{sC}, s{sB}", f"s_mul_i32 s{sB}, s{sQH}, {48*1280}", f"s_add_u32 s{sVo}, s{sC}, s{sB}",
          f"s_add_u32 s{sNeg}, s{sVo}, s{sB}", f"s_add_u32 s{sNeg}, s{sNeg}, {32*1280}"]
    o += [f"s_mul_i32 s{sB}, s{sFL}, {4*240*4}", f"s_add_u32 s{sB}, s{sB}, {OH_OFF}"]
    o += [f"s_lshl_b32 s{sKo}, s{sA}, 12", f"s_add_u32 s{sKo}, s{sKo}, s{sB}", f"s_add_u32 s{sKo}, s{sKo}, {192*1024}"]
    o += [f"s_lshl_b32 s{sKo2}, s{sA}, 11", f"s_add_u32 s{sKo2}, s{sKo2}, s{sB}", f"s_add_u32 s{sKo2}, s{sKo2}, {192*1024 + 32768}"]
    o += [f"s_mul_i32 s{sF}, s{sA}, {24*1024}", f"s_add_u32 s{sF}, s{sF}, s{sB}"]
    o += [f"s_mul_i32 s{sM}, s{sW}, 10240", f"v_lshlrev_b32 v{PFV}, 3, v0"]
    for r in range(4): o += [f"s_add_u32 s{24+r}, s{sSP}, {r}", f"s_and_b32 s{24+r}, s{24+r}, 3", f"s_mul_i32 s{24+r}, s{24+r}, {240*1024}"]
    return o
def b_warm():
    o = []
    for i in range(4):
        o.append((f"buffer_load_dword v7, v{PFV}, {sr(sWO)}, s{sKo2} offen", "PF"))
        if i < 3: o.append(f"s_add_u32 s{sKo2}, s{sKo2}, 4096")
    return o
def b_addr_ops():
    q = []
    t0, t1, t2, t3 = 255, 253, 254, 255
    for j in range(5):
        q += [f"v_add_u32 v{t0}, {64*j}, v0", f"v_mul_u32_u24 v{t1}, 3277, v{t0}", f"v_lshrrev_b32 v{t1}, 16, v{t1}",
              f"v_mul_u32_u24 v{t2}, 20, v{t1}", f"v_sub_u32 v{t2}, v{t0}, v{t2}", f"v_lshrrev_b32 v{t3}, 1, v{t1}", f"v_and_b32 v{t3}, 2, v{t3}",
              f"v_xor_b32 v{t2}, v{t2}, v{t3}", f"v_mul_u32_u24 v{t3}, 80, v{t1}", f"v_add_u32 v{t3}, v{t3}, v{t2}"]
        q += [f"v_lshlrev_b32 v{DS5[j]}, 4, v{t3}"]
        if 0 < j < 4: q += [f"v_subrev_u32 v{DS5[j]}, {1024*j}, v{DS5[j]}"]
    q += [f"v_and_b32 v{FLV}, 31, v0", f"v_lshlrev_b32 v{FLV}, 3, v{FLV}"]
    p = []
    p += [f"v_lshlrev_b32 v{t0}, 4, v0"]
    for r in range(4):
        p += [f"s_add_u32 s{sF}, s{sSP}, {r}", f"s_and_b32 s{sF}, s{sF}, 3", f"s_mul_i32 s{sF}, s{sF}, {240*1024}", f"v_add_u32 v{OV[r]}, s{sF}, v{t0}"]
    p += [f"v_lshlrev_b32 v{PFV}, {6 if opt['pst'] == 64 else 7}, v0", f"v_mov_b32 v{ZV}, 0"]
    if opt["pst"] == 128: p += [f"v_min_u32 v{PFV}, {47*128}, v{PFV}"] if False else []
    return p, q

def b_ra_ops():
    t0, t1, t2 = NREF + 8, NREF + 9, NREF + 10
    lo, hi = (NREF + 11, NREF + 12), (NREF + 13, NREF + 14)
    q = [f"s_mul_i32 s{sE}, s{sKH}, 20480", f"v_lshrrev_b32 v{t0}, 2, v0", f"v_mul_u32_u24 v{t0}, 320, v{t0}", f"v_and_b32 v{t1}, 3, v0", f"v_lshl_add_u32 v{t0}, v{t1}, 3, v{t0}",
         f"v_add_u32 v{t0}, s{sE}, v{t0}", f"v_bfe_u32 v{t1}, v0, 4, 1", f"v_xor_b32 v{t2}, 1, v{t1}",
         f"v_lshl_add_u32 v{lo[0]}, v{t1}, 5, v{t0}", f"v_lshl_add_u32 v{lo[1]}, v{t2}, 5, v{t0}",
         f"v_add_u32 v{hi[0]}, 128, v{lo[1]}", f"v_add_u32 v{hi[1]}, 192, v{lo[0]}",
         f"s_cmp_eq_u32 s{sKH}, 0", f"s_cselect_b64 vcc, -1, 0", "s_nop 0"]
    for k in range(2):
        q += [f"v_cndmask_b32 v{RA[k]}, v{lo[k]}, v{hi[k]}, vcc", f"v_cndmask_b32 v{RA[2+k]}, v{hi[k]}, v{lo[k]}, vcc"]
    return q
def lred(A):
    for sw in ("v_permlane32_swap_b32", "v_permlane16_swap_b32"):
        for qb in range(4): A(f"v_mov_b32 v{NREF+qb}, v{LS[qb]}")
        for qb in range(4): A(f"{sw} v{LS[qb]}, v{NREF+qb}")
        for qb in range(4): A(f"v_add_f32 v{LS[qb]}, v{LS[qb]}, v{NREF+qb}")
NEARLY = 24
def oepi_ops():
    q = []; late = []; n = 0
    so = [sA, sB, sC, sD]
    for m in range(6):
        for qb in range(4):
            x = 144 + 8 * (n & 1); d = PK + 4 * (n % 16)
            e = 16 * m + 8 + 2 * qb + 1 + 5
            for p in range(2):
                for r in range(4): q.append((f"v_accvgpr_read_b32 v{x+4*p+r}, a{O(2*m+p,qb)+r}", e, False, None))
            for i in range(8): q.append((f"v_mul_f32 v{x+i}, v{x+i}, v{LS[qb]}", 0, False, None))
            for i in range(4): q.append((f"v_cvt_pk_bf16_f32 v{d+i}, v{x+2*i}, v{x+2*i+1}", 0, False, None))
            v, off = (T1, 1024 * m) if m < 4 else (T0, 1024 * (m - 4))
            st = f"buffer_store_dwordx4 {vr(d)}, v{v}, {sr(sWS)}, s{so[qb]} offen offset:{off} sc1"
            if n < NEARLY: q.append((st, 0, False, "OST"))
            else: late.append((st, "OST"))
            n += 1
    return q, late
def oepi_pre():
    return [f"s_mul_i32 s{sA}, s{sQB0}, {240*1024}", f"s_mul_i32 s{sB}, s{sHEAD}, {6*1024}", f"s_add_u32 s{sA}, s{sA}, s{sB}", f"s_add_u32 s{sA}, s{sA}, {OH_OFF}",
            f"s_add_u32 s{sB}, s{sA}, {240*1024}", f"s_add_u32 s{sC}, s{sA}, {480*1024}", f"s_add_u32 s{sD}, s{sA}, {720*1024}",
            f"v_lshlrev_b32 v{T1}, 4, v0", f"v_add_u32 v{T0}, 4096, v{T1}"]
def BA(nb, r): return (192 + 16 * nb if nb < 4 else 16 * (nb - 4)) + 4 * r
def bread(u, nb, e, h):
    d = WF + 8 * ((10 * u + nb) % 6) + 4 * e + 2 * h
    j = nb % 5
    return f"ds_read_b64_tr_b16 {vr(d,2)}, v{RA[2 * (nb // 5) + (j & 1)]} offset:{64*(j >> 1) + e*10240 + h*5120}"
ORDR = [(i, r) for r in (1, 2, 3, 0) for i in range(5)]
def xchg_reads(E, tr):
    for (i, r) in ORDR: E(f"ds_read_b128 {vr(tr(i, r))}, v3 offset:{1024*(4*i+r)}")
def xchg_sum(E, tr, PKS, so, emit):
    st = []; RING = 150
    for n, (i, r) in enumerate(ORDR):
        t = RING + 4 * (n & 1); x = tr(i, r)
        for k in range(4): E(f"v_accvgpr_read_b32 v{t+k}, a{BA(5+i, r)+k}")
        if n % 5 == 0 and emit: E(f"s_waitcnt lgkmcnt({15 - n})")
        for k in range(2): E(f"v_pk_add_f32 {vr(x+2*k,2)}, {vr(x+2*k,2)}, {vr(t+2*k,2)}")
        if r:
            for k in range(2): E(f"v_cvt_pk_bf16_f32 v{PKS+10*(r-1)+2*i+k}, v{x+2*k}, v{x+2*k+1}")
            if i == 4:
                p = PKS + 10 * (r - 1)
                ss = [f"buffer_store_dwordx4 {vr(p)}, v4, {sr(sWS)}, s{so[r]} offen sc1",
                      f"buffer_store_dwordx4 {vr(p+4)}, v4, {sr(sWS)}, s{so[r]} offen offset:1024 sc1",
                      f"buffer_store_dwordx2 {vr(p+8,2)}, v1, {sr(sWS)}, s{so[r]} offen sc1"]
                if emit:
                    for t_ in ss: E(t_)
                elif r <= opt["yin"]:
                    for t_ in ss: E(t_, "YST")
                else: st += [(t_, "YST") for t_ in ss]
    return st
def slot_scalars(off, so, cons):
    o = [f"s_mul_i32 s{sA}, s{sH}, {64*3072}", f"s_mul_i32 s{sE}, s{sW}, 3072", f"s_add_u32 s{sA}, s{sA}, s{sE}", f"s_add_u32 s{sA}, s{sA}, {off}",
         f"s_mul_i32 s{sE}, s{sSP}, {16*3072}", f"s_add_u32 s{cons}, s{sA}, s{sE}", f"s_mul_i32 s{sE}, s{sSP}, {4*3072}", f"s_add_u32 s{sA}, s{sA}, s{sE}"]
    for r in (1, 2, 3):
        d = so[r]
        o += [f"s_add_u32 s{d}, s{sSP}, {r}", f"s_and_b32 s{d}, s{d}, 3", f"s_mul_i32 s{d}, s{d}, {16*3072}", f"s_add_u32 s{d}, s{d}, s{sA}"]
    return o
def inbox_loads(cons, P0, tag):
    o = []
    for r in (1, 2, 3):
        p = P0 + 10 * (r - 1)
        o += [f"s_add_u32 s{sA}, s{sSP}, {r}", f"s_and_b32 s{sA}, s{sA}, 3", f"s_mul_i32 s{sA}, s{sA}, {4*3072}", f"s_add_u32 s{sA}, s{sA}, s{cons}"]
        o += [(f"buffer_load_dwordx4 {vr(p)}, v4, {sr(sWS)}, s{sA} offen sc1", tag), (f"buffer_load_dwordx4 {vr(p+4)}, v4, {sr(sWS)}, s{sA} offen offset:1024 sc1", tag),
              (f"buffer_load_dwordx2 {vr(p+8,2)}, v1, {sr(sWS)}, s{sA} offen sc1", tag)]
    return o
def merge(a, b):
    out = []; k = 0
    na = sum(1 for x in a if isinstance(x, tuple)); seen = 0
    for x in a:
        out.append(x)
        if isinstance(x, tuple):
            seen += 1
            while k < len(b) and (k + 1) * na <= seen * len(b) and " m0," not in out[-1][0]:
                out.append(b[k]); k += 1
    return out + b[k:]
def b_chunk(u, lst, wtags, otags, czero=False, after_barrier=None, first_gap=(), last_gap=(), fillq=None, nxt=True, lim=None, xw=False, af=None, puts=(), ph=None, inc=None, blocks=None):
    mf = []; ph = u if ph is None else ph
    for nb in range(10):
        for r in range(4):
            for n, e in enumerate(snk(2, r)):
                acc = ar(BA(nb, r))
                mf.append(Ins(f"{MF} {acc}, {vr(WF + 8*((10*ph+nb)%6) + 4*e)}, {vr(OB[u] + 4*(r*2+e))}, {'0' if czero and n == 0 else acc}"))
    G = Gaps(mf)
    for nb in range(7):
        n = 0
        for e in range(2):
            for h in range(2):
                G.place(8 * nb + 2 * n, bread(ph, nb + 3, e, h)); n += 1
    for nb in range(1, 10): G.put(8 * nb - 1, lgw(rs(WF + 8 * ((10 * ph + nb) % 6), 8)))
    gb = 62
    if nxt:
        G.put(gb, vmw(wtags, " lgkmcnt(0)")); G.put(gb, Ins("s_barrier"))
        if inc is None: inc = STB if u < 2 else -2 * STB
        for i, r in enumerate(RA): G.place((30 + 2 * i) if i < 2 else (gb - 6 + i), f"v_add_u32 v{r}, {inc & 0xffffffff}, v{r}")
        if after_barrier: G.place(gb + 1, after_barrier, "FLAG")
        n = 0
        for nb in range(3):
            for e in range(2):
                for h in range(2):
                    G.place(gb + 1 + n + n // 4, bread((ph + 1) % 3, nb, e, h)); n += 1
        G.put(79, lgw(rs(WF + 8 * ((10 * ((ph + 1) % 3)) % 6), 8)))
    if otags: G.put(78, vmw(otags))
    if af is not None:
        G.put(af, vmw({"OST"})); G.place(af, f"buffer_store_dwordx2 v[254:255], v{ZV}, {sr(sWS)}, s17 offen sc1", "FLAG")
    for (g_, t_, tag_) in puts: G.place(g_, t_, tag_)
    if xw:
        if opt["xws"]:
            for n in range(20):
                i, r = n >> 2, n & 3
                G.place(max(8 * i + 2 * r + 1 + 8, opt["xw0"] + (n * opt["xws"]) // 10) | 1, f"ds_write_b128 v2, {ar(BA(i, r))} offset:{1024*(4*i+r)}")
        else:
            for n, (i, r) in enumerate(ORDR): G.place(44 + (n * 7) // 4, f"ds_write_b128 v2, {ar(BA(i, r))} offset:{1024*(4*i+r)}")
    for t in first_gap: G.put(0, Ins(t))
    g = spread(G, lst, 1 if first_gap else 0, lim or (76 if otags else 60)) if lst else 70
    assert g <= 79, g
    for t in last_gap: G.place(g, t)
    if blocks: G.blk.update(blocks)
    if fillq is not None:
        G.cap = opt["dense"]
        left = G.fill(fillq, 0)
        return G.emit(), left
    return G.emit()

def gen():
    global problems
    A = Asm()
    A("s_cmp_ge_u32 s2, 256\ns_cbranch_scc1 L_done")
    A("s_load_dwordx16 s[76:91], s[0:1], 0\ns_load_dwordx8 s[92:99], s[0:1], 64\ns_load_dwordx2 s[100:101], s[0:1], 96")
    pX, pK, pV, pWQ, pWO, pW1, pB1, pW2, pB2, pOUT, pDBG, pWS = 76, 78, 80, 82, 84, 88, 90, 92, 94, 96, 98, 100
    A(f"s_memrealtime s[{sN0}:{sN1}]")
    if opt["stamp"]: A(f"s_memtime s[{sInc}:{sInc+1}]")
    if opt["pf"]:
        A(f"s_getpc_b64 s[{sA}:{sA+1}]\nL_pc:\ns_bfe_u32 s{sC}, s2, 0x10003\ns_lshl_b32 s{sC}, s{sC}, 15\nv_lshlrev_b32 v98, 7, v0\nv_add_u32 v98, s{sC}, v98")
        A(f"global_load_dword v99, v98, s[{sA}:{sA+1}]")
    A("v_lshrrev_b32 v14, 6, v0\nv_and_b32 v0, 63, v0")
    A(f"v_readfirstlane_b32 s{sW}, v14")
    A(f"s_and_b32 s{sA}, s2, 7\ns_lshr_b32 s{sB}, s2, 3\ns_and_b32 s{sC}, s{sB}, 3\ns_lshl_b32 s{sA}, s{sA}, 2\ns_add_u32 s{sHEAD}, s{sA}, s{sC}")
    A(f"s_lshr_b32 s{sQT}, s{sB}, 2\ns_lshl_b32 s{sB}, s{sQT}, 4\ns_lshl_b32 s{sC}, s{sW}, 2\ns_add_u32 s{sQB0}, s{sB}, s{sC}")
    A(f"s_lshr_b32 s{sC}, s{sHEAD}, 1\ns_add_u32 s{sD}, s{sB}, s{sC}\ns_mul_i32 s{sE}, s{sD}, 20480")
    A("v_and_b32 v3, 15, v0\nv_lshrrev_b32 v4, 4, v0\nv_mul_u32_u24 v5, 1280, v3\nv_mul_u32_u24 v6, 320, v14\nv_lshlrev_b32 v7, 3, v4\nv_add3_u32 v5, v5, v6, v7")
    A("v_mov_b32 v96, 0\nv_mov_b32 v94, 0")
    A(f"s_or_b32 s{sKo}, s2, s{sW}")
    A("s_waitcnt lgkmcnt(0)")
    srd(A, sX, pX, 2621440)
    srd(A, sDBG, pDBG, 256)
    A(f"s_cmp_lg_u32 s{sKo}, 0\ns_cbranch_scc1 L_nonc")
    A(f"s_or_b32 s{sKo}, s{sN0}, 1\nv_mov_b32 v80, s{sKo}\nv_mov_b32 v81, s{sN1}")
    A(f"buffer_store_dwordx2 v[80:81], v96, {sr(sDBG)}, 0 offen sc1")
    A("L_nonc:")
    A(f"s_bitcmp1_b32 s{sHEAD}, 0\ns_cbranch_scc1 L_nox")
    for i in range(5):
        A(f"buffer_load_dwordx2 {vr(100+4*i,2)}, v5, {sr(sX)}, s{sE} offen offset:{64*i}", "LX")
        A(f"buffer_load_dwordx2 {vr(102+4*i,2)}, v5, {sr(sX)}, s{sE} offen offset:{64*i+32}", "LX")
    A("L_nox:")
    for j in range(3):
        A(f"v_add_u32 v82, {64*j}, v0\nv_mul_u32_u24 v83, 2731, v82\nv_lshrrev_b32 v83, 16, v83")
        A(f"v_mul_u32_u24 v97, 24, v83\nv_sub_u32 v82, v82, v97\nv_and_b32 v97, 6, v83\nv_xor_b32 v82, v82, v97\nv_lshlrev_b32 v82, 4, v82")
        A(f"v_mul_u32_u24 v97, 12288, v83\nv_add_u32 v97, v97, v82\nv_add_u32 v{DW[j]}, {(-1024*j) & 0xffffffff}, v97")
        A(f"v_mul_u32_u24 v97, 384, v83\nv_add_u32 v97, v97, v82\nv_add_u32 v{84+j}, {(128 - 1024*j) & 0xffffffff}, v97")
    A(f"v_lshrrev_b32 v83, 3, v0\nv_and_b32 v82, 7, v0\nv_and_b32 v97, 6, v83\nv_xor_b32 v82, v82, v97\nv_lshlrev_b32 v82, 4, v82\nv_mul_u32_u24 v97, 3072, v83\nv_add_u32 v{DW1}, v97, v82")
    A(f"s_mul_i32 s{sA}, s{sHEAD}, 384")
    A(f"s_add_u32 s{sWQ}, s{pWQ}, s{sA}\ns_addc_u32 s{sWQ+1}, s{pWQ+1}, 0\ns_and_b32 s{sWQ+1}, s{sWQ+1}, 0xffff\ns_sub_u32 s{sWQ+2}, {640*12288}, s{sA}\ns_mov_b32 s{sWQ+3}, 0x20000")
    A(f"s_mul_i32 s{sF}, s{sHEAD}, 96")
    A(f"s_add_u32 s{sW1}, s{pW1}, s{sF}\ns_addc_u32 s{sW1+1}, s{pW1+1}, 0\ns_and_b32 s{sW1+1}, s{sW1+1}, 0xffff\ns_sub_u32 s{sW1+2}, {640*3072}, s{sF}\ns_mov_b32 s{sW1+3}, 0x20000")
    A(f"s_mul_i32 s{sWb}, s{sW}, 6144")
    A(f"s_mul_i32 s{sA}, s{sW}, {16*12288}\ns_mul_i32 s{sB}, s{sW}, {16*3072}\ns_mul_i32 s{sC}, s{sQB0}, 20480\ns_lshl_b32 s{sM}, s{sW}, 11")
    XB = [SB, SB + 32, PB[0]]
    def wdma(ch):
        sl = ch % 3; o = []
        o.append(f"s_add_u32 m0, s{sWb}, {VRING + sl*STG}")
        o += [(f"buffer_load_dwordx4 v{DW[j]}, {sr(sWQ)}, s{sA} offen offset:{1024*j} lds", f"W{ch}") for j in range(3)]
        o.append(f"s_add_u32 s{sA}, s{sA}, {8*12288}")
        o.append(f"s_add_u32 m0, s{sWb}, {VRING + sl*STG + 3072}")
        o += [(f"buffer_load_dwordx4 v{DW[j]}, {sr(sWQ)}, s{sA} offen offset:{1024*j} lds", f"W{ch}") for j in range(3)]
        o.append(f"s_add_u32 s{sA}, s{sA}, {56*12288}")
        o.append(f"s_add_u32 m0, s{sM}, {W1RING + sl*8192}")
        o.append((f"buffer_load_dwordx4 v{DW1}, {sr(sW1)}, s{sB} offen lds", f"W{ch}"))
        o.append(f"s_add_u32 s{sB}, s{sB}, {8*3072 - 1024}")
        o.append((f"buffer_load_dwordx4 v{DW1}, {sr(sW1)}, s{sB} offen offset:1024 lds", f"W{ch}"))
        o.append(f"s_add_u32 s{sB}, s{sB}, {56*3072 + 1024}")
        return o
    def xload(ch):
        o = [(f"buffer_load_dwordx4 {vr(XB[ch%3] + 4*(qb*2+e))}, v{XV[qb]}, {sr(sWS)}, s{sC} offen offset:{1024*e} sc1", f"X{ch}") for qb in range(4) for e in range(2)]
        o.append(f"s_add_u32 s{sC}, s{sC}, 2048")
        return o
    def kvdma(srd_, slotbase, t, tag):
        o = []
        for hf in range(2):
            o.append(f"s_add_u32 s{sKo2}, s{sWb}, {t*STG + 3072*hf}")
            o.append(f"s_add_u32 m0, s{sWb}, {slotbase + 3072*hf}")
            o += [(f"buffer_load_dwordx4 v{DSR[j]}, {sr(srd_)}, s{sKo2} offen offset:{1024*j} lds", tag) for j in range(3)]
        return o
    straight(A, wdma(0))
    srd(A, sB1, pB1, 3072)
    for ct in range(3): A(f"buffer_load_dwordx2 {vr(88 + 2*ct, 2)}, v7, {sr(sB1)}, s{sF} offen offset:{32*ct}", "B1")
    straight(A, wdma(1))
    A(f"s_mul_i32 s{sKo}, s{sHEAD}, 786432")
    for (d, lo) in ((sK, pK), (sV, pV)):
        A(f"s_add_u32 s{d}, s{lo}, s{sKo}\ns_addc_u32 s{d+1}, s{lo+1}, 0\ns_sub_u32 s{d}, s{d}, 128\ns_subb_u32 s{d+1}, s{d+1}, 0\ns_and_b32 s{d+1}, s{d+1}, 0xffff")
        A(f"s_mov_b32 s{d+2}, {786432 + 128}\ns_mov_b32 s{d+3}, 0x20000")
    srd(A, sWS, pWS, WS_SZ)
    srd(A, sOUT, pOUT, 2621440)
    srd(A, sB2, pB2, 1280)
    srd(A, sWO, pWO, 6144 * 1280)
    srd(A, sW2, pW2, 1536 * 1280)
    if opt["stamp"]:
        A(f"s_mov_b32 s78, s{sN0}\ns_mov_b32 s79, s{sInc}"); NST[0] = 1
    A(f"s_and_b32 s{sSP}, s2, 3\ns_bfe_u32 s{sKo}, s2, 0x10002\ns_lshl_b32 s{sKo}, s{sKo}, 3\ns_bfe_u32 s{sMT}, s2, 0x30003\ns_add_u32 s{sMT}, s{sMT}, s{sKo}\ns_lshr_b32 s{sNT}, s2, 6")
    A(f"s_lshr_b32 s{sKH}, s{sW}, 1\ns_and_b32 s{sQH}, s{sW}, 1")
    A(f"s_lshl_b32 s{sVo}, s{sQT}, 7\ns_add_u32 s{sVo}, s{sVo}, {LF_OFF}")
    A(f"s_bitcmp1_b32 s{sHEAD}, 0\ns_cbranch_scc1 L_noln")
    A(f"v_lshlrev_b32 v8, 6, v3\nv_add_u32 v8, {LDS_LN}, v8\nv_lshl_add_u32 v9, v14, 2, v4\nv_lshl_add_u32 v9, v9, 2, v8")
    A("v_mul_u32_u24 v10, 5120, v14\nv_lshl_add_u32 v10, v0, 4, v10")
    A(f"s_mov_b32 s{sKo}, 0x3f803f80\ns_mov_b32 s{sKo2}, 0x3f80\ns_mov_b32 s{sSlot}, 0x3f800000")
    A("s_waitcnt vmcnt(19)")
    A(f"v_dot2_f32_bf16 v11, v100, s{sKo}, 0\nv_dot2_f32_bf16 v12, v101, s{sKo}, 0")
    for i in range(2, 20): A(f"v_dot2_f32_bf16 v{11+(i&1)}, v{100+i}, s{sKo}, v{11+(i&1)}")
    A("s_nop 2\nv_add_f32 v11, v11, v12")
    def xsum(off):
        A(f"ds_write_b32 v9, v11 offset:{off}\ns_waitcnt lgkmcnt(0)\ns_barrier")
        for i in range(4): A(f"ds_read_b128 {vr(16+4*i)}, v8 offset:{off+16*i}")
        A("s_waitcnt lgkmcnt(0)")
        for i in range(4): A(f"v_pk_add_f32 {vr(16+2*i,2)}, {vr(16+2*i,2)}, {vr(24+2*i,2)}")
        for i in range(2): A(f"v_pk_add_f32 {vr(16+2*i,2)}, {vr(16+2*i,2)}, {vr(20+2*i,2)}")
        A("v_pk_add_f32 v[16:17], v[16:17], v[18:19]\nv_add_f32 v16, v16, v17")
    xsum(0)
    A(f"v_mul_f32 v13, {fh(-1/640)}, v16")
    for i in range(20): A(f"v_dot2_f32_bf16 v{40+2*i}, v{100+i}, s{sKo2}, v13\nv_dot2_f32_bf16 v{41+2*i}, v{100+i}, s{sSlot}, v13")
    A("v_pk_mul_f32 v[36:37], v[40:41], v[40:41]\nv_pk_mul_f32 v[38:39], v[42:43], v[42:43]")
    for i in range(2, 20): A(f"v_pk_fma_f32 {vr(36+2*(i&1),2)}, {vr(40+2*i,2)}, {vr(40+2*i,2)}, {vr(36+2*(i&1),2)}")
    A("v_pk_add_f32 v[36:37], v[36:37], v[38:39]\nv_add_f32 v11, v36, v37")
    xsum(1024)
    A(f"v_mov_b32 v12, {fh(1e-5)}\nv_fmac_f32 v12, {fh(1/640)}, v16\nv_rsq_f32 v12, v12\ns_nop 0\nv_mul_f32 v12, {fh(CSC)}, v12")
    for i in range(5):
        for k in range(4): A(f"v_pk_mul_f32 {vr(40+8*i+2*k,2)}, {vr(40+8*i+2*k,2)}, v[12:13] op_sel_hi:[1,0]")
        for k in range(4): A(f"v_cvt_pk_bf16_f32 v{16+4*i+k}, v{40+8*i+2*k}, v{41+8*i+2*k}")
        if i == 4: A(f"s_add_u32 s{sE}, s{sE}, 4096")
        A(f"buffer_store_dwordx4 {vr(16+4*i)}, v10, {sr(sWS)}, s{sE} offen offset:{1024*i if i < 4 else 0} sc1")
    A(f"s_cmp_lg_u32 s{sW}, 0\ns_cbranch_scc1 L_ln2")
    A(f"buffer_load_dwordx2 v[94:95], v96, {sr(sDBG)}, 0 offen sc1")
    A("L_ln2:")
    A("s_waitcnt vmcnt(0)\ns_barrier")
    A("L_noln:")
    A(f"s_cmp_lg_u32 s{sW}, 0\ns_cbranch_scc1 L_w0a")
    A(f"v_mov_b32 v{T0}, v94\nv_mov_b32 v{T1}, v95\ns_nop 0")
    def cond_non():
        A(f"v_readfirstlane_b32 s{sN0}, v{T0}\nv_readfirstlane_b32 s{sN1}, v{T1}\ns_nop 0\ns_cmp_eq_u32 s{sN0}, 0")
    poll(A, "L_pnon", 96, sDBG, "0", cond_non, sleep=8, precheck=True)
    A(f"s_bitcmp1_b32 s{sHEAD}, 0\ns_cbranch_scc1 L_w0a")
    A(f"s_lshl_b32 s{sKo}, s{sHEAD}, 2\ns_add_u32 s{sKo}, s{sKo}, s{sVo}")
    A(f"buffer_store_dwordx2 {vr(T0,2)}, v96, {sr(sWS)}, s{sKo} offen sc1")
    A("L_w0a:")
    stamp(A, 1)
    for j in range(3): A(f"v_mov_b32 v{DSR[j]}, v{84+j}")
    for qb in range(4): A(f"v_lshlrev_b32 v17, 4, v0\nv_add_u32 v{XV[qb]}, {XS_OFF + qb*20480}, v17")
    A("v_lshrrev_b32 v16, 2, v0\nv_and_b32 v17, 6, v16\nv_and_b32 v18, 3, v0")
    A("v_lshrrev_b32 v19, 1, v18\nv_and_b32 v20, 1, v18\nv_lshlrev_b32 v20, 3, v20")
    A(f"v_mul_u32_u24 v21, 384, v16\nv_add_u32 v21, {VRING}, v21")
    for m in range(4):
        A(f"v_add_u32 v22, {2*m}, v19\nv_xor_b32 v22, v22, v17\nv_lshlrev_b32 v22, 4, v22\nv_add3_u32 v{VA[m]}, v21, v22, v20\nv_add_u32 v{VA[m]}, {STG}, v{VA[m]}")
    for e in range(2):
        A(f"v_add_u32 v22, {4*e}, v18\nv_xor_b32 v22, v22, v17\nv_lshlrev_b32 v22, 4, v22\nv_add_u32 v{WA[e]}, v21, v22\nv_add_u32 v{WA2[e]}, {2*STG}, v{WA[e]}")
    A(f"v_lshlrev_b32 v21, 7, v16\nv_add_u32 v21, {W1RING}, v21")
    for ct in range(3):
        A(f"v_add_u32 v22, {2*ct}, v19\nv_xor_b32 v22, v22, v17\nv_lshlrev_b32 v22, 4, v22\nv_add3_u32 v{W1A[ct]}, v21, v22, v20")
    A("v_and_b32 v16, 15, v0\nv_and_b32 v17, 6, v16\nv_lshrrev_b32 v18, 4, v0\nv_mul_u32_u24 v21, 384, v16")
    for e in range(2):
        A(f"v_add_u32 v22, {4*e}, v18\nv_xor_b32 v22, v22, v17\nv_lshlrev_b32 v22, 4, v22\nv_add_u32 v{KA[e]}, v21, v22")
    A(f"v_lshlrev_b32 v40, 3, v16\nv_mov_b32 v41, {LDS_FL}")
    HACC = {12: PB[1], 13: PB[1] + 16, 14: NREF}
    A("s_waitcnt vmcnt(0)")
    if opt["wqpf"]:
        sPFa = sSlot
        A(f"s_movk_i32 s{sPFa}, {12288-384}\ns_bitcmp1_b32 s{sHEAD}, 0\ns_cbranch_scc0 L_nopf")
        A(f"s_lshl_b32 s{sKo}, s{sQT}, 2\ns_add_u32 s{sKo}, s{sKo}, s{sW}\ns_lshl_b32 s{sKo}, s{sKo}, 4\ns_add_u32 s{sKo}, s{sKo}, 127")
        A(f"s_mul_i32 s{sKo2}, s{sKo}, 3072\ns_mul_i32 s{sKo}, s{sKo}, 12288")
        A(f"v_lshrrev_b32 v120, 2, v0\nv_and_b32 v121, 3, v0\nv_min_u32 v121, 2, v121\nv_lshlrev_b32 v121, 7, v121\nv_mul_u32_u24 v122, 12288, v120\nv_add3_u32 v122, v122, v121, s{sPFa}")
        A(f"v_and_b32 v121, 3, v0\nv_lshlrev_b32 v121, 6, v121\nv_min_u32 v121, 188, v121\nv_mul_u32_u24 v123, 3072, v120\nv_add_u32 v123, v123, v121\nv_add_u32 v123, {3072-96}, v123")
        A(f"buffer_load_dword v121, v122, {sr(sWQ)}, s{sKo} offen\nbuffer_load_dword v121, v122, {sr(sWQ)}, s{sKo} offen offset:384\nbuffer_load_dword v121, v123, {sr(sW1)}, s{sKo2} offen")
        A("L_nopf:")
    for ct in range(3):
        h = HACC[12 + ct]
        for r in range(2):
            A(f"v_lshlrev_b32 v{h+2*r}, 16, v{88+2*ct+r}\nv_and_b32 v{h+2*r+1}, 0xffff0000, v{88+2*ct+r}")
        for r in range(4): A(f"v_mul_f32 v{h+r}, {fh(CSC)}, v{h+r}")
        for qb in range(1, 4):
            for r in range(4): A(f"v_mov_b32 v{h+4*qb+r}, v{h+r}")
    A(f"s_cmp_lg_u32 s{sW}, 0\ns_cbranch_scc1 L_w0b")
    A(f"s_mov_b32 s{sKo}, s{sA}\ns_mov_b32 s{sKo2}, s{sB}")
    poll(A, "L_pln", 40, sWS, f"s{sVo}", cond_nonce(A, "0xffff"), sleep=2)
    A(f"s_mov_b32 s{sA}, s{sKo}\ns_mov_b32 s{sB}, s{sKo2}")
    A(f"v_mov_b32 v42, s{sN0}\nv_mov_b32 v43, s{sN1}\nds_write_b64 v41, v[42:43]\ns_waitcnt lgkmcnt(0)")
    A("L_w0b:")
    A("s_barrier")
    stamp(A, 2)
    straight(A, xload(0) + xload(1))
    A("ds_read_b64 v[42:43], v41")
    order = [list(range(15))] * 9 + [[14, 12, 13] + list(range(12))]
    def wread(ch, pos, e, h):
        ct = order[ch][pos]
        n = 15 * ch + pos; d = KV + 8 * (n % 6) + 4 * e + 2 * h; sl = ch % 3
        if ct < 12:
            ks, p = ct >> 1, ct & 1
            a, o = (WA[ks & 1], sl * STG) if sl < 2 else (WA2[ks & 1], 0)
            return f"ds_read_b64_tr_b16 {vr(d,2)}, v{a} offset:{o + (ks >> 1)*128 + 8*p + e*12288 + h*6144}"
        return f"ds_read_b64_tr_b16 {vr(d,2)}, v{W1A[ct-12]} offset:{sl*8192 + e*4096 + h*2048}"
    mf = []
    for ch in range(10):
        for pos in range(15):
            ct = order[ch][pos]; n = 15 * ch + pos
            for qb in range(4):
                for i_, e in enumerate(snk(2, qb)):
                    acc = ar(4 * (ct * 4 + qb)) if ct < 12 else vr(HACC[ct] + 4 * qb)
                    c = "0" if (ch == 0 and i_ == 0 and ct < 12) else acc
                    mf.append(Ins(f"{MF} {acc}, {vr(KV + 8*(n%6) + 4*e)}, {vr(XB[ch%3] + 4*(qb*2+e))}, {c}"))
    G = Gaps(mf)
    for pos in range(3):
        for e in range(2):
            for h in range(2): A(wread(0, pos, e, h))
    A.l.append(lgw(rs(KV, 8)))
    A(f"v_readfirstlane_b32 s{sN0}, v42\nv_readfirstlane_b32 s{sN1}, v43")
    A.l.append(vmw({"X0"}))
    stamp(A, 3); zst(A, 6, 1)
    if opt["zoom"] == 6:
        for ch in range(10):
            Z = Asm(); zst(Z, 6, 2 + ch); G.blk[120 * ch + 119] = Z.l
    late_fill = []
    for ch in range(10):
        b = 120 * ch
        for pos in range(12):
            n = 0
            for e in range(2):
                for h in range(2):
                    G.place(b + 8 * pos + (2 * n if ch < 9 else 4 * (n >> 1)), wread(ch, pos + 3, e, h)); n += 1
        gb = b + 102
        G.put(gb, vmw({f"W{ch+1}"} if ch < 9 else {"K0", "V0"}, " lgkmcnt(0)")); G.put(gb, Ins("s_barrier"))
        if ch < 9:
            n = 0
            for pos in range(3):
                for e in range(2):
                    for h in range(2):
                        G.place(gb + 1 + n + n // 4, wread(ch + 1, pos, e, h)); n += 1
            G.put(b + 118, vmw({f"X{ch+1}"}))
        else:
            for ks in range(6): G.place(gb + 1 + 2 * ks, kread(0, 0, ks))
        for pos in range(15):
            n = 15 * ch + pos
            if b + 8 * pos - 1 >= 0: G.put(b + 8 * pos - 1, lgw(rs(KV + 8 * (n % 6), 8)))
        ke = opt["kearly"]
        if ch + 2 < 10:
            lst = wdma(ch + 2) + xload(ch + 2)
            if ke == 1 and ch in (6, 7): lst += kvdma(sK, KRING + (ch - 6) * STG, ch - 6, f"K{ch-6}")
            if ke == 2 and ch in (4, 5, 6, 7): lst += kvdma(sK, KRING + ((ch - 4) >> 1) * STG, (ch - 4) >> 1, f"K{(ch-4)>>1}")[5 * (ch & 1): 5 * (ch & 1) + 5]
        elif ch == 8: lst = ([] if ke else kvdma(sK, KRING, 0, "K0")) + kvdma(sV, VRING + STG, 0, "V0")
        else: lst = ([] if ke else kvdma(sK, KRING + STG, 1, "K1")) + kvdma(sV, VRING + 2 * STG, 1, "V1")
        if ch == opt["kvw"] and ch:
            q_ = [f"s_lshr_b32 s{sE}, s{sQB0}, 2", f"s_mul_i32 s{sKo}, s{sE}, 2304", f"s_mul_i32 s{sE}, s{sE}, 1536", "v_lshlrev_b32 v60, 7, v0", "v_add_u32 v60, 128, v60",
                  f"v_min_u32 v61, {128 + 17*128}, v60", f"v_min_u32 v60, {128 + 11*128}, v60",
                  (f"buffer_load_dword v62, v61, {sr(sK)}, s{sKo} offen", 0, False, "PF"), (f"buffer_load_dword v62, v60, {sr(sV)}, s{sE} offen", b + 40, False, "PF")]
            late_fill.append((q_, b + 2))
        g = spread(G, lst, b, b + (117 if ch < 9 else 100))
        assert g <= b + 120, g
    if opt["pfm"]:
        b_ = 120 * opt["pfm"]
        G.blk[b_ + 3] = [Ins("s_getpc_b64 s[34:35]"), Ins("L_pc3:"), Ins(f"s_lshl_b32 s{sE}, s{sW}, 13"), Ins(f"s_add_u32 s{sE}, s{sE}, L_mid-L_pc3"),
                         Ins(f"s_add_u32 s34, s34, s{sE}"), Ins("s_addc_u32 s35, s35, 0")]
        late_fill.append((["v_lshlrev_b32 v63, 7, v0", ("global_load_dword v63, v63, s[34:35]", b_ + 9, False, "PF")], b_ + 5))
    for q_, g_ in late_fill: assert not G.fill(q_, g_)
    b = 1080
    spread(G, kvdma(sK, KRING + 2 * STG, 2, "K2"), b + 103, b + 119)
    k0 = -2.0 * LOG2E * math.sqrt(2.0 / math.pi) / CSC; k1 = k0 * 0.044715 / (CSC * CSC)
    HS = {14: sVo, 12: sVo2}
    pre = [f"s_mov_b32 s{sA}, {fh(CSC)}", f"s_mov_b32 s{sB}, {fh(k1)}", f"s_mul_i32 s{sC}, s{sQB0}, {240*1024}", f"s_add_u32 s{sC}, s{sC}, {OH_OFF + 192*1024}",
           f"s_lshl_b32 s{sD}, s{sHEAD}, 10", f"s_add_u32 s{sVo2}, s{sC}, s{sD}", f"s_lshl_b32 s{sD}, s{sHEAD}, 9", f"s_add_u32 s{sVo}, s{sC}, s{sD}", f"s_add_u32 s{sVo}, s{sVo}, 32768"]
    pre += [f"s_lshl_b32 s{sFL}, s{sMT}, 1", f"s_add_u32 s{sFL}, s{sFL}, s{sQH}", f"s_lshl_b32 s{sFL}, s{sFL}, 8", f"s_add_u32 s{sG}, s{sFL}, {HF_OFF}",
            f"s_lshl_b32 s{sE}, s{sSP}, 1", f"s_add_u32 s{sE}, s{sE}, s{sKH}", f"s_lshl_b32 s{sE}, s{sE}, 2", f"s_lshl_b32 s{sMSK}, 15, s{sE}",
            f"s_lshl_b32 s{sE}, s{sQB0}, 6", f"s_and_b32 s{sE}, s{sE}, 0xffffff00", f"s_lshl_b32 s{sD}, s{sHEAD}, 3", f"s_add_u32 s{sQT}, s{sE}, s{sD}"]
    g = b - 118
    for t in pre: g = G.place(g, t) + 1
    assert g < b
    G.place(b - 30, f"v_mov_b32 v{T0}, {fh(k0)}"); G.place(b - 28, f"v_lshlrev_b32 v{T1}, 3, v0"); G.place(b - 26, "v_lshlrev_b32 v10, 4, v0")
    def gelu_q(ct, tmp):
        q = []
        for qb in range(4):
            y = tmp + 8 * (qb & 1); pk = y + 4; so_ = (sE, sF)[qb & 1]
            ad = (f"s_add_u32 s{so_}, s{HS[ct]}, {qb*240*1024}", 0, False, None)
            if ct == 14:
                st = [ad, (f"buffer_store_dwordx2 {vr(pk,2)}, v{T1}, {sr(sWS)}, s{so_} offen sc1", 0, False, "H")]
                q.append(tuple(f(HACC[14] + 4 * qb, y, pk, st) for f in (gelu_ops, gelu_pk)))
            else:
                st = [ad, (f"buffer_store_dwordx4 {vr(pk)}, v10, {sr(sWS)}, s{so_} offen sc1", 0, False, "H")]
                q.append(tuple(f(HACC[12] + 4 * qb, y, pk, []) + f(HACC[13] + 4 * qb, y, pk + 2, st) for f in (gelu_ops, gelu_pk)))
        return q
    g14 = gelu_q(14, XB[1])
    def two_streams(G, tiles, g0, e0, partial=False):
        import copy
        best = None
        for nfit in range(len(tiles), -1, -1):
            G2 = copy.deepcopy(G); ok = True
            for par in range(2):
                q_ = [x for t_ in tiles[par:nfit:2] for x in t_[0]]
                if q_: q_[0] = (q_[0][0], e0, False, None)
                if G2.fill(q_, g0): ok = False
            if ok: break
        part = []
        np_ = nfit + 1 if (partial and nfit < len(tiles)) else nfit
        for par in ((nfit + 1) & 1, nfit & 1):
            q_ = [x for t_ in tiles[par:np_:2] for x in t_[0]]
            if q_: q_[0] = (q_[0][0], e0, False, None)
            part += G.fill(q_, g0)
        print("gelu tiles hidden:", nfit, "of", len(tiles), "partial left", len(part), file=sys.stderr)
        return part + [x for t_ in tiles[np_:] for x in t_[1 if opt["pk"] else 0]]
    left14 = two_streams(G, g14, b, b + 12)
    q = []
    n = 0
    for ks in range(6):
        for qb in range(4):
            f = qb * 6 + ks; x = PB[0] + 16 * (n & 1); n += 1
            e = b + 24 + 16 * ks + 8 + 2 * qb + 1 + 5
            for p in range(2):
                for r in range(4): q.append((f"v_accvgpr_read_b32 v{x+4*p+r}, a{4*((2*ks+p)*4+qb)+r}", e, False, None))
            d = (x + 8) if f < 16 else QV + 4 * (f - 16)
            for i in range(4): q.append((f"v_cvt_pk_bf16_f32 v{d+i}, v{x+2*i}, v{x+2*i+1}", 0, False, None))
            if f < 16:
                for i in range(4): q.append((f"v_accvgpr_write_b32 a{192+4*f+i}, v{d+i}", 0, False, None))
    left = left14 + G.fill(q, b)
    print("Q conversion ops exposed:", len(left) - len(left14), file=sys.stderr)
    A.ext(G.emit())
    A("L_mid:")
    stamp(A, 4); zst(A, 5, 1)
    A("s_nop 7")
    straight(A, left)
    zst(A, 5, 2)
    for i in range(4): A(f"ds_read_b64 {vr(244+2*i,2)}, v{VA[i]} offset:{6144*i}")
    A.l.append(lgw(rs(244, 8)))
    for i in range(8): A(f"v_and_b32 v{244+i}, 0x7fff7fff, v{244+i}")
    for i in range(4): A(f"v_pk_max_u16 v{244+i}, v{244+i}, v{248+i}")
    A("v_pk_max_u16 v244, v244, v245\nv_pk_max_u16 v246, v246, v247\nv_pk_max_u16 v244, v244, v246\nv_lshlrev_b32 v245, 16, v244\nv_max_u32 v244, v244, v245")
    A(f"v_cmp_le_u32 vcc, {fh(2.0**-6)}, v244\ns_mov_b32 s{sBI}, {fh(-BIAS_LO)}\ns_mov_b32 s{sLM}, {fh(2.0**(112-BIAS_LO))}\ns_cmp_lg_u64 vcc, 0")
    A(f"s_cselect_b32 s{sBI}, {fh(-BIAS)}, s{sBI}\ns_cselect_b32 s{sLM}, {fh(2.0**(112-BIAS))}, s{sLM}")
    zst(A, 5, 3)
    G = Gaps(qk_mfmas(set())); qk_reads(G, 0, vpre=False)
    gq = gelu_q(12, 240)
    for kb in range(4):
        mq = []
        for qb in range(4):
            m = NREF + 4 * qb; s_ = S(kb, qb); e = 6 * (4 * kb + qb) + 5 + 8
            if kb == 0: mq += [(f"v_max3_f32 v{m}, v{s_}, v{s_+1}, v{s_+2}", e, False, None), (f"v_max_f32 v{m}, v{m}, v{s_+3}", e, False, None)]
            else: mq += [(f"v_max3_f32 v{m}, v{m}, v{s_}, v{s_+1}", e, False, None), (f"v_max3_f32 v{m}, v{m}, v{s_+2}, v{s_+3}", e, False, None)]
        mleft = G.fill(mq, 0)
        assert kb == 3 or not mleft
    left = two_streams(G, gq, 0, 0, partial=True)
    A.ext(G.emit())
    zst(A, 5, 4)
    A.l.append(vmw({"K1"})); A("s_barrier")
    zst(A, 5, 5)
    for r in KA: A(f"v_add_u32 v{r}, {STG}, v{r}")
    A("s_nop 4")
    for ks in range(6): A(kread(0, 0, ks))
    straight(A, mleft)
    for sw in ("v_permlane32_swap_b32", "v_permlane16_swap_b32"):
        for qb in range(4): A(f"v_mov_b32 v{NREF+4*qb+1}, v{NREF+4*qb}")
        for qb in range(4): A(f"{sw} v{NREF+4*qb}, v{NREF+4*qb+1}")
        for qb in range(4): A(f"v_max_f32 v{NREF+4*qb}, v{NREF+4*qb}, v{NREF+4*qb+1}")
    for qb in range(4): A(f"v_sub_f32 v{NREF+4*qb}, s{sBI}, v{NREF+4*qb}")
    for qb in range(4):
        for r in range(1, 4): A(f"v_mov_b32 v{NREF+4*qb+r}, v{NREF+4*qb}")
    zst(A, 5, 6)
    straight(A, left)
    zst(A, 5, 7)
    sm = sm_ops(0)
    L2 = 240
    for i in range(17):
        kb, qb = (i >> 2) & 3, i & 3
        if i < 16:
            for k in range(2): A(f"v_pk_add_f32 {vr(S(kb,qb)+2*k,2)}, {vr(S(kb,qb)+2*k,2)}, {vr(NREF+4*qb,2)}")
            for t in sm[i][0]: A(t)
        else: A("s_nop 0")
        if i > 0:
            j = i - 1; s_ = S(j >> 2, j & 3); l_ = L2 + 2 * (j & 3)
            if j < 4: A(f"v_pk_add_f32 {vr(l_,2)}, {vr(s_,2)}, {vr(s_+2,2)}")
            else:
                for k in range(2): A(f"v_pk_add_f32 {vr(l_,2)}, {vr(l_,2)}, {vr(s_+2*k,2)}")
            for t in sm[j][2]: A(t)
    for qb in range(4): A(f"v_add_f32 v{LS[qb]}, v{L2+2*qb}, v{L2+2*qb+1}")
    A(f"s_add_u32 s{sKo}, s{sWb}, {3*STG}\ns_mov_b32 s{sCnt}, 5")
    A(f"s_add_u32 s{sE}, s{sQT}, {HF_OFF}")
    A(f"v_mov_b32 v{T0}, s{sN0}\nv_mov_b32 v{T1}, s{sN1}")
    bp, bq = b_addr_ops()
    for t in bp: A(t)
    stamp(A, 5); zst(A, 5, 8); zst(A, 7, 1)
    A("s_waitcnt lgkmcnt(0)")
    Gf = gen_step(0, 0, first=True)
    Gf.place(177, f"buffer_store_dwordx2 {vr(T0,2)}, v{ZV}, {sr(sWS)}, s{sE} offen sc1")
    assert not Gf.fill(bq, 0, 192)
    sf = Gf.emit()
    A(f"s_getpc_b64 s[16:17]\nL_pc2:\ns_lshr_b32 s19, s2, 3\ns_lshl_b32 s19, s19, 2\ns_add_u32 s19, s19, s{sW}\ns_lshl_b32 s18, s{sW}, 13")
    A("s_add_u32 s18, s18, L_tail-L_pc2\ns_add_u32 s16, s16, s18\ns_addc_u32 s17, s17, 0")
    A(f"s_mul_i32 s18, s19, 15360\ns_mul_i32 s24, s{sSP}, {1536*1280}\ns_add_u32 s18, s18, s24\ns_add_u32 s26, s18, 8192")
    A(f"s_mul_i32 s19, s19, 3840\ns_mul_i32 s24, s{sSP}, {384*1280}\ns_add_u32 s19, s19, s24\ns_brev_b32 s27, 1")
    ex = {1: [(179, f"buffer_load_dword v254, v{PFV}, {sr(sWO)}, s24 offen")], 2: [(179, f"buffer_load_dword v254, v{PFV}, {sr(sWO)}, s24 offen")],
          3: [(179, f"buffer_load_dword v254, v{PFV}, {sr(sW2)}, s24 offen")], 4: [(179, f"global_load_dword v254, v{PFV}, s[16:17]")],
          }
    st = []
    for k in range(6):
        Gk = gen_step((k + 1) & 1, (k + 1) % 3, extra=ex.get(k, []))
        if k in (1, 2, 3): Gk.place2(150, f"s_cmp_eq_u32 s{sCnt}, 0", f"s_cselect_b32 s24, s{(0, 18, 26, 19)[k]}, s27")
        if k == 0: Gk.place(186, f"s_sub_u32 s{sCnt}, s{sCnt}, 1")
        if k == 4: Gk.place(186, f"s_cmp_eq_u32 s{sCnt}, 0")
        st.append(Gk.emit())
    pro = list(A.l)
    auto_vm(pro); auto_lgkm(pro)
    auto_lgkm(sf)
    for k in range(6): auto_lgkm(st[k], pre=st[k - 1])
    s0 = st[4]; s1 = [x for k in range(4) for x in st[k]]
    A.ext(sf)
    zst(A, 7, 2)
    A(".p2align 6\nL_loop:")
    A.ext(s1); A.ext(s0); A("s_cbranch_scc1 L_tail"); A.ext(st[5]); A("s_branch L_loop")
    OOL = Asm()
    w01 = b_wdma(sW2, "W0", 0, step=96) + b_wdma(sW2, "W1", STB, step=(sNeg,))
    ra = [t.replace(f"v_cndmask_b32 v{RA[2]},", "v_cndmask_b32 v254,").replace(f"v_cndmask_b32 v{RA[3]},", "v_cndmask_b32 v255,") for t in b_ra_ops()]
    ra = [t for t in ra if t != "s_nop 0"]
    b_ra_fin = [f"v_mov_b32 v{RA[2]}, v254", f"v_mov_b32 v{RA[3]}, v255", f"v_mov_b32 v254, s{sN0}", f"v_mov_b32 v255, s{sN1}"]
    post = []
    def last(G):
        B = 96
        G.place(2, f"buffer_load_dwordx2 {vr(T0,2)}, v{FLV}, {sr(sWS)}, s{sG} offen sc1")
        g = 4
        for t in b_scalars(): g = G.place(g, t) + (1 if t.startswith("v_") else 0)
        assert g < 90
        G.put(92, Ins("s_waitcnt vmcnt(0)")); G.put(92, Ins("s_barrier"))
        X_ = Asm(); cond_nonce(X_, f"s{sMSK}")(); X_("s_cbranch_scc1 L_o1\nL_o1_r:"); G.blk[94] = X_.l
        OOL("L_o1:"); poll(OOL, "L_ph", FLV, sWS, f"s{sG}", cond_nonce(OOL, f"s{sMSK}"), sleep=8); OOL("s_branch L_o1_r")
        for i, r in enumerate(VA): G.place(B + 72 + i, f"v_add_u32 v{r}, {STG}, v{r}")
        n = 0
        for db in range(3):
            for e in range(2):
                for h in range(2):
                    G.place(B + 77 + (3 * n) // 2, vread(db, e, h)); n += 1
        spread(G, w01, B, B + 92)
        post.append(G)
    Gl = gen_step(0, 0, last=last)
    k_ = [i for i, t in enumerate(ra) if t.startswith("s_cmp")][0]
    q_ = ra[:k_] + oepi_pre() + [f"s_lshl_b32 s16, s{sW}, 2", f"s_add_u32 s16, s16, {LDS_FL}", f"v_mov_b32 v{NREF+5}, s16", f"v_mov_b32 v{NREF+6}, {LDS_FL}"]
    lf_ = Gl.fill(q_, 100); print("step-30 set-up ops left over:", len(lf_), file=sys.stderr)
    T = Asm()
    T("L_tail:")
    T.ext(Gl.emit())
    straight(T, lf_)
    zst(T, 1, 1)
    stamp(T, 6)
    lred(T)
    T(f"v_cmp_nge_f32 vcc, s{sLM}, v{LS[0]}")
    for qb in range(1, 4): T(f"v_cmp_nge_f32 s[34:35], s{sLM}, v{LS[qb]}\ns_nop 0\ns_or_b64 vcc, vcc, s[34:35]")
    T(f"s_cmp_lg_u64 vcc, 0\ns_cselect_b32 s16, 1, {opt['forcesafe']}\nv_mov_b32 v{NREF}, s16")
    T(f"ds_write_b32 v{NREF+5}, v{NREF}")
    for qb in range(4): T(f"v_rcp_f32 v{LS[qb]}, v{LS[qb]}")
    for t in ra[k_:]: T(t)
    T(f"v_mov_b32 v{NREF+2}, v{NREF+6}")
    T("s_waitcnt lgkmcnt(0)\ns_barrier")
    T(f"ds_read_b128 {vr(NREF+4)}, v{NREF+2}")
    G = Gaps(pv_mfmas(1)); pv_reads(G, 0)
    G.put(3, lgw(rs(NREF + 4, 4)))
    G.place(4, f"v_or3_b32 v{NREF}, v{NREF+4}, v{NREF+5}, v{NREF+6}"); G.place(5, f"v_or_b32 v{NREF}, v{NREF}, v{NREF+7}")
    G.place(7, f"v_readfirstlane_b32 s{sE}, v{NREF}")
    gck = G.place2(9, f"s_cmp_lg_u32 s{sE}, 0", "s_cbranch_scc1 L_safe")
    w2_ = b_wdma(sW2, "W2", 2 * STB, second=48)
    l0_ = ([] if opt["w2t"] else w2_) + hload(2, "O2"); l1_ = []
    ylo = hload(0, "O0") + hload(1, "O1") + (w2_ if opt["w2t"] else [])
    g = spread(G, ylo, gck + 1, opt["hl"])
    oq, _ = oepi_ops()
    items = []; cur = []
    for x in oq:
        if x[3] == "OST": items.append((cur, x)); cur = []
        else: cur.append(x)
    pc = [int(x) for x in opt["pace"].split(",")]; assert sum(pc) == 24
    first = []
    for n in range(12):
        first += items[n][0]
        if n < pc[0]: first.append(items[n][1])
    left = G.fill(first, 12)
    T.ext(G.emit())
    if opt["tst"] == 2: stamp(T, 7)
    zst(T, 1, 2)
    T("s_nop 7")
    straight(T, pkify(left))
    T("L_join:")
    zst(T, 1, 3)
    if opt["tst"] == 0: stamp(T, 7)
    for t in b_ra_fin: T(t)
    T.l.append(vmw({"W0", "O0"})); T("s_barrier")
    for nb in range(3):
        for e in range(2):
            for h in range(2): T(bread(0, nb, e, h))
    T(f"s_add_u32 s17, s{sQT}, {AF_OFF}")
    T("s_waitcnt lgkmcnt(0)")
    zst(T, 1, 4)
    def paced(k, lim=78):
        n0 = sum(pc[:k + 1]); q = []
        for j in range(pc[k + 1]):
            n = n0 + j; g = 2 + (lim - 2) * j // pc[k + 1]
            if n >= 12: q += [(t, max(0, g - 7), ng, tag) for (t, e, ng, tag) in items[n][0]]
            q.append((items[n][1][0], g, False, "OST"))
        return q
    c0, late = b_chunk(0, l0_, {"W1"}, {"O1"}, czero=True, fillq=paced(0), lim=opt["jl"] if opt["jit"] else None)
    T.ext(c0); straight(T, late); print("y0 leftover", len(late), file=sys.stderr)
    zst(T, 1, 5)
    so = {1: 18, 2: 19, 3: 16}; sYC, sXC, sYF, sXF = 26, 27, 24, 25
    assert pc[2] == pc[3] == 0 and opt["afc"] == 1
    a1 = [f"v_lshlrev_b32 v4, 4, v0", f"s_mul_i32 s{sE}, s{sW}, 20480", f"v_add_u32 v2, s{sE}, v4", f"s_xor_b32 s{sE}, s{sW}, 2", f"s_mul_i32 s{sE}, s{sE}, 20480", f"v_add_u32 v3, s{sE}, v4",
          "v_lshlrev_b32 v1, 3, v0", "v_add_u32 v1, 2048, v1", f"s_add_u32 s{sG}, s{sFL}, {AF_OFF}", f"s_mov_b32 s{sKo}, s{sF}"]
    c1, left = b_chunk(1, [f"s_mov_b32 s{sVo}, s{sH}"] + b_wdma(sWO, "W3", 3 * STB), {"W2"}, {"O2"}, lim=opt["jl"], fillq=a1, af=opt["afg"])
    T.ext(c1); assert not left
    zst(T, 1, 6)
    a2 = [f"s_lshl_b32 s{sH}, s{sMT}, 2", f"s_add_u32 s{sH}, s{sH}, s{sNT}"] + [t.replace(f"s{sA}", f"s{sInc}") for t in slot_scalars(YC_OFF, so, sYC)]
    a2 += [f"s_lshl_b32 s{sC}, s{sH}, 2", f"s_add_u32 s{sC}, s{sC}, s{sW}", f"s_lshl_b32 s{sC}, s{sC}, 6", f"s_add_u32 s{sYF}, s{sC}, {YF_OFF}", f"s_add_u32 s{sXF}, s{sC}, {XF_OFF}"]
    c2 = b_chunk(2, a2, {"W3"}, None, xw=True, inc=STB, lim=40,
                 puts=[(opt["aflg"], f"buffer_load_dwordx2 {vr(T0,2)}, v{FLV}, {sr(sWS)}, s{sG} offen sc1", "AFL")])
    T.ext(c2)
    zst(T, 1, 7); stamp(T, 8)
    YO = 80; YP = 100
    try_ = lambda i, r: (YO, 16, 130, 216)[r] + 4 * i
    T.l.append(vmw({"AFL"})); cond_nonce(T, f"s{sMSK}")(); T(f"s_cselect_b32 s{sD}, 1, 0")
    T("s_waitcnt lgkmcnt(0)\ns_barrier")
    stamp(T, 9); zst(T, 1, 8); zst(T, 2, 1)
    xchg_reads(T, try_)
    T(f"s_cmp_lg_u32 s{sD}, 0\ns_cbranch_scc1 L_o2")
    straight(T, oload(1, "O1"))
    T("s_waitcnt lgkmcnt(0)\ns_barrier")
    S_ = Asm(); yst = xchg_sum(S_, try_, YP, so, False)
    rest = Asm(); straight(rest, oload(2, "O2") + b_wdma(sWO, "W2", 2 * STB))
    grp = []; cur = []
    for x in rest.l:
        cur.append(x)
        if x.kind == "vmem": grp.append(cur); cur = []
    grp[-1] += cur
    for n, x in enumerate(S_.l):
        T.l.append(x)
        if n % 8 == 3 and grp: T.ext(grp.pop(0))
    for g_ in grp: T.ext(g_)
    zst(T, 1, 9)
    T.l.append(vmw({"O1"}))
    T("L_o2_r:")
    T(f"s_mov_b32 s{sCnt}, 2\ns_lshl_b32 s{sE}, s{sSP}, 3\ns_add_u32 s{sG}, s{sYF}, s{sE}")
    OOL("L_o2:"); straight(OOL, b_wdma(sWO, "W2", 2 * STB)); OOL("s_waitcnt lgkmcnt(0)\ns_barrier")
    xchg_sum(OOL, try_, YP, so, False)
    poll(OOL, "L_pat", FLV, sWS, f"s{sG}", cond_nonce(OOL, f"s{sMSK}"), sleep=4)
    straight(OOL, oload(1, "O1") + oload(2, "O2")); OOL("s_waitcnt vmcnt(8)\ns_branch L_o2_r")
    zst(T, 1, 10); zst(T, 2, 2)
    def sl(u): return b_wdma(sWO, f"W{(u+2)%3}", ((u + 2) % 3) * STB) + oload((u + 2) % 3, f"O{(u+2)%3}")
    def nx(k, u): return {f"{k}{(u+1)%3}"}
    for n, u in enumerate((1, 2, 0)):
        T.ext(b_chunk(u, merge(sl(u), yst[5 * n: 5 * n + 5]), nx("W", u), nx("O", u), czero=(n == 0), ph=n, inc=-STB if n == 0 else None))
        zst(T, 2, 3 + n)
    zst(T, 1, 11)
    tail = list(T.l)
    auto_lgkm(tail, pre=s0); auto_vm(tail)
    A.ext(tail)
    steps = [b_chunk(1, sl(1), nx("W", 1), nx("O", 1), ph=0, first_gap=[f"s_sub_u32 s{sCnt}, s{sCnt}, 1"]),
             b_chunk(2, sl(2), nx("W", 2), nx("O", 2), ph=1, after_barrier=f"buffer_store_dwordx2 v[254:255], v{ZV}, {sr(sWS)}, s{sG} offen sc1"),
             b_chunk(0, sl(0), nx("W", 0), nx("O", 0), ph=2, last_gap=[f"s_cmp_lg_u32 s{sCnt}, 0"])]
    for u in range(3):
        auto_lgkm(steps[u], pre=steps[(u + 2) % 3]); auto_vm(steps[u], pre=steps[(u + 1) % 3] + steps[(u + 2) % 3])
    A(".p2align 6\nL_bloop:")
    for u in range(3): A.ext(steps[u])
    A("s_cbranch_scc1 L_bloop")
    PKS = 16; XL = 48; B2L = 58
    E = Asm()
    zst(E, 2, 6)
    E(f"v_and_b32 v6, 3, v0\nv_lshlrev_b32 v6, 3, v6\ns_lshl_b32 s{sMSK}, 1, s{sSP}\ns_xor_b32 s{sMSK}, s{sMSK}, 15")
    a3 = [f"v_add_u32 v2, {STB}, v2", f"v_add_u32 v3, {STB}, v3",
          "v_lshrrev_b32 v7, 4, v0", "v_lshlrev_b32 v7, 3, v7", "v_and_b32 v5, 15, v0", "v_mul_u32_u24 v5, 1280, v5", "v_add_u32 v5, v5, v7"]
    c, left = b_chunk(1, [(f"buffer_load_dwordx2 {vr(T0,2)}, v6, {sr(sWS)}, s{sYF} offen sc1", "YF")] + sl(1), nx("W", 1), nx("O", 1), ph=0, fillq=a3); assert not left
    E.ext(c)
    E.l.append(vmw({"YF"}))
    poll(E, "L_py", 6, sWS, f"s{sYF}", cond_nonce(E, f"s{sMSK}"), sleep=4, precheck=True)
    zst(E, 2, 7)
    a4 = [f"s_lshr_b32 s{sC}, s{sFL}, 6", f"s_add_u32 s{sC}, s{sC}, s{sSP}", f"s_mul_i32 s{sKo}, s{sC}, 20480",
          f"s_mul_i32 s{sC}, s{sNT}, 320", f"s_mul_i32 s{sB}, s{sKH}, 160", f"s_add_u32 s{sC}, s{sC}, s{sB}", f"s_add_u32 s{sKo}, s{sKo}, s{sC}"]
    E.ext(b_chunk(2, inbox_loads(sYC, YP, "YL") + a4, nx("W", 2), nx("O", 2), ph=1, lim=50))
    zst(E, 2, 8)
    l2 = [(f"buffer_load_dwordx2 {vr(B2L+2*i,2)}, v7, {sr(sB2)}, s{sC} offen offset:{32*i}", "YL") for i in range(5)]
    l2 += [(f"buffer_load_dwordx2 {vr(XL+2*i,2)}, v5, {sr(sX)}, s{sKo} offen offset:{32*i}", "YL") for i in range(5)]
    if opt["opre"]: l2 += [(f"buffer_load_dword v70, v5, {sr(sOUT)}, s{sKo} offen offset:{o_}", "YL") for o_ in (0, 128)]
    a5 = slot_scalars(XC_OFF, so, sXC) + [f"s_lshl_b32 s{sE}, s{sSP}, 3", f"s_add_u32 s{sG}, s{sXF}, s{sE}"]
    c, left = b_chunk(0, l2, None, None, nxt=False, xw=True, ph=2, lim=36, fillq=a5); assert not left
    E.ext(c)
    stamp(E, 10); zst(E, 2, 9); zst(E, 3, 1)
    auto_lgkm(E.l, pre=steps[2]); auto_vm(E.l, pre=steps[1] + steps[2])
    trs = lambda i, r: 160 + 20 * r + 4 * i
    E("s_waitcnt lgkmcnt(0)\ns_barrier")
    xchg_reads(E, trs)
    xchg_sum(E, trs, PKS, so, True)
    zst(E, 2, 10); zst(E, 3, 2)
    E("s_waitcnt vmcnt(9)")
    E(f"s_mov_b32 s{sC}, 0x3f80\ns_mov_b32 s{sD}, 0x3f800000")
    def dacc(x, src):
        for k in range(2): E(f"v_dot2_f32_bf16 v{x+2*k}, v{src+k}, s{sC}, v{x+2*k}\nv_dot2_f32_bf16 v{x+2*k+1}, v{src+k}, s{sD}, v{x+2*k+1}")
    for p in range(4):
        for i in range(5): dacc(YO + 4 * i, (B2L + 2 * i) if p == 3 else (YP + 10 * p + 2 * i))
    zst(E, 3, 3)
    E("s_waitcnt vmcnt(0)")
    zst(E, 3, 4)
    E(f"buffer_store_dwordx2 v[254:255], v{ZV}, {sr(sWS)}, s{sG} offen sc1")
    for i in range(5):
        g_ = YO + 4 * i; t = 130 + 4 * i
        for k in range(4): E(f"v_mul_f32 v{t+k}, {fh(-LOG2E)}, v{g_+k}")
        for k in range(4): E(f"v_exp_f32 v{t+k}, v{t+k}")
        for k in range(4): E(f"v_add_f32 v{t+k}, 1.0, v{t+k}")
        for k in range(4): E(f"v_rcp_f32 v{t+k}, v{t+k}")
        for k in range(4): E(f"v_mul_f32 v{g_+k}, v{g_+k}, v{t+k}")
        for k in range(2): E(f"v_lshlrev_b32 v{t+2*k}, 16, v{XL+2*i+k}\nv_and_b32 v{t+2*k+1}, 0xffff0000, v{XL+2*i+k}")
    zst(E, 3, 5)
    poll(E, "L_pxc", 6, sWS, f"s{sXF}", cond_nonce(E, f"s{sMSK}"), sleep=1)
    stamp(E, 11); zst(E, 2, 11); zst(E, 3, 6)
    straight(E, inbox_loads(sXC, PKS, "XL"))
    for r in (1, 2, 3):
        E(f"s_waitcnt vmcnt({9-3*r})")
        for i in range(5): dacc(trs(i, 0), PKS + 10 * (r - 1) + 2 * i)
    for i in range(5):
        x = trs(i, 0)
        for k in range(2): E(f"v_pk_fma_f32 {vr(x+2*k,2)}, {vr(x+2*k,2)}, {vr(YO+4*i+2*k,2)}, {vr(130+4*i+2*k,2)}")
        for k in range(2): E(f"v_cvt_pk_bf16_f32 v{trs(i,2)+k}, v{x+2*k}, v{x+2*k+1}")
        E(f"buffer_store_dwordx2 {vr(trs(i,2),2)}, v5, {sr(sOUT)}, s{sKo} offen offset:{32*i}{(' ' + opt['ost'].replace('+', ' ')) if opt['ost'] else ''}")
    if opt["stamp"]:
        E("s_waitcnt vmcnt(0)")
        E("s_memrealtime s[4:5]\ns_memtime s[6:7]\ns_load_dwordx2 s[8:9], s[0:1], 96\ns_waitcnt lgkmcnt(0)")
        E(f"s_add_u32 s8, s8, {ST_OFF}\ns_addc_u32 s9, s9, 0\ns_and_b32 s9, s9, 0xffff\ns_mov_b32 s10, 0x40000\ns_mov_b32 s11, 0x20000")
        E(f"s_lshl_b32 s12, s2, 2\ns_add_u32 s12, s12, s{sW}\ns_lshl_b32 s12, s12, 7\nv_mov_b32 v2, 0\ns_mov_b64 exec, 1")
        for i in range(NST[0] + 1):
            a, b_ = (78 + 2 * i, 79 + 2 * i) if i < NST[0] else (4, 6)
            E(f"v_mov_b32 v{16+2*i}, s{a}\nv_mov_b32 v{17+2*i}, s{b_}\nbuffer_store_dwordx2 v[{16+2*i}:{17+2*i}], v2, s[8:11], s12 offen offset:{8*i}")
    if opt["stamp"] and opt["dbgst"]:
        E("s_load_dwordx2 s[8:9], s[0:1], 88\ns_waitcnt lgkmcnt(0)\ns_and_b32 s9, s9, 0xffff\ns_mov_b32 s10, 256\ns_mov_b32 s11, 0x20000")
        E("s_not_b32 s78, s78")
        for i in range(NST[0] + 1):
            a_ = 78 + 2 * i if i < NST[0] else 4
            E(f"v_mov_b32 v{16+i}, s{a_}\nbuffer_atomic_umax v{16+i}, v2, s[8:11], 0 offen offset:{8+4*i} sc1")
    ec = list(E.l)
    A.ext(ec)
    A("L_done:\ns_endpgm")
    A.ext(OOL.l); problems += check_hazards(OOL.l, "ool")
    F = Asm()
    F("L_safe:")
    F("s_waitcnt vmcnt(0) lgkmcnt(0)\ns_nop 7")
    for r in KA: F(f"v_subrev_u32 v{r}, {STG}, v{r}")
    for r in VA: F(f"v_subrev_u32 v{r}, {2*STG}, v{r}")
    for i in range(192): F(f"v_accvgpr_write_b32 a{i}, 0")
    MX = PB[1]
    for qb in range(4): F(f"v_mov_b32 v{LS[qb]}, 0\nv_mov_b32 v{MX+qb}, 0xff7fffff")
    F(f"s_mov_b32 s{sSlot}, s{sWb}\ns_mov_b32 s{sCnt}, 32")
    Fp = list(F.l)
    L = Asm()
    L("L_sloop:")
    L("s_barrier")
    for srd_, base in ((sK, KRING), (sV, VRING)):
        for hf in range(2):
            L(f"s_add_u32 s{sInc}, s{sSlot}, {3072*hf}\ns_add_u32 m0, s{sWb}, {base + 3072*hf}\ns_nop 0")
            for j in range(3): L(f"buffer_load_dwordx4 v{DSR[j]}, {sr(srd_)}, s{sInc} offen offset:{1024*j} lds")
    L(f"s_add_u32 s{sSlot}, s{sSlot}, {STG}")
    L("s_waitcnt vmcnt(0)\ns_barrier")
    for ks in range(6): L(kread(0, 0, ks))
    L("s_waitcnt lgkmcnt(0)")
    G = Gaps(qk_mfmas(set())); qk_reads(G, 0, vpre=True)
    L.ext(G.emit())
    L("s_nop 7")
    for qb in range(4):
        m = NREF + 4 * qb
        v = [S(kb, qb) + r for kb in range(4) for r in range(4)]
        L(f"v_max3_f32 v{m}, v{v[0]}, v{v[1]}, v{MX+qb}")
        for i in range(2, 16, 2): L(f"v_max3_f32 v{m}, v{m}, v{v[i]}, v{v[i+1]}")
    for sw in ("v_permlane32_swap_b32", "v_permlane16_swap_b32"):
        for qb in range(4): L(f"v_mov_b32 v{NREF+4*qb+1}, v{NREF+4*qb}")
        for qb in range(4): L(f"{sw} v{NREF+4*qb}, v{NREF+4*qb+1}")
        for qb in range(4): L(f"v_max_f32 v{NREF+4*qb}, v{NREF+4*qb}, v{NREF+4*qb+1}")
    for qb in range(4): L(f"v_sub_f32 v{NREF+4*qb+1}, v{MX+qb}, v{NREF+4*qb}")
    for qb in range(4): L(f"v_exp_f32 v{NREF+4*qb+1}, v{NREF+4*qb+1}")
    for qb in range(4): L(f"v_mov_b32 v{MX+qb}, v{NREF+4*qb}")
    for qb in range(4): L(f"v_mul_f32 v{LS[qb]}, v{LS[qb]}, v{NREF+4*qb+1}")
    for db in range(12):
        for qb in range(4):
            t = PB[1] + 8 + 4 * ((db * 4 + qb) % 4)
            for r in range(4): L(f"v_accvgpr_read_b32 v{t+r}, a{O(db,qb)+r}")
            for r in range(4): L(f"v_mul_f32 v{t+r}, v{t+r}, v{NREF+4*qb+1}")
            for r in range(4): L(f"v_accvgpr_write_b32 a{O(db,qb)+r}, v{t+r}")
    for kb in range(4):
        for qb in range(4):
            for r in range(4): L(f"v_sub_f32 v{S(kb,qb)+r}, v{S(kb,qb)+r}, v{MX+qb}")
    for (ex, ad, cv) in sm_ops(0):
        for t in ex: L(t)
        L("s_nop 0")
        for t in ad + cv: L(t)
    L("s_waitcnt lgkmcnt(0)\ns_nop 1")
    G = Gaps(pv_mfmas(0)); pv_reads(G, 0)
    L.ext(G.emit())
    L(f"s_sub_u32 s{sCnt}, s{sCnt}, 1\ns_cmp_lg_u32 s{sCnt}, 0\ns_cbranch_scc1 L_sloop")
    auto_lgkm(L.l)
    X = Asm()
    X("s_waitcnt lgkmcnt(0)\ns_barrier")
    lred(X)
    for qb in range(4): X(f"v_rcp_f32 v{LS[qb]}, v{LS[qb]}")
    for t in b_scalars() + oepi_pre(): X(t)
    straight(X, w01 + ylo)
    straight(X, first)
    X("s_waitcnt vmcnt(0)\ns_branch L_join")
    A.ext(Fp); A.ext(L.l); A.ext(X.l)
    j = [i for i, x in enumerate(tail) if x.text == "L_join:"][0]
    ck = [i for i, x in enumerate(tail) if "L_safe" in x.text][0]
    bl = steps[0] + steps[1] + steps[2]
    main = pro + sf + s1 + s0 + st[5] + s1 + s0 + tail + bl + bl + ec
    problems += check_hazards(main, "main"); problems += check_waits(main, "main")[0]
    safe = s0 + tail[:ck + 1] + Fp + L.l + L.l + X.l + tail[j:]
    problems += check_hazards(safe, "safe"); problems += check_waits(safe, "safe")[0]
    return A.text()

body = gen()
kn = NAME + "_kernel"
out = f"""; generated by gen/gen16.py (own generator): one persistent launch, 1 workgroup per CU
; @launch grid=(256,1,1) block=(256,1,1) lds={LDS_SZ}
.amdgcn_target "amdgcn-amd-amdhsa--gfx950"
.text
.globl {kn}
.p2align 8
.type {kn},@function
{kn}:
{body}
.section .rodata,"a"
.p2align 6
.amdhsa_kernel {kn}
  .amdhsa_next_free_vgpr 512
  .amdhsa_next_free_sgpr 102
  .amdhsa_accum_offset 256
  .amdhsa_group_segment_fixed_size 0
  .amdhsa_kernarg_size 104
  .amdhsa_user_sgpr_count 2
  .amdhsa_user_sgpr_kernarg_segment_ptr 1
  .amdhsa_system_sgpr_workgroup_id_x 1
.end_amdhsa_kernel
"""
if problems:
    for p in sorted(set(problems)): print(p, file=sys.stderr)
    print(f"{len(set(problems))} problems", file=sys.stderr)
sys.stdout.write(out)
```

```python
import sys, math, struct, re
from asmlib import *

NAME = "recurrent_scan__gqa_block_cached__dense_activation_gelu__prompt"
def f2u(x): return struct.unpack("<I", struct.pack("<f", x))[0]
def fh(x): return f"0x{f2u(x):08x}"
LOG2E = math.log2(math.e)
CSC = LOG2E / math.sqrt(192.0)
XS_OFF = 0
OH_OFF = 0x400000
YC_OFF = 0x2400000
XC_OFF = 0x3c00000
FL_OFF = 0x4800000
AF_OFF = FL_OFF; HF_OFF = FL_OFF + 0x4000; XF_OFF = FL_OFF + 0x8000; YF_OFF = FL_OFF + 0xc000; LF_OFF = FL_OFF + 0x10000
WS_SZ = 0x5000000
ST_OFF = 0x8000000
LDS_LN = 147456; LDS_FL = LDS_LN + 2048; LDS_SZ = 163840
SPIN = 1 << 18
MARK = 0x7f817f81

opt = dict(stamp=0, forcesafe=0, pf=1, warm=0, pst=128, snake=1, bias=102, opf=0, dense=4, zoom=0, pace="10,14,0,0", afc=1, afg=40, lim1=64, wqpf=1, aflg=56, xws=33, xat=0, xpm=0, xsl=1, nobar=0, gbar=80, lns=2, ost="", opre=0, xw0=11, pk=1, dbgst=0, warmh=0, jit=0, yin=0, kvw=0, pfm=6, hl=92, w2t=1, kearly=1, noh=0, jl=60, nearly=8, tst=0)
for a in sys.argv[1:]:
    k, v = a.split("="); opt[k] = type(opt.get(k, ""))(v)
problems = []
BIAS = opt["bias"]; BIAS_LO = 48
def snk(n, i): return list(range(n))[::-1] if (opt["snake"] and i & 1) else list(range(n))

def vr(b, n=4): return f"v[{b}:{b+n-1}]"
def ar(b, n=4): return f"a[{b}:{b+n-1}]"
def sr(b, n=4): return f"s[{b}:{b+n-1}]"
def rs(b, n): return {f"v{i}" for i in range(b, b + n)}
def lgw(regs): return Ins("s_waitcnt lgkmcnt(?)", ("lg", regs))
def vmw(tags, extra=""): return Ins("s_waitcnt vmcnt(?)" + extra, ("vm", set(tags)))
MF = "v_mfma_f32_16x16x32_bf16"

sK, sV, sWQ, sW1, sWS, sB1, sX, sDBG, sOUT, sWO, sB2, sW2 = 4, 8, 12, 16, 20, 24, 28, 32, 36, 40, 44, 48
sSP = 3
(sW, sHEAD, sQT, sQB0, sKo, sKo2, sVo, sVo2, sSlot, sM, sInc, sCnt, sA, sB, sC, sD, sWb, sNeg, sN0, sN1,
 sMT, sNT, sE, sF, sKH, sQH) = range(52, 78)
sMSK, sFL, sG, sH = 12, 13, 14, 15
sBI, sLM = 32, 33
KT = 76
NST = [0]
def zst(A, z, i):
    if opt["zoom"] == z: stamp(A, i, True)
def stamp(A, i, force=False):
    if opt["zoom"] and not force: return
    if opt["stamp"]:
        A(f"s_memrealtime vcc\ns_waitcnt lgkmcnt(0)\ns_mov_b32 s{78+2*i}, vcc_lo\ns_memtime vcc\ns_waitcnt lgkmcnt(0)\ns_mov_b32 s{79+2*i}, vcc_lo")
        NST[0] = max(NST[0], i + 1)

KA = [1, 2]; VA = [3, 4, 5, 6]; DSR = [7, 8, 9]; LS = [10, 11, 12, 13]; T0, T1 = 14, 15
NREF = 16; QV = 32; SB = 64; PB = [128, 160]; KV = 192
WA = [240, 241]; WA2 = [242, 243]; W1A = [244, 245, 246]; DW = [247, 248, 249]; DW1 = 250; XV = [251, 252, 253, 254]
KRING = 0; VRING = 73728; STG = 24576; W1RING = 49152
DS5 = [240, 241, 242, 243, 244]; RA = [245, 246, 8, 9]; RAT = [245, 246, 254, 255]; OV = [247, 248, 249, 250]; PFV = 251; ZV = 252; FLV = 253
OB = [16, 48, 160]; WF = 192; STB = 40960; PK = 80

def qfrag(qb, ks):
    f = qb * 6 + ks
    return ar(192 + 4 * f) if f < 16 else vr(QV + 4 * (f - 16))
def S(kb, qb): return SB + 4 * (kb * 4 + qb)
def P(par, qb, e): return PB[par] + 4 * (qb * 2 + e)
def O(db, qb): return 4 * (db * 4 + qb)

class Gaps:
    def __init__(self, mfmas):
        self.m = mfmas; n = len(mfmas); self.n = n; self.cap = 2; self.blk = {}
        self.sc = [[] for _ in range(n)]; self.mem = [[] for _ in range(n)]; self.va = [[] for _ in range(n)]
    def vcost(self, g): return len(self.mem[g]) + sum(2 if x.kind == "trans" else 1 for x in self.va[g])
    def cost(self, g): return self.vcost(g) + len(self.sc[g])
    def fits(self, g, ins):
        c = 2 if ins.kind == "trans" else 1
        if ins.kind in ("valu", "trans", "ds", "vmem"):
            if self.vcost(g) + c > self.cap: return False
            if ins.kind in ("ds", "vmem") and self.va[g]: return False
            return self.vcost(g) + c + len(self.sc[g]) <= self.cap + 1
        return self.cost(g) + 1 <= 3
    def put(self, g, ins):
        if ins.kind in ("ds", "vmem"): self.mem[g].append(ins)
        elif ins.kind in ("valu", "trans"): self.va[g].append(ins)
        else: self.sc[g].append(ins)
    def place(self, g, text, tag=None):
        ins = Ins(text, tag)
        while not self.fits(g, ins): g += 1
        self.put(g, ins); return g
    def place2(self, g, t1, t2):
        while self.cost(g) + 2 > 3: g += 1
        self.put(g, Ins(t1)); self.put(g, Ins(t2)); return g
    def fill(self, queue, g0=0, g1=None):
        g1 = self.n if g1 is None else g1
        g = g0; i = 0; last = -1; lastkind = None
        while i < len(queue):
            t, e, ng, tag = (list(queue[i]) + [0, False, None])[:4] if not isinstance(queue[i], str) else (queue[i], 0, False, None)
            ins = Ins(t, tag)
            g = max(g, e)
            order = {"salu": 0, "wait": 0, "ds": 1, "vmem": 1, "valu": 2, "trans": 2}
            if last >= 0 and (ng or order[ins.kind] < order[lastkind] or (lastkind == "salu" and "m0" in queue_prev and ins.kind == "vmem")): g = max(g, last + 1)
            while g < g1 and not self.fits(g, ins): g += 1
            if g >= g1: break
            self.put(g, ins); last = g; lastkind = ins.kind; queue_prev = t; i += 1
        return queue[i:]
    def emit(self):
        out = []
        for g, m in enumerate(self.m):
            out.append(m); out += self.sc[g] + self.mem[g] + self.va[g] + self.blk.get(g, [])
        return out

def spread(G, lst, g0, g1):
    nv = max(1, sum(1 for x in lst if isinstance(x, tuple)))
    k = 0; g = g0
    for x in lst:
        t, tag = x if isinstance(x, tuple) else (x, None)
        if tag:
            tgt = g0 + 1 + int((g1 - g0 - 1) * k / nv); k += 1
            g = G.place(max(g, tgt), t, tag) + 1
        else:
            g = G.place(g, t)
            if " m0," in t: g += 1
    return g

def straight(A, lst):
    prev_m0 = False
    for x in lst:
        if isinstance(x, str): t, tag = x, None
        elif len(x) == 2: t, tag = x
        else:
            t = x[0]; tag = x[3] if len(x) > 3 else None
            if len(x) > 2 and x[2]: A("s_nop 1")
        if prev_m0 and "lds" in t: A("s_nop 0")
        A(t, tag); prev_m0 = " m0," in t

def srd(A, d, lo, size, add=None):
    if add is None:
        A(f"s_mov_b32 s{d}, s{lo}\ns_and_b32 s{d+1}, s{lo+1}, 0xffff")
    else:
        A(f"s_add_u32 s{d}, s{lo}, {add}\ns_addc_u32 s{d+1}, s{lo+1}, 0\ns_and_b32 s{d+1}, s{d+1}, 0xffff")
    A(f"s_mov_b32 s{d+2}, {size}\ns_mov_b32 s{d+3}, 0x20000")

def kread(buf, kb, ks):
    d = KV + 24 * buf + 4 * ks
    return f"ds_read_b128 {vr(d)}, v{KA[ks & 1]} offset:{(ks >> 1) * 128 + kb * 6144}"
def vread(db, e, half):
    d = KV + 8 * (db % 6) + 4 * e + 2 * half
    return f"ds_read_b64_tr_b16 {vr(d,2)}, v{VA[db & 3]} offset:{(db >> 2) * 128 + e * 12288 + half * 6144}"

def qk_mfmas(cinit):
    out = []
    for kb in range(4):
        for qb in range(4):
            for n, ks in enumerate(snk(6, qb)):
                a = KV + 24 * (kb & 1) + 4 * ks
                c = (vr(NREF + 4 * qb) if kb in cinit else "0") if n == 0 else vr(S(kb, qb))
                out.append(Ins(f"{MF} {vr(S(kb,qb))}, {vr(a)}, {qfrag(qb,ks)}, {c}"))
    return out
def pv_mfmas(par, first=False):
    out = []
    for db in range(12):
        for qb in range(4):
            for n, e in enumerate(snk(2, qb)):
                a = KV + 8 * (db % 6) + 4 * e
                c = "0" if (first and n == 0) else ar(O(db, qb))
                out.append(Ins(f"{MF} {ar(O(db,qb))}, {vr(a)}, {vr(P(par,qb,e))}, {c}"))
    return out
def sm_ops(par):
    out = []
    for kb in range(4):
        for qb in range(4):
            s = S(kb, qb); p = P(par, qb, kb >> 1) + 2 * (kb & 1)
            out.append(([f"v_exp_f32 v{s+r}, v{s+r}" for r in range(4)],
                        [f"v_add_f32 v{LS[qb]}, v{LS[qb]}, v{s+r}" for r in range(4)],
                        [f"v_cvt_pk_bf16_f32 v{p+r}, v{s+2*r}, v{s+2*r+1}" for r in range(2)]))
    return out
def qk_reads(G, base, vpre=True):
    for kb in range(3):
        for ks in range(6): G.place(base + 24 * kb + 1 + 3 * ks, kread((kb + 1) & 1, kb + 1, ks))
    if vpre:
        n = 0
        for db in range(3):
            for e in range(2):
                for h in range(2):
                    G.place(base + 73 + (n * 3) // 2, vread(db, e, h)); n += 1
    for ks in (2, 4): G.put(base + ks - 1, lgw(rs(KV + 4 * ks, 8)))
    for kb in range(1, 4): G.put(base + 24 * kb - 1, lgw(rs(KV + 24 * (kb & 1), 24)))
def pv_reads(G, B, first_wait=True):
    for db in range(9):
        n = 0
        for e in range(2):
            for h in range(2):
                G.place(B + 8 * db + 2 * n, vread(db + 3, e, h)); n += 1
    for db in range(12):
        if B + 8 * db - 1 >= 0: G.put(B + 8 * db - 1, lgw(rs(KV + 8 * (db % 6), 8)))

def gen_step(par, slot, first=False, extra=(), last=None):
    G = Gaps(qk_mfmas({0, 1, 2, 3}) + pv_mfmas(par, first))
    qk_reads(G, 0)
    B = 96
    pv_reads(G, B)
    if last:
        last(G)
    else:
        gb = B + opt["gbar"]
        G.put(gb, Ins("s_waitcnt vmcnt(12) lgkmcnt(0)"))
        if not opt["nobar"]: G.put(gb, Ins("s_barrier"))
        for (g_, t_) in extra: G.place(g_, t_)
        for ks in range(6): G.place(gb + 1 + 2 * ks, kread(0, 0, ks))
        G.put(191, lgw(rs(KV, 8)))
        G.place(2, f"s_add_u32 s{sKo2}, s{sKo}, 3072")
        G.place(4, f"s_sub_u32 s{sVo}, s{sKo}, {STG}")
        G.place(5, f"s_sub_u32 s{sVo2}, s{sKo}, {STG - 3072}")
        dm = [(sK, sKo, 0), (sK, sKo2, 3072), (sV, sVo, VRING), (sV, sVo2, VRING + 3072)]
        g = 8
        for (srd_, so, mo) in dm:
            G.place(g, f"s_add_u32 m0, s{sWb}, {slot * STG + mo}")
            for j in range(3):
                g2 = G.place(g + 3 + 12 * j, f"buffer_load_dwordx4 v{DSR[j]}, {sr(srd_)}, s{so} offen offset:{1024*j} lds")
            g = g2 + 9
        G.place(g, f"s_add_u32 s{sKo}, s{sKo}, {STG}")
        inc = (-2 * STG if slot == 1 else STG) & 0xffffffff
        for i, r in enumerate(KA): G.place(B + 10 + 2 * i, f"v_add_u32 v{r}, {inc}, v{r}")
        for i, r in enumerate(VA): G.place(B + 82 + 2 * i, f"v_add_u32 v{r}, {inc}, v{r}")
    ops = sm_ops(par ^ 1)
    first_g, last_g = 10, (160 if last else 186)
    pend = []
    exps = [(i, r) for i in range(16) for r in range(4)]
    ei = 0
    for g in range(192):
        if ei < 64:
            i, r = exps[ei]
            target = first_g + (last_g - first_g) * ei / 64.0
            if g >= 6 * i + 5 + 4 and g >= target and G.vcost(g) == 0 and len(G.sc[g]) <= 1:
                G.put(g, Ins(ops[i][0][r])); ei += 1
                pend.append((g + 1, ops[i][1][r]))
                if r & 1: pend.append((g + 1, ops[i][2][r >> 1]))
                continue
        while pend and pend[0][0] <= g and G.fits(g, Ins(pend[0][1])):
            G.put(g, Ins(pend.pop(0)[1]))
    assert ei == 64 and not pend, (ei, pend)
    return G


def poll(A, lab, voff, srd_, soff, cond, sleep=2, precheck=False):
    if precheck:
        cond(); A(f"s_cbranch_scc0 {lab}_ok")
    A(f"s_mov_b32 s{sE}, {SPIN}")
    A(f"{lab}:")
    A(f"buffer_load_dwordx2 {vr(T0,2)}, v{voff}, {sr(srd_)}, {soff} offen sc1")
    A("s_waitcnt vmcnt(0)")
    cond()
    A(f"s_cbranch_scc0 {lab}_ok")
    A(f"s_sleep {sleep}\ns_sub_u32 s{sE}, s{sE}, 1\ns_cmp_lg_u32 s{sE}, 0\ns_cbranch_scc1 {lab}")
    A(f"{lab}_ok:")
def cond_nonce(A, mask):
    def f():
        A(f"v_cmp_ne_u32 vcc, s{sN0}, v{T0}\nv_cmp_ne_u32 s[{sA}:{sA+1}], s{sN1}, v{T1}\ns_nop 0")
        A(f"s_or_b32 s{sA}, vcc_lo, s{sA}\ns_and_b32 s{sA}, s{sA}, {mask}\ns_cmp_lg_u32 s{sA}, 0")
    return f
assert sA % 2 == 0 and sC % 2 == 0

def gelu_ops(x, y, pk, store):
    q = []
    for r in range(4): q.append(f"v_mul_f32 v{y+r}, v{x+r}, v{x+r}")
    for r in range(4): q.append(f"v_fma_f32 v{y+r}, v{y+r}, s{sB}, v{T0}")
    for r in range(4): q.append(f"v_mul_f32 v{y+r}, v{y+r}, v{x+r}")
    for r in range(4): q.append(f"v_exp_f32 v{y+r}, v{y+r}")
    for r in range(4): q.append(f"v_fma_f32 v{y+r}, v{y+r}, s{sA}, s{sA}")
    for r in range(4): q.append(f"v_rcp_f32 v{y+r}, v{y+r}")
    for r in range(4): q.append(f"v_mul_f32 v{y+r}, v{y+r}, v{x+r}")
    for r in range(2): q.append(f"v_cvt_pk_bf16_f32 v{pk+r}, v{y+2*r}, v{y+2*r+1}")
    return [(t, 0, False, None) for t in q] + store

def gelu_pk(x, y, pk, store):
    q = []
    for k in range(2): q.append(f"v_pk_mul_f32 {vr(y+2*k,2)}, {vr(x+2*k,2)}, {vr(x+2*k,2)}")
    for k in range(2): q.append(f"v_pk_fma_f32 {vr(y+2*k,2)}, {vr(y+2*k,2)}, s[{sA}:{sA+1}], {vr(T0,2)} op_sel:[0,1,0] op_sel_hi:[1,1,0]")
    for k in range(2): q.append(f"v_pk_mul_f32 {vr(y+2*k,2)}, {vr(y+2*k,2)}, {vr(x+2*k,2)}")
    for r in range(4): q.append(f"v_exp_f32 v{y+r}, v{y+r}")
    q.append("s_nop 0")
    for k in range(2): q.append(f"v_pk_fma_f32 {vr(y+2*k,2)}, {vr(y+2*k,2)}, s[{sA}:{sA+1}], s[{sA}:{sA+1}] op_sel_hi:[1,0,0]")
    for r in range(4): q.append(f"v_rcp_f32 v{y+r}, v{y+r}")
    q.append("s_nop 0")
    for k in range(2): q.append(f"v_pk_mul_f32 {vr(y+2*k,2)}, {vr(y+2*k,2)}, {vr(x+2*k,2)}")
    for r in range(2): q.append(f"v_cvt_pk_bf16_f32 v{pk+r}, v{y+2*r}, v{y+2*r+1}")
    return [(t, 0, False, None) for t in q] + store
def pkify(q):
    out = []; i = 0
    while i < len(q):
        t = q[i][0] if isinstance(q[i], tuple) else q[i]
        n = (q[i + 1][0] if isinstance(q[i + 1], tuple) else q[i + 1]) if i + 1 < len(q) else ""
        m1 = re.match(r"v_(mul|add)_f32 v(\d+), v(\d+), v(\d+)$", t); m2 = re.match(r"v_(mul|add)_f32 v(\d+), v(\d+), v(\d+)$", n)
        if opt["pk"] and m1 and m2 and m1.group(1) == m2.group(1):
            d1, a1, b1 = map(int, m1.groups()[1:]); d2, a2, b2 = map(int, m2.groups()[1:])
            if d1 % 2 == 0 and a1 % 2 == 0 and d2 == d1 + 1 and a2 == a1 + 1:
                if b1 == b2 and b1 not in (d1, d2):
                    h = b1 & 1
                    out.append((f"v_pk_{m1.group(1)}_f32 {vr(d1,2)}, {vr(a1,2)}, {vr(b1-h,2)} op_sel:[0,{h}] op_sel_hi:[1,{h}]", 0, False, None)); i += 2; continue
                if b1 % 2 == 0 and b2 == b1 + 1:
                    out.append((f"v_pk_{m1.group(1)}_f32 {vr(d1,2)}, {vr(a1,2)}, {vr(b1,2)}", 0, False, None)); i += 2; continue
        out.append(q[i]); i += 1
    return out

def b_wdma(srd_, tag, slot_imm, second=16, step=64):
    o = [f"s_add_u32 s{sInc}, s{sM}, {slot_imm}", f"s_add_u32 s{sVo2}, s{sVo}, {second*1280}"]
    for hf, so in enumerate((sVo, sVo2)):
        o.append(f"s_add_u32 m0, s{sInc}, {5120*hf}")
        o += [(f"buffer_load_dwordx4 v{DS5[j]}, {sr(srd_)}, s{so} offen offset:{1024*j} lds", tag) for j in range(4)]
        o.append(f"s_add_u32 m0, s{sInc}, {5120*hf + 4096}")
        o.append((f"buffer_load_dwordx4 v{DS5[4]}, {sr(srd_)}, s{so} offen lds", tag))
    o.append(f"s_add_u32 s{sVo}, s{sVo}, {step*1280}" if isinstance(step, int) else f"s_mov_b32 s{sVo}, s{step[0]}")
    return o
def oload(buf, tag):
    o = [(f"buffer_load_dwordx4 {vr(OB[buf] + 4*(r*2+e))}, v{OV[r]}, {sr(sWS)}, s{sKo} offen offset:{1024*e} sc1", tag) for r in range(4) for e in range(2)]
    o.append(f"s_add_u32 s{sKo}, s{sKo}, 2048")
    return o
def hload(buf, tag):
    if buf < 2:
        return [(f"buffer_load_dwordx4 {vr(OB[buf] + 4*(r*2+e))}, v{OV[r]}, {sr(sWS)}, s{sKo} offen offset:{2048*buf + 1024*e} sc1", tag) for r in range(4) for e in range(2)]
    o = []
    for r in range(4):
        o.append(f"s_add_u32 s{sE}, s{sKo2}, s{24+r}")
        o += [(f"buffer_load_dwordx2 {vr(OB[buf] + 4*(r*2+e) + 2*h, 2)}, v{PFV}, {sr(sWS)}, s{sE} offen offset:{1024*e + 512*h} sc1", tag) for e in range(2) for h in range(2)]
    return o
def b_scalars():
    o = [f"s_lshl_b32 s{sA}, s{sSP}, 1", f"s_add_u32 s{sA}, s{sA}, s{sKH}"]
    o += [f"s_mul_i32 s{sC}, s{sNT}, 320", f"s_mul_i32 s{sB}, s{sQH}, {32*1280}", f"s_add_u32 s{sB}, s{sB}, s{sC}", f"s_mul_i32 s{sH}, s{sA}, {768*1280}", f"s_add_u32 s{sH}, s{sH}, s{sB}"]
    o += [f"s_mul_i32 s{sB}, s{sA}, {192*1280}", f"s_add_u32 s{sC}, s{sC}, s{sB}", f"s_mul_i32 s{sB}, s{sQH}, {48*1280}", f"s_add_u32 s{sVo}, s{sC}, s{sB}",
          f"s_add_u32 s{sNeg}, s{sVo}, s{sB}", f"s_add_u32 s{sNeg}, s{sNeg}, {32*1280}"]
    o += [f"s_mul_i32 s{sB}, s{sFL}, {4*240*4}", f"s_add_u32 s{sB}, s{sB}, {OH_OFF}"]
    o += [f"s_lshl_b32 s{sKo}, s{sA}, 12", f"s_add_u32 s{sKo}, s{sKo}, s{sB}", f"s_add_u32 s{sKo}, s{sKo}, {192*1024}"]
    o += [f"s_lshl_b32 s{sKo2}, s{sA}, 11", f"s_add_u32 s{sKo2}, s{sKo2}, s{sB}", f"s_add_u32 s{sKo2}, s{sKo2}, {192*1024 + 32768}"]
    o += [f"s_mul_i32 s{sF}, s{sA}, {24*1024}", f"s_add_u32 s{sF}, s{sF}, s{sB}"]
    o += [f"s_mul_i32 s{sM}, s{sW}, 10240", f"v_lshlrev_b32 v{PFV}, 3, v0"]
    for r in range(4): o += [f"s_add_u32 s{24+r}, s{sSP}, {r}", f"s_and_b32 s{24+r}, s{24+r}, 3", f"s_mul_i32 s{24+r}, s{24+r}, {240*1024}"]
    return o
def b_warm():
    o = []
    for i in range(4):
        o.append((f"buffer_load_dword v7, v{PFV}, {sr(sWO)}, s{sKo2} offen", "PF"))
        if i < 3: o.append(f"s_add_u32 s{sKo2}, s{sKo2}, 4096")
    return o
def b_addr_ops():
    q = []
    t0, t1, t2, t3 = 255, 253, 254, 255
    for j in range(5):
        q += [f"v_add_u32 v{t0}, {64*j}, v0", f"v_mul_u32_u24 v{t1}, 3277, v{t0}", f"v_lshrrev_b32 v{t1}, 16, v{t1}",
              f"v_mul_u32_u24 v{t2}, 20, v{t1}", f"v_sub_u32 v{t2}, v{t0}, v{t2}", f"v_lshrrev_b32 v{t3}, 1, v{t1}", f"v_and_b32 v{t3}, 2, v{t3}",
              f"v_xor_b32 v{t2}, v{t2}, v{t3}", f"v_mul_u32_u24 v{t3}, 80, v{t1}", f"v_add_u32 v{t3}, v{t3}, v{t2}"]
        q += [f"v_lshlrev_b32 v{DS5[j]}, 4, v{t3}"]
        if 0 < j < 4: q += [f"v_subrev_u32 v{DS5[j]}, {1024*j}, v{DS5[j]}"]
    q += [f"v_and_b32 v{FLV}, 31, v0", f"v_lshlrev_b32 v{FLV}, 3, v{FLV}"]
    p = []
    p += ["v_lshlrev_b32 v245, 4, v0"] + [f"v_mov_b32 v{246+i}, {MARK}" for i in range(4)]
    p += [f"s_lshl_b32 s34, s{sMT}, 2", f"s_add_u32 s34, s34, s{sNT}", f"s_lshl_b32 s34, s34, 2", f"s_add_u32 s34, s34, s{sSP}", f"s_lshl_b32 s34, s34, 2", f"s_add_u32 s34, s34, s{sW}",
          "s_mul_i32 s34, s34, 10240", f"s_add_u32 s34, s34, {XC_OFF}"]
    p += [f"v_lshlrev_b32 v{PFV}, {6 if opt['pst'] == 64 else 7}, v0", f"v_mov_b32 v{ZV}, 0"]
    if opt["pst"] == 128: p += [f"v_min_u32 v{PFV}, {47*128}, v{PFV}"] if False else []
    return p, q

def b_ra_ops():
    t0, t1, t2 = NREF + 8, NREF + 9, NREF + 10
    lo, hi = (NREF + 11, NREF + 12), (NREF + 13, NREF + 14)
    q = [f"s_mul_i32 s{sE}, s{sKH}, 20480", f"v_lshrrev_b32 v{t0}, 2, v0", f"v_mul_u32_u24 v{t0}, 320, v{t0}", f"v_and_b32 v{t1}, 3, v0", f"v_lshl_add_u32 v{t0}, v{t1}, 3, v{t0}",
         f"v_add_u32 v{t0}, s{sE}, v{t0}", f"v_bfe_u32 v{t1}, v0, 4, 1", f"v_xor_b32 v{t2}, 1, v{t1}",
         f"v_lshl_add_u32 v{lo[0]}, v{t1}, 5, v{t0}", f"v_lshl_add_u32 v{lo[1]}, v{t2}, 5, v{t0}",
         f"v_add_u32 v{hi[0]}, 128, v{lo[1]}", f"v_add_u32 v{hi[1]}, 192, v{lo[0]}",
         f"s_cmp_eq_u32 s{sKH}, 0", f"s_cselect_b64 vcc, -1, 0", "s_nop 0"]
    for k in range(2):
        q += [f"v_cndmask_b32 v{RA[k]}, v{lo[k]}, v{hi[k]}, vcc", f"v_cndmask_b32 v{RA[2+k]}, v{hi[k]}, v{lo[k]}, vcc"]
    return q
def lred(A):
    for sw in ("v_permlane32_swap_b32", "v_permlane16_swap_b32"):
        for qb in range(4): A(f"v_mov_b32 v{NREF+qb}, v{LS[qb]}")
        for qb in range(4): A(f"{sw} v{LS[qb]}, v{NREF+qb}")
        for qb in range(4): A(f"v_add_f32 v{LS[qb]}, v{LS[qb]}, v{NREF+qb}")
NEARLY = 24
def oepi_ops():
    q = []; late = []; n = 0
    so = [sA, sB, sC, sD]
    for m in range(6):
        for qb in range(4):
            x = 144 + 8 * (n & 1); d = PK + 4 * (n % 16)
            e = 16 * m + 8 + 2 * qb + 1 + 5
            for p in range(2):
                for r in range(4): q.append((f"v_accvgpr_read_b32 v{x+4*p+r}, a{O(2*m+p,qb)+r}", e, False, None))
            for i in range(8): q.append((f"v_mul_f32 v{x+i}, v{x+i}, v{LS[qb]}", 0, False, None))
            for i in range(4): q.append((f"v_cvt_pk_bf16_f32 v{d+i}, v{x+2*i}, v{x+2*i+1}", 0, False, None))
            v, off = (T1, 1024 * m) if m < 4 else (T0, 1024 * (m - 4))
            st = f"buffer_store_dwordx4 {vr(d)}, v{v}, {sr(sWS)}, s{so[qb]} offen offset:{off} sc1"
            if n < NEARLY: q.append((st, 0, False, "OST"))
            else: late.append((st, "OST"))
            n += 1
    return q, late
def oepi_pre():
    return [f"s_mul_i32 s{sA}, s{sQB0}, {240*1024}", f"s_mul_i32 s{sB}, s{sHEAD}, {6*1024}", f"s_add_u32 s{sA}, s{sA}, s{sB}", f"s_add_u32 s{sA}, s{sA}, {OH_OFF}",
            f"s_add_u32 s{sB}, s{sA}, {240*1024}", f"s_add_u32 s{sC}, s{sA}, {480*1024}", f"s_add_u32 s{sD}, s{sA}, {720*1024}",
            f"v_lshlrev_b32 v{T1}, 4, v0", f"v_add_u32 v{T0}, 4096, v{T1}"]
def BA(nb, r): return (192 + 16 * nb if nb < 4 else 16 * (nb - 4)) + 4 * r
def bread(u, nb, e, h):
    d = WF + 8 * ((10 * u + nb) % 6) + 4 * e + 2 * h
    j = nb % 5
    return f"ds_read_b64_tr_b16 {vr(d,2)}, v{RA[2 * (nb // 5) + (j & 1)]} offset:{64*(j >> 1) + e*10240 + h*5120}"
ORDR = [(i, r) for r in (1, 2, 3, 0) for i in range(5)]
def xchg_reads(E, tr):
    for (i, r) in ORDR: E(f"ds_read_b128 {vr(tr(i, r))}, v3 offset:{1024*(4*i+r)}")
def xchg_sum(E, tr, PKS, so, emit):
    st = []; RING = 150
    for n, (i, r) in enumerate(ORDR):
        t = RING + 4 * (n & 1); x = tr(i, r)
        for k in range(4): E(f"v_accvgpr_read_b32 v{t+k}, a{BA(5+i, r)+k}")
        if n % 5 == 0 and emit: E(f"s_waitcnt lgkmcnt({15 - n})")
        for k in range(2): E(f"v_pk_add_f32 {vr(x+2*k,2)}, {vr(x+2*k,2)}, {vr(t+2*k,2)}")
        if r:
            for k in range(2): E(f"v_cvt_pk_bf16_f32 v{PKS+10*(r-1)+2*i+k}, v{x+2*k}, v{x+2*k+1}")
            if i == 4:
                p = PKS + 10 * (r - 1)
                ss = [f"buffer_store_dwordx4 {vr(p)}, v4, {sr(sWS)}, s{so[r]} offen sc1",
                      f"buffer_store_dwordx4 {vr(p+4)}, v4, {sr(sWS)}, s{so[r]} offen offset:1024 sc1",
                      f"buffer_store_dwordx2 {vr(p+8,2)}, v1, {sr(sWS)}, s{so[r]} offen sc1"]
                if emit:
                    for t_ in ss: E(t_)
                elif r <= opt["yin"]:
                    for t_ in ss: E(t_, "YST")
                else: st += [(t_, "YST") for t_ in ss]
    return st
def slot_scalars(off, so, cons):
    o = [f"s_mul_i32 s{sA}, s{sH}, {64*3072}", f"s_mul_i32 s{sE}, s{sW}, 3072", f"s_add_u32 s{sA}, s{sA}, s{sE}", f"s_add_u32 s{sA}, s{sA}, {off}",
         f"s_mul_i32 s{sE}, s{sSP}, {16*3072}", f"s_add_u32 s{cons}, s{sA}, s{sE}", f"s_mul_i32 s{sE}, s{sSP}, {4*3072}", f"s_add_u32 s{sA}, s{sA}, s{sE}"]
    for r in (1, 2, 3):
        d = so[r]
        o += [f"s_add_u32 s{d}, s{sSP}, {r}", f"s_and_b32 s{d}, s{d}, 3", f"s_mul_i32 s{d}, s{d}, {16*3072}", f"s_add_u32 s{d}, s{d}, s{sA}"]
    return o
def inbox_loads(cons, P0, tag):
    o = []
    for r in (1, 2, 3):
        p = P0 + 10 * (r - 1)
        o += [f"s_add_u32 s{sA}, s{sSP}, {r}", f"s_and_b32 s{sA}, s{sA}, 3", f"s_mul_i32 s{sA}, s{sA}, {4*3072}", f"s_add_u32 s{sA}, s{sA}, s{cons}"]
        o += [(f"buffer_load_dwordx4 {vr(p)}, v4, {sr(sWS)}, s{sA} offen sc1", tag), (f"buffer_load_dwordx4 {vr(p+4)}, v4, {sr(sWS)}, s{sA} offen offset:1024 sc1", tag),
              (f"buffer_load_dwordx2 {vr(p+8,2)}, v1, {sr(sWS)}, s{sA} offen sc1", tag)]
    return o
def merge(a, b):
    out = []; k = 0
    na = sum(1 for x in a if isinstance(x, tuple)); seen = 0
    for x in a:
        out.append(x)
        if isinstance(x, tuple):
            seen += 1
            while k < len(b) and (k + 1) * na <= seen * len(b) and " m0," not in out[-1][0]:
                out.append(b[k]); k += 1
    return out + b[k:]
def b_chunk(u, lst, wtags, otags, czero=False, after_barrier=None, first_gap=(), last_gap=(), fillq=None, nxt=True, lim=None, xw=False, af=None, puts=(), ph=None, inc=None, blocks=None):
    mf = []; ph = u if ph is None else ph
    for nb in range(10):
        for r in range(4):
            for n, e in enumerate(snk(2, r)):
                acc = ar(BA(nb, r))
                mf.append(Ins(f"{MF} {acc}, {vr(WF + 8*((10*ph+nb)%6) + 4*e)}, {vr(OB[u] + 4*(r*2+e))}, {'0' if czero and n == 0 else acc}"))
    G = Gaps(mf)
    for nb in range(7):
        n = 0
        for e in range(2):
            for h in range(2):
                G.place(8 * nb + 2 * n, bread(ph, nb + 3, e, h)); n += 1
    for nb in range(1, 10): G.put(8 * nb - 1, lgw(rs(WF + 8 * ((10 * ph + nb) % 6), 8)))
    gb = 62
    if nxt:
        G.put(gb, vmw(wtags, " lgkmcnt(0)")); G.put(gb, Ins("s_barrier"))
        if inc is None: inc = STB if u < 2 else -2 * STB
        for i, r in enumerate(RA): G.place((30 + 2 * i) if i < 2 else (gb - 6 + i), f"v_add_u32 v{r}, {inc & 0xffffffff}, v{r}")
        if after_barrier: G.place(gb + 1, after_barrier, "FLAG")
        n = 0
        for nb in range(3):
            for e in range(2):
                for h in range(2):
                    G.place(gb + 1 + n + n // 4, bread((ph + 1) % 3, nb, e, h)); n += 1
        G.put(79, lgw(rs(WF + 8 * ((10 * ((ph + 1) % 3)) % 6), 8)))
    if otags: G.put(78, vmw(otags))
    if af is not None:
        G.put(af, vmw({"OST"})); G.place(af, f"buffer_store_dwordx2 v[254:255], v{ZV}, {sr(sWS)}, s17 offen sc1", "FLAG")
    for (g_, t_, tag_) in puts: G.place(g_, t_, tag_)
    if xw:
        if opt["xws"]:
            for n in range(20):
                i, r = n >> 2, n & 3
                G.place(max(8 * i + 2 * r + 1 + 8, opt["xw0"] + (n * opt["xws"]) // 10) | 1, f"ds_write_b128 v2, {ar(BA(i, r))} offset:{1024*(4*i+r)}")
        else:
            for n, (i, r) in enumerate(ORDR): G.place(44 + (n * 7) // 4, f"ds_write_b128 v2, {ar(BA(i, r))} offset:{1024*(4*i+r)}")
    for t in first_gap: G.put(0, Ins(t))
    g = spread(G, lst, 1 if first_gap else 0, lim or (76 if otags else 60)) if lst else 70
    assert g <= 79, g
    for t in last_gap: G.place(g, t)
    if blocks: G.blk.update(blocks)
    if fillq is not None:
        G.cap = opt["dense"]
        left = G.fill(fillq, 0)
        return G.emit(), left
    return G.emit()

def gen():
    global problems
    A = Asm()
    A("s_cmp_ge_u32 s2, 256\ns_cbranch_scc1 L_done")
    A("s_load_dwordx16 s[76:91], s[0:1], 0\ns_load_dwordx8 s[92:99], s[0:1], 64\ns_load_dwordx2 s[100:101], s[0:1], 96")
    pX, pK, pV, pWQ, pWO, pW1, pB1, pW2, pB2, pOUT, pDBG, pWS = 76, 78, 80, 82, 84, 88, 90, 92, 94, 96, 98, 100
    A(f"s_memrealtime s[{sN0}:{sN1}]")
    if opt["stamp"]: A(f"s_memtime s[{sInc}:{sInc+1}]")
    if opt["pf"]:
        A(f"s_getpc_b64 s[{sA}:{sA+1}]\nL_pc:\ns_bfe_u32 s{sC}, s2, 0x10003\ns_lshl_b32 s{sC}, s{sC}, 15\nv_lshlrev_b32 v98, 7, v0\nv_add_u32 v98, s{sC}, v98")
        A(f"global_load_dword v99, v98, s[{sA}:{sA+1}]")
    A("v_lshrrev_b32 v14, 6, v0\nv_and_b32 v0, 63, v0")
    A(f"v_readfirstlane_b32 s{sW}, v14")
    A(f"s_and_b32 s{sA}, s2, 7\ns_lshr_b32 s{sB}, s2, 3\ns_and_b32 s{sC}, s{sB}, 3\ns_lshl_b32 s{sA}, s{sA}, 2\ns_add_u32 s{sHEAD}, s{sA}, s{sC}")
    A(f"s_lshr_b32 s{sQT}, s{sB}, 2\ns_lshl_b32 s{sB}, s{sQT}, 4\ns_lshl_b32 s{sC}, s{sW}, 2\ns_add_u32 s{sQB0}, s{sB}, s{sC}")
    A(f"s_lshr_b32 s{sC}, s{sHEAD}, 1\ns_add_u32 s{sD}, s{sB}, s{sC}\ns_mul_i32 s{sE}, s{sD}, 20480")
    A("v_and_b32 v3, 15, v0\nv_lshrrev_b32 v4, 4, v0\nv_mul_u32_u24 v5, 1280, v3\nv_mul_u32_u24 v6, 320, v14\nv_lshlrev_b32 v7, 3, v4\nv_add3_u32 v5, v5, v6, v7")
    A("v_mov_b32 v96, 0\nv_mov_b32 v94, 0")
    A(f"s_or_b32 s{sKo}, s2, s{sW}")
    A("s_waitcnt lgkmcnt(0)")
    srd(A, sX, pX, 2621440)
    srd(A, sDBG, pDBG, 256)
    A(f"s_cmp_lg_u32 s{sKo}, 0\ns_cbranch_scc1 L_nonc")
    A(f"s_or_b32 s{sKo}, s{sN0}, 1\nv_mov_b32 v80, s{sKo}\nv_mov_b32 v81, s{sN1}")
    A(f"buffer_store_dwordx2 v[80:81], v96, {sr(sDBG)}, 0 offen sc1")
    A("L_nonc:")
    A(f"s_bitcmp1_b32 s{sHEAD}, 0\ns_cbranch_scc1 L_nox")
    for i in range(5):
        A(f"buffer_load_dwordx2 {vr(100+4*i,2)}, v5, {sr(sX)}, s{sE} offen offset:{64*i}", "LX")
        A(f"buffer_load_dwordx2 {vr(102+4*i,2)}, v5, {sr(sX)}, s{sE} offen offset:{64*i+32}", "LX")
    A("L_nox:")
    for j in range(3):
        A(f"v_add_u32 v82, {64*j}, v0\nv_mul_u32_u24 v83, 2731, v82\nv_lshrrev_b32 v83, 16, v83")
        A(f"v_mul_u32_u24 v97, 24, v83\nv_sub_u32 v82, v82, v97\nv_and_b32 v97, 6, v83\nv_xor_b32 v82, v82, v97\nv_lshlrev_b32 v82, 4, v82")
        A(f"v_mul_u32_u24 v97, 12288, v83\nv_add_u32 v97, v97, v82\nv_add_u32 v{DW[j]}, {(-1024*j) & 0xffffffff}, v97")
        A(f"v_mul_u32_u24 v97, 384, v83\nv_add_u32 v97, v97, v82\nv_add_u32 v{84+j}, {(128 - 1024*j) & 0xffffffff}, v97")
    A(f"v_lshrrev_b32 v83, 3, v0\nv_and_b32 v82, 7, v0\nv_and_b32 v97, 6, v83\nv_xor_b32 v82, v82, v97\nv_lshlrev_b32 v82, 4, v82\nv_mul_u32_u24 v97, 3072, v83\nv_add_u32 v{DW1}, v97, v82")
    A(f"s_mul_i32 s{sA}, s{sHEAD}, 384")
    A(f"s_add_u32 s{sWQ}, s{pWQ}, s{sA}\ns_addc_u32 s{sWQ+1}, s{pWQ+1}, 0\ns_and_b32 s{sWQ+1}, s{sWQ+1}, 0xffff\ns_sub_u32 s{sWQ+2}, {640*12288}, s{sA}\ns_mov_b32 s{sWQ+3}, 0x20000")
    A(f"s_mul_i32 s{sF}, s{sHEAD}, 96")
    A(f"s_add_u32 s{sW1}, s{pW1}, s{sF}\ns_addc_u32 s{sW1+1}, s{pW1+1}, 0\ns_and_b32 s{sW1+1}, s{sW1+1}, 0xffff\ns_sub_u32 s{sW1+2}, {640*3072}, s{sF}\ns_mov_b32 s{sW1+3}, 0x20000")
    A(f"s_mul_i32 s{sWb}, s{sW}, 6144")
    A(f"s_mul_i32 s{sA}, s{sW}, {16*12288}\ns_mul_i32 s{sB}, s{sW}, {16*3072}\ns_mul_i32 s{sC}, s{sQB0}, 20480\ns_lshl_b32 s{sM}, s{sW}, 11")
    XB = [SB, SB + 32, PB[0]]
    def wdma(ch):
        sl = ch % 3; o = []
        o.append(f"s_add_u32 m0, s{sWb}, {VRING + sl*STG}")
        o += [(f"buffer_load_dwordx4 v{DW[j]}, {sr(sWQ)}, s{sA} offen offset:{1024*j} lds", f"W{ch}") for j in range(3)]
        o.append(f"s_add_u32 s{sA}, s{sA}, {8*12288}")
        o.append(f"s_add_u32 m0, s{sWb}, {VRING + sl*STG + 3072}")
        o += [(f"buffer_load_dwordx4 v{DW[j]}, {sr(sWQ)}, s{sA} offen offset:{1024*j} lds", f"W{ch}") for j in range(3)]
        o.append(f"s_add_u32 s{sA}, s{sA}, {56*12288}")
        o.append(f"s_add_u32 m0, s{sM}, {W1RING + sl*8192}")
        o.append((f"buffer_load_dwordx4 v{DW1}, {sr(sW1)}, s{sB} offen lds", f"W{ch}"))
        o.append(f"s_add_u32 s{sB}, s{sB}, {8*3072 - 1024}")
        o.append((f"buffer_load_dwordx4 v{DW1}, {sr(sW1)}, s{sB} offen offset:1024 lds", f"W{ch}"))
        o.append(f"s_add_u32 s{sB}, s{sB}, {56*3072 + 1024}")
        return o
    def xload(ch):
        o = [(f"buffer_load_dwordx4 {vr(XB[ch%3] + 4*(qb*2+e))}, v{XV[qb]}, {sr(sWS)}, s{sC} offen offset:{1024*e} sc1", f"X{ch}") for qb in range(4) for e in range(2)]
        o.append(f"s_add_u32 s{sC}, s{sC}, 2048")
        return o
    def kvdma(srd_, slotbase, t, tag):
        o = []
        for hf in range(2):
            o.append(f"s_add_u32 s{sKo2}, s{sWb}, {t*STG + 3072*hf}")
            o.append(f"s_add_u32 m0, s{sWb}, {slotbase + 3072*hf}")
            o += [(f"buffer_load_dwordx4 v{DSR[j]}, {sr(srd_)}, s{sKo2} offen offset:{1024*j} lds", tag) for j in range(3)]
        return o
    straight(A, wdma(0))
    srd(A, sB1, pB1, 3072)
    for ct in range(3): A(f"buffer_load_dwordx2 {vr(88 + 2*ct, 2)}, v7, {sr(sB1)}, s{sF} offen offset:{32*ct}", "B1")
    straight(A, wdma(1))
    A(f"s_mul_i32 s{sKo}, s{sHEAD}, 786432")
    for (d, lo) in ((sK, pK), (sV, pV)):
        A(f"s_add_u32 s{d}, s{lo}, s{sKo}\ns_addc_u32 s{d+1}, s{lo+1}, 0\ns_sub_u32 s{d}, s{d}, 128\ns_subb_u32 s{d+1}, s{d+1}, 0\ns_and_b32 s{d+1}, s{d+1}, 0xffff")
        A(f"s_mov_b32 s{d+2}, {786432 + 128}\ns_mov_b32 s{d+3}, 0x20000")
    srd(A, sWS, pWS, WS_SZ)
    srd(A, sOUT, pOUT, 2621440)
    srd(A, sB2, pB2, 1280)
    srd(A, sWO, pWO, 6144 * 1280)
    srd(A, sW2, pW2, 1536 * 1280)
    if opt["stamp"]:
        A(f"s_mov_b32 s78, s{sN0}\ns_mov_b32 s79, s{sInc}"); NST[0] = 1
    A(f"s_and_b32 s{sSP}, s2, 3\ns_bfe_u32 s{sKo}, s2, 0x10002\ns_lshl_b32 s{sKo}, s{sKo}, 3\ns_bfe_u32 s{sMT}, s2, 0x30003\ns_add_u32 s{sMT}, s{sMT}, s{sKo}\ns_lshr_b32 s{sNT}, s2, 6")
    A(f"s_lshr_b32 s{sKH}, s{sW}, 1\ns_and_b32 s{sQH}, s{sW}, 1")
    A(f"s_lshl_b32 s{sVo}, s{sQT}, 7\ns_add_u32 s{sVo}, s{sVo}, {LF_OFF}")
    A(f"s_bitcmp1_b32 s{sHEAD}, 0\ns_cbranch_scc1 L_noln")
    A(f"v_lshlrev_b32 v8, 6, v3\nv_add_u32 v8, {LDS_LN}, v8\nv_lshl_add_u32 v9, v14, 2, v4\nv_lshl_add_u32 v9, v9, 2, v8")
    A("v_mul_u32_u24 v10, 5120, v14\nv_lshl_add_u32 v10, v0, 4, v10")
    A(f"s_mov_b32 s{sKo}, 0x3f803f80\ns_mov_b32 s{sKo2}, 0x3f80\ns_mov_b32 s{sSlot}, 0x3f800000")
    A("s_waitcnt vmcnt(19)")
    A(f"v_dot2_f32_bf16 v11, v100, s{sKo}, 0\nv_dot2_f32_bf16 v12, v101, s{sKo}, 0")
    for i in range(2, 20): A(f"v_dot2_f32_bf16 v{11+(i&1)}, v{100+i}, s{sKo}, v{11+(i&1)}")
    A("s_nop 2\nv_add_f32 v11, v11, v12")
    def xsum(off):
        A(f"ds_write_b32 v9, v11 offset:{off}\ns_waitcnt lgkmcnt(0)\ns_barrier")
        for i in range(4): A(f"ds_read_b128 {vr(16+4*i)}, v8 offset:{off+16*i}")
        A("s_waitcnt lgkmcnt(0)")
        for i in range(4): A(f"v_pk_add_f32 {vr(16+2*i,2)}, {vr(16+2*i,2)}, {vr(24+2*i,2)}")
        for i in range(2): A(f"v_pk_add_f32 {vr(16+2*i,2)}, {vr(16+2*i,2)}, {vr(20+2*i,2)}")
        A("v_pk_add_f32 v[16:17], v[16:17], v[18:19]\nv_add_f32 v16, v16, v17")
    xsum(0)
    A(f"v_mul_f32 v13, {fh(-1/640)}, v16")
    for i in range(20): A(f"v_dot2_f32_bf16 v{40+2*i}, v{100+i}, s{sKo2}, v13\nv_dot2_f32_bf16 v{41+2*i}, v{100+i}, s{sSlot}, v13")
    A("v_pk_mul_f32 v[36:37], v[40:41], v[40:41]\nv_pk_mul_f32 v[38:39], v[42:43], v[42:43]")
    for i in range(2, 20): A(f"v_pk_fma_f32 {vr(36+2*(i&1),2)}, {vr(40+2*i,2)}, {vr(40+2*i,2)}, {vr(36+2*(i&1),2)}")
    A("v_pk_add_f32 v[36:37], v[36:37], v[38:39]\nv_add_f32 v11, v36, v37")
    xsum(1024)
    A(f"v_mov_b32 v12, {fh(1e-5)}\nv_fmac_f32 v12, {fh(1/640)}, v16\nv_rsq_f32 v12, v12\ns_nop 0\nv_mul_f32 v12, {fh(CSC)}, v12")
    for i in range(5):
        for k in range(4): A(f"v_pk_mul_f32 {vr(40+8*i+2*k,2)}, {vr(40+8*i+2*k,2)}, v[12:13] op_sel_hi:[1,0]")
        for k in range(4): A(f"v_cvt_pk_bf16_f32 v{16+4*i+k}, v{40+8*i+2*k}, v{41+8*i+2*k}")
        if i == 4: A(f"s_add_u32 s{sE}, s{sE}, 4096")
        A(f"buffer_store_dwordx4 {vr(16+4*i)}, v10, {sr(sWS)}, s{sE} offen offset:{1024*i if i < 4 else 0} sc1")
    A(f"s_cmp_lg_u32 s{sW}, 0\ns_cbranch_scc1 L_ln2")
    A(f"buffer_load_dwordx2 v[94:95], v96, {sr(sDBG)}, 0 offen sc1")
    A("L_ln2:")
    A("s_waitcnt vmcnt(0)\ns_barrier")
    A("L_noln:")
    A(f"s_cmp_lg_u32 s{sW}, 0\ns_cbranch_scc1 L_w0a")
    A(f"v_mov_b32 v{T0}, v94\nv_mov_b32 v{T1}, v95\ns_nop 0")
    def cond_non():
        A(f"v_readfirstlane_b32 s{sN0}, v{T0}\nv_readfirstlane_b32 s{sN1}, v{T1}\ns_nop 0\ns_cmp_eq_u32 s{sN0}, 0")
    poll(A, "L_pnon", 96, sDBG, "0", cond_non, sleep=8, precheck=True)
    A(f"s_bitcmp1_b32 s{sHEAD}, 0\ns_cbranch_scc1 L_w0a")
    A(f"s_lshl_b32 s{sKo}, s{sHEAD}, 2\ns_add_u32 s{sKo}, s{sKo}, s{sVo}")
    A(f"buffer_store_dwordx2 {vr(T0,2)}, v96, {sr(sWS)}, s{sKo} offen sc1")
    A("L_w0a:")
    stamp(A, 1)
    for j in range(3): A(f"v_mov_b32 v{DSR[j]}, v{84+j}")
    for qb in range(4): A(f"v_lshlrev_b32 v17, 4, v0\nv_add_u32 v{XV[qb]}, {XS_OFF + qb*20480}, v17")
    A("v_lshrrev_b32 v16, 2, v0\nv_and_b32 v17, 6, v16\nv_and_b32 v18, 3, v0")
    A("v_lshrrev_b32 v19, 1, v18\nv_and_b32 v20, 1, v18\nv_lshlrev_b32 v20, 3, v20")
    A(f"v_mul_u32_u24 v21, 384, v16\nv_add_u32 v21, {VRING}, v21")
    for m in range(4):
        A(f"v_add_u32 v22, {2*m}, v19\nv_xor_b32 v22, v22, v17\nv_lshlrev_b32 v22, 4, v22\nv_add3_u32 v{VA[m]}, v21, v22, v20\nv_add_u32 v{VA[m]}, {STG}, v{VA[m]}")
    for e in range(2):
        A(f"v_add_u32 v22, {4*e}, v18\nv_xor_b32 v22, v22, v17\nv_lshlrev_b32 v22, 4, v22\nv_add_u32 v{WA[e]}, v21, v22\nv_add_u32 v{WA2[e]}, {2*STG}, v{WA[e]}")
    A(f"v_lshlrev_b32 v21, 7, v16\nv_add_u32 v21, {W1RING}, v21")
    for ct in range(3):
        A(f"v_add_u32 v22, {2*ct}, v19\nv_xor_b32 v22, v22, v17\nv_lshlrev_b32 v22, 4, v22\nv_add3_u32 v{W1A[ct]}, v21, v22, v20")
    A("v_and_b32 v16, 15, v0\nv_and_b32 v17, 6, v16\nv_lshrrev_b32 v18, 4, v0\nv_mul_u32_u24 v21, 384, v16")
    for e in range(2):
        A(f"v_add_u32 v22, {4*e}, v18\nv_xor_b32 v22, v22, v17\nv_lshlrev_b32 v22, 4, v22\nv_add_u32 v{KA[e]}, v21, v22")
    A(f"v_lshlrev_b32 v40, 3, v16\nv_mov_b32 v41, {LDS_FL}")
    HACC = {12: PB[1], 13: PB[1] + 16, 14: NREF}
    A("s_waitcnt vmcnt(0)")
    if opt["wqpf"]:
        sPFa = sSlot
        A(f"s_movk_i32 s{sPFa}, {12288-384}\ns_bitcmp1_b32 s{sHEAD}, 0\ns_cbranch_scc0 L_nopf")
        A(f"s_lshl_b32 s{sKo}, s{sQT}, 2\ns_add_u32 s{sKo}, s{sKo}, s{sW}\ns_lshl_b32 s{sKo}, s{sKo}, 4\ns_add_u32 s{sKo}, s{sKo}, 127")
        A(f"s_mul_i32 s{sKo2}, s{sKo}, 3072\ns_mul_i32 s{sKo}, s{sKo}, 12288")
        A(f"v_lshrrev_b32 v120, 2, v0\nv_and_b32 v121, 3, v0\nv_min_u32 v121, 2, v121\nv_lshlrev_b32 v121, 7, v121\nv_mul_u32_u24 v122, 12288, v120\nv_add3_u32 v122, v122, v121, s{sPFa}")
        A(f"v_and_b32 v121, 3, v0\nv_lshlrev_b32 v121, 6, v121\nv_min_u32 v121, 188, v121\nv_mul_u32_u24 v123, 3072, v120\nv_add_u32 v123, v123, v121\nv_add_u32 v123, {3072-96}, v123")
        A(f"buffer_load_dword v121, v122, {sr(sWQ)}, s{sKo} offen\nbuffer_load_dword v121, v122, {sr(sWQ)}, s{sKo} offen offset:384\nbuffer_load_dword v121, v123, {sr(sW1)}, s{sKo2} offen")
        A("L_nopf:")
    for ct in range(3):
        h = HACC[12 + ct]
        for r in range(2):
            A(f"v_lshlrev_b32 v{h+2*r}, 16, v{88+2*ct+r}\nv_and_b32 v{h+2*r+1}, 0xffff0000, v{88+2*ct+r}")
        for r in range(4): A(f"v_mul_f32 v{h+r}, {fh(CSC)}, v{h+r}")
        for qb in range(1, 4):
            for r in range(4): A(f"v_mov_b32 v{h+4*qb+r}, v{h+r}")
    A(f"s_cmp_lg_u32 s{sW}, 0\ns_cbranch_scc1 L_w0b")
    A(f"s_mov_b32 s{sKo}, s{sA}\ns_mov_b32 s{sKo2}, s{sB}")
    poll(A, "L_pln", 40, sWS, f"s{sVo}", cond_nonce(A, "0xffff"), sleep=opt["lns"])
    A(f"s_mov_b32 s{sA}, s{sKo}\ns_mov_b32 s{sB}, s{sKo2}")
    A(f"v_mov_b32 v42, s{sN0}\nv_mov_b32 v43, s{sN1}\nds_write_b64 v41, v[42:43]\ns_waitcnt lgkmcnt(0)")
    A("L_w0b:")
    A("s_barrier")
    stamp(A, 2)
    straight(A, xload(0) + xload(1))
    A("ds_read_b64 v[42:43], v41")
    order = [list(range(15))] * 9 + [[14, 12, 13] + list(range(12))]
    def wread(ch, pos, e, h):
        ct = order[ch][pos]
        n = 15 * ch + pos; d = KV + 8 * (n % 6) + 4 * e + 2 * h; sl = ch % 3
        if ct < 12:
            ks, p = ct >> 1, ct & 1
            a, o = (WA[ks & 1], sl * STG) if sl < 2 else (WA2[ks & 1], 0)
            return f"ds_read_b64_tr_b16 {vr(d,2)}, v{a} offset:{o + (ks >> 1)*128 + 8*p + e*12288 + h*6144}"
        return f"ds_read_b64_tr_b16 {vr(d,2)}, v{W1A[ct-12]} offset:{sl*8192 + e*4096 + h*2048}"
    mf = []
    for ch in range(10):
        for pos in range(15):
            ct = order[ch][pos]; n = 15 * ch + pos
            for qb in range(4):
                for i_, e in enumerate(snk(2, qb)):
                    acc = ar(4 * (ct * 4 + qb)) if ct < 12 else vr(HACC[ct] + 4 * qb)
                    c = "0" if (ch == 0 and i_ == 0 and ct < 12) else acc
                    mf.append(Ins(f"{MF} {acc}, {vr(KV + 8*(n%6) + 4*e)}, {vr(XB[ch%3] + 4*(qb*2+e))}, {c}"))
    G = Gaps(mf)
    for pos in range(3):
        for e in range(2):
            for h in range(2): A(wread(0, pos, e, h))
    A.l.append(lgw(rs(KV, 8)))
    A(f"v_readfirstlane_b32 s{sN0}, v42\nv_readfirstlane_b32 s{sN1}, v43")
    A.l.append(vmw({"X0"}))
    stamp(A, 3); zst(A, 6, 1)
    if opt["zoom"] == 6:
        for ch in range(10):
            Z = Asm(); zst(Z, 6, 2 + ch); G.blk[120 * ch + 119] = Z.l
    late_fill = []
    for ch in range(10):
        b = 120 * ch
        for pos in range(12):
            n = 0
            for e in range(2):
                for h in range(2):
                    G.place(b + 8 * pos + (2 * n if ch < 9 else 4 * (n >> 1)), wread(ch, pos + 3, e, h)); n += 1
        gb = b + 102
        G.put(gb, vmw({f"W{ch+1}"} if ch < 9 else {"K0", "V0"}, " lgkmcnt(0)")); G.put(gb, Ins("s_barrier"))
        if ch < 9:
            n = 0
            for pos in range(3):
                for e in range(2):
                    for h in range(2):
                        G.place(gb + 1 + n + n // 4, wread(ch + 1, pos, e, h)); n += 1
            G.put(b + 118, vmw({f"X{ch+1}"}))
        else:
            for ks in range(6): G.place(gb + 1 + 2 * ks, kread(0, 0, ks))
        for pos in range(15):
            n = 15 * ch + pos
            if b + 8 * pos - 1 >= 0: G.put(b + 8 * pos - 1, lgw(rs(KV + 8 * (n % 6), 8)))
        ke = opt["kearly"]
        if ch + 2 < 10:
            lst = wdma(ch + 2) + xload(ch + 2)
            if ke == 1 and ch in (6, 7): lst += kvdma(sK, KRING + (ch - 6) * STG, ch - 6, f"K{ch-6}")
            if ke == 2 and ch in (4, 5, 6, 7): lst += kvdma(sK, KRING + ((ch - 4) >> 1) * STG, (ch - 4) >> 1, f"K{(ch-4)>>1}")[5 * (ch & 1): 5 * (ch & 1) + 5]
        elif ch == 8: lst = ([] if ke else kvdma(sK, KRING, 0, "K0")) + kvdma(sV, VRING + STG, 0, "V0")
        else: lst = ([] if ke else kvdma(sK, KRING + STG, 1, "K1")) + kvdma(sV, VRING + 2 * STG, 1, "V1")
        if ch == opt["kvw"] and ch:
            q_ = [f"s_lshr_b32 s{sE}, s{sQB0}, 2", f"s_mul_i32 s{sKo}, s{sE}, 2304", f"s_mul_i32 s{sE}, s{sE}, 1536", "v_lshlrev_b32 v60, 7, v0", "v_add_u32 v60, 128, v60",
                  f"v_min_u32 v61, {128 + 17*128}, v60", f"v_min_u32 v60, {128 + 11*128}, v60",
                  (f"buffer_load_dword v62, v61, {sr(sK)}, s{sKo} offen", 0, False, "PF"), (f"buffer_load_dword v62, v60, {sr(sV)}, s{sE} offen", b + 40, False, "PF")]
            late_fill.append((q_, b + 2))
        g = spread(G, lst, b, b + (117 if ch < 9 else 100))
        assert g <= b + 120, g
    if opt["pfm"]:
        b_ = 120 * opt["pfm"]
        G.blk[b_ + 3] = [Ins("s_getpc_b64 s[34:35]"), Ins("L_pc3:"), Ins(f"s_lshl_b32 s{sE}, s{sW}, 13"), Ins(f"s_add_u32 s{sE}, s{sE}, L_mid-L_pc3"),
                         Ins(f"s_add_u32 s34, s34, s{sE}"), Ins("s_addc_u32 s35, s35, 0")]
        late_fill.append((["v_lshlrev_b32 v63, 7, v0", ("global_load_dword v63, v63, s[34:35]", b_ + 9, False, "PF")], b_ + 5))
    for q_, g_ in late_fill: assert not G.fill(q_, g_)
    b = 1080
    spread(G, kvdma(sK, KRING + 2 * STG, 2, "K2"), b + 103, b + 119)
    k0 = -2.0 * LOG2E * math.sqrt(2.0 / math.pi) / CSC; k1 = k0 * 0.044715 / (CSC * CSC)
    HS = {14: sVo, 12: sVo2}
    pre = [f"s_mov_b32 s{sA}, {fh(CSC)}", f"s_mov_b32 s{sB}, {fh(k1)}", f"s_mul_i32 s{sC}, s{sQB0}, {240*1024}", f"s_add_u32 s{sC}, s{sC}, {OH_OFF + 192*1024}",
           f"s_lshl_b32 s{sD}, s{sHEAD}, 10", f"s_add_u32 s{sVo2}, s{sC}, s{sD}", f"s_lshl_b32 s{sD}, s{sHEAD}, 9", f"s_add_u32 s{sVo}, s{sC}, s{sD}", f"s_add_u32 s{sVo}, s{sVo}, 32768"]
    pre += [f"s_lshl_b32 s{sFL}, s{sMT}, 1", f"s_add_u32 s{sFL}, s{sFL}, s{sQH}", f"s_lshl_b32 s{sFL}, s{sFL}, 8", f"s_add_u32 s{sG}, s{sFL}, {HF_OFF}",
            f"s_lshl_b32 s{sE}, s{sSP}, 1", f"s_add_u32 s{sE}, s{sE}, s{sKH}", f"s_lshl_b32 s{sE}, s{sE}, 2", f"s_lshl_b32 s{sMSK}, 15, s{sE}",
            f"s_lshl_b32 s{sE}, s{sQB0}, 6", f"s_and_b32 s{sE}, s{sE}, 0xffffff00", f"s_lshl_b32 s{sD}, s{sHEAD}, 3", f"s_add_u32 s{sQT}, s{sE}, s{sD}"]
    g = b - 118
    for t in pre: g = G.place(g, t) + 1
    assert g < b
    G.place(b - 30, f"v_mov_b32 v{T0}, {fh(k0)}"); G.place(b - 28, f"v_lshlrev_b32 v{T1}, 3, v0"); G.place(b - 26, "v_lshlrev_b32 v10, 4, v0")
    def gelu_q(ct, tmp):
        q = []
        for qb in range(4):
            y = tmp + 8 * (qb & 1); pk = y + 4; so_ = (sE, sF)[qb & 1]
            ad = (f"s_add_u32 s{so_}, s{HS[ct]}, {qb*240*1024}", 0, False, None)
            if ct == 14:
                st = [ad, (f"buffer_store_dwordx2 {vr(pk,2)}, v{T1}, {sr(sWS)}, s{so_} offen sc1", 0, False, "H")]
                q.append(tuple(f(HACC[14] + 4 * qb, y, pk, st) for f in (gelu_ops, gelu_pk)))
            else:
                st = [ad, (f"buffer_store_dwordx4 {vr(pk)}, v10, {sr(sWS)}, s{so_} offen sc1", 0, False, "H")]
                q.append(tuple(f(HACC[12] + 4 * qb, y, pk, []) + f(HACC[13] + 4 * qb, y, pk + 2, st) for f in (gelu_ops, gelu_pk)))
        return q
    g14 = gelu_q(14, XB[1])
    def two_streams(G, tiles, g0, e0, partial=False):
        import copy
        best = None
        for nfit in range(len(tiles), -1, -1):
            G2 = copy.deepcopy(G); ok = True
            for par in range(2):
                q_ = [x for t_ in tiles[par:nfit:2] for x in t_[0]]
                if q_: q_[0] = (q_[0][0], e0, False, None)
                if G2.fill(q_, g0): ok = False
            if ok: break
        part = []
        np_ = nfit + 1 if (partial and nfit < len(tiles)) else nfit
        for par in ((nfit + 1) & 1, nfit & 1):
            q_ = [x for t_ in tiles[par:np_:2] for x in t_[0]]
            if q_: q_[0] = (q_[0][0], e0, False, None)
            part += G.fill(q_, g0)
        print("gelu tiles hidden:", nfit, "of", len(tiles), "partial left", len(part), file=sys.stderr)
        return part + [x for t_ in tiles[np_:] for x in t_[1 if opt["pk"] else 0]]
    left14 = two_streams(G, g14, b, b + 12)
    q = []
    n = 0
    for ks in range(6):
        for qb in range(4):
            f = qb * 6 + ks; x = PB[0] + 16 * (n & 1); n += 1
            e = b + 24 + 16 * ks + 8 + 2 * qb + 1 + 5
            for p in range(2):
                for r in range(4): q.append((f"v_accvgpr_read_b32 v{x+4*p+r}, a{4*((2*ks+p)*4+qb)+r}", e, False, None))
            d = (x + 8) if f < 16 else QV + 4 * (f - 16)
            for i in range(4): q.append((f"v_cvt_pk_bf16_f32 v{d+i}, v{x+2*i}, v{x+2*i+1}", 0, False, None))
            if f < 16:
                for i in range(4): q.append((f"v_accvgpr_write_b32 a{192+4*f+i}, v{d+i}", 0, False, None))
    left = left14 + G.fill(q, b)
    print("Q conversion ops exposed:", len(left) - len(left14), file=sys.stderr)
    A.ext(G.emit())
    A("L_mid:")
    stamp(A, 4); zst(A, 5, 1)
    A("s_nop 7")
    straight(A, left)
    zst(A, 5, 2)
    for i in range(4): A(f"ds_read_b64 {vr(244+2*i,2)}, v{VA[i]} offset:{6144*i}")
    A.l.append(lgw(rs(244, 8)))
    for i in range(8): A(f"v_and_b32 v{244+i}, 0x7fff7fff, v{244+i}")
    for i in range(4): A(f"v_pk_max_u16 v{244+i}, v{244+i}, v{248+i}")
    A("v_pk_max_u16 v244, v244, v245\nv_pk_max_u16 v246, v246, v247\nv_pk_max_u16 v244, v244, v246\nv_lshlrev_b32 v245, 16, v244\nv_max_u32 v244, v244, v245")
    A(f"v_cmp_le_u32 vcc, {fh(2.0**-6)}, v244\ns_mov_b32 s{sBI}, {fh(-BIAS_LO)}\ns_mov_b32 s{sLM}, {fh(2.0**(112-BIAS_LO))}\ns_cmp_lg_u64 vcc, 0")
    A(f"s_cselect_b32 s{sBI}, {fh(-BIAS)}, s{sBI}\ns_cselect_b32 s{sLM}, {fh(2.0**(112-BIAS))}, s{sLM}")
    zst(A, 5, 3)
    G = Gaps(qk_mfmas(set())); qk_reads(G, 0, vpre=False)
    gq = gelu_q(12, 240)
    for kb in range(4):
        mq = []
        for qb in range(4):
            m = NREF + 4 * qb; s_ = S(kb, qb); e = 6 * (4 * kb + qb) + 5 + 8
            if kb == 0: mq += [(f"v_max3_f32 v{m}, v{s_}, v{s_+1}, v{s_+2}", e, False, None), (f"v_max_f32 v{m}, v{m}, v{s_+3}", e, False, None)]
            else: mq += [(f"v_max3_f32 v{m}, v{m}, v{s_}, v{s_+1}", e, False, None), (f"v_max3_f32 v{m}, v{m}, v{s_+2}, v{s_+3}", e, False, None)]
        mleft = G.fill(mq, 0)
        assert kb == 3 or not mleft
    left = two_streams(G, gq, 0, 0, partial=True)
    A.ext(G.emit())
    zst(A, 5, 4)
    A.l.append(vmw({"K1"})); A("s_barrier")
    zst(A, 5, 5)
    for r in KA: A(f"v_add_u32 v{r}, {STG}, v{r}")
    A("s_nop 4")
    for ks in range(6): A(kread(0, 0, ks))
    straight(A, mleft)
    for sw in ("v_permlane32_swap_b32", "v_permlane16_swap_b32"):
        for qb in range(4): A(f"v_mov_b32 v{NREF+4*qb+1}, v{NREF+4*qb}")
        for qb in range(4): A(f"{sw} v{NREF+4*qb}, v{NREF+4*qb+1}")
        for qb in range(4): A(f"v_max_f32 v{NREF+4*qb}, v{NREF+4*qb}, v{NREF+4*qb+1}")
    for qb in range(4): A(f"v_sub_f32 v{NREF+4*qb}, s{sBI}, v{NREF+4*qb}")
    for qb in range(4):
        for r in range(1, 4): A(f"v_mov_b32 v{NREF+4*qb+r}, v{NREF+4*qb}")
    zst(A, 5, 6)
    straight(A, left)
    zst(A, 5, 7)
    sm = sm_ops(0)
    L2 = 240
    for i in range(17):
        kb, qb = (i >> 2) & 3, i & 3
        if i < 16:
            for k in range(2): A(f"v_pk_add_f32 {vr(S(kb,qb)+2*k,2)}, {vr(S(kb,qb)+2*k,2)}, {vr(NREF+4*qb,2)}")
            for t in sm[i][0]: A(t)
        else: A("s_nop 0")
        if i > 0:
            j = i - 1; s_ = S(j >> 2, j & 3); l_ = L2 + 2 * (j & 3)
            if j < 4: A(f"v_pk_add_f32 {vr(l_,2)}, {vr(s_,2)}, {vr(s_+2,2)}")
            else:
                for k in range(2): A(f"v_pk_add_f32 {vr(l_,2)}, {vr(l_,2)}, {vr(s_+2*k,2)}")
            for t in sm[j][2]: A(t)
    for qb in range(4): A(f"v_add_f32 v{LS[qb]}, v{L2+2*qb}, v{L2+2*qb+1}")
    A(f"s_add_u32 s{sKo}, s{sWb}, {3*STG}\ns_mov_b32 s{sCnt}, 5")
    A(f"s_add_u32 s{sE}, s{sQT}, {HF_OFF}")
    A(f"v_mov_b32 v{T0}, s{sN0}\nv_mov_b32 v{T1}, s{sN1}")
    bp, bq = b_addr_ops()
    for t in bp: A(t)
    stamp(A, 5); zst(A, 5, 8); zst(A, 7, 1)
    A("s_waitcnt lgkmcnt(0)")
    Gf = gen_step(0, 0, first=True)
    Gf.place(177, f"buffer_store_dwordx2 {vr(T0,2)}, v{ZV}, {sr(sWS)}, s{sE} offen sc1")
    assert not Gf.fill(bq, 0, 192)
    sf = Gf.emit()
    A(f"s_getpc_b64 s[16:17]\nL_pc2:\ns_lshr_b32 s19, s2, 3\ns_lshl_b32 s19, s19, 2\ns_add_u32 s19, s19, s{sW}\ns_lshl_b32 s18, s{sW}, 13")
    A("s_add_u32 s18, s18, L_tail-L_pc2\ns_add_u32 s16, s16, s18\ns_addc_u32 s17, s17, 0")
    A(f"s_mul_i32 s18, s19, 15360\ns_mul_i32 s24, s{sSP}, {1536*1280}\ns_add_u32 s18, s18, s24\ns_add_u32 s26, s18, 8192")
    A(f"s_mul_i32 s19, s19, 3840\ns_mul_i32 s24, s{sSP}, {384*1280}\ns_add_u32 s19, s19, s24\ns_brev_b32 s27, 1")
    ex = {1: [(179, f"buffer_load_dword v254, v{PFV}, {sr(sWO)}, s24 offen")], 2: [(179, f"buffer_load_dword v254, v{PFV}, {sr(sWO)}, s24 offen")],
          3: [(179, f"buffer_load_dword v254, v{PFV}, {sr(sW2)}, s24 offen")], 4: [(179, f"global_load_dword v254, v{PFV}, s[16:17]")],
          }
    for k in (0, 3): ex.setdefault(k, []).append((183, f"buffer_store_dwordx4 v[246:249], v245, {sr(sWS)}, s34 offen sc1"))
    st = []
    for k in range(6):
        Gk = gen_step((k + 1) & 1, (k + 1) % 3, extra=ex.get(k, []))
        if k in (1, 2, 3): Gk.place2(150, f"s_cmp_eq_u32 s{sCnt}, 0", f"s_cselect_b32 s24, s{(0, 18, 26, 19)[k]}, s27")
        if k in (1, 4): Gk.place(20, "s_add_u32 s34, s34, 1024")
        if k == 0: Gk.place(186, f"s_sub_u32 s{sCnt}, s{sCnt}, 1")
        if k == 4: Gk.place(186, f"s_cmp_eq_u32 s{sCnt}, 0")
        st.append(Gk.emit())
    pro = list(A.l)
    auto_vm(pro); auto_lgkm(pro)
    auto_lgkm(sf)
    for k in range(6): auto_lgkm(st[k], pre=st[k - 1])
    s0 = st[4]; s1 = [x for k in range(4) for x in st[k]]
    A.ext(sf)
    zst(A, 7, 2)
    A(".p2align 6\nL_loop:")
    A.ext(s1); A.ext(s0)
    if opt["zoom"] == 7: A(f"s_mov_b32 m0, s{sCnt}\ns_memrealtime vcc\ns_waitcnt lgkmcnt(0)\nv_writelane_b32 v245, vcc_lo, m0\ns_memtime vcc\ns_waitcnt lgkmcnt(0)\nv_writelane_b32 v246, vcc_lo, m0")
    A("s_cbranch_scc1 L_tail"); A.ext(st[5]); A("s_branch L_loop")
    OOL = Asm()
    w01 = b_wdma(sW2, "W0", 0, step=96) + b_wdma(sW2, "W1", STB, step=(sNeg,))
    ra = [t.replace(f"v_cndmask_b32 v{RA[2]},", "v_cndmask_b32 v254,").replace(f"v_cndmask_b32 v{RA[3]},", "v_cndmask_b32 v255,") for t in b_ra_ops()]
    ra = [t for t in ra if t != "s_nop 0"]
    b_ra_fin = [f"v_mov_b32 v{RA[2]}, v254", f"v_mov_b32 v{RA[3]}, v255", f"v_mov_b32 v254, s{sN0}", f"v_mov_b32 v255, s{sN1}"]
    post = []
    def last(G):
        B = 96
        G.place(2, f"buffer_load_dwordx2 {vr(T0,2)}, v{FLV}, {sr(sWS)}, s{sG} offen sc1")
        g = 4
        for t in b_scalars(): g = G.place(g, t) + (1 if t.startswith("v_") else 0)
        assert g < 90
        G.put(92, Ins("s_waitcnt vmcnt(0)")); G.put(92, Ins("s_barrier"))
        X_ = Asm(); cond_nonce(X_, f"s{sMSK}")(); X_("s_cbranch_scc1 L_o1\nL_o1_r:"); G.blk[94] = X_.l
        OOL("L_o1:"); poll(OOL, "L_ph", FLV, sWS, f"s{sG}", cond_nonce(OOL, f"s{sMSK}"), sleep=8); OOL("s_branch L_o1_r")
        for i, r in enumerate(VA): G.place(B + 72 + i, f"v_add_u32 v{r}, {STG}, v{r}")
        n = 0
        for db in range(3):
            for e in range(2):
                for h in range(2):
                    G.place(B + 77 + (3 * n) // 2, vread(db, e, h)); n += 1
        spread(G, w01, B, B + 92)
        post.append(G)
    Gl = gen_step(0, 0, last=last)
    k_ = [i for i, t in enumerate(ra) if t.startswith("s_cmp")][0]
    q_ = [f"v_add_u32 v{OV[r]}, s{24+r}, v245" for r in (3, 2, 1, 0)] + ra[:k_] + oepi_pre() + [f"s_lshl_b32 s16, s{sW}, 2", f"s_add_u32 s16, s16, {LDS_FL}", f"v_mov_b32 v{NREF+5}, s16", f"v_mov_b32 v{NREF+6}, {LDS_FL}"]
    lf_ = Gl.fill(q_, 100); print("step-30 set-up ops left over:", len(lf_), file=sys.stderr)
    T = Asm()
    T("L_tail:")
    if opt["zoom"] == 7:
        for i in range(5): T(f"v_readlane_b32 s{78+2*(3+i)}, v245, {4-i}\nv_readlane_b32 s{79+2*(3+i)}, v246, {4-i}")
        NST[0] = 8
    T.ext(Gl.emit())
    straight(T, lf_)
    zst(T, 1, 1)
    stamp(T, 6)
    lred(T)
    T(f"v_cmp_nge_f32 vcc, s{sLM}, v{LS[0]}")
    for qb in range(1, 4): T(f"v_cmp_nge_f32 s[34:35], s{sLM}, v{LS[qb]}\ns_nop 0\ns_or_b64 vcc, vcc, s[34:35]")
    T(f"s_cmp_lg_u64 vcc, 0\ns_cselect_b32 s16, 1, {opt['forcesafe']}\nv_mov_b32 v{NREF}, s16")
    T(f"ds_write_b32 v{NREF+5}, v{NREF}")
    for qb in range(4): T(f"v_rcp_f32 v{LS[qb]}, v{LS[qb]}")
    for t in ra[k_:]: T(t)
    T(f"v_mov_b32 v{NREF+2}, v{NREF+6}")
    T("s_waitcnt lgkmcnt(0)\ns_barrier")
    T(f"ds_read_b128 {vr(NREF+4)}, v{NREF+2}")
    G = Gaps(pv_mfmas(1)); pv_reads(G, 0)
    G.put(3, lgw(rs(NREF + 4, 4)))
    G.place(4, f"v_or3_b32 v{NREF}, v{NREF+4}, v{NREF+5}, v{NREF+6}"); G.place(5, f"v_or_b32 v{NREF}, v{NREF}, v{NREF+7}")
    G.place(7, f"v_readfirstlane_b32 s{sE}, v{NREF}")
    gck = G.place2(9, f"s_cmp_lg_u32 s{sE}, 0", "s_cbranch_scc1 L_safe")
    w2_ = b_wdma(sW2, "W2", 2 * STB, second=48)
    l0_ = ([] if opt["w2t"] else w2_) + hload(2, "O2"); l1_ = []
    ylo = hload(0, "O0") + hload(1, "O1") + (w2_ if opt["w2t"] else [])
    g = spread(G, ylo, gck + 1, opt["hl"])
    oq, _ = oepi_ops()
    items = []; cur = []
    for x in oq:
        if x[3] == "OST": items.append((cur, x)); cur = []
        else: cur.append(x)
    pc = [int(x) for x in opt["pace"].split(",")]; assert sum(pc) == 24
    first = []
    for n in range(12):
        first += items[n][0]
        if n < pc[0]: first.append(items[n][1])
    left = G.fill(first, 12)
    T.ext(G.emit())
    if opt["tst"] == 2: stamp(T, 7)
    zst(T, 1, 2)
    T("s_nop 7")
    straight(T, pkify(left))
    T("L_join:")
    zst(T, 1, 3)
    if opt["tst"] == 0: stamp(T, 7)
    for t in b_ra_fin: T(t)
    T.l.append(vmw({"W0", "O0"})); T("s_barrier")
    for nb in range(3):
        for e in range(2):
            for h in range(2): T(bread(0, nb, e, h))
    T(f"s_add_u32 s17, s{sQT}, {AF_OFF}")
    T("s_waitcnt lgkmcnt(0)")
    zst(T, 1, 4)
    def paced(k, lim=78):
        n0 = sum(pc[:k + 1]); q = []
        for j in range(pc[k + 1]):
            n = n0 + j; g = 2 + (lim - 2) * j // pc[k + 1]
            if n >= 12: q += [(t, max(0, g - 7), ng, tag) for (t, e, ng, tag) in items[n][0]]
            q.append((items[n][1][0], g, False, "OST"))
        return q
    c0, late = b_chunk(0, l0_, {"W1"}, {"O1"}, czero=True, fillq=paced(0), lim=opt["jl"] if opt["jit"] else None)
    T.ext(c0); straight(T, late); print("y0 leftover", len(late), file=sys.stderr)
    zst(T, 1, 5)
    so = {1: 18, 2: 19, 3: 16}; sYC, sXC, sYF, sXF = 26, 27, 24, 25
    assert pc[2] == pc[3] == 0 and opt["afc"] == 1
    a1 = [f"v_lshlrev_b32 v4, 4, v0", f"s_mul_i32 s{sE}, s{sW}, 20480", f"v_add_u32 v2, s{sE}, v4", f"s_xor_b32 s{sE}, s{sW}, 2", f"s_mul_i32 s{sE}, s{sE}, 20480", f"v_add_u32 v3, s{sE}, v4",
          "v_lshlrev_b32 v1, 3, v0", "v_add_u32 v1, 2048, v1", f"s_add_u32 s{sG}, s{sFL}, {AF_OFF}", f"s_mov_b32 s{sKo}, s{sF}"]
    c1, left = b_chunk(1, [f"s_mov_b32 s{sVo}, s{sH}"] + b_wdma(sWO, "W3", 3 * STB), {"W2"}, {"O2"}, lim=opt["jl"], fillq=a1, af=opt["afg"])
    T.ext(c1); assert not left
    zst(T, 1, 6)
    a2 = [f"s_lshl_b32 s{sH}, s{sMT}, 2", f"s_add_u32 s{sH}, s{sH}, s{sNT}"] + [t.replace(f"s{sA}", f"s{sInc}") for t in slot_scalars(YC_OFF, so, sYC)]
    a2 += [f"s_lshl_b32 s{sC}, s{sH}, 2", f"s_add_u32 s{sC}, s{sC}, s{sW}", f"s_lshl_b32 s{sC}, s{sC}, 6", f"s_add_u32 s{sYF}, s{sC}, {YF_OFF}", f"s_add_u32 s{sXF}, s{sC}, {XF_OFF}"]
    c2 = b_chunk(2, a2, {"W3"}, None, xw=True, inc=STB, lim=40,
                 puts=[(opt["aflg"], f"buffer_load_dwordx2 {vr(T0,2)}, v{FLV}, {sr(sWS)}, s{sG} offen sc1", "AFL")])
    T.ext(c2)
    zst(T, 1, 7); stamp(T, 8)
    YO = 80; YP = 100
    try_ = lambda i, r: (YO, 16, 130, 216)[r] + 4 * i
    T.l.append(vmw({"AFL"})); cond_nonce(T, f"s{sMSK}")(); T(f"s_cselect_b32 s{sD}, 1, 0")
    T("s_waitcnt lgkmcnt(0)\ns_barrier")
    stamp(T, 9); zst(T, 1, 8); zst(T, 2, 1)
    xchg_reads(T, try_)
    T(f"s_cmp_lg_u32 s{sD}, 0\ns_cbranch_scc1 L_o2")
    straight(T, oload(1, "O1"))
    T("s_waitcnt lgkmcnt(0)\ns_barrier")
    S_ = Asm(); yst = xchg_sum(S_, try_, YP, so, False)
    rest = Asm(); straight(rest, oload(2, "O2") + b_wdma(sWO, "W2", 2 * STB))
    grp = []; cur = []
    for x in rest.l:
        cur.append(x)
        if x.kind == "vmem": grp.append(cur); cur = []
    grp[-1] += cur
    for n, x in enumerate(S_.l):
        T.l.append(x)
        if n % 8 == 3 and grp: T.ext(grp.pop(0))
    for g_ in grp: T.ext(g_)
    zst(T, 1, 9)
    T.l.append(vmw({"O1"}))
    T("L_o2_r:")
    T(f"s_mov_b32 s{sCnt}, 2\ns_lshl_b32 s{sE}, s{sSP}, 3\ns_add_u32 s{sG}, s{sYF}, s{sE}")
    OOL("L_o2:"); straight(OOL, b_wdma(sWO, "W2", 2 * STB)); OOL("s_waitcnt lgkmcnt(0)\ns_barrier")
    xchg_sum(OOL, try_, YP, so, False)
    poll(OOL, "L_pat", FLV, sWS, f"s{sG}", cond_nonce(OOL, f"s{sMSK}"), sleep=4)
    straight(OOL, oload(1, "O1") + oload(2, "O2")); OOL("s_waitcnt vmcnt(8)\ns_branch L_o2_r")
    zst(T, 1, 10); zst(T, 2, 2)
    def sl(u): return b_wdma(sWO, f"W{(u+2)%3}", ((u + 2) % 3) * STB) + oload((u + 2) % 3, f"O{(u+2)%3}")
    def nx(k, u): return {f"{k}{(u+1)%3}"}
    for n, u in enumerate((1, 2, 0)):
        T.ext(b_chunk(u, merge(sl(u), yst[5 * n: 5 * n + 5]), nx("W", u), nx("O", u), czero=(n == 0), ph=n, inc=-STB if n == 0 else None))
        zst(T, 2, 3 + n)
    zst(T, 1, 11)
    tail = list(T.l)
    auto_lgkm(tail, pre=s0); auto_vm(tail)
    A.ext(tail)
    steps = [b_chunk(1, sl(1), nx("W", 1), nx("O", 1), ph=0, first_gap=[f"s_sub_u32 s{sCnt}, s{sCnt}, 1"]),
             b_chunk(2, sl(2), nx("W", 2), nx("O", 2), ph=1, after_barrier=f"buffer_store_dwordx2 v[254:255], v{ZV}, {sr(sWS)}, s{sG} offen sc1"),
             b_chunk(0, sl(0), nx("W", 0), nx("O", 0), ph=2, last_gap=[f"s_cmp_lg_u32 s{sCnt}, 0"])]
    for u in range(3):
        auto_lgkm(steps[u], pre=steps[(u + 2) % 3]); auto_vm(steps[u], pre=steps[(u + 1) % 3] + steps[(u + 2) % 3])
    A(".p2align 6\nL_bloop:")
    for u in range(3): A.ext(steps[u])
    A("s_cbranch_scc1 L_bloop")
    PKS = 16; XL = 48; B2L = 58
    E = Asm()
    zst(E, 2, 6)
    E(f"v_and_b32 v6, 3, v0\nv_lshlrev_b32 v6, 3, v6\ns_lshl_b32 s{sMSK}, 1, s{sSP}\ns_xor_b32 s{sMSK}, s{sMSK}, 15")
    a3 = [f"v_add_u32 v2, {STB}, v2", f"v_add_u32 v3, {STB}, v3",
          "v_lshrrev_b32 v7, 4, v0", "v_lshlrev_b32 v7, 3, v7", "v_and_b32 v5, 15, v0", "v_mul_u32_u24 v5, 1280, v5", "v_add_u32 v5, v5, v7"]
    c, left = b_chunk(1, [(f"buffer_load_dwordx2 {vr(T0,2)}, v6, {sr(sWS)}, s{sYF} offen sc1", "YF")] + sl(1), nx("W", 1), nx("O", 1), ph=0, fillq=a3); assert not left
    E.ext(c)
    E.l.append(vmw({"YF"}))
    poll(E, "L_py", 6, sWS, f"s{sYF}", cond_nonce(E, f"s{sMSK}"), sleep=4, precheck=True)
    zst(E, 2, 7)
    a4 = [f"s_lshr_b32 s{sC}, s{sFL}, 6", f"s_add_u32 s{sC}, s{sC}, s{sSP}", f"s_mul_i32 s{sKo}, s{sC}, 20480",
          f"s_mul_i32 s{sC}, s{sNT}, 320", f"s_mul_i32 s{sB}, s{sKH}, 160", f"s_add_u32 s{sC}, s{sC}, s{sB}", f"s_add_u32 s{sKo}, s{sKo}, s{sC}"]
    E.ext(b_chunk(2, inbox_loads(sYC, YP, "YL") + a4, nx("W", 2), nx("O", 2), ph=1, lim=50))
    zst(E, 2, 8)
    l2 = [(f"buffer_load_dwordx2 {vr(B2L+2*i,2)}, v7, {sr(sB2)}, s{sC} offen offset:{32*i}", "YL") for i in range(5)]
    l2 += [(f"buffer_load_dwordx2 {vr(XL+2*i,2)}, v5, {sr(sX)}, s{sKo} offen offset:{32*i}", "YL") for i in range(5)]
    if opt["opre"]: l2 += [(f"buffer_load_dword v70, v5, {sr(sOUT)}, s{sKo} offen offset:{o_}", "YL") for o_ in (0, 128)]
    a5 = [f"s_lshl_b32 s{sA}, s{sH}, 4", f"s_add_u32 s{sA}, s{sA}, s{sW}", f"s_mul_i32 s{sA}, s{sA}, 10240", f"s_add_u32 s{sA}, s{sA}, {XC_OFF}",
          f"s_mul_i32 s{sE}, s{sSP}, 40960", f"s_add_u32 s{sXC}, s{sA}, s{sE}"]
    for r in (1, 2, 3):
        a5 += [f"s_add_u32 s{so[r]}, s{sSP}, {r}", f"s_and_b32 s{so[r]}, s{so[r]}, 3", f"s_mul_i32 s{so[r]}, s{so[r]}, 40960", f"s_add_u32 s{so[r]}, s{so[r]}, s{sA}",
               f"s_add_u32 s{so[r]}, s{so[r]}, {(3 - r) * 2560}"]
    a5 += ["v_min_u32 v6, 2, v0", "v_mul_u32_u24 v6, 2560, v6", "v_add_u32 v6, 2556, v6", f"s_add_u32 s{sXF}, s{sXC}, 2560", f"s_add_u32 s{sYF}, s{sXC}, 5120"]
    c, left = b_chunk(0, l2, None, None, nxt=False, xw=True, ph=2, lim=36, fillq=a5); assert not left
    E.ext(c)
    stamp(E, 10); zst(E, 2, 9); zst(E, 3, 1)
    auto_lgkm(E.l, pre=steps[2]); auto_vm(E.l, pre=steps[1] + steps[2])
    trs = lambda i, r: 160 + 20 * r + 4 * i
    XI = 200 if opt["xat"] < 2 else 68
    def x_loads(X_):
        for n, so_ in enumerate((sXC, sXF, sYF)):
            p = XI + 10 * n
            X_(f"buffer_load_dwordx4 {vr(p)}, v4, {sr(sWS)}, s{so_} offen sc1\nbuffer_load_dwordx4 {vr(p+4)}, v4, {sr(sWS)}, s{so_} offen offset:1024 sc1\nbuffer_load_dwordx2 {vr(p+8,2)}, v1, {sr(sWS)}, s{so_} offen sc1")
    E("s_waitcnt lgkmcnt(0)\ns_barrier")
    xchg_reads(E, trs)
    xchg_sum(E, trs, PKS, so, True)
    zst(E, 2, 10); zst(E, 3, 2)
    E("s_waitcnt vmcnt(9)")
    E(f"s_mov_b32 s{sC}, 0x3f80\ns_mov_b32 s{sD}, 0x3f800000")
    def dacc(x, src):
        for k in range(2): E(f"v_dot2_f32_bf16 v{x+2*k}, v{src+k}, s{sC}, v{x+2*k}\nv_dot2_f32_bf16 v{x+2*k+1}, v{src+k}, s{sD}, v{x+2*k+1}")
    for p in range(4):
        for i in range(5): dacc(YO + 4 * i, (B2L + 2 * i) if p == 3 else (YP + 10 * p + 2 * i))
    zst(E, 3, 3)
    if opt["xat"] == 0: x_loads(E)
    for i in range(5):
        g_ = YO + 4 * i; t = 130 + 4 * i
        for k in range(4): E(f"v_mul_f32 v{t+k}, {fh(-LOG2E)}, v{g_+k}")
        for k in range(4): E(f"v_exp_f32 v{t+k}, v{t+k}")
        for k in range(4): E(f"v_add_f32 v{t+k}, 1.0, v{t+k}")
        for k in range(4): E(f"v_rcp_f32 v{t+k}, v{t+k}")
        for k in range(4): E(f"v_mul_f32 v{g_+k}, v{g_+k}, v{t+k}")
        for k in range(2): E(f"v_lshlrev_b32 v{t+2*k}, 16, v{XL+2*i+k}\nv_and_b32 v{t+2*k+1}, 0xffff0000, v{XL+2*i+k}")
    zst(E, 3, 5)
    if opt["xat"] == 1: x_loads(E)
    E(f"s_mov_b32 s{sG}, {SPIN}")
    E("L_x2:")
    for n in range(3):
        E(f"s_waitcnt vmcnt({6 - 3*n})")
        for i in range(5):
            for k in range(2):
                for hl, sel in enumerate((sC, sD)):
                    E(f"v_dot2_f32_bf16 v{trs(i,1)+2*k+hl}, v{XI+10*n+2*i+k}, s{sel}, v{trs(i, 0 if n == 0 else 1)+2*k+hl}")
    for i in range(5):
        for k in range(2):
            E(f"v_cmp_u_f32 {'vcc' if i + k == 0 else 's[%d:%d]' % (sA, sA + 1)}, v{trs(i,1)+2*k}, v{trs(i,1)+2*k+1}")
            if i + k: E(f"s_nop 0\ns_or_b64 vcc, vcc, s[{sA}:{sA+1}]")
    E("s_cmp_lg_u64 vcc, 0\ns_cbranch_scc1 L_o4\nL_o4_r:")
    stamp(E, 11); zst(E, 2, 11); zst(E, 3, 6)
    if opt["xpm"] == 0:
        OOL(f"L_o4:\ns_mov_b32 s{sE}, {MARK}\ns_mov_b64 vcc, 0")
        for n in range(30): OOL(f"v_cmp_eq_u32 s[{sA}:{sA+1}], s{sE}, v{XI+n}\ns_nop 0\ns_or_b64 vcc, vcc, s[{sA}:{sA+1}]")
        OOL("s_cmp_lg_u64 vcc, 0\ns_cbranch_scc0 L_o4_r")
        OOL(f"L_px:\ns_sub_u32 s{sG}, s{sG}, 1\ns_cmp_eq_u32 s{sG}, 0\ns_cbranch_scc1 L_o4_r")
        OOL(f"buffer_load_dword v{T0}, v6, {sr(sWS)}, s{sXC} offen sc1\ns_waitcnt vmcnt(0)\nv_cmp_eq_u32 vcc, s{sE}, v{T0}\ns_nop 0\ns_cmp_lg_u64 vcc, 0\ns_cbranch_scc0 L_px_ok\ns_sleep 1\ns_branch L_px\nL_px_ok:")
        x_loads(OOL); OOL("s_branch L_x2")
    else:
        OOL(f"L_o4:\ns_mov_b32 s{sE}, {MARK}\ns_mov_b32 s{sH}, 0")
        OOL(f"L_px:\ns_sub_u32 s{sG}, s{sG}, 1\ns_cmp_eq_u32 s{sG}, 0\ns_cbranch_scc1 L_o4_r\ns_mov_b32 s{sF}, 0")
        for n, so_ in enumerate((sXC, sXF, sYF)):
            p = XI + 10 * n
            OOL("s_mov_b64 vcc, 0")
            for k in range(10): OOL(f"v_cmp_eq_u32 s[{sA}:{sA+1}], s{sE}, v{p+k}\ns_nop 0\ns_or_b64 vcc, vcc, s[{sA}:{sA+1}]")
            OOL(f"s_cmp_lg_u64 vcc, 0\ns_cbranch_scc0 L_px{n}\ns_mov_b32 s{sF}, 1")
            OOL(f"buffer_load_dwordx4 {vr(p)}, v4, {sr(sWS)}, s{so_} offen sc1\nbuffer_load_dwordx4 {vr(p+4)}, v4, {sr(sWS)}, s{so_} offen offset:1024 sc1\nbuffer_load_dwordx2 {vr(p+8,2)}, v1, {sr(sWS)}, s{so_} offen sc1\nL_px{n}:")
        OOL(f"s_cmp_eq_u32 s{sF}, 0\ns_cbranch_scc1 L_px_ok\ns_mov_b32 s{sH}, 1\ns_waitcnt vmcnt(0)\ns_sleep {opt['xsl']}\ns_branch L_px")
        OOL(f"L_px_ok:\ns_cmp_eq_u32 s{sH}, 0\ns_cbranch_scc1 L_o4_r\ns_branch L_x2")
    for i in range(5):
        x = trs(i, 1)
        for k in range(2): E(f"v_pk_fma_f32 {vr(x+2*k,2)}, {vr(x+2*k,2)}, {vr(YO+4*i+2*k,2)}, {vr(130+4*i+2*k,2)}")
        for k in range(2): E(f"v_cvt_pk_bf16_f32 v{trs(i,0)+k}, v{x+2*k}, v{x+2*k+1}")
        E(f"buffer_store_dwordx2 {vr(trs(i,0),2)}, v5, {sr(sOUT)}, s{sKo} offen offset:{32*i}")
    if opt["stamp"]:
        E("s_waitcnt vmcnt(0)")
        E("s_memrealtime s[4:5]\ns_memtime s[6:7]\ns_load_dwordx2 s[8:9], s[0:1], 96\ns_waitcnt lgkmcnt(0)")
        E(f"s_add_u32 s8, s8, {ST_OFF}\ns_addc_u32 s9, s9, 0\ns_and_b32 s9, s9, 0xffff\ns_mov_b32 s10, 0x40000\ns_mov_b32 s11, 0x20000")
        E(f"s_lshl_b32 s12, s2, 2\ns_add_u32 s12, s12, s{sW}\ns_lshl_b32 s12, s12, 7\nv_mov_b32 v2, 0\ns_mov_b64 exec, 1")
        for i in range(NST[0] + 1):
            a, b_ = (78 + 2 * i, 79 + 2 * i) if i < NST[0] else (4, 6)
            E(f"v_mov_b32 v{16+2*i}, s{a}\nv_mov_b32 v{17+2*i}, s{b_}\nbuffer_store_dwordx2 v[{16+2*i}:{17+2*i}], v2, s[8:11], s12 offen offset:{8*i}")
    if opt["stamp"] and opt["dbgst"]:
        E("s_load_dwordx2 s[8:9], s[0:1], 88\ns_waitcnt lgkmcnt(0)\ns_and_b32 s9, s9, 0xffff\ns_mov_b32 s10, 256\ns_mov_b32 s11, 0x20000")
        E("s_not_b32 s78, s78")
        for i in range(NST[0] + 1):
            a_ = 78 + 2 * i if i < NST[0] else 4
            E(f"v_mov_b32 v{16+i}, s{a_}\nbuffer_atomic_umax v{16+i}, v2, s[8:11], 0 offen offset:{8+4*i} sc1")
    ec = list(E.l)
    A.ext(ec)
    A("L_done:\ns_endpgm")
    A.ext(OOL.l); problems += check_hazards(OOL.l, "ool")
    F = Asm()
    F("L_safe:")
    F("s_waitcnt vmcnt(0) lgkmcnt(0)\ns_nop 7")
    for r in KA: F(f"v_subrev_u32 v{r}, {STG}, v{r}")
    for r in VA: F(f"v_subrev_u32 v{r}, {2*STG}, v{r}")
    for i in range(192): F(f"v_accvgpr_write_b32 a{i}, 0")
    MX = PB[1]
    for qb in range(4): F(f"v_mov_b32 v{LS[qb]}, 0\nv_mov_b32 v{MX+qb}, 0xff7fffff")
    F(f"s_mov_b32 s{sSlot}, s{sWb}\ns_mov_b32 s{sCnt}, 32")
    Fp = list(F.l)
    L = Asm()
    L("L_sloop:")
    L("s_barrier")
    for srd_, base in ((sK, KRING), (sV, VRING)):
        for hf in range(2):
            L(f"s_add_u32 s{sInc}, s{sSlot}, {3072*hf}\ns_add_u32 m0, s{sWb}, {base + 3072*hf}\ns_nop 0")
            for j in range(3): L(f"buffer_load_dwordx4 v{DSR[j]}, {sr(srd_)}, s{sInc} offen offset:{1024*j} lds")
    L(f"s_add_u32 s{sSlot}, s{sSlot}, {STG}")
    L("s_waitcnt vmcnt(0)\ns_barrier")
    for ks in range(6): L(kread(0, 0, ks))
    L("s_waitcnt lgkmcnt(0)")
    G = Gaps(qk_mfmas(set())); qk_reads(G, 0, vpre=True)
    L.ext(G.emit())
    L("s_nop 7")
    for qb in range(4):
        m = NREF + 4 * qb
        v = [S(kb, qb) + r for kb in range(4) for r in range(4)]
        L(f"v_max3_f32 v{m}, v{v[0]}, v{v[1]}, v{MX+qb}")
        for i in range(2, 16, 2): L(f"v_max3_f32 v{m}, v{m}, v{v[i]}, v{v[i+1]}")
    for sw in ("v_permlane32_swap_b32", "v_permlane16_swap_b32"):
        for qb in range(4): L(f"v_mov_b32 v{NREF+4*qb+1}, v{NREF+4*qb}")
        for qb in range(4): L(f"{sw} v{NREF+4*qb}, v{NREF+4*qb+1}")
        for qb in range(4): L(f"v_max_f32 v{NREF+4*qb}, v{NREF+4*qb}, v{NREF+4*qb+1}")
    for qb in range(4): L(f"v_sub_f32 v{NREF+4*qb+1}, v{MX+qb}, v{NREF+4*qb}")
    for qb in range(4): L(f"v_exp_f32 v{NREF+4*qb+1}, v{NREF+4*qb+1}")
    for qb in range(4): L(f"v_mov_b32 v{MX+qb}, v{NREF+4*qb}")
    for qb in range(4): L(f"v_mul_f32 v{LS[qb]}, v{LS[qb]}, v{NREF+4*qb+1}")
    for db in range(12):
        for qb in range(4):
            t = PB[1] + 8 + 4 * ((db * 4 + qb) % 4)
            for r in range(4): L(f"v_accvgpr_read_b32 v{t+r}, a{O(db,qb)+r}")
            for r in range(4): L(f"v_mul_f32 v{t+r}, v{t+r}, v{NREF+4*qb+1}")
            for r in range(4): L(f"v_accvgpr_write_b32 a{O(db,qb)+r}, v{t+r}")
    for kb in range(4):
        for qb in range(4):
            for r in range(4): L(f"v_sub_f32 v{S(kb,qb)+r}, v{S(kb,qb)+r}, v{MX+qb}")
    for (ex, ad, cv) in sm_ops(0):
        for t in ex: L(t)
        L("s_nop 0")
        for t in ad + cv: L(t)
    L("s_waitcnt lgkmcnt(0)\ns_nop 1")
    G = Gaps(pv_mfmas(0)); pv_reads(G, 0)
    L.ext(G.emit())
    L(f"s_sub_u32 s{sCnt}, s{sCnt}, 1\ns_cmp_lg_u32 s{sCnt}, 0\ns_cbranch_scc1 L_sloop")
    auto_lgkm(L.l)
    X = Asm()
    X("s_waitcnt lgkmcnt(0)\ns_barrier")
    lred(X)
    for qb in range(4): X(f"v_rcp_f32 v{LS[qb]}, v{LS[qb]}")
    for t in b_scalars() + oepi_pre(): X(t)
    straight(X, w01 + ylo)
    straight(X, first)
    X("s_waitcnt vmcnt(0)\ns_branch L_join")
    A.ext(Fp); A.ext(L.l); A.ext(X.l)
    j = [i for i, x in enumerate(tail) if x.text == "L_join:"][0]
    ck = [i for i, x in enumerate(tail) if "L_safe" in x.text][0]
    bl = steps[0] + steps[1] + steps[2]
    main = pro + sf + s1 + s0 + st[5] + s1 + s0 + tail + bl + bl + ec
    problems += check_hazards(main, "main"); problems += check_waits(main, "main")[0]
    safe = s0 + tail[:ck + 1] + Fp + L.l + L.l + X.l + tail[j:]
    problems += check_hazards(safe, "safe"); problems += check_waits(safe, "safe")[0]
    return A.text()

body = gen()
kn = NAME + "_kernel"
out = f"""; generated by gen/gen19.py (own generator): one persistent launch, 1 workgroup per CU
; @launch grid=(256,1,1) block=(256,1,1) lds={LDS_SZ}
.amdgcn_target "amdgcn-amd-amdhsa--gfx950"
.text
.globl {kn}
.p2align 8
.type {kn},@function
{kn}:
{body}
.section .rodata,"a"
.p2align 6
.amdhsa_kernel {kn}
  .amdhsa_next_free_vgpr 512
  .amdhsa_next_free_sgpr 102
  .amdhsa_accum_offset 256
  .amdhsa_group_segment_fixed_size 0
  .amdhsa_kernarg_size 104
  .amdhsa_user_sgpr_count 2
  .amdhsa_user_sgpr_kernarg_segment_ptr 1
  .amdhsa_system_sgpr_workgroup_id_x 1
.end_amdhsa_kernel
"""
if problems:
    for p in sorted(set(problems)): print(p, file=sys.stderr)
    print(f"{len(set(problems))} problems", file=sys.stderr)
sys.stdout.write(out)
```

```python
import sys, math, struct, re
from asmlib import *

NAME = "recurrent_scan__gqa_block_cached__dense_activation_gelu__prompt"
def f2u(x): return struct.unpack("<I", struct.pack("<f", x))[0]
def fh(x): return f"0x{f2u(x):08x}"
LOG2E = math.log2(math.e)
CSC = LOG2E / math.sqrt(192.0)
XS_OFF = 0
OH_OFF = 0x400000
YC_OFF = 0x2400000
XC_OFF = 0x3c00000
FL_OFF = 0x4800000
AF_OFF = FL_OFF; HF_OFF = FL_OFF + 0x4000; XF_OFF = FL_OFF + 0x8000; YF_OFF = FL_OFF + 0xc000; LF_OFF = FL_OFF + 0x10000
WS_SZ = 0x5000000
ST_OFF = 0x8000000
LDS_LN = 147456; LDS_FL = LDS_LN + 2048; LDS_SZ = 163840
SPIN = 1 << 18
MARK = 0x7f817f81

opt = dict(stamp=0, forcesafe=0, pf=1, warm=0, pst=128, snake=1, bias=102, opf=0, dense=4, zoom=0, pace="10,14,0,0", afc=1, afg=40, lim1=64, wqpf=1, aflg=56, xws=33, xid=0, foff=4096, xat=0, xpm=0, xsl=1, nobar=0, gbar=80, lns=2, ost="", opre=0, xw0=11, pk=1, dbgst=0, warmh=0, jit=0, yin=0, kvw=0, pfm=6, hl=92, w2t=1, kearly=1, noh=0, jl=60, nearly=8, tst=0)
for a in sys.argv[1:]:
    k, v = a.split("="); opt[k] = type(opt.get(k, ""))(v)
problems = []
BIAS = opt["bias"]; BIAS_LO = 48
def snk(n, i): return list(range(n))[::-1] if (opt["snake"] and i & 1) else list(range(n))

def vr(b, n=4): return f"v[{b}:{b+n-1}]"
def ar(b, n=4): return f"a[{b}:{b+n-1}]"
def sr(b, n=4): return f"s[{b}:{b+n-1}]"
def rs(b, n): return {f"v{i}" for i in range(b, b + n)}
def lgw(regs): return Ins("s_waitcnt lgkmcnt(?)", ("lg", regs))
def vmw(tags, extra=""): return Ins("s_waitcnt vmcnt(?)" + extra, ("vm", set(tags)))
MF = "v_mfma_f32_16x16x32_bf16"

sK, sV, sWQ, sW1, sWS, sB1, sX, sDBG, sOUT, sWO, sB2, sW2 = 4, 8, 12, 16, 20, 24, 28, 32, 36, 40, 44, 48
sSP = 3
(sW, sHEAD, sQT, sQB0, sKo, sKo2, sVo, sVo2, sSlot, sM, sInc, sCnt, sA, sB, sC, sD, sWb, sNeg, sN0, sN1,
 sMT, sNT, sE, sF, sKH, sQH) = range(52, 78)
sMSK, sFL, sG, sH = 12, 13, 14, 15
sBI, sLM = 32, 33
KT = 76
NST = [0]
def zst(A, z, i):
    if opt["zoom"] == z: stamp(A, i, True)
def stamp(A, i, force=False):
    if opt["zoom"] and not force: return
    if opt["stamp"]:
        A(f"s_memrealtime vcc\ns_waitcnt lgkmcnt(0)\ns_mov_b32 s{78+2*i}, vcc_lo\ns_memtime vcc\ns_waitcnt lgkmcnt(0)\ns_mov_b32 s{79+2*i}, vcc_lo")
        NST[0] = max(NST[0], i + 1)

KA = [1, 2]; VA = [3, 4, 5, 6]; DSR = [7, 8, 9]; LS = [10, 11, 12, 13]; T0, T1 = 14, 15
NREF = 16; QV = 32; SB = 64; PB = [128, 160]; KV = 192
WA = [240, 241]; WA2 = [242, 243]; W1A = [244, 245, 246, 255]; DW = [247, 248, 249]; DW1 = 250; XV = [251, 252, 253, 254]
KRING = 0; VRING = 73728; STG = 24576; W1RING = 49152
DS5 = [240, 241, 242, 243, 244]; RA = [245, 246, 8, 9]; RAT = [245, 246, 254, 255]; OV = [247, 248, 249, 250]; PFV = 251; ZV = 252; FLV = 253
OB = [16, 48, 160]; WF = 192; STB = 40960; PK = 80

def qfrag(qb, ks):
    f = qb * 6 + ks
    return ar(192 + 4 * f) if f < 16 else vr(QV + 4 * (f - 16))
def S(kb, qb): return SB + 4 * (kb * 4 + qb)
def P(par, qb, e): return PB[par] + 4 * (qb * 2 + e)
def O(db, qb): return 4 * (db * 4 + qb)

class Gaps:
    def __init__(self, mfmas):
        self.m = mfmas; n = len(mfmas); self.n = n; self.cap = 2; self.blk = {}
        self.sc = [[] for _ in range(n)]; self.mem = [[] for _ in range(n)]; self.va = [[] for _ in range(n)]
    def vcost(self, g): return len(self.mem[g]) + sum(2 if x.kind == "trans" else 1 for x in self.va[g])
    def cost(self, g): return self.vcost(g) + len(self.sc[g])
    def fits(self, g, ins):
        c = 2 if ins.kind == "trans" else 1
        if ins.kind in ("valu", "trans", "ds", "vmem"):
            if self.vcost(g) + c > self.cap: return False
            if ins.kind in ("ds", "vmem") and self.va[g]: return False
            return self.vcost(g) + c + len(self.sc[g]) <= self.cap + 1
        return self.cost(g) + 1 <= 3
    def put(self, g, ins):
        if ins.kind in ("ds", "vmem"): self.mem[g].append(ins)
        elif ins.kind in ("valu", "trans"): self.va[g].append(ins)
        else: self.sc[g].append(ins)
    def place(self, g, text, tag=None):
        ins = Ins(text, tag)
        while not self.fits(g, ins): g += 1
        self.put(g, ins); return g
    def place2(self, g, t1, t2):
        while self.cost(g) + 2 > 3: g += 1
        self.put(g, Ins(t1)); self.put(g, Ins(t2)); return g
    def fill(self, queue, g0=0, g1=None):
        g1 = self.n if g1 is None else g1
        g = g0; i = 0; last = -1; lastkind = None
        while i < len(queue):
            t, e, ng, tag = (list(queue[i]) + [0, False, None])[:4] if not isinstance(queue[i], str) else (queue[i], 0, False, None)
            ins = Ins(t, tag)
            g = max(g, e)
            order = {"salu": 0, "wait": 0, "ds": 1, "vmem": 1, "valu": 2, "trans": 2}
            if last >= 0 and (ng or order[ins.kind] < order[lastkind] or (lastkind == "salu" and "m0" in queue_prev and ins.kind == "vmem")): g = max(g, last + 1)
            while g < g1 and not self.fits(g, ins): g += 1
            if g >= g1: break
            self.put(g, ins); last = g; lastkind = ins.kind; queue_prev = t; i += 1
        return queue[i:]
    def emit(self):
        out = []
        for g, m in enumerate(self.m):
            out.append(m); out += self.sc[g] + self.mem[g] + self.va[g] + self.blk.get(g, [])
        return out

def spread(G, lst, g0, g1):
    nv = max(1, sum(1 for x in lst if isinstance(x, tuple)))
    k = 0; g = g0
    for x in lst:
        t, tag = x if isinstance(x, tuple) else (x, None)
        if tag:
            tgt = g0 + 1 + int((g1 - g0 - 1) * k / nv); k += 1
            g = G.place(max(g, tgt), t, tag) + 1
        else:
            g = G.place(g, t)
            if " m0," in t: g += 1
    return g

def straight(A, lst):
    prev_m0 = False
    for x in lst:
        if isinstance(x, str): t, tag = x, None
        elif len(x) == 2: t, tag = x
        else:
            t = x[0]; tag = x[3] if len(x) > 3 else None
            if len(x) > 2 and x[2]: A("s_nop 1")
        if prev_m0 and "lds" in t: A("s_nop 0")
        A(t, tag); prev_m0 = " m0," in t

def srd(A, d, lo, size, add=None):
    if add is None:
        A(f"s_mov_b32 s{d}, s{lo}\ns_and_b32 s{d+1}, s{lo+1}, 0xffff")
    else:
        A(f"s_add_u32 s{d}, s{lo}, {add}\ns_addc_u32 s{d+1}, s{lo+1}, 0\ns_and_b32 s{d+1}, s{d+1}, 0xffff")
    A(f"s_mov_b32 s{d+2}, {size}\ns_mov_b32 s{d+3}, 0x20000")

def kread(buf, kb, ks):
    d = KV + 24 * buf + 4 * ks
    return f"ds_read_b128 {vr(d)}, v{KA[ks & 1]} offset:{(ks >> 1) * 128 + kb * 6144}"
def vread(db, e, half):
    d = KV + 8 * (db % 6) + 4 * e + 2 * half
    return f"ds_read_b64_tr_b16 {vr(d,2)}, v{VA[db & 3]} offset:{(db >> 2) * 128 + e * 12288 + half * 6144}"

def qk_mfmas(cinit):
    out = []
    for kb in range(4):
        for qb in range(4):
            for n, ks in enumerate(snk(6, qb)):
                a = KV + 24 * (kb & 1) + 4 * ks
                c = (vr(NREF + 4 * qb) if kb in cinit else "0") if n == 0 else vr(S(kb, qb))
                out.append(Ins(f"{MF} {vr(S(kb,qb))}, {vr(a)}, {qfrag(qb,ks)}, {c}"))
    return out
def pv_mfmas(par, first=False):
    out = []
    for db in range(12):
        for qb in range(4):
            for n, e in enumerate(snk(2, qb)):
                a = KV + 8 * (db % 6) + 4 * e
                c = "0" if (first and n == 0) else ar(O(db, qb))
                out.append(Ins(f"{MF} {ar(O(db,qb))}, {vr(a)}, {vr(P(par,qb,e))}, {c}"))
    return out
def sm_ops(par):
    out = []
    for kb in range(4):
        for qb in range(4):
            s = S(kb, qb); p = P(par, qb, kb >> 1) + 2 * (kb & 1)
            out.append(([f"v_exp_f32 v{s+r}, v{s+r}" for r in range(4)],
                        [f"v_add_f32 v{LS[qb]}, v{LS[qb]}, v{s+r}" for r in range(4)],
                        [f"v_cvt_pk_bf16_f32 v{p+r}, v{s+2*r}, v{s+2*r+1}" for r in range(2)]))
    return out
def qk_reads(G, base, vpre=True):
    for kb in range(3):
        for ks in range(6): G.place(base + 24 * kb + 1 + 3 * ks, kread((kb + 1) & 1, kb + 1, ks))
    if vpre:
        n = 0
        for db in range(3):
            for e in range(2):
                for h in range(2):
                    G.place(base + 73 + (n * 3) // 2, vread(db, e, h)); n += 1
    for ks in (2, 4): G.put(base + ks - 1, lgw(rs(KV + 4 * ks, 8)))
    for kb in range(1, 4): G.put(base + 24 * kb - 1, lgw(rs(KV + 24 * (kb & 1), 24)))
def pv_reads(G, B, first_wait=True):
    for db in range(9):
        n = 0
        for e in range(2):
            for h in range(2):
                G.place(B + 8 * db + 2 * n, vread(db + 3, e, h)); n += 1
    for db in range(12):
        if B + 8 * db - 1 >= 0: G.put(B + 8 * db - 1, lgw(rs(KV + 8 * (db % 6), 8)))

def gen_step(par, slot, first=False, extra=(), last=None):
    G = Gaps(qk_mfmas({0, 1, 2, 3}) + pv_mfmas(par, first))
    qk_reads(G, 0)
    B = 96
    pv_reads(G, B)
    if last:
        last(G)
    else:
        gb = B + opt["gbar"]
        G.put(gb, Ins("s_waitcnt vmcnt(12) lgkmcnt(0)"))
        if not opt["nobar"]: G.put(gb, Ins("s_barrier"))
        for (g_, t_) in extra: G.place(g_, t_)
        for ks in range(6): G.place(gb + 1 + 2 * ks, kread(0, 0, ks))
        G.put(191, lgw(rs(KV, 8)))
        G.place(2, f"s_add_u32 s{sKo2}, s{sKo}, 3072")
        G.place(4, f"s_sub_u32 s{sVo}, s{sKo}, {STG}")
        G.place(5, f"s_sub_u32 s{sVo2}, s{sKo}, {STG - 3072}")
        dm = [(sK, sKo, 0), (sK, sKo2, 3072), (sV, sVo, VRING), (sV, sVo2, VRING + 3072)]
        g = 8
        for (srd_, so, mo) in dm:
            G.place(g, f"s_add_u32 m0, s{sWb}, {slot * STG + mo}")
            for j in range(3):
                g2 = G.place(g + 3 + 12 * j, f"buffer_load_dwordx4 v{DSR[j]}, {sr(srd_)}, s{so} offen offset:{1024*j} lds")
            g = g2 + 9
        G.place(g, f"s_add_u32 s{sKo}, s{sKo}, {STG}")
        inc = (-2 * STG if slot == 1 else STG) & 0xffffffff
        for i, r in enumerate(KA): G.place(B + 10 + 2 * i, f"v_add_u32 v{r}, {inc}, v{r}")
        for i, r in enumerate(VA): G.place(B + 82 + 2 * i, f"v_add_u32 v{r}, {inc}, v{r}")
    ops = sm_ops(par ^ 1)
    first_g, last_g = 10, (160 if last else 186)
    pend = []
    exps = [(i, r) for i in range(16) for r in range(4)]
    ei = 0
    for g in range(192):
        if ei < 64:
            i, r = exps[ei]
            target = first_g + (last_g - first_g) * ei / 64.0
            if g >= 6 * i + 5 + 4 and g >= target and G.vcost(g) == 0 and len(G.sc[g]) <= 1:
                G.put(g, Ins(ops[i][0][r])); ei += 1
                pend.append((g + 1, ops[i][1][r]))
                if r & 1: pend.append((g + 1, ops[i][2][r >> 1]))
                continue
        while pend and pend[0][0] <= g and G.fits(g, Ins(pend[0][1])):
            G.put(g, Ins(pend.pop(0)[1]))
    assert ei == 64 and not pend, (ei, pend)
    return G


def poll(A, lab, voff, srd_, soff, cond, sleep=2, precheck=False):
    if precheck:
        cond(); A(f"s_cbranch_scc0 {lab}_ok")
    A(f"s_mov_b32 s{sE}, {SPIN}")
    A(f"{lab}:")
    A(f"buffer_load_dwordx2 {vr(T0,2)}, v{voff}, {sr(srd_)}, {soff} offen sc1")
    A("s_waitcnt vmcnt(0)")
    cond()
    A(f"s_cbranch_scc0 {lab}_ok")
    A(f"s_sleep {sleep}\ns_sub_u32 s{sE}, s{sE}, 1\ns_cmp_lg_u32 s{sE}, 0\ns_cbranch_scc1 {lab}")
    A(f"{lab}_ok:")
def cond_nonce(A, mask):
    def f():
        A(f"v_cmp_ne_u32 vcc, s{sN0}, v{T0}\nv_cmp_ne_u32 s[{sA}:{sA+1}], s{sN1}, v{T1}\ns_nop 0")
        A(f"s_or_b32 s{sA}, vcc_lo, s{sA}\ns_and_b32 s{sA}, s{sA}, {mask}\ns_cmp_lg_u32 s{sA}, 0")
    return f
assert sA % 2 == 0 and sC % 2 == 0

def gelu_ops(x, y, pk, store):
    q = []
    for r in range(4): q.append(f"v_mul_f32 v{y+r}, v{x+r}, v{x+r}")
    for r in range(4): q.append(f"v_fma_f32 v{y+r}, v{y+r}, s{sB}, v{T0}")
    for r in range(4): q.append(f"v_mul_f32 v{y+r}, v{y+r}, v{x+r}")
    for r in range(4): q.append(f"v_exp_f32 v{y+r}, v{y+r}")
    for r in range(4): q.append(f"v_fma_f32 v{y+r}, v{y+r}, s{sA}, s{sA}")
    for r in range(4): q.append(f"v_rcp_f32 v{y+r}, v{y+r}")
    for r in range(4): q.append(f"v_mul_f32 v{y+r}, v{y+r}, v{x+r}")
    for r in range(2): q.append(f"v_cvt_pk_bf16_f32 v{pk+r}, v{y+2*r}, v{y+2*r+1}")
    return [(t, 0, False, None) for t in q] + store

def gelu_pk(x, y, pk, store):
    q = []
    for k in range(2): q.append(f"v_pk_mul_f32 {vr(y+2*k,2)}, {vr(x+2*k,2)}, {vr(x+2*k,2)}")
    for k in range(2): q.append(f"v_pk_fma_f32 {vr(y+2*k,2)}, {vr(y+2*k,2)}, s[{sA}:{sA+1}], {vr(T0,2)} op_sel:[0,1,0] op_sel_hi:[1,1,0]")
    for k in range(2): q.append(f"v_pk_mul_f32 {vr(y+2*k,2)}, {vr(y+2*k,2)}, {vr(x+2*k,2)}")
    for r in range(4): q.append(f"v_exp_f32 v{y+r}, v{y+r}")
    q.append("s_nop 0")
    for k in range(2): q.append(f"v_pk_fma_f32 {vr(y+2*k,2)}, {vr(y+2*k,2)}, s[{sA}:{sA+1}], s[{sA}:{sA+1}] op_sel_hi:[1,0,0]")
    for r in range(4): q.append(f"v_rcp_f32 v{y+r}, v{y+r}")
    q.append("s_nop 0")
    for k in range(2): q.append(f"v_pk_mul_f32 {vr(y+2*k,2)}, {vr(y+2*k,2)}, {vr(x+2*k,2)}")
    for r in range(2): q.append(f"v_cvt_pk_bf16_f32 v{pk+r}, v{y+2*r}, v{y+2*r+1}")
    return [(t, 0, False, None) for t in q] + store
def pkify(q):
    out = []; i = 0
    while i < len(q):
        t = q[i][0] if isinstance(q[i], tuple) else q[i]
        n = (q[i + 1][0] if isinstance(q[i + 1], tuple) else q[i + 1]) if i + 1 < len(q) else ""
        m1 = re.match(r"v_(mul|add)_f32 v(\d+), v(\d+), v(\d+)$", t); m2 = re.match(r"v_(mul|add)_f32 v(\d+), v(\d+), v(\d+)$", n)
        if opt["pk"] and m1 and m2 and m1.group(1) == m2.group(1):
            d1, a1, b1 = map(int, m1.groups()[1:]); d2, a2, b2 = map(int, m2.groups()[1:])
            if d1 % 2 == 0 and a1 % 2 == 0 and d2 == d1 + 1 and a2 == a1 + 1:
                if b1 == b2 and b1 not in (d1, d2):
                    h = b1 & 1
                    out.append((f"v_pk_{m1.group(1)}_f32 {vr(d1,2)}, {vr(a1,2)}, {vr(b1-h,2)} op_sel:[0,{h}] op_sel_hi:[1,{h}]", 0, False, None)); i += 2; continue
                if b1 % 2 == 0 and b2 == b1 + 1:
                    out.append((f"v_pk_{m1.group(1)}_f32 {vr(d1,2)}, {vr(a1,2)}, {vr(b1,2)}", 0, False, None)); i += 2; continue
        out.append(q[i]); i += 1
    return out

def b_wdma(srd_, tag, slot_imm, second=16, step=64):
    o = [f"s_add_u32 s{sInc}, s{sM}, {slot_imm}", f"s_add_u32 s{sVo2}, s{sVo}, {second*1280}"]
    for hf, so in enumerate((sVo, sVo2)):
        o.append(f"s_add_u32 m0, s{sInc}, {5120*hf}")
        o += [(f"buffer_load_dwordx4 v{DS5[j]}, {sr(srd_)}, s{so} offen offset:{1024*j} lds", tag) for j in range(4)]
        o.append(f"s_add_u32 m0, s{sInc}, {5120*hf + 4096}")
        o.append((f"buffer_load_dwordx4 v{DS5[4]}, {sr(srd_)}, s{so} offen lds", tag))
    o.append(f"s_add_u32 s{sVo}, s{sVo}, {step*1280}" if isinstance(step, int) else f"s_mov_b32 s{sVo}, s{step[0]}")
    return o
def oload(buf, tag):
    o = [(f"buffer_load_dwordx4 {vr(OB[buf] + 4*(r*2+e))}, v{OV[r]}, {sr(sWS)}, s{sKo} offen offset:{1024*e} sc1", tag) for r in range(4) for e in range(2)]
    o.append(f"s_add_u32 s{sKo}, s{sKo}, 2048")
    return o
hload = oload
def b_scalars():
    o = [f"s_lshl_b32 s{sA}, s{sSP}, 1", f"s_add_u32 s{sA}, s{sA}, s{sKH}"]
    o += [f"s_mul_i32 s{sB}, s{sQH}, {32*1280}", f"s_mul_i32 s{sC}, s{sNT}, 320", f"s_add_u32 s{sB}, s{sB}, s{sC}"]
    o += [f"s_mul_i32 s{sVo}, s{sA}, {192*1280}", f"s_add_u32 s{sVo}, s{sVo}, s{sB}", f"s_mul_i32 s{sH}, s{sA}, {768*1280}", f"s_add_u32 s{sH}, s{sH}, s{sB}"]
    o += [f"s_mul_i32 s{sB}, s{sFL}, {4*240*4}", f"s_add_u32 s{sB}, s{sB}, {OH_OFF}"]
    o += [f"s_mul_i32 s{sKo}, s{sA}, {6*1024}", f"s_add_u32 s{sKo}, s{sKo}, s{sB}", f"s_add_u32 s{sKo}, s{sKo}, {192*1024}"]
    o += [f"s_mul_i32 s{sF}, s{sA}, {24*1024}", f"s_add_u32 s{sF}, s{sF}, s{sB}"]
    o += [f"s_mul_i32 s{sM}, s{sW}, 10240"]
    for r in range(4): o += [f"s_add_u32 s{24+r}, s{sSP}, {r}", f"s_and_b32 s{24+r}, s{24+r}, 3", f"s_mul_i32 s{24+r}, s{24+r}, {240*1024}"]
    return o
def b_warm():
    o = []
    for i in range(4):
        o.append((f"buffer_load_dword v7, v{PFV}, {sr(sWO)}, s{sKo2} offen", "PF"))
        if i < 3: o.append(f"s_add_u32 s{sKo2}, s{sKo2}, 4096")
    return o
def b_addr_ops():
    q = []
    t0, t1, t2, t3 = 255, 253, 254, 255
    for j in range(5):
        q += [f"v_add_u32 v{t0}, {64*j}, v0", f"v_mul_u32_u24 v{t1}, 3277, v{t0}", f"v_lshrrev_b32 v{t1}, 16, v{t1}",
              f"v_mul_u32_u24 v{t2}, 20, v{t1}", f"v_sub_u32 v{t2}, v{t0}, v{t2}", f"v_lshrrev_b32 v{t3}, 1, v{t1}", f"v_and_b32 v{t3}, 2, v{t3}",
              f"v_xor_b32 v{t2}, v{t2}, v{t3}", f"v_mul_u32_u24 v{t3}, 80, v{t1}", f"v_add_u32 v{t3}, v{t3}, v{t2}"]
        q += [f"v_lshlrev_b32 v{DS5[j]}, 4, v{t3}"]
        if 0 < j < 4: q += [f"v_subrev_u32 v{DS5[j]}, {1024*j}, v{DS5[j]}"]
    q += [f"v_and_b32 v{FLV}, 31, v0", f"v_lshlrev_b32 v{FLV}, 3, v{FLV}"]
    p = []
    p += ["v_lshlrev_b32 v245, 4, v0"] + [f"v_mov_b32 v{246+i}, {MARK}" for i in range(4)]
    p += [f"s_lshl_b32 s34, s{sMT}, 2", f"s_add_u32 s34, s34, s{sNT}", f"s_lshl_b32 s34, s34, 2", f"s_add_u32 s34, s34, s{sSP}", f"s_lshl_b32 s34, s34, 2", f"s_add_u32 s34, s34, s{sW}",
          "s_mul_i32 s34, s34, 10240", f"s_add_u32 s34, s34, {XC_OFF}"]
    p += [f"v_lshlrev_b32 v{PFV}, {6 if opt['pst'] == 64 else 7}, v0", f"v_mov_b32 v{ZV}, 0"]
    if opt["pst"] == 128: p += [f"v_min_u32 v{PFV}, {47*128}, v{PFV}"] if False else []
    return p, q

def b_ra_ops():
    t0, t1, t2 = NREF + 8, NREF + 9, NREF + 10
    lo, hi = (NREF + 11, NREF + 12), (NREF + 13, NREF + 14)
    q = [f"s_mul_i32 s{sE}, s{sKH}, 20480", f"v_lshrrev_b32 v{t0}, 2, v0", f"v_mul_u32_u24 v{t0}, 320, v{t0}", f"v_and_b32 v{t1}, 3, v0", f"v_lshl_add_u32 v{t0}, v{t1}, 3, v{t0}",
         f"v_add_u32 v{t0}, s{sE}, v{t0}", f"v_bfe_u32 v{t1}, v0, 4, 1", f"v_xor_b32 v{t2}, 1, v{t1}",
         f"v_lshl_add_u32 v{lo[0]}, v{t1}, 5, v{t0}", f"v_lshl_add_u32 v{lo[1]}, v{t2}, 5, v{t0}",
         f"v_add_u32 v{hi[0]}, 128, v{lo[1]}", f"v_add_u32 v{hi[1]}, 192, v{lo[0]}",
         f"s_cmp_eq_u32 s{sKH}, 0", f"s_cselect_b64 vcc, -1, 0", "s_nop 0"]
    for k in range(2):
        q += [f"v_cndmask_b32 v{RA[k]}, v{lo[k]}, v{hi[k]}, vcc", f"v_cndmask_b32 v{RA[2+k]}, v{hi[k]}, v{lo[k]}, vcc"]
    return q
def lred(A):
    for sw in ("v_permlane32_swap_b32", "v_permlane16_swap_b32"):
        for qb in range(4): A(f"v_mov_b32 v{NREF+qb}, v{LS[qb]}")
        for qb in range(4): A(f"{sw} v{LS[qb]}, v{NREF+qb}")
        for qb in range(4): A(f"v_add_f32 v{LS[qb]}, v{LS[qb]}, v{NREF+qb}")
NEARLY = 24
def oepi_ops():
    q = []; late = []; n = 0
    so = [sA, sB, sC, sD]
    for m in range(6):
        for qb in range(4):
            x = 144 + 8 * (n & 1); d = PK + 4 * (n % 16)
            e = 16 * m + 8 + 2 * qb + 1 + 5
            for p in range(2):
                for r in range(4): q.append((f"v_accvgpr_read_b32 v{x+4*p+r}, a{O(2*m+p,qb)+r}", e, False, None))
            for i in range(8): q.append((f"v_mul_f32 v{x+i}, v{x+i}, v{LS[qb]}", 0, False, None))
            for i in range(4): q.append((f"v_cvt_pk_bf16_f32 v{d+i}, v{x+2*i}, v{x+2*i+1}", 0, False, None))
            v, off = (T1, 1024 * m) if m < 4 else (T0, 1024 * (m - 4))
            st = f"buffer_store_dwordx4 {vr(d)}, v{v}, {sr(sWS)}, s{so[qb]} offen offset:{off} sc1"
            if n < NEARLY: q.append((st, 0, False, "OST"))
            else: late.append((st, "OST"))
            n += 1
    return q, late
def oepi_pre():
    return [f"s_mul_i32 s{sA}, s{sQB0}, {240*1024}", f"s_mul_i32 s{sB}, s{sHEAD}, {6*1024}", f"s_add_u32 s{sA}, s{sA}, s{sB}", f"s_add_u32 s{sA}, s{sA}, {OH_OFF}",
            f"s_add_u32 s{sB}, s{sA}, {240*1024}", f"s_add_u32 s{sC}, s{sA}, {480*1024}", f"s_add_u32 s{sD}, s{sA}, {720*1024}",
            f"v_lshlrev_b32 v{T1}, 4, v0", f"v_add_u32 v{T0}, 4096, v{T1}"]
def BA(nb, r): return (192 + 16 * nb if nb < 4 else 16 * (nb - 4)) + 4 * r
def bread(u, nb, e, h):
    d = WF + 8 * ((10 * u + nb) % 6) + 4 * e + 2 * h
    j = nb % 5
    return f"ds_read_b64_tr_b16 {vr(d,2)}, v{RA[2 * (nb // 5) + (j & 1)]} offset:{64*(j >> 1) + e*10240 + h*5120}"
ORDR = [(i, r) for r in (1, 2, 3, 0) for i in range(5)]
def xchg_reads(E, tr):
    for (i, r) in ORDR: E(f"ds_read_b128 {vr(tr(i, r))}, v3 offset:{1024*(4*i+r)}")
def xchg_sum(E, tr, PKS, so, emit):
    st = []; RING = 150
    for n, (i, r) in enumerate(ORDR):
        t = RING + 4 * (n & 1); x = tr(i, r)
        for k in range(4): E(f"v_accvgpr_read_b32 v{t+k}, a{BA(5+i, r)+k}")
        if n % 5 == 0 and emit: E(f"s_waitcnt lgkmcnt({15 - n})")
        for k in range(2): E(f"v_pk_add_f32 {vr(x+2*k,2)}, {vr(x+2*k,2)}, {vr(t+2*k,2)}")
        if r:
            for k in range(2): E(f"v_cvt_pk_bf16_f32 v{PKS+10*(r-1)+2*i+k}, v{x+2*k}, v{x+2*k+1}")
            if i == 4:
                p = PKS + 10 * (r - 1)
                ss = [f"buffer_store_dwordx4 {vr(p)}, v4, {sr(sWS)}, s{so[r]} offen sc1",
                      f"buffer_store_dwordx4 {vr(p+4)}, v4, {sr(sWS)}, s{so[r]} offen offset:1024 sc1",
                      f"buffer_store_dwordx2 {vr(p+8,2)}, v1, {sr(sWS)}, s{so[r]} offen sc1"]
                if emit:
                    for t_ in ss: E(t_)
                elif r <= opt["yin"]:
                    for t_ in ss: E(t_, "YST")
                else: st += [(t_, "YST") for t_ in ss]
    return st
def slot_scalars(off, so, cons):
    o = [f"s_mul_i32 s{sA}, s{sH}, {64*3072}", f"s_mul_i32 s{sE}, s{sW}, 3072", f"s_add_u32 s{sA}, s{sA}, s{sE}", f"s_add_u32 s{sA}, s{sA}, {off}",
         f"s_mul_i32 s{sE}, s{sSP}, {16*3072}", f"s_add_u32 s{cons}, s{sA}, s{sE}", f"s_mul_i32 s{sE}, s{sSP}, {4*3072}", f"s_add_u32 s{sA}, s{sA}, s{sE}"]
    for r in (1, 2, 3):
        d = so[r]
        o += [f"s_add_u32 s{d}, s{sSP}, {r}", f"s_and_b32 s{d}, s{d}, 3", f"s_mul_i32 s{d}, s{d}, {16*3072}", f"s_add_u32 s{d}, s{d}, s{sA}"]
    return o
def inbox_loads(cons, P0, tag):
    o = []
    for r in (1, 2, 3):
        p = P0 + 10 * (r - 1)
        o += [f"s_add_u32 s{sA}, s{sSP}, {r}", f"s_and_b32 s{sA}, s{sA}, 3", f"s_mul_i32 s{sA}, s{sA}, {4*3072}", f"s_add_u32 s{sA}, s{sA}, s{cons}"]
        o += [(f"buffer_load_dwordx4 {vr(p)}, v4, {sr(sWS)}, s{sA} offen sc1", tag), (f"buffer_load_dwordx4 {vr(p+4)}, v4, {sr(sWS)}, s{sA} offen offset:1024 sc1", tag),
              (f"buffer_load_dwordx2 {vr(p+8,2)}, v1, {sr(sWS)}, s{sA} offen sc1", tag)]
    return o
def merge(a, b):
    out = []; k = 0
    na = sum(1 for x in a if isinstance(x, tuple)); seen = 0
    for x in a:
        out.append(x)
        if isinstance(x, tuple):
            seen += 1
            while k < len(b) and (k + 1) * na <= seen * len(b) and " m0," not in out[-1][0]:
                out.append(b[k]); k += 1
    return out + b[k:]
def b_chunk(u, lst, wtags, otags, czero=False, after_barrier=None, first_gap=(), last_gap=(), fillq=None, nxt=True, lim=None, xw=False, af=None, puts=(), ph=None, inc=None, blocks=None):
    mf = []; ph = u if ph is None else ph
    for nb in range(10):
        for r in range(4):
            for n, e in enumerate(snk(2, r)):
                acc = ar(BA(nb, r))
                mf.append(Ins(f"{MF} {acc}, {vr(WF + 8*((10*ph+nb)%6) + 4*e)}, {vr(OB[u] + 4*(r*2+e))}, {'0' if czero and n == 0 else acc}"))
    G = Gaps(mf)
    for nb in range(7):
        n = 0
        for e in range(2):
            for h in range(2):
                G.place(8 * nb + 2 * n, bread(ph, nb + 3, e, h)); n += 1
    for nb in range(1, 10): G.put(8 * nb - 1, lgw(rs(WF + 8 * ((10 * ph + nb) % 6), 8)))
    gb = 62
    if nxt:
        G.put(gb, vmw(wtags, " lgkmcnt(0)")); G.put(gb, Ins("s_barrier"))
        if inc is None: inc = STB if u < 2 else -2 * STB
        for i, r in enumerate(RA): G.place((30 + 2 * i) if i < 2 else (gb - 6 + i), f"v_add_u32 v{r}, {inc & 0xffffffff}, v{r}")
        if after_barrier: G.place(gb + 1, after_barrier, "FLAG")
        n = 0
        for nb in range(3):
            for e in range(2):
                for h in range(2):
                    G.place(gb + 1 + n + n // 4, bread((ph + 1) % 3, nb, e, h)); n += 1
        G.put(79, lgw(rs(WF + 8 * ((10 * ((ph + 1) % 3)) % 6), 8)))
    if otags: G.put(78, vmw(otags))
    if af is not None:
        G.put(af, vmw({"OST"})); G.place(af, f"buffer_store_dwordx2 v[254:255], v{ZV}, {sr(sWS)}, s17 offen sc1", "FLAG")
    for (g_, t_, tag_) in puts: G.place(g_, t_, tag_)
    if xw:
        if opt["xws"]:
            for n in range(20):
                i, r = n >> 2, n & 3
                G.place(max(8 * i + 2 * r + 1 + 8, opt["xw0"] + (n * opt["xws"]) // 10) | 1, f"ds_write_b128 v2, {ar(BA(i, r))} offset:{1024*(4*i+r)}")
        else:
            for n, (i, r) in enumerate(ORDR): G.place(44 + (n * 7) // 4, f"ds_write_b128 v2, {ar(BA(i, r))} offset:{1024*(4*i+r)}")
    for t in first_gap: G.put(0, Ins(t))
    g = spread(G, lst, 1 if first_gap else 0, lim or (76 if otags else 60)) if lst else 70
    assert g <= 79, g
    for t in last_gap: G.place(g, t)
    if blocks: G.blk.update(blocks)
    if fillq is not None:
        G.cap = opt["dense"]
        left = G.fill(fillq, 0)
        return G.emit(), left
    return G.emit()

def gen():
    global problems
    A = Asm()
    A("s_cmp_ge_u32 s2, 256\ns_cbranch_scc1 L_done")
    A("s_load_dwordx16 s[76:91], s[0:1], 0\ns_load_dwordx8 s[92:99], s[0:1], 64\ns_load_dwordx2 s[100:101], s[0:1], 96")
    pX, pK, pV, pWQ, pWO, pW1, pB1, pW2, pB2, pOUT, pDBG, pWS = 76, 78, 80, 82, 84, 88, 90, 92, 94, 96, 98, 100
    A(f"s_memrealtime s[{sN0}:{sN1}]")
    if opt["stamp"]: A(f"s_memtime s[{sInc}:{sInc+1}]")
    if opt["pf"]:
        A(f"s_getpc_b64 s[{sA}:{sA+1}]\nL_pc:\ns_mov_b32 s{sD}, 32768\ns_bitcmp1_b32 s2, 0\ns_cselect_b32 s{sC}, L_fo-L_pc-{opt['foff']}, s{sD}\ns_bitcmp1_b32 s2, 3\ns_cselect_b32 s{sC}, s{sC}, 0\nv_lshlrev_b32 v98, 7, v0\nv_add_u32 v98, s{sC}, v98")
        A(f"global_load_dword v99, v98, s[{sA}:{sA+1}]")
    A("v_lshrrev_b32 v14, 6, v0\nv_and_b32 v0, 63, v0")
    A(f"v_readfirstlane_b32 s{sW}, v14")
    A(f"s_and_b32 s{sA}, s2, 7\ns_lshr_b32 s{sB}, s2, 3\ns_and_b32 s{sC}, s{sB}, 3\ns_lshl_b32 s{sA}, s{sA}, 2\ns_add_u32 s{sHEAD}, s{sA}, s{sC}")
    A(f"s_lshr_b32 s{sQT}, s{sB}, 2\ns_lshl_b32 s{sB}, s{sQT}, 4\ns_lshl_b32 s{sC}, s{sW}, 2\ns_add_u32 s{sQB0}, s{sB}, s{sC}")
    A(f"s_lshr_b32 s{sC}, s{sHEAD}, 1\ns_add_u32 s{sD}, s{sB}, s{sC}\ns_mul_i32 s{sE}, s{sD}, 20480")
    A("v_and_b32 v3, 15, v0\nv_lshrrev_b32 v4, 4, v0\nv_mul_u32_u24 v5, 1280, v3\nv_mul_u32_u24 v6, 320, v14\nv_lshlrev_b32 v7, 3, v4\nv_add3_u32 v5, v5, v6, v7")
    A("v_mov_b32 v96, 0\nv_mov_b32 v94, 0")
    A(f"s_or_b32 s{sKo}, s2, s{sW}")
    A("s_waitcnt lgkmcnt(0)")
    srd(A, sX, pX, 2621440)
    srd(A, sDBG, pDBG, 256)
    A(f"s_cmp_lg_u32 s{sKo}, 0\ns_cbranch_scc1 L_nonc")
    A(f"s_or_b32 s{sKo}, s{sN0}, 1\nv_mov_b32 v80, s{sKo}\nv_mov_b32 v81, s{sN1}")
    A(f"buffer_store_dwordx2 v[80:81], v96, {sr(sDBG)}, 0 offen sc1")
    A("L_nonc:")
    A(f"s_bitcmp1_b32 s{sHEAD}, 0\ns_cbranch_scc1 L_nox")
    for i in range(5):
        A(f"buffer_load_dwordx2 {vr(100+4*i,2)}, v5, {sr(sX)}, s{sE} offen offset:{64*i}", "LX")
        A(f"buffer_load_dwordx2 {vr(102+4*i,2)}, v5, {sr(sX)}, s{sE} offen offset:{64*i+32}", "LX")
    A("L_nox:")
    for j in range(3):
        A(f"v_add_u32 v82, {64*j}, v0\nv_mul_u32_u24 v83, 2731, v82\nv_lshrrev_b32 v83, 16, v83")
        A(f"v_mul_u32_u24 v97, 24, v83\nv_sub_u32 v82, v82, v97\nv_and_b32 v97, 6, v83\nv_xor_b32 v82, v82, v97\nv_lshlrev_b32 v82, 4, v82")
        A(f"v_mul_u32_u24 v97, 12288, v83\nv_add_u32 v97, v97, v82\nv_add_u32 v{DW[j]}, {(-1024*j) & 0xffffffff}, v97")
        A(f"v_mul_u32_u24 v97, 384, v83\nv_add_u32 v97, v97, v82\nv_add_u32 v{84+j}, {(128 - 1024*j) & 0xffffffff}, v97")
    A(f"v_lshrrev_b32 v83, 3, v0\nv_and_b32 v82, 7, v0\nv_and_b32 v97, 6, v83\nv_xor_b32 v82, v82, v97\nv_lshlrev_b32 v82, 4, v82\nv_mul_u32_u24 v97, 3072, v83\nv_add_u32 v{DW1}, v97, v82")
    A(f"s_mul_i32 s{sA}, s{sHEAD}, 384")
    A(f"s_add_u32 s{sWQ}, s{pWQ}, s{sA}\ns_addc_u32 s{sWQ+1}, s{pWQ+1}, 0\ns_and_b32 s{sWQ+1}, s{sWQ+1}, 0xffff\ns_sub_u32 s{sWQ+2}, {640*12288}, s{sA}\ns_mov_b32 s{sWQ+3}, 0x20000")
    A(f"s_lshr_b32 s{sF}, s{sHEAD}, 3\ns_lshl_b32 s{sF}, s{sF}, 2\ns_and_b32 s{sVo2}, s{sHEAD}, 3\ns_add_u32 s{sNeg}, s{sF}, s{sVo2}\ns_mul_i32 s{sF}, s{sNeg}, 192")
    A(f"s_and_b32 s{sVo2}, s2, 1\ns_lshl_b32 s{sVo2}, s{sVo2}, 7\ns_add_u32 s{sF}, s{sF}, s{sVo2}")
    A(f"s_add_u32 s{sW1}, s{pW1}, s{sF}\ns_addc_u32 s{sW1+1}, s{pW1+1}, 0\ns_and_b32 s{sW1+1}, s{sW1+1}, 0xffff\ns_sub_u32 s{sW1+2}, {640*3072}, s{sF}\ns_mov_b32 s{sW1+3}, 0x20000")
    A(f"s_mul_i32 s{sWb}, s{sW}, 6144")
    A(f"s_mul_i32 s{sA}, s{sW}, {16*12288}\ns_mul_i32 s{sB}, s{sW}, {16*3072}\ns_mul_i32 s{sC}, s{sQB0}, 20480\ns_lshl_b32 s{sM}, s{sW}, 11")
    XB = [SB, SB + 32, PB[0]]
    def wdma(ch):
        sl = ch % 3; o = []
        o.append(f"s_add_u32 m0, s{sWb}, {VRING + sl*STG}")
        o += [(f"buffer_load_dwordx4 v{DW[j]}, {sr(sWQ)}, s{sA} offen offset:{1024*j} lds", f"W{ch}") for j in range(3)]
        o.append(f"s_add_u32 s{sA}, s{sA}, {8*12288}")
        o.append(f"s_add_u32 m0, s{sWb}, {VRING + sl*STG + 3072}")
        o += [(f"buffer_load_dwordx4 v{DW[j]}, {sr(sWQ)}, s{sA} offen offset:{1024*j} lds", f"W{ch}") for j in range(3)]
        o.append(f"s_add_u32 s{sA}, s{sA}, {56*12288}")
        o.append(f"s_add_u32 m0, s{sM}, {W1RING + sl*8192}")
        o.append((f"buffer_load_dwordx4 v{DW1}, {sr(sW1)}, s{sB} offen lds", f"W{ch}"))
        o.append(f"s_add_u32 s{sB}, s{sB}, {8*3072 - 1024}")
        o.append((f"buffer_load_dwordx4 v{DW1}, {sr(sW1)}, s{sB} offen offset:1024 lds", f"W{ch}"))
        o.append(f"s_add_u32 s{sB}, s{sB}, {56*3072 + 1024}")
        return o
    def xload(ch):
        o = [(f"buffer_load_dwordx4 {vr(XB[ch%3] + 4*(qb*2+e))}, v{XV[qb]}, {sr(sWS)}, s{sC} offen offset:{1024*e} sc1", f"X{ch}") for qb in range(4) for e in range(2)]
        o.append(f"s_add_u32 s{sC}, s{sC}, 2048")
        return o
    def kvdma(srd_, slotbase, t, tag):
        o = []
        for hf in range(2):
            o.append(f"s_add_u32 s{sKo2}, s{sWb}, {t*STG + 3072*hf}")
            o.append(f"s_add_u32 m0, s{sWb}, {slotbase + 3072*hf}")
            o += [(f"buffer_load_dwordx4 v{DSR[j]}, {sr(srd_)}, s{sKo2} offen offset:{1024*j} lds", tag) for j in range(3)]
        return o
    straight(A, wdma(0))
    srd(A, sB1, pB1, 3072)
    BL = [88, 90, 92, 124]
    for ct in range(4): A(f"buffer_load_dwordx2 {vr(BL[ct], 2)}, v7, {sr(sB1)}, s{sF} offen offset:{32*ct}", "B1")
    straight(A, wdma(1))
    A(f"s_mul_i32 s{sKo}, s{sHEAD}, 786432")
    for (d, lo) in ((sK, pK), (sV, pV)):
        A(f"s_add_u32 s{d}, s{lo}, s{sKo}\ns_addc_u32 s{d+1}, s{lo+1}, 0\ns_sub_u32 s{d}, s{d}, 128\ns_subb_u32 s{d+1}, s{d+1}, 0\ns_and_b32 s{d+1}, s{d+1}, 0xffff")
        A(f"s_mov_b32 s{d+2}, {786432 + 128}\ns_mov_b32 s{d+3}, 0x20000")
    srd(A, sWS, pWS, WS_SZ)
    srd(A, sOUT, pOUT, 2621440)
    srd(A, sB2, pB2, 1280)
    srd(A, sWO, pWO, 6144 * 1280)
    srd(A, sW2, pW2, 1536 * 1280)
    if opt["stamp"]:
        A(f"s_mov_b32 s78, s{sN0}\ns_mov_b32 s79, s{sInc}"); NST[0] = 1
        if opt["xid"]: A("s_getreg_b32 s79, hwreg(HW_REG_XCC_ID)")
    A(f"s_and_b32 s{sSP}, s2, 3\ns_bfe_u32 s{sKo}, s2, 0x10002\ns_lshl_b32 s{sKo}, s{sKo}, 3\ns_bfe_u32 s{sMT}, s2, 0x30003\ns_add_u32 s{sMT}, s{sMT}, s{sKo}\ns_lshr_b32 s{sNT}, s2, 6")
    A(f"s_lshr_b32 s{sKH}, s{sW}, 1\ns_and_b32 s{sQH}, s{sW}, 1")
    A(f"s_lshl_b32 s{sVo}, s{sQT}, 7\ns_add_u32 s{sVo}, s{sVo}, {LF_OFF}")
    A(f"s_bitcmp1_b32 s{sHEAD}, 0\ns_cbranch_scc1 L_noln")
    A(f"v_lshlrev_b32 v8, 6, v3\nv_add_u32 v8, {LDS_LN}, v8\nv_lshl_add_u32 v9, v14, 2, v4\nv_lshl_add_u32 v9, v9, 2, v8")
    A("v_mul_u32_u24 v10, 5120, v14\nv_lshl_add_u32 v10, v0, 4, v10")
    A(f"s_mov_b32 s{sKo}, 0x3f803f80\ns_mov_b32 s{sKo2}, 0x3f80\ns_mov_b32 s{sSlot}, 0x3f800000")
    A("s_waitcnt vmcnt(20)")
    A(f"v_dot2_f32_bf16 v11, v100, s{sKo}, 0\nv_dot2_f32_bf16 v12, v101, s{sKo}, 0")
    for i in range(2, 20): A(f"v_dot2_f32_bf16 v{11+(i&1)}, v{100+i}, s{sKo}, v{11+(i&1)}")
    A("s_nop 2\nv_add_f32 v11, v11, v12")
    def xsum(off):
        A(f"ds_write_b32 v9, v11 offset:{off}\ns_waitcnt lgkmcnt(0)\ns_barrier")
        for i in range(4): A(f"ds_read_b128 {vr(16+4*i)}, v8 offset:{off+16*i}")
        A("s_waitcnt lgkmcnt(0)")
        for i in range(4): A(f"v_pk_add_f32 {vr(16+2*i,2)}, {vr(16+2*i,2)}, {vr(24+2*i,2)}")
        for i in range(2): A(f"v_pk_add_f32 {vr(16+2*i,2)}, {vr(16+2*i,2)}, {vr(20+2*i,2)}")
        A("v_pk_add_f32 v[16:17], v[16:17], v[18:19]\nv_add_f32 v16, v16, v17")
    xsum(0)
    A(f"v_mul_f32 v13, {fh(-1/640)}, v16")
    for i in range(20): A(f"v_dot2_f32_bf16 v{40+2*i}, v{100+i}, s{sKo2}, v13\nv_dot2_f32_bf16 v{41+2*i}, v{100+i}, s{sSlot}, v13")
    A("v_pk_mul_f32 v[36:37], v[40:41], v[40:41]\nv_pk_mul_f32 v[38:39], v[42:43], v[42:43]")
    for i in range(2, 20): A(f"v_pk_fma_f32 {vr(36+2*(i&1),2)}, {vr(40+2*i,2)}, {vr(40+2*i,2)}, {vr(36+2*(i&1),2)}")
    A("v_pk_add_f32 v[36:37], v[36:37], v[38:39]\nv_add_f32 v11, v36, v37")
    xsum(1024)
    A(f"v_mov_b32 v12, {fh(1e-5)}\nv_fmac_f32 v12, {fh(1/640)}, v16\nv_rsq_f32 v12, v12\ns_nop 0\nv_mul_f32 v12, {fh(CSC)}, v12")
    for i in range(5):
        for k in range(4): A(f"v_pk_mul_f32 {vr(40+8*i+2*k,2)}, {vr(40+8*i+2*k,2)}, v[12:13] op_sel_hi:[1,0]")
        for k in range(4): A(f"v_cvt_pk_bf16_f32 v{16+4*i+k}, v{40+8*i+2*k}, v{41+8*i+2*k}")
        if i == 4: A(f"s_add_u32 s{sE}, s{sE}, 4096")
        A(f"buffer_store_dwordx4 {vr(16+4*i)}, v10, {sr(sWS)}, s{sE} offen offset:{1024*i if i < 4 else 0} sc1")
    A(f"s_cmp_lg_u32 s{sW}, 0\ns_cbranch_scc1 L_ln2")
    A(f"buffer_load_dwordx2 v[94:95], v96, {sr(sDBG)}, 0 offen sc1")
    A("L_ln2:")
    A("s_waitcnt vmcnt(0)\ns_barrier")
    A("L_noln:")
    A(f"s_cmp_lg_u32 s{sW}, 0\ns_cbranch_scc1 L_w0a")
    A(f"v_mov_b32 v{T0}, v94\nv_mov_b32 v{T1}, v95\ns_nop 0")
    def cond_non():
        A(f"v_readfirstlane_b32 s{sN0}, v{T0}\nv_readfirstlane_b32 s{sN1}, v{T1}\ns_nop 0\ns_cmp_eq_u32 s{sN0}, 0")
    poll(A, "L_pnon", 96, sDBG, "0", cond_non, sleep=8, precheck=True)
    A(f"s_bitcmp1_b32 s{sHEAD}, 0\ns_cbranch_scc1 L_w0a")
    A(f"s_lshl_b32 s{sKo}, s{sHEAD}, 2\ns_add_u32 s{sKo}, s{sKo}, s{sVo}")
    A(f"buffer_store_dwordx2 {vr(T0,2)}, v96, {sr(sWS)}, s{sKo} offen sc1")
    A("L_w0a:")
    stamp(A, 1)
    for j in range(3): A(f"v_mov_b32 v{DSR[j]}, v{84+j}")
    for qb in range(4): A(f"v_lshlrev_b32 v17, 4, v0\nv_add_u32 v{XV[qb]}, {XS_OFF + qb*20480}, v17")
    A("v_lshrrev_b32 v16, 2, v0\nv_and_b32 v17, 6, v16\nv_and_b32 v18, 3, v0")
    A("v_lshrrev_b32 v19, 1, v18\nv_and_b32 v20, 1, v18\nv_lshlrev_b32 v20, 3, v20")
    A(f"v_mul_u32_u24 v21, 384, v16\nv_add_u32 v21, {VRING}, v21")
    for m in range(4):
        A(f"v_add_u32 v22, {2*m}, v19\nv_xor_b32 v22, v22, v17\nv_lshlrev_b32 v22, 4, v22\nv_add3_u32 v{VA[m]}, v21, v22, v20\nv_add_u32 v{VA[m]}, {STG}, v{VA[m]}")
    for e in range(2):
        A(f"v_add_u32 v22, {4*e}, v18\nv_xor_b32 v22, v22, v17\nv_lshlrev_b32 v22, 4, v22\nv_add_u32 v{WA[e]}, v21, v22\nv_add_u32 v{WA2[e]}, {2*STG}, v{WA[e]}")
    A(f"v_lshlrev_b32 v21, 7, v16\nv_add_u32 v21, {W1RING}, v21")
    for ct in range(4):
        A(f"v_add_u32 v22, {2*ct}, v19\nv_xor_b32 v22, v22, v17\nv_lshlrev_b32 v22, 4, v22\nv_add3_u32 v{W1A[ct]}, v21, v22, v20")
    A("v_and_b32 v16, 15, v0\nv_and_b32 v17, 6, v16\nv_lshrrev_b32 v18, 4, v0\nv_mul_u32_u24 v21, 384, v16")
    for e in range(2):
        A(f"v_add_u32 v22, {4*e}, v18\nv_xor_b32 v22, v22, v17\nv_lshlrev_b32 v22, 4, v22\nv_add_u32 v{KA[e]}, v21, v22")
    A(f"v_lshlrev_b32 v40, 3, v16\nv_mov_b32 v41, {LDS_FL}")
    HACC = {12: PB[1], 13: PB[1] + 16, 14: NREF, 15: QV + 16}
    A("s_waitcnt vmcnt(0)")
    if opt["wqpf"]:
        sPFa = sSlot
        A(f"s_movk_i32 s{sPFa}, {12288-384}\ns_bitcmp1_b32 s{sHEAD}, 0\ns_cbranch_scc0 L_nopf")
        A(f"s_lshl_b32 s{sKo}, s{sQT}, 2\ns_add_u32 s{sKo}, s{sKo}, s{sW}\ns_lshl_b32 s{sKo}, s{sKo}, 4\ns_add_u32 s{sKo}, s{sKo}, 127")
        A(f"s_mul_i32 s{sKo2}, s{sKo}, 3072\ns_mul_i32 s{sKo}, s{sKo}, 12288")
        A(f"v_lshrrev_b32 v120, 2, v0\nv_and_b32 v121, 3, v0\nv_min_u32 v121, 2, v121\nv_lshlrev_b32 v121, 7, v121\nv_mul_u32_u24 v122, 12288, v120\nv_add3_u32 v122, v122, v121, s{sPFa}")
        A(f"v_bfe_u32 v121, v0, 1, 1\nv_mul_u32_u24 v121, 192, v121\nv_mul_u32_u24 v123, 3072, v120\nv_add_u32 v123, v123, v121\nv_and_b32 v121, 1, v0\nv_mul_u32_u24 v121, 124, v121\nv_add_u32 v123, v123, v121\nv_add_u32 v123, {3072-192}, v123")
        A(f"buffer_load_dword v121, v122, {sr(sWQ)}, s{sKo} offen\nbuffer_load_dword v121, v122, {sr(sWQ)}, s{sKo} offen offset:384\nbuffer_load_dword v121, v123, {sr(sW1)}, s{sKo2} offen")
        A("L_nopf:")
    for ct in range(4):
        h = HACC[12 + ct]
        for r in range(2):
            A(f"v_lshlrev_b32 v{h+2*r}, 16, v{BL[ct]+r}\nv_and_b32 v{h+2*r+1}, 0xffff0000, v{BL[ct]+r}")
        for r in range(4): A(f"v_mul_f32 v{h+r}, {fh(CSC)}, v{h+r}")
        for qb in range(1, 4):
            for r in range(4): A(f"v_mov_b32 v{h+4*qb+r}, v{h+r}")
    A(f"s_cmp_lg_u32 s{sW}, 0\ns_cbranch_scc1 L_w0b")
    A(f"s_mov_b32 s{sKo}, s{sA}\ns_mov_b32 s{sKo2}, s{sB}")
    poll(A, "L_pln", 40, sWS, f"s{sVo}", cond_nonce(A, "0xffff"), sleep=opt["lns"])
    A(f"s_mov_b32 s{sA}, s{sKo}\ns_mov_b32 s{sB}, s{sKo2}")
    A(f"v_mov_b32 v42, s{sN0}\nv_mov_b32 v43, s{sN1}\nds_write_b64 v41, v[42:43]\ns_waitcnt lgkmcnt(0)")
    A("L_w0b:")
    A("s_barrier")
    stamp(A, 2)
    straight(A, xload(0) + xload(1))
    A("ds_read_b64 v[42:43], v41")
    def front(A, NH, sfx):
        NT = 12 + NH; CH = 8 * NT; OFF = (5 - (10 * NT - 1)) % 6
        order = [list(range(NT))] * 9 + [([14, 15, 12, 13] if NH == 4 else [12, 13]) + list(range(12))]
        def wread(ch, pos, e, h):
            ct = order[ch][pos]
            n = NT * ch + pos + OFF; d = KV + 8 * (n % 6) + 4 * e + 2 * h; sl = ch % 3
            if ct < 12:
                ks, p = ct >> 1, ct & 1
                a, o = (WA[ks & 1], sl * STG) if sl < 2 else (WA2[ks & 1], 0)
                return f"ds_read_b64_tr_b16 {vr(d,2)}, v{a} offset:{o + (ks >> 1)*128 + 8*p + e*12288 + h*6144}"
            return f"ds_read_b64_tr_b16 {vr(d,2)}, v{W1A[ct-12]} offset:{sl*8192 + e*4096 + h*2048}"
        mf = []
        for ch in range(10):
            for pos in range(NT):
                ct = order[ch][pos]; n = NT * ch + pos + OFF
                for qb in range(4):
                    for i_, e in enumerate(snk(2, qb)):
                        acc = ar(4 * (ct * 4 + qb)) if ct < 12 else vr(HACC[ct] + 4 * qb)
                        c = "0" if (ch == 0 and i_ == 0 and ct < 12) else acc
                        mf.append(Ins(f"{MF} {acc}, {vr(KV + 8*(n%6) + 4*e)}, {vr(XB[ch%3] + 4*(qb*2+e))}, {c}"))
        G = Gaps(mf)
        for pos in range(3):
            for e in range(2):
                for h in range(2): A(wread(0, pos, e, h))
        A.l.append(lgw(rs(KV + 8 * (OFF % 6), 8)))
        A(f"v_readfirstlane_b32 s{sN0}, v42\nv_readfirstlane_b32 s{sN1}, v43")
        A.l.append(vmw({"X0"}))
        stamp(A, 3); zst(A, 6, 1)
        if opt["zoom"] == 6:
            for ch in range(10):
                Z = Asm(); zst(Z, 6, 2 + ch); G.blk[CH * ch + CH - 1] = Z.l
        late_fill = []
        for ch in range(10):
            b = CH * ch
            for pos in range(NT - 3):
                n = 0
                for e in range(2):
                    for h in range(2):
                        G.place(b + 8 * pos + (2 * n if ch < 9 else 4 * (n >> 1)), wread(ch, pos + 3, e, h)); n += 1
            gb = b + CH - 18
            G.put(gb, vmw({f"W{ch+1}"} if ch < 9 else {"K0", "V0"}, " lgkmcnt(0)")); G.put(gb, Ins("s_barrier"))
            if ch < 9:
                n = 0
                for pos in range(3):
                    for e in range(2):
                        for h in range(2):
                            G.place(gb + 1 + n + n // 4, wread(ch + 1, pos, e, h)); n += 1
                G.put(b + CH - 2, vmw({f"X{ch+1}"}))
            else:
                for ks in range(6): G.place(gb + 1 + 2 * ks, kread(0, 0, ks))
            for pos in range(NT):
                n = NT * ch + pos + OFF
                if b + 8 * pos - 1 >= 0: G.put(b + 8 * pos - 1, lgw(rs(KV + 8 * (n % 6), 8)))
            ke = opt["kearly"]
            if ch + 2 < 10:
                lst = wdma(ch + 2) + xload(ch + 2)
                if ke == 1 and ch in (6, 7): lst += kvdma(sK, KRING + (ch - 6) * STG, ch - 6, f"K{ch-6}")
                if ke == 2 and ch in (4, 5, 6, 7): lst += kvdma(sK, KRING + ((ch - 4) >> 1) * STG, (ch - 4) >> 1, f"K{(ch-4)>>1}")[5 * (ch & 1): 5 * (ch & 1) + 5]
            elif ch == 8: lst = ([] if ke else kvdma(sK, KRING, 0, "K0")) + kvdma(sV, VRING + STG, 0, "V0")
            else: lst = ([] if ke else kvdma(sK, KRING + STG, 1, "K1")) + kvdma(sV, VRING + 2 * STG, 1, "V1")
            if ch == opt["kvw"] and ch:
                q_ = [f"s_lshr_b32 s{sE}, s{sQB0}, 2", f"s_mul_i32 s{sKo}, s{sE}, 2304", f"s_mul_i32 s{sE}, s{sE}, 1536", "v_lshlrev_b32 v60, 7, v0", "v_add_u32 v60, 128, v60",
                      f"v_min_u32 v61, {128 + 17*128}, v60", f"v_min_u32 v60, {128 + 11*128}, v60",
                      (f"buffer_load_dword v62, v61, {sr(sK)}, s{sKo} offen", 0, False, "PF"), (f"buffer_load_dword v62, v60, {sr(sV)}, s{sE} offen", b + 40, False, "PF")]
                late_fill.append((q_, b + 2))
            g = spread(G, lst, b, b + (CH - 3 if ch < 9 else CH - 20))
            assert g <= b + CH, g
        if opt["pfm"]:
            b_ = CH * opt["pfm"]
            G.blk[b_ + 3] = [Ins(t) for t in ("s_getpc_b64 s[34:35]", f"L_pc3{sfx}:", f"s_bfe_u32 s{sE}, s2, 0x10003", f"s_lshl_b32 s{sE}, s{sE}, 2", f"s_add_u32 s{sE}, s{sE}, s{sW}",
                             f"s_min_u32 s{sE}, s{sE}, 4", f"s_lshl_b32 s{sE}, s{sE}, 13", f"s_add_u32 s{sKo}, s{sE}, L_mid{sfx}-L_pc3{sfx}", f"s_add_u32 s{sE}, s{sE}, L_common-L_pc3{sfx}-8192", f"s_cmp_eq_u32 s{sKo}, L_mid{sfx}-L_pc3{sfx}",
                             f"s_cselect_b32 s{sE}, s{sKo}, s{sE}", f"s_ashr_i32 s{sKo}, s{sE}, 31", f"s_add_u32 s34, s34, s{sE}", f"s_addc_u32 s35, s35, s{sKo}")]
            late_fill.append((["v_lshlrev_b32 v47, 7, v0", ("global_load_dword v47, v47, s[34:35]", b_ + 9, False, "PF")], b_ + 5))
        for q_, g_ in late_fill: assert not G.fill(q_, g_)
        b = 9 * CH
        spread(G, kvdma(sK, KRING + 2 * STG, 2, "K2"), b + CH - 17, b + CH - 1)
        k0 = -2.0 * LOG2E * math.sqrt(2.0 / math.pi) / CSC; k1 = k0 * 0.044715 / (CSC * CSC)
        HS = {12: sVo2, 14: sVo}
        pre = [f"s_mov_b32 s{sA}, {fh(CSC)}", f"s_mov_b32 s{sB}, {fh(k1)}", f"s_mul_i32 s{sC}, s{sQB0}, {240*1024}", f"s_add_u32 s{sC}, s{sC}, {OH_OFF + (192 if NH == 4 else 194)*1024}",
               f"s_mul_i32 s{sD}, s{sNeg}, 3072", f"s_add_u32 s{sVo2}, s{sC}, s{sD}", f"s_add_u32 s{sVo}, s{sVo2}, 1024"]
        pre += [f"s_lshl_b32 s{sFL}, s{sMT}, 1", f"s_add_u32 s{sFL}, s{sFL}, s{sQH}", f"s_lshl_b32 s{sFL}, s{sFL}, 8", f"s_add_u32 s{sG}, s{sFL}, {HF_OFF}",
                f"s_lshl_b32 s{sE}, s{sSP}, 1", f"s_add_u32 s{sE}, s{sE}, s{sKH}", f"s_lshl_b32 s{sE}, s{sE}, 2", f"s_lshl_b32 s{sMSK}, 15, s{sE}",
                f"s_lshl_b32 s{sE}, s{sSP}, 3", f"s_lshl_b32 s{sD}, s{sKH}, 1", f"s_add_u32 s{sE}, s{sE}, s{sD}", f"s_lshl_b32 s{sSlot}, 0x33, s{sE}",
                f"s_lshl_b32 s{sE}, s{sQB0}, 6", f"s_and_b32 s{sE}, s{sE}, 0xffffff00", f"s_lshl_b32 s{sD}, s{sHEAD}, 3", f"s_add_u32 s{sQT}, s{sE}, s{sD}"]
        g = b - CH + 2
        for t in pre: g = G.place(g, t) + 1
        assert g < b
        G.place(b - 30, f"v_mov_b32 v{T0}, {fh(k0)}"); G.place(b - 26, "v_lshlrev_b32 v10, 4, v0")
        def gelu_q(ct, tmp):
            q = []
            for qb in range(4):
                y = tmp + 8 * (qb & 1); pk = y + 4; so_ = (sE, sF)[qb & 1]
                ad = (f"s_add_u32 s{so_}, s{HS[ct]}, {qb*240*1024}", 0, False, None)
                st = [ad, (f"buffer_store_dwordx4 {vr(pk)}, v10, {sr(sWS)}, s{so_} offen sc1", 0, False, "H")]
                q.append(tuple(f(HACC[ct] + 4 * qb, y, pk, []) + f(HACC[ct + 1] + 4 * qb, y, pk + 2, st) for f in (gelu_ops, gelu_pk)))
            return q
        g14 = gelu_q(14 if NH == 4 else 12, XB[1])
        def two_streams(G, tiles, g0, e0, partial=False, carry=False):
            import copy
            best = None
            for nfit in range(len(tiles), -1, -1):
                G2 = copy.deepcopy(G); ok = True
                for par in range(2):
                    q_ = [x for t_ in tiles[par:nfit:2] for x in t_[0]]
                    if q_: q_[0] = (q_[0][0], e0, False, None)
                    if G2.fill(q_, g0): ok = False
                if ok: break
            part = []
            np_ = nfit + 1 if (partial and nfit < len(tiles)) else nfit
            for par in ((nfit + 1) & 1, nfit & 1):
                q_ = [x for t_ in tiles[par:np_:2] for x in t_[0]]
                if q_: q_[0] = (q_[0][0], e0, False, None)
                part += G.fill(q_, g0)
            print("gelu tiles hidden:", nfit, "of", len(tiles), "partial left", len(part), file=sys.stderr)
            if carry: return nfit
            return part + [x for t_ in tiles[np_:] for x in t_[1 if opt["pk"] else 0]]
        if NH == 4: left14 = two_streams(G, g14, b, b + 20, partial=True); ndone = 0
        else: left14 = []; ndone = two_streams(G, g14, b, b + 20, carry=True)
        q = []
        n = 0
        for ks in range(6):
            for qb in range(4):
                f = qb * 6 + ks; x = PB[0] + 16 * (n & 1); n += 1
                e = b + 8 * NH + 16 * ks + 8 + 2 * qb + 1 + 5
                for p in range(2):
                    for r in range(4): q.append((f"v_accvgpr_read_b32 v{x+4*p+r}, a{4*((2*ks+p)*4+qb)+r}", e, False, None))
                d = (x + 8) if f < 16 else QV + 4 * (f - 16)
                for i in range(4): q.append((f"v_cvt_pk_bf16_f32 v{d+i}, v{x+2*i}, v{x+2*i+1}", 0, False, None))
                if f < 16:
                    for i in range(4): q.append((f"v_accvgpr_write_b32 a{192+4*f+i}, v{d+i}", 0, False, None))
        left = left14 + G.fill(q, b)
        print("Q conversion ops exposed:", len(left) - len(left14), file=sys.stderr)
        A.ext(G.emit())
        A(f"L_mid{sfx}:")
        stamp(A, 4); zst(A, 5, 1)
        A("s_nop 7")
        straight(A, left)
        zst(A, 5, 2)
        for i in range(4): A(f"ds_read_b64 {vr(244+2*i,2)}, v{VA[i]} offset:{6144*i}")
        A.l.append(lgw(rs(244, 8)))
        for i in range(8): A(f"v_and_b32 v{244+i}, 0x7fff7fff, v{244+i}")
        for i in range(4): A(f"v_pk_max_u16 v{244+i}, v{244+i}, v{248+i}")
        A("v_pk_max_u16 v244, v244, v245\nv_pk_max_u16 v246, v246, v247\nv_pk_max_u16 v244, v244, v246\nv_lshlrev_b32 v245, 16, v244\nv_max_u32 v244, v244, v245")
        A(f"v_cmp_le_u32 vcc, {fh(2.0**-6)}, v244\ns_mov_b32 s{sBI}, {fh(-BIAS_LO)}\ns_mov_b32 s{sLM}, {fh(2.0**(112-BIAS_LO))}\ns_cmp_lg_u64 vcc, 0")
        A(f"s_cselect_b32 s{sBI}, {fh(-BIAS)}, s{sBI}\ns_cselect_b32 s{sLM}, {fh(2.0**(112-BIAS))}, s{sLM}")
        zst(A, 5, 3)
        G = Gaps(qk_mfmas(set())); qk_reads(G, 0, vpre=False)
        gq = gelu_q(12, 240)[ndone:]
        for kb in range(4):
            mq = []
            for qb in range(4):
                m = NREF + 4 * qb; s_ = S(kb, qb); e = 6 * (4 * kb + qb) + 5 + 8
                if kb == 0: mq += [(f"v_max3_f32 v{m}, v{s_}, v{s_+1}, v{s_+2}", e, False, None), (f"v_max_f32 v{m}, v{m}, v{s_+3}", e, False, None)]
                else: mq += [(f"v_max3_f32 v{m}, v{m}, v{s_}, v{s_+1}", e, False, None), (f"v_max3_f32 v{m}, v{m}, v{s_+2}, v{s_+3}", e, False, None)]
            mleft = G.fill(mq, 0)
            assert kb == 3 or not mleft
        left = two_streams(G, gq, 0, 0, partial=True)
        A.ext(G.emit())
        zst(A, 5, 4)
        A.l.append(vmw({"K1"})); A("s_barrier")
        zst(A, 5, 5)
        for r in KA: A(f"v_add_u32 v{r}, {STG}, v{r}")
        A("s_nop 4")
        for ks in range(6): A(kread(0, 0, ks))
        straight(A, mleft)
        for sw in ("v_permlane32_swap_b32", "v_permlane16_swap_b32"):
            for qb in range(4): A(f"v_mov_b32 v{NREF+4*qb+1}, v{NREF+4*qb}")
            for qb in range(4): A(f"{sw} v{NREF+4*qb}, v{NREF+4*qb+1}")
            for qb in range(4): A(f"v_max_f32 v{NREF+4*qb}, v{NREF+4*qb}, v{NREF+4*qb+1}")
        for qb in range(4): A(f"v_sub_f32 v{NREF+4*qb}, s{sBI}, v{NREF+4*qb}")
        for qb in range(4):
            for r in range(1, 4): A(f"v_mov_b32 v{NREF+4*qb+r}, v{NREF+4*qb}")
        zst(A, 5, 6)
        straight(A, left)
        zst(A, 5, 7)
    head_ = list(A.l)
    FE = Asm(); front(FE, 4, "e"); FO = Asm(); front(FO, 2, "o")
    tr_o = head_ + FO.l; auto_vm(tr_o); auto_lgkm(tr_o)
    A("s_bitcmp1_b32 s2, 0\ns_cbranch_scc1 L_fo")
    A.ext(FE.l)
    A("L_common:")
    k_common = len(A.l)
    sm = sm_ops(0)
    L2 = 240
    for i in range(17):
        kb, qb = (i >> 2) & 3, i & 3
        if i < 16:
            for k in range(2): A(f"v_pk_add_f32 {vr(S(kb,qb)+2*k,2)}, {vr(S(kb,qb)+2*k,2)}, {vr(NREF+4*qb,2)}")
            for t in sm[i][0]: A(t)
        else: A("s_nop 0")
        if i > 0:
            j = i - 1; s_ = S(j >> 2, j & 3); l_ = L2 + 2 * (j & 3)
            if j < 4: A(f"v_pk_add_f32 {vr(l_,2)}, {vr(s_,2)}, {vr(s_+2,2)}")
            else:
                for k in range(2): A(f"v_pk_add_f32 {vr(l_,2)}, {vr(l_,2)}, {vr(s_+2*k,2)}")
            for t in sm[j][2]: A(t)
    for qb in range(4): A(f"v_add_f32 v{LS[qb]}, v{L2+2*qb}, v{L2+2*qb+1}")
    A(f"s_add_u32 s{sKo}, s{sWb}, {3*STG}\ns_mov_b32 s{sCnt}, 5")
    A(f"s_add_u32 s{sE}, s{sQT}, {HF_OFF}")
    A(f"v_mov_b32 v{T0}, s{sN0}\nv_mov_b32 v{T1}, s{sN1}")
    bp, bq = b_addr_ops()
    for t in bp: A(t)
    stamp(A, 5); zst(A, 5, 8); zst(A, 7, 1)
    A("s_waitcnt lgkmcnt(0)")
    Gf = gen_step(0, 0, first=True)
    Gf.place(177, f"buffer_store_dwordx2 {vr(T0,2)}, v{ZV}, {sr(sWS)}, s{sE} offen sc1")
    assert not Gf.fill(bq, 0, 192)
    sf = Gf.emit()
    A(f"s_getpc_b64 s[16:17]\nL_pc2:\ns_lshr_b32 s19, s2, 3\ns_lshl_b32 s19, s19, 2\ns_add_u32 s19, s19, s{sW}\ns_lshl_b32 s18, s{sW}, 13")
    A("s_add_u32 s18, s18, L_tail-L_pc2\ns_add_u32 s16, s16, s18\ns_addc_u32 s17, s17, 0")
    A(f"s_mul_i32 s18, s19, 15360\ns_mul_i32 s24, s{sSP}, {1536*1280}\ns_add_u32 s18, s18, s24\ns_add_u32 s26, s18, 8192")
    A(f"s_mul_i32 s19, s19, 3840\ns_mul_i32 s24, s{sSP}, {384*1280}\ns_add_u32 s19, s19, s24\ns_brev_b32 s27, 1")
    ex = {1: [(179, f"buffer_load_dword v254, v{PFV}, {sr(sWO)}, s24 offen")], 2: [(179, f"buffer_load_dword v254, v{PFV}, {sr(sWO)}, s24 offen")],
          3: [(179, f"buffer_load_dword v254, v{PFV}, {sr(sW2)}, s24 offen")], 4: [(179, f"global_load_dword v254, v{PFV}, s[16:17]")],
          }
    for k in (0, 3): ex.setdefault(k, []).append((183, f"buffer_store_dwordx4 v[246:249], v245, {sr(sWS)}, s34 offen sc1"))
    st = []
    for k in range(6):
        Gk = gen_step((k + 1) & 1, (k + 1) % 3, extra=ex.get(k, []))
        if k in (1, 2, 3): Gk.place2(150, f"s_cmp_eq_u32 s{sCnt}, 0", f"s_cselect_b32 s24, s{(0, 18, 26, 19)[k]}, s27")
        if k in (1, 4): Gk.place(20, "s_add_u32 s34, s34, 1024")
        if k == 0: Gk.place(186, f"s_sub_u32 s{sCnt}, s{sCnt}, 1")
        if k == 4: Gk.place(186, f"s_cmp_eq_u32 s{sCnt}, 0")
        st.append(Gk.emit())
    pro = list(A.l)
    auto_vm(pro); auto_lgkm(pro)
    auto_lgkm(sf)
    for k in range(6): auto_lgkm(st[k], pre=st[k - 1])
    s0 = st[4]; s1 = [x for k in range(4) for x in st[k]]
    A.ext(sf)
    zst(A, 7, 2)
    A(".p2align 6\nL_loop:")
    A.ext(s1); A.ext(s0)
    if opt["zoom"] == 7: A(f"s_mov_b32 m0, s{sCnt}\ns_memrealtime vcc\ns_waitcnt lgkmcnt(0)\nv_writelane_b32 v245, vcc_lo, m0\ns_memtime vcc\ns_waitcnt lgkmcnt(0)\nv_writelane_b32 v246, vcc_lo, m0")
    A("s_cbranch_scc1 L_tail"); A.ext(st[5]); A("s_branch L_loop")
    OOL = Asm()
    w01 = b_wdma(sW2, "W0", 0) + b_wdma(sW2, "W1", STB)
    ra = [t.replace(f"v_cndmask_b32 v{RA[2]},", "v_cndmask_b32 v254,").replace(f"v_cndmask_b32 v{RA[3]},", "v_cndmask_b32 v255,") for t in b_ra_ops()]
    ra = [t for t in ra if t != "s_nop 0"]
    b_ra_fin = [f"v_mov_b32 v{RA[2]}, v254", f"v_mov_b32 v{RA[3]}, v255", f"v_mov_b32 v254, s{sN0}", f"v_mov_b32 v255, s{sN1}"]
    post = []
    def last(G):
        B = 96
        G.place(2, f"buffer_load_dwordx2 {vr(T0,2)}, v{FLV}, {sr(sWS)}, s{sG} offen sc1")
        g = 4
        for t in b_scalars(): g = G.place(g, t) + (1 if t.startswith("v_") else 0)
        assert g < 90
        G.put(92, Ins("s_waitcnt vmcnt(0)")); G.put(92, Ins("s_barrier"))
        X_ = Asm(); cond_nonce(X_, f"s{sSlot}")(); X_("s_cbranch_scc1 L_o1\nL_o1_r:"); G.blk[94] = X_.l
        OOL("L_o1:"); poll(OOL, "L_ph", FLV, sWS, f"s{sG}", cond_nonce(OOL, f"s{sSlot}"), sleep=8); OOL("s_branch L_o1_r")
        for i, r in enumerate(VA): G.place(B + 72 + i, f"v_add_u32 v{r}, {STG}, v{r}")
        n = 0
        for db in range(3):
            for e in range(2):
                for h in range(2):
                    G.place(B + 77 + (3 * n) // 2, vread(db, e, h)); n += 1
        spread(G, w01, B, B + 92)
        post.append(G)
    Gl = gen_step(0, 0, last=last)
    k_ = [i for i, t in enumerate(ra) if t.startswith("s_cmp")][0]
    q_ = [f"v_add_u32 v{OV[r]}, s{24+r}, v245" for r in (3, 2, 1, 0)] + ra[:k_] + oepi_pre() + [f"s_lshl_b32 s16, s{sW}, 2", f"s_add_u32 s16, s16, {LDS_FL}", f"v_mov_b32 v{NREF+5}, s16", f"v_mov_b32 v{NREF+6}, {LDS_FL}"]
    lf_ = Gl.fill(q_, 100); print("step-30 set-up ops left over:", len(lf_), file=sys.stderr)
    T = Asm()
    T("L_tail:")
    if opt["zoom"] == 7:
        for i in range(5): T(f"v_readlane_b32 s{78+2*(3+i)}, v245, {4-i}\nv_readlane_b32 s{79+2*(3+i)}, v246, {4-i}")
        NST[0] = 8
    T.ext(Gl.emit())
    straight(T, lf_)
    zst(T, 1, 1)
    stamp(T, 6)
    lred(T)
    T(f"v_cmp_nge_f32 vcc, s{sLM}, v{LS[0]}")
    for qb in range(1, 4): T(f"v_cmp_nge_f32 s[34:35], s{sLM}, v{LS[qb]}\ns_nop 0\ns_or_b64 vcc, vcc, s[34:35]")
    T(f"s_cmp_lg_u64 vcc, 0\ns_cselect_b32 s16, 1, {opt['forcesafe']}\nv_mov_b32 v{NREF}, s16")
    T(f"ds_write_b32 v{NREF+5}, v{NREF}")
    for qb in range(4): T(f"v_rcp_f32 v{LS[qb]}, v{LS[qb]}")
    for t in ra[k_:]: T(t)
    T(f"v_mov_b32 v{NREF+2}, v{NREF+6}")
    T("s_waitcnt lgkmcnt(0)\ns_barrier")
    T(f"ds_read_b128 {vr(NREF+4)}, v{NREF+2}")
    G = Gaps(pv_mfmas(1)); pv_reads(G, 0)
    G.put(3, lgw(rs(NREF + 4, 4)))
    G.place(4, f"v_or3_b32 v{NREF}, v{NREF+4}, v{NREF+5}, v{NREF+6}"); G.place(5, f"v_or_b32 v{NREF}, v{NREF}, v{NREF+7}")
    G.place(7, f"v_readfirstlane_b32 s{sE}, v{NREF}")
    gck = G.place2(9, f"s_cmp_lg_u32 s{sE}, 0", "s_cbranch_scc1 L_safe")
    w2_ = b_wdma(sW2, "W2", 2 * STB)
    l0_ = ([] if opt["w2t"] else w2_) + hload(2, "O2"); l1_ = []
    ylo = hload(0, "O0") + hload(1, "O1") + (w2_ if opt["w2t"] else [])
    g = spread(G, ylo, gck + 1, opt["hl"])
    oq, _ = oepi_ops()
    items = []; cur = []
    for x in oq:
        if x[3] == "OST": items.append((cur, x)); cur = []
        else: cur.append(x)
    pc = [int(x) for x in opt["pace"].split(",")]; assert sum(pc) == 24
    first = []
    for n in range(12):
        first += items[n][0]
        if n < pc[0]: first.append(items[n][1])
    left = G.fill(first, 12)
    T.ext(G.emit())
    if opt["tst"] == 2: stamp(T, 7)
    zst(T, 1, 2)
    T("s_nop 7")
    straight(T, pkify(left))
    T("L_join:")
    zst(T, 1, 3)
    if opt["tst"] == 0: stamp(T, 7)
    for t in b_ra_fin: T(t)
    T.l.append(vmw({"W0", "O0"})); T("s_barrier")
    for nb in range(3):
        for e in range(2):
            for h in range(2): T(bread(0, nb, e, h))
    T(f"s_add_u32 s17, s{sQT}, {AF_OFF}")
    T("s_waitcnt lgkmcnt(0)")
    zst(T, 1, 4)
    def paced(k, lim=78):
        n0 = sum(pc[:k + 1]); q = []
        for j in range(pc[k + 1]):
            n = n0 + j; g = 2 + (lim - 2) * j // pc[k + 1]
            if n >= 12: q += [(t, max(0, g - 7), ng, tag) for (t, e, ng, tag) in items[n][0]]
            q.append((items[n][1][0], g, False, "OST"))
        return q
    c0, late = b_chunk(0, l0_, {"W1"}, {"O1"}, czero=True, fillq=paced(0), lim=opt["jl"] if opt["jit"] else None)
    T.ext(c0); straight(T, late); print("y0 leftover", len(late), file=sys.stderr)
    zst(T, 1, 5)
    so = {1: 18, 2: 19, 3: 16}; sYC, sXC, sYF, sXF = 26, 27, 24, 25
    assert pc[2] == pc[3] == 0 and opt["afc"] == 1
    a1 = [f"v_lshlrev_b32 v4, 4, v0", f"s_mul_i32 s{sE}, s{sW}, 20480", f"v_add_u32 v2, s{sE}, v4", f"s_xor_b32 s{sE}, s{sW}, 2", f"s_mul_i32 s{sE}, s{sE}, 20480", f"v_add_u32 v3, s{sE}, v4",
          "v_lshlrev_b32 v1, 3, v0", "v_add_u32 v1, 2048, v1", f"s_add_u32 s{sG}, s{sFL}, {AF_OFF}", f"s_mov_b32 s{sKo}, s{sF}"]
    c1, left = b_chunk(1, [f"s_mov_b32 s{sVo}, s{sH}"] + b_wdma(sWO, "W3", 3 * STB), {"W2"}, {"O2"}, lim=opt["jl"], fillq=a1, af=opt["afg"])
    T.ext(c1); assert not left
    zst(T, 1, 6)
    a2 = [f"s_lshl_b32 s{sH}, s{sMT}, 2", f"s_add_u32 s{sH}, s{sH}, s{sNT}"] + [t.replace(f"s{sA}", f"s{sInc}") for t in slot_scalars(YC_OFF, so, sYC)]
    a2 += [f"s_lshl_b32 s{sC}, s{sH}, 2", f"s_add_u32 s{sC}, s{sC}, s{sW}", f"s_lshl_b32 s{sC}, s{sC}, 6", f"s_add_u32 s{sYF}, s{sC}, {YF_OFF}", f"s_add_u32 s{sXF}, s{sC}, {XF_OFF}"]
    c2 = b_chunk(2, a2, {"W3"}, None, xw=True, inc=STB, lim=40,
                 puts=[(opt["aflg"], f"buffer_load_dwordx2 {vr(T0,2)}, v{FLV}, {sr(sWS)}, s{sG} offen sc1", "AFL")])
    T.ext(c2)
    zst(T, 1, 7); stamp(T, 8)
    YO = 80; YP = 100
    try_ = lambda i, r: (YO, 16, 130, 216)[r] + 4 * i
    T.l.append(vmw({"AFL"})); cond_nonce(T, f"s{sMSK}")(); T(f"s_cselect_b32 s{sD}, 1, 0")
    T("s_waitcnt lgkmcnt(0)\ns_barrier")
    stamp(T, 9); zst(T, 1, 8); zst(T, 2, 1)
    xchg_reads(T, try_)
    T(f"s_cmp_lg_u32 s{sD}, 0\ns_cbranch_scc1 L_o2")
    straight(T, oload(1, "O1"))
    T("s_waitcnt lgkmcnt(0)\ns_barrier")
    S_ = Asm(); yst = xchg_sum(S_, try_, YP, so, False)
    rest = Asm(); straight(rest, oload(2, "O2") + b_wdma(sWO, "W2", 2 * STB))
    grp = []; cur = []
    for x in rest.l:
        cur.append(x)
        if x.kind == "vmem": grp.append(cur); cur = []
    grp[-1] += cur
    for n, x in enumerate(S_.l):
        T.l.append(x)
        if n % 8 == 3 and grp: T.ext(grp.pop(0))
    for g_ in grp: T.ext(g_)
    zst(T, 1, 9)
    T.l.append(vmw({"O1"}))
    T("L_o2_r:")
    T(f"s_mov_b32 s{sCnt}, 2\ns_lshl_b32 s{sE}, s{sSP}, 3\ns_add_u32 s{sG}, s{sYF}, s{sE}")
    OOL("L_o2:"); straight(OOL, b_wdma(sWO, "W2", 2 * STB)); OOL("s_waitcnt lgkmcnt(0)\ns_barrier")
    xchg_sum(OOL, try_, YP, so, False)
    poll(OOL, "L_pat", FLV, sWS, f"s{sG}", cond_nonce(OOL, f"s{sMSK}"), sleep=4)
    straight(OOL, oload(1, "O1") + oload(2, "O2")); OOL("s_waitcnt vmcnt(8)\ns_branch L_o2_r")
    zst(T, 1, 10); zst(T, 2, 2)
    def sl(u): return b_wdma(sWO, f"W{(u+2)%3}", ((u + 2) % 3) * STB) + oload((u + 2) % 3, f"O{(u+2)%3}")
    def nx(k, u): return {f"{k}{(u+1)%3}"}
    for n, u in enumerate((1, 2, 0)):
        T.ext(b_chunk(u, merge(sl(u), yst[5 * n: 5 * n + 5]), nx("W", u), nx("O", u), czero=(n == 0), ph=n, inc=-STB if n == 0 else None))
        zst(T, 2, 3 + n)
    zst(T, 1, 11)
    tail = list(T.l)
    auto_lgkm(tail, pre=s0); auto_vm(tail)
    A.ext(tail)
    steps = [b_chunk(1, sl(1), nx("W", 1), nx("O", 1), ph=0, first_gap=[f"s_sub_u32 s{sCnt}, s{sCnt}, 1"]),
             b_chunk(2, sl(2), nx("W", 2), nx("O", 2), ph=1, after_barrier=f"buffer_store_dwordx2 v[254:255], v{ZV}, {sr(sWS)}, s{sG} offen sc1"),
             b_chunk(0, sl(0), nx("W", 0), nx("O", 0), ph=2, last_gap=[f"s_cmp_lg_u32 s{sCnt}, 0"])]
    for u in range(3):
        auto_lgkm(steps[u], pre=steps[(u + 2) % 3]); auto_vm(steps[u], pre=steps[(u + 1) % 3] + steps[(u + 2) % 3])
    A(".p2align 6\nL_bloop:")
    for u in range(3): A.ext(steps[u])
    A("s_cbranch_scc1 L_bloop")
    PKS = 16; XL = 48; B2L = 58
    E = Asm()
    zst(E, 2, 6)
    E(f"v_and_b32 v6, 3, v0\nv_lshlrev_b32 v6, 3, v6\ns_lshl_b32 s{sMSK}, 1, s{sSP}\ns_xor_b32 s{sMSK}, s{sMSK}, 15")
    a3 = [f"v_add_u32 v2, {STB}, v2", f"v_add_u32 v3, {STB}, v3",
          "v_lshrrev_b32 v7, 4, v0", "v_lshlrev_b32 v7, 3, v7", "v_and_b32 v5, 15, v0", "v_mul_u32_u24 v5, 1280, v5", "v_add_u32 v5, v5, v7"]
    c, left = b_chunk(1, [(f"buffer_load_dwordx2 {vr(T0,2)}, v6, {sr(sWS)}, s{sYF} offen sc1", "YF")] + sl(1), nx("W", 1), nx("O", 1), ph=0, fillq=a3); assert not left
    E.ext(c)
    E.l.append(vmw({"YF"}))
    poll(E, "L_py", 6, sWS, f"s{sYF}", cond_nonce(E, f"s{sMSK}"), sleep=4, precheck=True)
    zst(E, 2, 7)
    a4 = [f"s_lshr_b32 s{sC}, s{sFL}, 6", f"s_add_u32 s{sC}, s{sC}, s{sSP}", f"s_mul_i32 s{sKo}, s{sC}, 20480",
          f"s_mul_i32 s{sC}, s{sNT}, 320", f"s_mul_i32 s{sB}, s{sKH}, 160", f"s_add_u32 s{sC}, s{sC}, s{sB}", f"s_add_u32 s{sKo}, s{sKo}, s{sC}"]
    E.ext(b_chunk(2, inbox_loads(sYC, YP, "YL") + a4, nx("W", 2), nx("O", 2), ph=1, lim=50))
    zst(E, 2, 8)
    l2 = [(f"buffer_load_dwordx2 {vr(B2L+2*i,2)}, v7, {sr(sB2)}, s{sC} offen offset:{32*i}", "YL") for i in range(5)]
    l2 += [(f"buffer_load_dwordx2 {vr(XL+2*i,2)}, v5, {sr(sX)}, s{sKo} offen offset:{32*i}", "YL") for i in range(5)]
    if opt["opre"]: l2 += [(f"buffer_load_dword v70, v5, {sr(sOUT)}, s{sKo} offen offset:{o_}", "YL") for o_ in (0, 128)]
    a5 = [f"s_lshl_b32 s{sA}, s{sH}, 4", f"s_add_u32 s{sA}, s{sA}, s{sW}", f"s_mul_i32 s{sA}, s{sA}, 10240", f"s_add_u32 s{sA}, s{sA}, {XC_OFF}",
          f"s_mul_i32 s{sE}, s{sSP}, 40960", f"s_add_u32 s{sXC}, s{sA}, s{sE}"]
    for r in (1, 2, 3):
        a5 += [f"s_add_u32 s{so[r]}, s{sSP}, {r}", f"s_and_b32 s{so[r]}, s{so[r]}, 3", f"s_mul_i32 s{so[r]}, s{so[r]}, 40960", f"s_add_u32 s{so[r]}, s{so[r]}, s{sA}",
               f"s_add_u32 s{so[r]}, s{so[r]}, {(3 - r) * 2560}"]
    a5 += ["v_min_u32 v6, 2, v0", "v_mul_u32_u24 v6, 2560, v6", "v_add_u32 v6, 2556, v6", f"s_add_u32 s{sXF}, s{sXC}, 2560", f"s_add_u32 s{sYF}, s{sXC}, 5120"]
    c, left = b_chunk(0, l2, None, None, nxt=False, xw=True, ph=2, lim=36, fillq=a5); assert not left
    E.ext(c)
    stamp(E, 10); zst(E, 2, 9); zst(E, 3, 1)
    auto_lgkm(E.l, pre=steps[2]); auto_vm(E.l, pre=steps[1] + steps[2])
    trs = lambda i, r: 160 + 20 * r + 4 * i
    XI = 200 if opt["xat"] < 2 else 68
    def x_loads(X_):
        for n, so_ in enumerate((sXC, sXF, sYF)):
            p = XI + 10 * n
            X_(f"buffer_load_dwordx4 {vr(p)}, v4, {sr(sWS)}, s{so_} offen sc1\nbuffer_load_dwordx4 {vr(p+4)}, v4, {sr(sWS)}, s{so_} offen offset:1024 sc1\nbuffer_load_dwordx2 {vr(p+8,2)}, v1, {sr(sWS)}, s{so_} offen sc1")
    E("s_waitcnt lgkmcnt(0)\ns_barrier")
    xchg_reads(E, trs)
    xchg_sum(E, trs, PKS, so, True)
    zst(E, 2, 10); zst(E, 3, 2)
    E("s_waitcnt vmcnt(9)")
    E(f"s_mov_b32 s{sC}, 0x3f80\ns_mov_b32 s{sD}, 0x3f800000")
    def dacc(x, src):
        for k in range(2): E(f"v_dot2_f32_bf16 v{x+2*k}, v{src+k}, s{sC}, v{x+2*k}\nv_dot2_f32_bf16 v{x+2*k+1}, v{src+k}, s{sD}, v{x+2*k+1}")
    for p in range(4):
        for i in range(5): dacc(YO + 4 * i, (B2L + 2 * i) if p == 3 else (YP + 10 * p + 2 * i))
    zst(E, 3, 3)
    if opt["xat"] == 0: x_loads(E)
    for i in range(5):
        g_ = YO + 4 * i; t = 130 + 4 * i
        for k in range(4): E(f"v_mul_f32 v{t+k}, {fh(-LOG2E)}, v{g_+k}")
        for k in range(4): E(f"v_exp_f32 v{t+k}, v{t+k}")
        for k in range(4): E(f"v_add_f32 v{t+k}, 1.0, v{t+k}")
        for k in range(4): E(f"v_rcp_f32 v{t+k}, v{t+k}")
        for k in range(4): E(f"v_mul_f32 v{g_+k}, v{g_+k}, v{t+k}")
        for k in range(2): E(f"v_lshlrev_b32 v{t+2*k}, 16, v{XL+2*i+k}\nv_and_b32 v{t+2*k+1}, 0xffff0000, v{XL+2*i+k}")
    zst(E, 3, 5)
    if opt["xat"] == 1: x_loads(E)
    E(f"s_mov_b32 s{sG}, {SPIN}")
    E("L_x2:")
    for n in range(3):
        E(f"s_waitcnt vmcnt({6 - 3*n})")
        for i in range(5):
            for k in range(2):
                for hl, sel in enumerate((sC, sD)):
                    E(f"v_dot2_f32_bf16 v{trs(i,1)+2*k+hl}, v{XI+10*n+2*i+k}, s{sel}, v{trs(i, 0 if n == 0 else 1)+2*k+hl}")
    for i in range(5):
        for k in range(2):
            E(f"v_cmp_u_f32 {'vcc' if i + k == 0 else 's[%d:%d]' % (sA, sA + 1)}, v{trs(i,1)+2*k}, v{trs(i,1)+2*k+1}")
            if i + k: E(f"s_nop 0\ns_or_b64 vcc, vcc, s[{sA}:{sA+1}]")
    E("s_cmp_lg_u64 vcc, 0\ns_cbranch_scc1 L_o4\nL_o4_r:")
    stamp(E, 11); zst(E, 2, 11); zst(E, 3, 6)
    if opt["xpm"] == 0:
        OOL(f"L_o4:\ns_mov_b32 s{sE}, {MARK}\ns_mov_b64 vcc, 0")
        for n in range(30): OOL(f"v_cmp_eq_u32 s[{sA}:{sA+1}], s{sE}, v{XI+n}\ns_nop 0\ns_or_b64 vcc, vcc, s[{sA}:{sA+1}]")
        OOL("s_cmp_lg_u64 vcc, 0\ns_cbranch_scc0 L_o4_r")
        OOL(f"L_px:\ns_sub_u32 s{sG}, s{sG}, 1\ns_cmp_eq_u32 s{sG}, 0\ns_cbranch_scc1 L_o4_r")
        OOL(f"buffer_load_dword v{T0}, v6, {sr(sWS)}, s{sXC} offen sc1\ns_waitcnt vmcnt(0)\nv_cmp_eq_u32 vcc, s{sE}, v{T0}\ns_nop 0\ns_cmp_lg_u64 vcc, 0\ns_cbranch_scc0 L_px_ok\ns_sleep 1\ns_branch L_px\nL_px_ok:")
        x_loads(OOL); OOL("s_branch L_x2")
    else:
        OOL(f"L_o4:\ns_mov_b32 s{sE}, {MARK}\ns_mov_b32 s{sH}, 0")
        OOL(f"L_px:\ns_sub_u32 s{sG}, s{sG}, 1\ns_cmp_eq_u32 s{sG}, 0\ns_cbranch_scc1 L_o4_r\ns_mov_b32 s{sF}, 0")
        for n, so_ in enumerate((sXC, sXF, sYF)):
            p = XI + 10 * n
            OOL("s_mov_b64 vcc, 0")
            for k in range(10): OOL(f"v_cmp_eq_u32 s[{sA}:{sA+1}], s{sE}, v{p+k}\ns_nop 0\ns_or_b64 vcc, vcc, s[{sA}:{sA+1}]")
            OOL(f"s_cmp_lg_u64 vcc, 0\ns_cbranch_scc0 L_px{n}\ns_mov_b32 s{sF}, 1")
            OOL(f"buffer_load_dwordx4 {vr(p)}, v4, {sr(sWS)}, s{so_} offen sc1\nbuffer_load_dwordx4 {vr(p+4)}, v4, {sr(sWS)}, s{so_} offen offset:1024 sc1\nbuffer_load_dwordx2 {vr(p+8,2)}, v1, {sr(sWS)}, s{so_} offen sc1\nL_px{n}:")
        OOL(f"s_cmp_eq_u32 s{sF}, 0\ns_cbranch_scc1 L_px_ok\ns_mov_b32 s{sH}, 1\ns_waitcnt vmcnt(0)\ns_sleep {opt['xsl']}\ns_branch L_px")
        OOL(f"L_px_ok:\ns_cmp_eq_u32 s{sH}, 0\ns_cbranch_scc1 L_o4_r\ns_branch L_x2")
    for i in range(5):
        x = trs(i, 1)
        for k in range(2): E(f"v_pk_fma_f32 {vr(x+2*k,2)}, {vr(x+2*k,2)}, {vr(YO+4*i+2*k,2)}, {vr(130+4*i+2*k,2)}")
        for k in range(2): E(f"v_cvt_pk_bf16_f32 v{trs(i,0)+k}, v{x+2*k}, v{x+2*k+1}")
        E(f"buffer_store_dwordx2 {vr(trs(i,0),2)}, v5, {sr(sOUT)}, s{sKo} offen offset:{32*i}")
    if opt["stamp"]:
        E("s_waitcnt vmcnt(0)")
        E("s_memrealtime s[4:5]\ns_memtime s[6:7]\ns_load_dwordx2 s[8:9], s[0:1], 96\ns_waitcnt lgkmcnt(0)")
        E(f"s_add_u32 s8, s8, {ST_OFF}\ns_addc_u32 s9, s9, 0\ns_and_b32 s9, s9, 0xffff\ns_mov_b32 s10, 0x40000\ns_mov_b32 s11, 0x20000")
        E(f"s_lshl_b32 s12, s2, 2\ns_add_u32 s12, s12, s{sW}\ns_lshl_b32 s12, s12, 7\nv_mov_b32 v2, 0\ns_mov_b64 exec, 1")
        for i in range(NST[0] + 1):
            a, b_ = (78 + 2 * i, 79 + 2 * i) if i < NST[0] else (4, 6)
            E(f"v_mov_b32 v{16+2*i}, s{a}\nv_mov_b32 v{17+2*i}, s{b_}\nbuffer_store_dwordx2 v[{16+2*i}:{17+2*i}], v2, s[8:11], s12 offen offset:{8*i}")
    if opt["stamp"] and opt["dbgst"]:
        E("s_load_dwordx2 s[8:9], s[0:1], 88\ns_waitcnt lgkmcnt(0)\ns_and_b32 s9, s9, 0xffff\ns_mov_b32 s10, 256\ns_mov_b32 s11, 0x20000")
        E("s_not_b32 s78, s78")
        for i in range(NST[0] + 1):
            a_ = 78 + 2 * i if i < NST[0] else 4
            E(f"v_mov_b32 v{16+i}, s{a_}\nbuffer_atomic_umax v{16+i}, v2, s[8:11], 0 offen offset:{8+4*i} sc1")
    ec = list(E.l)
    A.ext(ec)
    A("L_done:\ns_endpgm")
    A.ext(OOL.l); problems += check_hazards(OOL.l, "ool")
    A("L_fo:"); A.ext(FO.l); A("s_branch L_common")
    tr_o = head_ + FO.l + pro[k_common:] + sf + s1
    problems += check_hazards(tr_o, "odd"); problems += check_waits(tr_o, "odd")[0]
    F = Asm()
    F("L_safe:")
    F("s_waitcnt vmcnt(0) lgkmcnt(0)\ns_nop 7")
    for r in KA: F(f"v_subrev_u32 v{r}, {STG}, v{r}")
    for r in VA: F(f"v_subrev_u32 v{r}, {2*STG}, v{r}")
    for i in range(192): F(f"v_accvgpr_write_b32 a{i}, 0")
    MX = PB[1]
    for qb in range(4): F(f"v_mov_b32 v{LS[qb]}, 0\nv_mov_b32 v{MX+qb}, 0xff7fffff")
    F(f"s_mov_b32 s{sSlot}, s{sWb}\ns_mov_b32 s{sCnt}, 32")
    Fp = list(F.l)
    L = Asm()
    L("L_sloop:")
    L("s_barrier")
    for srd_, base in ((sK, KRING), (sV, VRING)):
        for hf in range(2):
            L(f"s_add_u32 s{sInc}, s{sSlot}, {3072*hf}\ns_add_u32 m0, s{sWb}, {base + 3072*hf}\ns_nop 0")
            for j in range(3): L(f"buffer_load_dwordx4 v{DSR[j]}, {sr(srd_)}, s{sInc} offen offset:{1024*j} lds")
    L(f"s_add_u32 s{sSlot}, s{sSlot}, {STG}")
    L("s_waitcnt vmcnt(0)\ns_barrier")
    for ks in range(6): L(kread(0, 0, ks))
    L("s_waitcnt lgkmcnt(0)")
    G = Gaps(qk_mfmas(set())); qk_reads(G, 0, vpre=True)
    L.ext(G.emit())
    L("s_nop 7")
    for qb in range(4):
        m = NREF + 4 * qb
        v = [S(kb, qb) + r for kb in range(4) for r in range(4)]
        L(f"v_max3_f32 v{m}, v{v[0]}, v{v[1]}, v{MX+qb}")
        for i in range(2, 16, 2): L(f"v_max3_f32 v{m}, v{m}, v{v[i]}, v{v[i+1]}")
    for sw in ("v_permlane32_swap_b32", "v_permlane16_swap_b32"):
        for qb in range(4): L(f"v_mov_b32 v{NREF+4*qb+1}, v{NREF+4*qb}")
        for qb in range(4): L(f"{sw} v{NREF+4*qb}, v{NREF+4*qb+1}")
        for qb in range(4): L(f"v_max_f32 v{NREF+4*qb}, v{NREF+4*qb}, v{NREF+4*qb+1}")
    for qb in range(4): L(f"v_sub_f32 v{NREF+4*qb+1}, v{MX+qb}, v{NREF+4*qb}")
    for qb in range(4): L(f"v_exp_f32 v{NREF+4*qb+1}, v{NREF+4*qb+1}")
    for qb in range(4): L(f"v_mov_b32 v{MX+qb}, v{NREF+4*qb}")
    for qb in range(4): L(f"v_mul_f32 v{LS[qb]}, v{LS[qb]}, v{NREF+4*qb+1}")
    for db in range(12):
        for qb in range(4):
            t = PB[1] + 8 + 4 * ((db * 4 + qb) % 4)
            for r in range(4): L(f"v_accvgpr_read_b32 v{t+r}, a{O(db,qb)+r}")
            for r in range(4): L(f"v_mul_f32 v{t+r}, v{t+r}, v{NREF+4*qb+1}")
            for r in range(4): L(f"v_accvgpr_write_b32 a{O(db,qb)+r}, v{t+r}")
    for kb in range(4):
        for qb in range(4):
            for r in range(4): L(f"v_sub_f32 v{S(kb,qb)+r}, v{S(kb,qb)+r}, v{MX+qb}")
    for (ex, ad, cv) in sm_ops(0):
        for t in ex: L(t)
        L("s_nop 0")
        for t in ad + cv: L(t)
    L("s_waitcnt lgkmcnt(0)\ns_nop 1")
    G = Gaps(pv_mfmas(0)); pv_reads(G, 0)
    L.ext(G.emit())
    L(f"s_sub_u32 s{sCnt}, s{sCnt}, 1\ns_cmp_lg_u32 s{sCnt}, 0\ns_cbranch_scc1 L_sloop")
    auto_lgkm(L.l)
    X = Asm()
    X("s_waitcnt lgkmcnt(0)\ns_barrier")
    lred(X)
    for qb in range(4): X(f"v_rcp_f32 v{LS[qb]}, v{LS[qb]}")
    for t in b_scalars() + oepi_pre(): X(t)
    straight(X, w01 + ylo)
    straight(X, first)
    X("s_waitcnt vmcnt(0)\ns_branch L_join")
    A.ext(Fp); A.ext(L.l); A.ext(X.l)
    j = [i for i, x in enumerate(tail) if x.text == "L_join:"][0]
    ck = [i for i, x in enumerate(tail) if "L_safe" in x.text][0]
    bl = steps[0] + steps[1] + steps[2]
    main = pro + sf + s1 + s0 + st[5] + s1 + s0 + tail + bl + bl + ec
    problems += check_hazards(main, "main"); problems += check_waits(main, "main")[0]
    safe = s0 + tail[:ck + 1] + Fp + L.l + L.l + X.l + tail[j:]
    problems += check_hazards(safe, "safe"); problems += check_waits(safe, "safe")[0]
    return A.text()

body = gen()
kn = NAME + "_kernel"
out = f"""; generated by gen/gen20.py (own generator): one persistent launch, 1 workgroup per CU
; @launch grid=(256,1,1) block=(256,1,1) lds={LDS_SZ}
.amdgcn_target "amdgcn-amd-amdhsa--gfx950"
.text
.globl {kn}
.p2align 8
.type {kn},@function
{kn}:
{body}
.section .rodata,"a"
.p2align 6
.amdhsa_kernel {kn}
  .amdhsa_next_free_vgpr 512
  .amdhsa_next_free_sgpr 102
  .amdhsa_accum_offset 256
  .amdhsa_group_segment_fixed_size 0
  .amdhsa_kernarg_size 104
  .amdhsa_user_sgpr_count 2
  .amdhsa_user_sgpr_kernarg_segment_ptr 1
  .amdhsa_system_sgpr_workgroup_id_x 1
.end_amdhsa_kernel
"""
if problems:
    for p in sorted(set(problems)): print(p, file=sys.stderr)
    print(f"{len(set(problems))} problems", file=sys.stderr)
sys.stdout.write(out)
```

```python
import sys, math, struct, re
from asmlib import *

NAME = "recurrent_scan__gqa_block_cached__dense_activation_gelu__prompt"
def f2u(x): return struct.unpack("<I", struct.pack("<f", x))[0]
def fh(x): return f"0x{f2u(x):08x}"
LOG2E = math.log2(math.e)
CSC = LOG2E / math.sqrt(192.0)
XS_OFF = 0
OH_OFF = 0x400000
YC_OFF = 0x2400000
XC_OFF = 0x3c00000
FL_OFF = 0x4800000
AF_OFF = FL_OFF; HF_OFF = FL_OFF + 0x4000; XF_OFF = FL_OFF + 0x8000; YF_OFF = FL_OFF + 0xc000; LF_OFF = FL_OFF + 0x10000
WS_SZ = 0x5000000
ST_OFF = 0x8000000
LDS_LN = 147456; LDS_FL = LDS_LN + 2048; LDS_SZ = 163840
SPIN = 1 << 18
MARK = 0x7f817f81

opt = dict(stamp=0, forcesafe=0, pf=1, warm=0, pst=128, snake=1, bias=102, opf=0, dense=4, zoom=0, pace="10,14,0,0", afc=1, afg=40, lim1=64, wqpf=1, aflg=56, xws=33, xid=0, foff=4096, xat=0, xpm=0, xsl=1, nobar=0, gbar=80, lns=2, ost="", opre=0, xw0=11, pk=1, dbgst=0, warmh=0, jit=0, yin=0, kvw=0, pfm=6, hl=92, w2t=1, kearly=1, noh=0, jl=60, nearly=8, tst=0)
for a in sys.argv[1:]:
    k, v = a.split("="); opt[k] = type(opt.get(k, ""))(v)
problems = []
BIAS = opt["bias"]; BIAS_LO = 48
def snk(n, i): return list(range(n))[::-1] if (opt["snake"] and i & 1) else list(range(n))

def vr(b, n=4): return f"v[{b}:{b+n-1}]"
def ar(b, n=4): return f"a[{b}:{b+n-1}]"
def sr(b, n=4): return f"s[{b}:{b+n-1}]"
def rs(b, n): return {f"v{i}" for i in range(b, b + n)}
def lgw(regs): return Ins("s_waitcnt lgkmcnt(?)", ("lg", regs))
def vmw(tags, extra=""): return Ins("s_waitcnt vmcnt(?)" + extra, ("vm", set(tags)))
MF = "v_mfma_f32_16x16x32_bf16"

sK, sV, sWQ, sW1, sWS, sB1, sX, sDBG, sOUT, sWO, sB2, sW2 = 4, 8, 12, 16, 20, 24, 28, 32, 36, 40, 44, 48
sSP = 3
(sW, sHEAD, sQT, sQB0, sKo, sKo2, sVo, sVo2, sSlot, sM, sInc, sCnt, sA, sB, sC, sD, sWb, sNeg, sN0, sN1,
 sMT, sNT, sE, sF, sKH, sQH) = range(52, 78)
sMSK, sFL, sG, sH = 12, 13, 14, 15
sBI, sLM = 32, 33
KT = 76
NST = [0]
def zst(A, z, i):
    if opt["zoom"] == z: stamp(A, i, True)
def stamp(A, i, force=False):
    if opt["zoom"] and not force: return
    if opt["stamp"]:
        A(f"s_memrealtime vcc\ns_waitcnt lgkmcnt(0)\ns_mov_b32 s{78+2*i}, vcc_lo\ns_memtime vcc\ns_waitcnt lgkmcnt(0)\ns_mov_b32 s{79+2*i}, vcc_lo")
        NST[0] = max(NST[0], i + 1)

KA = [1, 2]; VA = [3, 4, 5, 6]; DSR = [7, 8, 9]; LS = [10, 11, 12, 13]; T0, T1 = 14, 15
NREF = 16; QV = 32; SB = 64; PB = [128, 160]; KV = 192
WA = [240, 241]; WA2 = [242, 243]; W1A = [244, 245, 246, 255]; DW = [247, 248, 249]; DW1 = 250; XV = [251, 252, 253, 254]
KRING = 0; VRING = 73728; STG = 24576; W1RING = 49152
DS5 = [240, 241, 242, 243, 244]; RA = [245, 246, 8, 9]; RAT = [245, 246, 254, 255]; OV = [247, 248, 249, 250]; PFV = 251; ZV = 252; FLV = 253
OB = [16, 48, 160]; WF = 192; STB = 40960; PK = 80

def qfrag(qb, ks):
    f = qb * 6 + ks
    return ar(192 + 4 * f) if f < 16 else vr(QV + 4 * (f - 16))
def S(kb, qb): return SB + 4 * (kb * 4 + qb)
def P(par, qb, e): return PB[par] + 4 * (qb * 2 + e)
def O(db, qb): return 4 * (db * 4 + qb)

class Gaps:
    def __init__(self, mfmas):
        self.m = mfmas; n = len(mfmas); self.n = n; self.cap = 2; self.blk = {}
        self.sc = [[] for _ in range(n)]; self.mem = [[] for _ in range(n)]; self.va = [[] for _ in range(n)]
    def vcost(self, g): return len(self.mem[g]) + sum(2 if x.kind == "trans" else 1 for x in self.va[g])
    def cost(self, g): return self.vcost(g) + len(self.sc[g])
    def fits(self, g, ins):
        c = 2 if ins.kind == "trans" else 1
        if ins.kind in ("valu", "trans", "ds", "vmem"):
            if self.vcost(g) + c > self.cap: return False
            if ins.kind in ("ds", "vmem") and self.va[g]: return False
            return self.vcost(g) + c + len(self.sc[g]) <= self.cap + 1
        return self.cost(g) + 1 <= 3
    def put(self, g, ins):
        if ins.kind in ("ds", "vmem"): self.mem[g].append(ins)
        elif ins.kind in ("valu", "trans"): self.va[g].append(ins)
        else: self.sc[g].append(ins)
    def place(self, g, text, tag=None):
        ins = Ins(text, tag)
        while not self.fits(g, ins): g += 1
        self.put(g, ins); return g
    def place2(self, g, t1, t2):
        while self.cost(g) + 2 > 3: g += 1
        self.put(g, Ins(t1)); self.put(g, Ins(t2)); return g
    def fill(self, queue, g0=0, g1=None):
        g1 = self.n if g1 is None else g1
        g = g0; i = 0; last = -1; lastkind = None
        while i < len(queue):
            t, e, ng, tag = (list(queue[i]) + [0, False, None])[:4] if not isinstance(queue[i], str) else (queue[i], 0, False, None)
            ins = Ins(t, tag)
            g = max(g, e)
            order = {"salu": 0, "wait": 0, "ds": 1, "vmem": 1, "valu": 2, "trans": 2}
            if last >= 0 and (ng or order[ins.kind] < order[lastkind] or (lastkind == "salu" and "m0" in queue_prev and ins.kind == "vmem")): g = max(g, last + 1)
            while g < g1 and not self.fits(g, ins): g += 1
            if g >= g1: break
            self.put(g, ins); last = g; lastkind = ins.kind; queue_prev = t; i += 1
        return queue[i:]
    def emit(self):
        out = []
        for g, m in enumerate(self.m):
            out.append(m); out += self.sc[g] + self.mem[g] + self.va[g] + self.blk.get(g, [])
        return out

def spread(G, lst, g0, g1):
    nv = max(1, sum(1 for x in lst if isinstance(x, tuple)))
    k = 0; g = g0
    for x in lst:
        t, tag = x if isinstance(x, tuple) else (x, None)
        if tag:
            tgt = g0 + 1 + int((g1 - g0 - 1) * k / nv); k += 1
            g = G.place(max(g, tgt), t, tag) + 1
        else:
            g = G.place(g, t)
            if " m0," in t: g += 1
    return g

def straight(A, lst):
    prev_m0 = False
    for x in lst:
        if isinstance(x, str): t, tag = x, None
        elif len(x) == 2: t, tag = x
        else:
            t = x[0]; tag = x[3] if len(x) > 3 else None
            if len(x) > 2 and x[2]: A("s_nop 1")
        if prev_m0 and "lds" in t: A("s_nop 0")
        A(t, tag); prev_m0 = " m0," in t

def srd(A, d, lo, size, add=None):
    if add is None:
        A(f"s_mov_b32 s{d}, s{lo}\ns_and_b32 s{d+1}, s{lo+1}, 0xffff")
    else:
        A(f"s_add_u32 s{d}, s{lo}, {add}\ns_addc_u32 s{d+1}, s{lo+1}, 0\ns_and_b32 s{d+1}, s{d+1}, 0xffff")
    A(f"s_mov_b32 s{d+2}, {size}\ns_mov_b32 s{d+3}, 0x20000")

def kread(buf, kb, ks):
    d = KV + 24 * buf + 4 * ks
    return f"ds_read_b128 {vr(d)}, v{KA[ks & 1]} offset:{(ks >> 1) * 128 + kb * 6144}"
def vread(db, e, half):
    d = KV + 8 * (db % 6) + 4 * e + 2 * half
    return f"ds_read_b64_tr_b16 {vr(d,2)}, v{VA[db & 3]} offset:{(db >> 2) * 128 + e * 12288 + half * 6144}"

def qk_mfmas(cinit):
    out = []
    for kb in range(4):
        for qb in range(4):
            for n, ks in enumerate(snk(6, qb)):
                a = KV + 24 * (kb & 1) + 4 * ks
                c = (vr(NREF + 4 * qb) if kb in cinit else "0") if n == 0 else vr(S(kb, qb))
                out.append(Ins(f"{MF} {vr(S(kb,qb))}, {vr(a)}, {qfrag(qb,ks)}, {c}"))
    return out
def pv_mfmas(par, first=False):
    out = []
    for db in range(12):
        for qb in range(4):
            for n, e in enumerate(snk(2, qb)):
                a = KV + 8 * (db % 6) + 4 * e
                c = "0" if (first and n == 0) else ar(O(db, qb))
                out.append(Ins(f"{MF} {ar(O(db,qb))}, {vr(a)}, {vr(P(par,qb,e))}, {c}"))
    return out
def sm_ops(par):
    out = []
    for kb in range(4):
        for qb in range(4):
            s = S(kb, qb); p = P(par, qb, kb >> 1) + 2 * (kb & 1)
            out.append(([f"v_exp_f32 v{s+r}, v{s+r}" for r in range(4)],
                        [f"v_add_f32 v{LS[qb]}, v{LS[qb]}, v{s+r}" for r in range(4)],
                        [f"v_cvt_pk_bf16_f32 v{p+r}, v{s+2*r}, v{s+2*r+1}" for r in range(2)]))
    return out
def qk_reads(G, base, vpre=True):
    for kb in range(3):
        for ks in range(6): G.place(base + 24 * kb + 1 + 3 * ks, kread((kb + 1) & 1, kb + 1, ks))
    if vpre:
        n = 0
        for db in range(3):
            for e in range(2):
                for h in range(2):
                    G.place(base + 73 + (n * 3) // 2, vread(db, e, h)); n += 1
    for ks in (2, 4): G.put(base + ks - 1, lgw(rs(KV + 4 * ks, 8)))
    for kb in range(1, 4): G.put(base + 24 * kb - 1, lgw(rs(KV + 24 * (kb & 1), 24)))
def pv_reads(G, B, first_wait=True):
    for db in range(9):
        n = 0
        for e in range(2):
            for h in range(2):
                G.place(B + 8 * db + 2 * n, vread(db + 3, e, h)); n += 1
    for db in range(12):
        if B + 8 * db - 1 >= 0: G.put(B + 8 * db - 1, lgw(rs(KV + 8 * (db % 6), 8)))

def gen_step(par, slot, first=False, extra=(), last=None):
    G = Gaps(qk_mfmas({0, 1, 2, 3}) + pv_mfmas(par, first))
    qk_reads(G, 0)
    B = 96
    pv_reads(G, B)
    if last:
        last(G)
    else:
        gb = B + opt["gbar"]
        G.put(gb, Ins("s_waitcnt vmcnt(12) lgkmcnt(0)"))
        if not opt["nobar"]: G.put(gb, Ins("s_barrier"))
        for (g_, t_) in extra: G.place(g_, t_)
        for ks in range(6): G.place(gb + 1 + 2 * ks, kread(0, 0, ks))
        G.put(191, lgw(rs(KV, 8)))
        G.place(2, f"s_add_u32 s{sKo2}, s{sKo}, 3072")
        G.place(4, f"s_sub_u32 s{sVo}, s{sKo}, {STG}")
        G.place(5, f"s_sub_u32 s{sVo2}, s{sKo}, {STG - 3072}")
        dm = [(sK, sKo, 0), (sK, sKo2, 3072), (sV, sVo, VRING), (sV, sVo2, VRING + 3072)]
        g = 8
        for (srd_, so, mo) in dm:
            G.place(g, f"s_add_u32 m0, s{sWb}, {slot * STG + mo}")
            for j in range(3):
                g2 = G.place(g + 3 + 12 * j, f"buffer_load_dwordx4 v{DSR[j]}, {sr(srd_)}, s{so} offen offset:{1024*j} lds")
            g = g2 + 9
        G.place(g, f"s_add_u32 s{sKo}, s{sKo}, {STG}")
        inc = (-2 * STG if slot == 1 else STG) & 0xffffffff
        for i, r in enumerate(KA): G.place(B + 10 + 2 * i, f"v_add_u32 v{r}, {inc}, v{r}")
        for i, r in enumerate(VA): G.place(B + 82 + 2 * i, f"v_add_u32 v{r}, {inc}, v{r}")
    ops = sm_ops(par ^ 1)
    first_g, last_g = 10, (160 if last else 186)
    pend = []
    exps = [(i, r) for i in range(16) for r in range(4)]
    ei = 0
    for g in range(192):
        if ei < 64:
            i, r = exps[ei]
            target = first_g + (last_g - first_g) * ei / 64.0
            if g >= 6 * i + 5 + 4 and g >= target and G.vcost(g) == 0 and len(G.sc[g]) <= 1:
                G.put(g, Ins(ops[i][0][r])); ei += 1
                pend.append((g + 1, ops[i][1][r]))
                if r & 1: pend.append((g + 1, ops[i][2][r >> 1]))
                continue
        while pend and pend[0][0] <= g and G.fits(g, Ins(pend[0][1])):
            G.put(g, Ins(pend.pop(0)[1]))
    assert ei == 64 and not pend, (ei, pend)
    return G


def poll(A, lab, voff, srd_, soff, cond, sleep=2, precheck=False):
    if precheck:
        cond(); A(f"s_cbranch_scc0 {lab}_ok")
    A(f"s_mov_b32 s{sE}, {SPIN}")
    A(f"{lab}:")
    A(f"buffer_load_dwordx2 {vr(T0,2)}, v{voff}, {sr(srd_)}, {soff} offen sc1")
    A("s_waitcnt vmcnt(0)")
    cond()
    A(f"s_cbranch_scc0 {lab}_ok")
    A(f"s_sleep {sleep}\ns_sub_u32 s{sE}, s{sE}, 1\ns_cmp_lg_u32 s{sE}, 0\ns_cbranch_scc1 {lab}")
    A(f"{lab}_ok:")
def cond_nonce(A, mask):
    def f():
        A(f"v_cmp_ne_u32 vcc, s{sN0}, v{T0}\nv_cmp_ne_u32 s[{sA}:{sA+1}], s{sN1}, v{T1}\ns_nop 0")
        A(f"s_or_b32 s{sA}, vcc_lo, s{sA}\ns_and_b32 s{sA}, s{sA}, {mask}\ns_cmp_lg_u32 s{sA}, 0")
    return f
assert sA % 2 == 0 and sC % 2 == 0

def gelu_ops(x, y, pk, store):
    q = []
    for r in range(4): q.append(f"v_mul_f32 v{y+r}, v{x+r}, v{x+r}")
    for r in range(4): q.append(f"v_fma_f32 v{y+r}, v{y+r}, s{sB}, v{T0}")
    for r in range(4): q.append(f"v_mul_f32 v{y+r}, v{y+r}, v{x+r}")
    for r in range(4): q.append(f"v_exp_f32 v{y+r}, v{y+r}")
    for r in range(4): q.append(f"v_fma_f32 v{y+r}, v{y+r}, s{sA}, s{sA}")
    for r in range(4): q.append(f"v_rcp_f32 v{y+r}, v{y+r}")
    for r in range(4): q.append(f"v_mul_f32 v{y+r}, v{y+r}, v{x+r}")
    for r in range(2): q.append(f"v_cvt_pk_bf16_f32 v{pk+r}, v{y+2*r}, v{y+2*r+1}")
    return [(t, 0, False, None) for t in q] + store

def gelu_pk(x, y, pk, store):
    q = []
    for k in range(2): q.append(f"v_pk_mul_f32 {vr(y+2*k,2)}, {vr(x+2*k,2)}, {vr(x+2*k,2)}")
    for k in range(2): q.append(f"v_pk_fma_f32 {vr(y+2*k,2)}, {vr(y+2*k,2)}, s[{sA}:{sA+1}], {vr(T0,2)} op_sel:[0,1,0] op_sel_hi:[1,1,0]")
    for k in range(2): q.append(f"v_pk_mul_f32 {vr(y+2*k,2)}, {vr(y+2*k,2)}, {vr(x+2*k,2)}")
    for r in range(4): q.append(f"v_exp_f32 v{y+r}, v{y+r}")
    q.append("s_nop 0")
    for k in range(2): q.append(f"v_pk_fma_f32 {vr(y+2*k,2)}, {vr(y+2*k,2)}, s[{sA}:{sA+1}], s[{sA}:{sA+1}] op_sel_hi:[1,0,0]")
    for r in range(4): q.append(f"v_rcp_f32 v{y+r}, v{y+r}")
    q.append("s_nop 0")
    for k in range(2): q.append(f"v_pk_mul_f32 {vr(y+2*k,2)}, {vr(y+2*k,2)}, {vr(x+2*k,2)}")
    for r in range(2): q.append(f"v_cvt_pk_bf16_f32 v{pk+r}, v{y+2*r}, v{y+2*r+1}")
    return [(t, 0, False, None) for t in q] + store
def pkify(q):
    out = []; i = 0
    while i < len(q):
        t = q[i][0] if isinstance(q[i], tuple) else q[i]
        n = (q[i + 1][0] if isinstance(q[i + 1], tuple) else q[i + 1]) if i + 1 < len(q) else ""
        m1 = re.match(r"v_(mul|add)_f32 v(\d+), v(\d+), v(\d+)$", t); m2 = re.match(r"v_(mul|add)_f32 v(\d+), v(\d+), v(\d+)$", n)
        if opt["pk"] and m1 and m2 and m1.group(1) == m2.group(1):
            d1, a1, b1 = map(int, m1.groups()[1:]); d2, a2, b2 = map(int, m2.groups()[1:])
            if d1 % 2 == 0 and a1 % 2 == 0 and d2 == d1 + 1 and a2 == a1 + 1:
                if b1 == b2 and b1 not in (d1, d2):
                    h = b1 & 1
                    out.append((f"v_pk_{m1.group(1)}_f32 {vr(d1,2)}, {vr(a1,2)}, {vr(b1-h,2)} op_sel:[0,{h}] op_sel_hi:[1,{h}]", 0, False, None)); i += 2; continue
                if b1 % 2 == 0 and b2 == b1 + 1:
                    out.append((f"v_pk_{m1.group(1)}_f32 {vr(d1,2)}, {vr(a1,2)}, {vr(b1,2)}", 0, False, None)); i += 2; continue
        out.append(q[i]); i += 1
    return out

def b_wdma(srd_, tag, slot_imm, second=16, step=64):
    o = [f"s_add_u32 s{sInc}, s{sM}, {slot_imm}", f"s_add_u32 s{sVo2}, s{sVo}, {second*1280}"]
    for hf, so in enumerate((sVo, sVo2)):
        o.append(f"s_add_u32 m0, s{sInc}, {5120*hf}")
        o += [(f"buffer_load_dwordx4 v{DS5[j]}, {sr(srd_)}, s{so} offen offset:{1024*j} lds", tag) for j in range(4)]
        o.append(f"s_add_u32 m0, s{sInc}, {5120*hf + 4096}")
        o.append((f"buffer_load_dwordx4 v{DS5[4]}, {sr(srd_)}, s{so} offen lds", tag))
    o.append(f"s_add_u32 s{sVo}, s{sVo}, {step*1280}" if isinstance(step, int) else f"s_mov_b32 s{sVo}, s{step[0]}")
    return o
def oload(buf, tag):
    o = [(f"buffer_load_dwordx4 {vr(OB[buf] + 4*(r*2+e))}, v{OV[r]}, {sr(sWS)}, s{sKo} offen offset:{1024*e} sc1", tag) for r in range(4) for e in range(2)]
    o.append(f"s_add_u32 s{sKo}, s{sKo}, 2048")
    return o
hload = oload
def b_scalars():
    o = [f"s_lshl_b32 s{sA}, s{sSP}, 1", f"s_add_u32 s{sA}, s{sA}, s{sKH}"]
    o += [f"s_mul_i32 s{sB}, s{sQH}, {32*1280}", f"s_mul_i32 s{sC}, s{sNT}, 320", f"s_add_u32 s{sB}, s{sB}, s{sC}"]
    o += [f"s_mul_i32 s{sVo}, s{sA}, {192*1280}", f"s_add_u32 s{sVo}, s{sVo}, s{sB}", f"s_mul_i32 s{sH}, s{sA}, {768*1280}", f"s_add_u32 s{sH}, s{sH}, s{sB}"]
    o += [f"s_mul_i32 s{sB}, s{sFL}, {4*240*4}", f"s_add_u32 s{sB}, s{sB}, {OH_OFF}"]
    o += [f"s_mul_i32 s{sKo}, s{sA}, {6*1024}", f"s_add_u32 s{sKo}, s{sKo}, s{sB}", f"s_add_u32 s{sKo}, s{sKo}, {192*1024}"]
    o += [f"s_mul_i32 s{sF}, s{sA}, {24*1024}", f"s_add_u32 s{sF}, s{sF}, s{sB}"]
    o += [f"s_mul_i32 s{sM}, s{sW}, 10240"]
    for r in range(4): o += [f"s_add_u32 s{24+r}, s{sSP}, {r}", f"s_and_b32 s{24+r}, s{24+r}, 3", f"s_mul_i32 s{24+r}, s{24+r}, {240*1024}"]
    return o
def b_warm():
    o = []
    for i in range(4):
        o.append((f"buffer_load_dword v7, v{PFV}, {sr(sWO)}, s{sKo2} offen", "PF"))
        if i < 3: o.append(f"s_add_u32 s{sKo2}, s{sKo2}, 4096")
    return o
def b_addr_ops():
    q = []
    t0, t1, t2, t3 = 255, 253, 254, 255
    for j in range(5):
        q += [f"v_add_u32 v{t0}, {64*j}, v0", f"v_mul_u32_u24 v{t1}, 3277, v{t0}", f"v_lshrrev_b32 v{t1}, 16, v{t1}",
              f"v_mul_u32_u24 v{t2}, 20, v{t1}", f"v_sub_u32 v{t2}, v{t0}, v{t2}", f"v_lshrrev_b32 v{t3}, 1, v{t1}", f"v_and_b32 v{t3}, 2, v{t3}",
              f"v_xor_b32 v{t2}, v{t2}, v{t3}", f"v_mul_u32_u24 v{t3}, 80, v{t1}", f"v_add_u32 v{t3}, v{t3}, v{t2}"]
        q += [f"v_lshlrev_b32 v{DS5[j]}, 4, v{t3}"]
        if 0 < j < 4: q += [f"v_subrev_u32 v{DS5[j]}, {1024*j}, v{DS5[j]}"]
    q += [f"v_and_b32 v{FLV}, 31, v0", f"v_lshlrev_b32 v{FLV}, 3, v{FLV}"]
    p = []
    p += ["v_lshlrev_b32 v245, 4, v0"] + [f"v_mov_b32 v{246+i}, {MARK}" for i in range(4)]
    p += [f"s_lshl_b32 s34, s{sMT}, 2", f"s_add_u32 s34, s34, s{sNT}", f"s_lshl_b32 s34, s34, 2", f"s_add_u32 s34, s34, s{sSP}", f"s_lshl_b32 s34, s34, 2", f"s_add_u32 s34, s34, s{sW}",
          "s_mul_i32 s34, s34, 10240", f"s_add_u32 s34, s34, {XC_OFF}"]
    p += [f"v_lshlrev_b32 v{PFV}, {6 if opt['pst'] == 64 else 7}, v0", f"v_mov_b32 v{ZV}, 0"]
    if opt["pst"] == 128: p += [f"v_min_u32 v{PFV}, {47*128}, v{PFV}"] if False else []
    return p, q

def b_ra_ops():
    t0, t1, t2 = NREF + 8, NREF + 9, NREF + 10
    lo, hi = (NREF + 11, NREF + 12), (NREF + 13, NREF + 14)
    q = [f"s_mul_i32 s{sE}, s{sKH}, 20480", f"v_lshrrev_b32 v{t0}, 2, v0", f"v_mul_u32_u24 v{t0}, 320, v{t0}", f"v_and_b32 v{t1}, 3, v0", f"v_lshl_add_u32 v{t0}, v{t1}, 3, v{t0}",
         f"v_add_u32 v{t0}, s{sE}, v{t0}", f"v_bfe_u32 v{t1}, v0, 4, 1", f"v_xor_b32 v{t2}, 1, v{t1}",
         f"v_lshl_add_u32 v{lo[0]}, v{t1}, 5, v{t0}", f"v_lshl_add_u32 v{lo[1]}, v{t2}, 5, v{t0}",
         f"v_add_u32 v{hi[0]}, 128, v{lo[1]}", f"v_add_u32 v{hi[1]}, 192, v{lo[0]}",
         f"s_cmp_eq_u32 s{sKH}, 0", f"s_cselect_b64 vcc, -1, 0", "s_nop 0"]
    for k in range(2):
        q += [f"v_cndmask_b32 v{RA[k]}, v{lo[k]}, v{hi[k]}, vcc", f"v_cndmask_b32 v{RA[2+k]}, v{hi[k]}, v{lo[k]}, vcc"]
    return q
def lred(A):
    for sw in ("v_permlane32_swap_b32", "v_permlane16_swap_b32"):
        for qb in range(4): A(f"v_mov_b32 v{NREF+qb}, v{LS[qb]}")
        for qb in range(4): A(f"{sw} v{LS[qb]}, v{NREF+qb}")
        for qb in range(4): A(f"v_add_f32 v{LS[qb]}, v{LS[qb]}, v{NREF+qb}")
NEARLY = 24
def oepi_ops():
    q = []; late = []; n = 0
    so = [sA, sB, sC, sD]
    for m in range(6):
        for qb in range(4):
            x = 144 + 8 * (n & 1); d = PK + 4 * (n % 16)
            e = 16 * m + 8 + 2 * qb + 1 + 5
            for p in range(2):
                for r in range(4): q.append((f"v_accvgpr_read_b32 v{x+4*p+r}, a{O(2*m+p,qb)+r}", e, False, None))
            for i in range(8): q.append((f"v_mul_f32 v{x+i}, v{x+i}, v{LS[qb]}", 0, False, None))
            for i in range(4): q.append((f"v_cvt_pk_bf16_f32 v{d+i}, v{x+2*i}, v{x+2*i+1}", 0, False, None))
            v, off = (T1, 1024 * m) if m < 4 else (T0, 1024 * (m - 4))
            st = f"buffer_store_dwordx4 {vr(d)}, v{v}, {sr(sWS)}, s{so[qb]} offen offset:{off} sc1"
            if n < NEARLY: q.append((st, 0, False, "OST"))
            else: late.append((st, "OST"))
            n += 1
    return q, late
def oepi_pre():
    return [f"s_mul_i32 s{sA}, s{sQB0}, {240*1024}", f"s_mul_i32 s{sB}, s{sHEAD}, {6*1024}", f"s_add_u32 s{sA}, s{sA}, s{sB}", f"s_add_u32 s{sA}, s{sA}, {OH_OFF}",
            f"s_add_u32 s{sB}, s{sA}, {240*1024}", f"s_add_u32 s{sC}, s{sA}, {480*1024}", f"s_add_u32 s{sD}, s{sA}, {720*1024}",
            f"v_lshlrev_b32 v{T1}, 4, v0", f"v_add_u32 v{T0}, 4096, v{T1}"]
def BA(nb, r): return (192 + 16 * nb if nb < 4 else 16 * (nb - 4)) + 4 * r
def bread(u, nb, e, h):
    d = WF + 8 * ((10 * u + nb) % 6) + 4 * e + 2 * h
    j = nb % 5
    return f"ds_read_b64_tr_b16 {vr(d,2)}, v{RA[2 * (nb // 5) + (j & 1)]} offset:{64*(j >> 1) + e*10240 + h*5120}"
ORDR = [(i, r) for r in (1, 2, 3, 0) for i in range(5)]
def xchg_reads(E, tr):
    for (i, r) in ORDR: E(f"ds_read_b128 {vr(tr(i, r))}, v3 offset:{1024*(4*i+r)}")
def xchg_sum(E, tr, PKS, so, emit):
    st = []; RING = 150
    for n, (i, r) in enumerate(ORDR):
        t = RING + 4 * (n & 1); x = tr(i, r)
        for k in range(4): E(f"v_accvgpr_read_b32 v{t+k}, a{BA(5+i, r)+k}")
        if n % 5 == 0 and emit: E(f"s_waitcnt lgkmcnt({15 - n})")
        for k in range(2): E(f"v_pk_add_f32 {vr(x+2*k,2)}, {vr(x+2*k,2)}, {vr(t+2*k,2)}")
        if r:
            for k in range(2): E(f"v_cvt_pk_bf16_f32 v{PKS+10*(r-1)+2*i+k}, v{x+2*k}, v{x+2*k+1}")
            if i == 4:
                p = PKS + 10 * (r - 1)
                ss = [f"buffer_store_dwordx4 {vr(p)}, v4, {sr(sWS)}, s{so[r]} offen sc1",
                      f"buffer_store_dwordx4 {vr(p+4)}, v4, {sr(sWS)}, s{so[r]} offen offset:1024 sc1",
                      f"buffer_store_dwordx2 {vr(p+8,2)}, v1, {sr(sWS)}, s{so[r]} offen sc1"]
                if emit:
                    for t_ in ss: E(t_)
                elif r <= opt["yin"]:
                    for t_ in ss: E(t_, "YST")
                else: st += [(t_, "YST") for t_ in ss]
    return st
def slot_scalars(off, so, cons):
    o = [f"s_mul_i32 s{sA}, s{sH}, {64*3072}", f"s_mul_i32 s{sE}, s{sW}, 3072", f"s_add_u32 s{sA}, s{sA}, s{sE}", f"s_add_u32 s{sA}, s{sA}, {off}",
         f"s_mul_i32 s{sE}, s{sSP}, {16*3072}", f"s_add_u32 s{cons}, s{sA}, s{sE}", f"s_mul_i32 s{sE}, s{sSP}, {4*3072}", f"s_add_u32 s{sA}, s{sA}, s{sE}"]
    for r in (1, 2, 3):
        d = so[r]
        o += [f"s_add_u32 s{d}, s{sSP}, {r}", f"s_and_b32 s{d}, s{d}, 3", f"s_mul_i32 s{d}, s{d}, {16*3072}", f"s_add_u32 s{d}, s{d}, s{sA}"]
    return o
def inbox_loads(cons, P0, tag):
    o = []
    for r in (1, 2, 3):
        p = P0 + 10 * (r - 1)
        o += [f"s_add_u32 s{sA}, s{sSP}, {r}", f"s_and_b32 s{sA}, s{sA}, 3", f"s_mul_i32 s{sA}, s{sA}, {4*3072}", f"s_add_u32 s{sA}, s{sA}, s{cons}"]
        o += [(f"buffer_load_dwordx4 {vr(p)}, v4, {sr(sWS)}, s{sA} offen sc1", tag), (f"buffer_load_dwordx4 {vr(p+4)}, v4, {sr(sWS)}, s{sA} offen offset:1024 sc1", tag),
              (f"buffer_load_dwordx2 {vr(p+8,2)}, v1, {sr(sWS)}, s{sA} offen sc1", tag)]
    return o
def merge(a, b):
    out = []; k = 0
    na = sum(1 for x in a if isinstance(x, tuple)); seen = 0
    for x in a:
        out.append(x)
        if isinstance(x, tuple):
            seen += 1
            while k < len(b) and (k + 1) * na <= seen * len(b) and " m0," not in out[-1][0]:
                out.append(b[k]); k += 1
    return out + b[k:]
def b_chunk(u, lst, wtags, otags, czero=False, after_barrier=None, first_gap=(), last_gap=(), fillq=None, nxt=True, lim=None, xw=False, af=None, puts=(), ph=None, inc=None, blocks=None):
    mf = []; ph = u if ph is None else ph
    for nb in range(10):
        for r in range(4):
            for n, e in enumerate(snk(2, r)):
                acc = ar(BA(nb, r))
                mf.append(Ins(f"{MF} {acc}, {vr(WF + 8*((10*ph+nb)%6) + 4*e)}, {vr(OB[u] + 4*(r*2+e))}, {'0' if czero and n == 0 else acc}"))
    G = Gaps(mf)
    for nb in range(7):
        n = 0
        for e in range(2):
            for h in range(2):
                G.place(8 * nb + 2 * n, bread(ph, nb + 3, e, h)); n += 1
    for nb in range(1, 10): G.put(8 * nb - 1, lgw(rs(WF + 8 * ((10 * ph + nb) % 6), 8)))
    gb = 62
    if nxt:
        G.put(gb, vmw(wtags, " lgkmcnt(0)")); G.put(gb, Ins("s_barrier"))
        if inc is None: inc = STB if u < 2 else -2 * STB
        for i, r in enumerate(RA): G.place((30 + 2 * i) if i < 2 else (gb - 6 + i), f"v_add_u32 v{r}, {inc & 0xffffffff}, v{r}")
        if after_barrier: G.place(gb + 1, after_barrier, "FLAG")
        n = 0
        for nb in range(3):
            for e in range(2):
                for h in range(2):
                    G.place(gb + 1 + n + n // 4, bread((ph + 1) % 3, nb, e, h)); n += 1
        G.put(79, lgw(rs(WF + 8 * ((10 * ((ph + 1) % 3)) % 6), 8)))
    if otags: G.put(78, vmw(otags))
    if af is not None:
        G.put(af, vmw({"OST"})); G.place(af, f"buffer_store_dwordx2 v[254:255], v{ZV}, {sr(sWS)}, s17 offen sc1", "FLAG")
    for (g_, t_, tag_) in puts: G.place(g_, t_, tag_)
    if xw:
        if opt["xws"]:
            for n in range(20):
                i, r = n >> 2, n & 3
                G.place(max(8 * i + 2 * r + 1 + 8, opt["xw0"] + (n * opt["xws"]) // 10) | 1, f"ds_write_b128 v2, {ar(BA(i, r))} offset:{1024*(4*i+r)}")
        else:
            for n, (i, r) in enumerate(ORDR): G.place(44 + (n * 7) // 4, f"ds_write_b128 v2, {ar(BA(i, r))} offset:{1024*(4*i+r)}")
    for t in first_gap: G.put(0, Ins(t))
    g = spread(G, lst, 1 if first_gap else 0, lim or (76 if otags else 60)) if lst else 70
    assert g <= 79, g
    for t in last_gap: G.place(g, t)
    if blocks: G.blk.update(blocks)
    if fillq is not None:
        G.cap = opt["dense"]
        left = G.fill(fillq, 0)
        return G.emit(), left
    return G.emit()

def gen():
    global problems
    A = Asm()
    A("s_cmp_ge_u32 s2, 256\ns_cbranch_scc1 L_done")
    A("s_load_dwordx16 s[76:91], s[0:1], 0\ns_load_dwordx8 s[92:99], s[0:1], 64\ns_load_dwordx2 s[100:101], s[0:1], 96")
    pX, pK, pV, pWQ, pWO, pW1, pB1, pW2, pB2, pOUT, pDBG, pWS = 76, 78, 80, 82, 84, 88, 90, 92, 94, 96, 98, 100
    A(f"s_memrealtime s[{sN0}:{sN1}]")
    if opt["stamp"]: A(f"s_memtime s[{sInc}:{sInc+1}]")
    if opt["pf"]:
        A(f"s_getpc_b64 s[{sA}:{sA+1}]\nL_pc:\ns_mov_b32 s{sD}, 32768\ns_bitcmp1_b32 s2, 0\ns_cselect_b32 s{sC}, L_fo-L_pc-{opt['foff']}, s{sD}\ns_bitcmp1_b32 s2, 3\ns_cselect_b32 s{sC}, s{sC}, 0\nv_lshlrev_b32 v98, 7, v0\nv_add_u32 v98, s{sC}, v98")
        A(f"global_load_dword v99, v98, s[{sA}:{sA+1}]")
    A("v_lshrrev_b32 v14, 6, v0\nv_and_b32 v0, 63, v0")
    A(f"v_readfirstlane_b32 s{sW}, v14")
    A(f"s_and_b32 s{sA}, s2, 7\ns_lshr_b32 s{sB}, s2, 3\ns_and_b32 s{sC}, s{sB}, 3\ns_lshl_b32 s{sA}, s{sA}, 2\ns_add_u32 s{sHEAD}, s{sA}, s{sC}")
    A(f"s_lshr_b32 s{sQT}, s{sB}, 2\ns_lshl_b32 s{sB}, s{sQT}, 4\ns_lshl_b32 s{sC}, s{sW}, 2\ns_add_u32 s{sQB0}, s{sB}, s{sC}")
    A(f"s_lshr_b32 s{sC}, s{sHEAD}, 1\ns_add_u32 s{sD}, s{sB}, s{sC}\ns_mul_i32 s{sE}, s{sD}, 20480")
    A("v_and_b32 v3, 15, v0\nv_lshrrev_b32 v4, 4, v0\nv_mul_u32_u24 v5, 1280, v3\nv_mul_u32_u24 v6, 320, v14\nv_lshlrev_b32 v7, 3, v4\nv_add3_u32 v5, v5, v6, v7")
    A("v_mov_b32 v96, 0\nv_mov_b32 v94, 0")
    A(f"s_or_b32 s{sKo}, s2, s{sW}")
    A("s_waitcnt lgkmcnt(0)")
    srd(A, sX, pX, 2621440)
    srd(A, sDBG, pDBG, 256)
    A(f"s_cmp_lg_u32 s{sKo}, 0\ns_cbranch_scc1 L_nonc")
    A(f"s_or_b32 s{sKo}, s{sN0}, 1\nv_mov_b32 v80, s{sKo}\nv_mov_b32 v81, s{sN1}")
    A(f"buffer_store_dwordx2 v[80:81], v96, {sr(sDBG)}, 0 offen sc1")
    A("L_nonc:")
    A(f"s_bitcmp1_b32 s{sHEAD}, 0\ns_cbranch_scc1 L_nox")
    for i in range(5):
        A(f"buffer_load_dwordx2 {vr(100+4*i,2)}, v5, {sr(sX)}, s{sE} offen offset:{64*i}", "LX")
        A(f"buffer_load_dwordx2 {vr(102+4*i,2)}, v5, {sr(sX)}, s{sE} offen offset:{64*i+32}", "LX")
    A("L_nox:")
    for j in range(3):
        A(f"v_add_u32 v82, {64*j}, v0\nv_mul_u32_u24 v83, 2731, v82\nv_lshrrev_b32 v83, 16, v83")
        A(f"v_mul_u32_u24 v97, 24, v83\nv_sub_u32 v82, v82, v97\nv_and_b32 v97, 6, v83\nv_xor_b32 v82, v82, v97\nv_lshlrev_b32 v82, 4, v82")
        A(f"v_mul_u32_u24 v97, 12288, v83\nv_add_u32 v97, v97, v82\nv_add_u32 v{DW[j]}, {(-1024*j) & 0xffffffff}, v97")
        A(f"v_mul_u32_u24 v97, 384, v83\nv_add_u32 v97, v97, v82\nv_add_u32 v{84+j}, {(128 - 1024*j) & 0xffffffff}, v97")
    A(f"v_lshrrev_b32 v83, 3, v0\nv_and_b32 v82, 7, v0\nv_and_b32 v97, 6, v83\nv_xor_b32 v82, v82, v97\nv_lshlrev_b32 v82, 4, v82\nv_mul_u32_u24 v97, 3072, v83\nv_add_u32 v{DW1}, v97, v82")
    A(f"s_mul_i32 s{sA}, s{sHEAD}, 384")
    A(f"s_add_u32 s{sWQ}, s{pWQ}, s{sA}\ns_addc_u32 s{sWQ+1}, s{pWQ+1}, 0\ns_and_b32 s{sWQ+1}, s{sWQ+1}, 0xffff\ns_sub_u32 s{sWQ+2}, {640*12288}, s{sA}\ns_mov_b32 s{sWQ+3}, 0x20000")
    A(f"s_lshr_b32 s{sF}, s{sHEAD}, 3\ns_lshl_b32 s{sF}, s{sF}, 2\ns_and_b32 s{sVo2}, s{sHEAD}, 3\ns_add_u32 s{sNeg}, s{sF}, s{sVo2}\ns_mul_i32 s{sF}, s{sNeg}, 192")
    A(f"s_and_b32 s{sVo2}, s2, 1\ns_lshl_b32 s{sVo2}, s{sVo2}, 7\ns_add_u32 s{sF}, s{sF}, s{sVo2}")
    A(f"s_add_u32 s{sW1}, s{pW1}, s{sF}\ns_addc_u32 s{sW1+1}, s{pW1+1}, 0\ns_and_b32 s{sW1+1}, s{sW1+1}, 0xffff\ns_sub_u32 s{sW1+2}, {640*3072}, s{sF}\ns_mov_b32 s{sW1+3}, 0x20000")
    A(f"s_mul_i32 s{sWb}, s{sW}, 6144")
    A(f"s_mul_i32 s{sA}, s{sW}, {16*12288}\ns_mul_i32 s{sB}, s{sW}, {16*3072}\ns_mul_i32 s{sC}, s{sQB0}, 20480\ns_lshl_b32 s{sM}, s{sW}, 11")
    XB = [SB, SB + 32, PB[0]]
    def wdma(ch):
        sl = ch % 3; o = []
        o.append(f"s_add_u32 m0, s{sWb}, {VRING + sl*STG}")
        o += [(f"buffer_load_dwordx4 v{DW[j]}, {sr(sWQ)}, s{sA} offen offset:{1024*j} lds", f"W{ch}") for j in range(3)]
        o.append(f"s_add_u32 s{sA}, s{sA}, {8*12288}")
        o.append(f"s_add_u32 m0, s{sWb}, {VRING + sl*STG + 3072}")
        o += [(f"buffer_load_dwordx4 v{DW[j]}, {sr(sWQ)}, s{sA} offen offset:{1024*j} lds", f"W{ch}") for j in range(3)]
        o.append(f"s_add_u32 s{sA}, s{sA}, {56*12288}")
        o.append(f"s_add_u32 m0, s{sM}, {W1RING + sl*8192}")
        o.append((f"buffer_load_dwordx4 v{DW1}, {sr(sW1)}, s{sB} offen lds", f"W{ch}"))
        o.append(f"s_add_u32 s{sB}, s{sB}, {8*3072 - 1024}")
        o.append((f"buffer_load_dwordx4 v{DW1}, {sr(sW1)}, s{sB} offen offset:1024 lds", f"W{ch}"))
        o.append(f"s_add_u32 s{sB}, s{sB}, {56*3072 + 1024}")
        return o
    def xload(ch):
        o = [(f"buffer_load_dwordx4 {vr(XB[ch%3] + 4*(qb*2+e))}, v{XV[qb]}, {sr(sWS)}, s{sC} offen offset:{1024*e} sc1", f"X{ch}") for qb in range(4) for e in range(2)]
        o.append(f"s_add_u32 s{sC}, s{sC}, 2048")
        return o
    def kvdma(srd_, slotbase, t, tag):
        o = []
        for hf in range(2):
            o.append(f"s_add_u32 s{sKo2}, s{sWb}, {t*STG + 3072*hf}")
            o.append(f"s_add_u32 m0, s{sWb}, {slotbase + 3072*hf}")
            o += [(f"buffer_load_dwordx4 v{DSR[j]}, {sr(srd_)}, s{sKo2} offen offset:{1024*j} lds", tag) for j in range(3)]
        return o
    straight(A, wdma(0))
    srd(A, sB1, pB1, 3072)
    BL = [88, 90, 92, 124]
    for ct in range(4): A(f"buffer_load_dwordx2 {vr(BL[ct], 2)}, v7, {sr(sB1)}, s{sF} offen offset:{32*ct}", "B1")
    straight(A, wdma(1))
    A(f"s_mul_i32 s{sKo}, s{sHEAD}, 786432")
    for (d, lo) in ((sK, pK), (sV, pV)):
        A(f"s_add_u32 s{d}, s{lo}, s{sKo}\ns_addc_u32 s{d+1}, s{lo+1}, 0\ns_sub_u32 s{d}, s{d}, 128\ns_subb_u32 s{d+1}, s{d+1}, 0\ns_and_b32 s{d+1}, s{d+1}, 0xffff")
        A(f"s_mov_b32 s{d+2}, {786432 + 128}\ns_mov_b32 s{d+3}, 0x20000")
    srd(A, sWS, pWS, WS_SZ)
    srd(A, sOUT, pOUT, 2621440)
    srd(A, sB2, pB2, 1280)
    srd(A, sWO, pWO, 6144 * 1280)
    srd(A, sW2, pW2, 1536 * 1280)
    if opt["stamp"]:
        A(f"s_mov_b32 s78, s{sN0}\ns_mov_b32 s79, s{sInc}"); NST[0] = 1
        if opt["xid"]: A("s_getreg_b32 s79, hwreg(HW_REG_XCC_ID)")
    A(f"s_and_b32 s{sSP}, s2, 3\ns_bfe_u32 s{sKo}, s2, 0x10002\ns_lshl_b32 s{sKo}, s{sKo}, 3\ns_bfe_u32 s{sMT}, s2, 0x30003\ns_add_u32 s{sMT}, s{sMT}, s{sKo}\ns_lshr_b32 s{sNT}, s2, 6")
    A(f"s_lshr_b32 s{sKH}, s{sW}, 1\ns_and_b32 s{sQH}, s{sW}, 1")
    A(f"s_lshl_b32 s{sVo}, s{sQT}, 7\ns_add_u32 s{sVo}, s{sVo}, {LF_OFF}")
    A(f"s_bitcmp1_b32 s{sHEAD}, 0\ns_cbranch_scc1 L_noln")
    A(f"v_lshlrev_b32 v8, 6, v3\nv_add_u32 v8, {LDS_LN}, v8\nv_lshl_add_u32 v9, v14, 2, v4\nv_lshl_add_u32 v9, v9, 2, v8")
    A("v_mul_u32_u24 v10, 5120, v14\nv_lshl_add_u32 v10, v0, 4, v10")
    A(f"s_mov_b32 s{sKo}, 0x3f803f80\ns_mov_b32 s{sKo2}, 0x3f80\ns_mov_b32 s{sSlot}, 0x3f800000")
    A("s_waitcnt vmcnt(20)")
    A(f"v_dot2_f32_bf16 v11, v100, s{sKo}, 0\nv_dot2_f32_bf16 v12, v101, s{sKo}, 0")
    for i in range(2, 20): A(f"v_dot2_f32_bf16 v{11+(i&1)}, v{100+i}, s{sKo}, v{11+(i&1)}")
    A("s_nop 2\nv_add_f32 v11, v11, v12")
    def xsum(off):
        A(f"ds_write_b32 v9, v11 offset:{off}\ns_waitcnt lgkmcnt(0)\ns_barrier")
        for i in range(4): A(f"ds_read_b128 {vr(16+4*i)}, v8 offset:{off+16*i}")
        A("s_waitcnt lgkmcnt(0)")
        for i in range(4): A(f"v_pk_add_f32 {vr(16+2*i,2)}, {vr(16+2*i,2)}, {vr(24+2*i,2)}")
        for i in range(2): A(f"v_pk_add_f32 {vr(16+2*i,2)}, {vr(16+2*i,2)}, {vr(20+2*i,2)}")
        A("v_pk_add_f32 v[16:17], v[16:17], v[18:19]\nv_add_f32 v16, v16, v17")
    xsum(0)
    A(f"v_mul_f32 v13, {fh(-1/640)}, v16")
    for i in range(20): A(f"v_dot2_f32_bf16 v{40+2*i}, v{100+i}, s{sKo2}, v13\nv_dot2_f32_bf16 v{41+2*i}, v{100+i}, s{sSlot}, v13")
    A("v_pk_mul_f32 v[36:37], v[40:41], v[40:41]\nv_pk_mul_f32 v[38:39], v[42:43], v[42:43]")
    for i in range(2, 20): A(f"v_pk_fma_f32 {vr(36+2*(i&1),2)}, {vr(40+2*i,2)}, {vr(40+2*i,2)}, {vr(36+2*(i&1),2)}")
    A("v_pk_add_f32 v[36:37], v[36:37], v[38:39]\nv_add_f32 v11, v36, v37")
    xsum(1024)
    A(f"v_mov_b32 v12, {fh(1e-5)}\nv_fmac_f32 v12, {fh(1/640)}, v16\nv_rsq_f32 v12, v12\ns_nop 0\nv_mul_f32 v12, {fh(CSC)}, v12")
    for i in range(5):
        for k in range(4): A(f"v_pk_mul_f32 {vr(40+8*i+2*k,2)}, {vr(40+8*i+2*k,2)}, v[12:13] op_sel_hi:[1,0]")
        for k in range(4): A(f"v_cvt_pk_bf16_f32 v{16+4*i+k}, v{40+8*i+2*k}, v{41+8*i+2*k}")
        if i == 4: A(f"s_add_u32 s{sE}, s{sE}, 4096")
        A(f"buffer_store_dwordx4 {vr(16+4*i)}, v10, {sr(sWS)}, s{sE} offen offset:{1024*i if i < 4 else 0} sc1")
    A(f"s_cmp_lg_u32 s{sW}, 0\ns_cbranch_scc1 L_ln2")
    A(f"buffer_load_dwordx2 v[94:95], v96, {sr(sDBG)}, 0 offen sc1")
    A("L_ln2:")
    A("s_waitcnt vmcnt(0)\ns_barrier")
    A("L_noln:")
    A(f"s_cmp_lg_u32 s{sW}, 0\ns_cbranch_scc1 L_w0a")
    A(f"v_mov_b32 v{T0}, v94\nv_mov_b32 v{T1}, v95\ns_nop 0")
    def cond_non():
        A(f"v_readfirstlane_b32 s{sN0}, v{T0}\nv_readfirstlane_b32 s{sN1}, v{T1}\ns_nop 0\ns_cmp_eq_u32 s{sN0}, 0")
    poll(A, "L_pnon", 96, sDBG, "0", cond_non, sleep=8, precheck=True)
    A(f"s_bitcmp1_b32 s{sHEAD}, 0\ns_cbranch_scc1 L_w0a")
    A(f"s_lshl_b32 s{sKo}, s{sHEAD}, 2\ns_add_u32 s{sKo}, s{sKo}, s{sVo}")
    A(f"buffer_store_dwordx2 {vr(T0,2)}, v96, {sr(sWS)}, s{sKo} offen sc1")
    A("L_w0a:")
    stamp(A, 1)
    for j in range(3): A(f"v_mov_b32 v{DSR[j]}, v{84+j}")
    for qb in range(4): A(f"v_lshlrev_b32 v17, 4, v0\nv_add_u32 v{XV[qb]}, {XS_OFF + qb*20480}, v17")
    A("v_lshrrev_b32 v16, 2, v0\nv_and_b32 v17, 6, v16\nv_and_b32 v18, 3, v0")
    A("v_lshrrev_b32 v19, 1, v18\nv_and_b32 v20, 1, v18\nv_lshlrev_b32 v20, 3, v20")
    A(f"v_mul_u32_u24 v21, 384, v16\nv_add_u32 v21, {VRING}, v21")
    for m in range(4):
        A(f"v_add_u32 v22, {2*m}, v19\nv_xor_b32 v22, v22, v17\nv_lshlrev_b32 v22, 4, v22\nv_add3_u32 v{VA[m]}, v21, v22, v20\nv_add_u32 v{VA[m]}, {STG}, v{VA[m]}")
    for e in range(2):
        A(f"v_add_u32 v22, {4*e}, v18\nv_xor_b32 v22, v22, v17\nv_lshlrev_b32 v22, 4, v22\nv_add_u32 v{WA[e]}, v21, v22\nv_add_u32 v{WA2[e]}, {2*STG}, v{WA[e]}")
    A(f"v_lshlrev_b32 v21, 7, v16\nv_add_u32 v21, {W1RING}, v21")
    for ct in range(4):
        A(f"v_add_u32 v22, {2*ct}, v19\nv_xor_b32 v22, v22, v17\nv_lshlrev_b32 v22, 4, v22\nv_add3_u32 v{W1A[ct]}, v21, v22, v20")
    A("v_and_b32 v16, 15, v0\nv_and_b32 v17, 6, v16\nv_lshrrev_b32 v18, 4, v0\nv_mul_u32_u24 v21, 384, v16")
    for e in range(2):
        A(f"v_add_u32 v22, {4*e}, v18\nv_xor_b32 v22, v22, v17\nv_lshlrev_b32 v22, 4, v22\nv_add_u32 v{KA[e]}, v21, v22")
    A(f"v_lshlrev_b32 v40, 3, v16\nv_mov_b32 v41, {LDS_FL}")
    HACC = {12: PB[1], 13: PB[1] + 16, 14: NREF, 15: QV + 16}
    A("s_waitcnt vmcnt(0)")
    if opt["wqpf"]:
        sPFa = sSlot
        A(f"s_movk_i32 s{sPFa}, {12288-384}\ns_bitcmp1_b32 s{sHEAD}, 0\ns_cbranch_scc0 L_nopf")
        A(f"s_lshl_b32 s{sKo}, s{sQT}, 2\ns_add_u32 s{sKo}, s{sKo}, s{sW}\ns_lshl_b32 s{sKo}, s{sKo}, 4\ns_add_u32 s{sKo}, s{sKo}, 127")
        A(f"s_mul_i32 s{sKo2}, s{sKo}, 3072\ns_mul_i32 s{sKo}, s{sKo}, 12288")
        A(f"v_lshrrev_b32 v120, 2, v0\nv_and_b32 v121, 3, v0\nv_min_u32 v121, 2, v121\nv_lshlrev_b32 v121, 7, v121\nv_mul_u32_u24 v122, 12288, v120\nv_add3_u32 v122, v122, v121, s{sPFa}")
        A(f"v_bfe_u32 v121, v0, 1, 1\nv_mul_u32_u24 v121, 192, v121\nv_mul_u32_u24 v123, 3072, v120\nv_add_u32 v123, v123, v121\nv_and_b32 v121, 1, v0\nv_mul_u32_u24 v121, 124, v121\nv_add_u32 v123, v123, v121\nv_add_u32 v123, {3072-192}, v123")
        A(f"buffer_load_dword v121, v122, {sr(sWQ)}, s{sKo} offen\nbuffer_load_dword v121, v122, {sr(sWQ)}, s{sKo} offen offset:384\nbuffer_load_dword v121, v123, {sr(sW1)}, s{sKo2} offen")
        A("L_nopf:")
    for ct in range(4):
        h = HACC[12 + ct]
        for r in range(2):
            A(f"v_lshlrev_b32 v{h+2*r}, 16, v{BL[ct]+r}\nv_and_b32 v{h+2*r+1}, 0xffff0000, v{BL[ct]+r}")
        for r in range(4): A(f"v_mul_f32 v{h+r}, {fh(CSC)}, v{h+r}")
        for qb in range(1, 4):
            for r in range(4): A(f"v_mov_b32 v{h+4*qb+r}, v{h+r}")
    A(f"s_cmp_lg_u32 s{sW}, 0\ns_cbranch_scc1 L_w0b")
    A(f"s_mov_b32 s{sKo}, s{sA}\ns_mov_b32 s{sKo2}, s{sB}")
    poll(A, "L_pln", 40, sWS, f"s{sVo}", cond_nonce(A, "0xffff"), sleep=opt["lns"])
    A(f"s_mov_b32 s{sA}, s{sKo}\ns_mov_b32 s{sB}, s{sKo2}")
    A(f"v_mov_b32 v42, s{sN0}\nv_mov_b32 v43, s{sN1}\nds_write_b64 v41, v[42:43]\ns_waitcnt lgkmcnt(0)")
    A("L_w0b:")
    A("s_barrier")
    stamp(A, 2)
    straight(A, xload(0) + xload(1))
    A("ds_read_b64 v[42:43], v41")
    def front(A, NH, sfx):
        NT = 12 + NH; CH = 8 * NT; OFF = (5 - (10 * NT - 1)) % 6
        order = [list(range(NT))] * 9 + [([14, 15, 12, 13] if NH == 4 else [12, 13]) + list(range(12))]
        def wread(ch, pos, e, h):
            ct = order[ch][pos]
            n = NT * ch + pos + OFF; d = KV + 8 * (n % 6) + 4 * e + 2 * h; sl = ch % 3
            if ct < 12:
                ks, p = ct >> 1, ct & 1
                a, o = (WA[ks & 1], sl * STG) if sl < 2 else (WA2[ks & 1], 0)
                return f"ds_read_b64_tr_b16 {vr(d,2)}, v{a} offset:{o + (ks >> 1)*128 + 8*p + e*12288 + h*6144}"
            return f"ds_read_b64_tr_b16 {vr(d,2)}, v{W1A[ct-12]} offset:{sl*8192 + e*4096 + h*2048}"
        mf = []
        for ch in range(10):
            for pos in range(NT):
                ct = order[ch][pos]; n = NT * ch + pos + OFF
                for qb in range(4):
                    for i_, e in enumerate(snk(2, qb)):
                        acc = ar(4 * (ct * 4 + qb)) if ct < 12 else vr(HACC[ct] + 4 * qb)
                        c = "0" if (ch == 0 and i_ == 0 and ct < 12) else acc
                        mf.append(Ins(f"{MF} {acc}, {vr(KV + 8*(n%6) + 4*e)}, {vr(XB[ch%3] + 4*(qb*2+e))}, {c}"))
        G = Gaps(mf)
        for pos in range(3):
            for e in range(2):
                for h in range(2): A(wread(0, pos, e, h))
        A.l.append(lgw(rs(KV + 8 * (OFF % 6), 8)))
        A(f"v_readfirstlane_b32 s{sN0}, v42\nv_readfirstlane_b32 s{sN1}, v43")
        A.l.append(vmw({"X0"}))
        stamp(A, 3); zst(A, 6, 1)
        if opt["zoom"] == 6:
            for ch in range(10):
                Z = Asm(); zst(Z, 6, 2 + ch); G.blk[CH * ch + CH - 1] = Z.l
        late_fill = []
        for ch in range(10):
            b = CH * ch
            for pos in range(NT - 3):
                n = 0
                for e in range(2):
                    for h in range(2):
                        G.place(b + 8 * pos + (2 * n if ch < 9 else 4 * (n >> 1)), wread(ch, pos + 3, e, h)); n += 1
            gb = b + CH - 18
            G.put(gb, vmw({f"W{ch+1}"} if ch < 9 else {"K0", "V0"}, " lgkmcnt(0)")); G.put(gb, Ins("s_barrier"))
            if ch < 9:
                n = 0
                for pos in range(3):
                    for e in range(2):
                        for h in range(2):
                            G.place(gb + 1 + n + n // 4, wread(ch + 1, pos, e, h)); n += 1
                G.put(b + CH - 2, vmw({f"X{ch+1}"}))
            else:
                for ks in range(6): G.place(gb + 1 + 2 * ks, kread(0, 0, ks))
            for pos in range(NT):
                n = NT * ch + pos + OFF
                if b + 8 * pos - 1 >= 0: G.put(b + 8 * pos - 1, lgw(rs(KV + 8 * (n % 6), 8)))
            ke = opt["kearly"]
            if ch + 2 < 10:
                lst = wdma(ch + 2) + xload(ch + 2)
                if ke == 1 and ch in (6, 7): lst += kvdma(sK, KRING + (ch - 6) * STG, ch - 6, f"K{ch-6}")
                if ke == 2 and ch in (4, 5, 6, 7): lst += kvdma(sK, KRING + ((ch - 4) >> 1) * STG, (ch - 4) >> 1, f"K{(ch-4)>>1}")[5 * (ch & 1): 5 * (ch & 1) + 5]
            elif ch == 8: lst = ([] if ke else kvdma(sK, KRING, 0, "K0")) + kvdma(sV, VRING + STG, 0, "V0")
            else: lst = ([] if ke else kvdma(sK, KRING + STG, 1, "K1")) + kvdma(sV, VRING + 2 * STG, 1, "V1")
            if ch == opt["kvw"] and ch:
                q_ = [f"s_lshr_b32 s{sE}, s{sQB0}, 2", f"s_mul_i32 s{sKo}, s{sE}, 2304", f"s_mul_i32 s{sE}, s{sE}, 1536", "v_lshlrev_b32 v60, 7, v0", "v_add_u32 v60, 128, v60",
                      f"v_min_u32 v61, {128 + 17*128}, v60", f"v_min_u32 v60, {128 + 11*128}, v60",
                      (f"buffer_load_dword v62, v61, {sr(sK)}, s{sKo} offen", 0, False, "PF"), (f"buffer_load_dword v62, v60, {sr(sV)}, s{sE} offen", b + 40, False, "PF")]
                late_fill.append((q_, b + 2))
            g = spread(G, lst, b, b + (CH - 3 if ch < 9 else CH - 20))
            assert g <= b + CH, g
        if opt["pfm"]:
            b_ = CH * opt["pfm"]
            G.blk[b_ + 3] = [Ins(t) for t in ("s_getpc_b64 s[34:35]", f"L_pc3{sfx}:", f"s_bfe_u32 s{sE}, s2, 0x10003", f"s_lshl_b32 s{sE}, s{sE}, 2", f"s_add_u32 s{sE}, s{sE}, s{sW}",
                             f"s_min_u32 s{sE}, s{sE}, 4", f"s_lshl_b32 s{sE}, s{sE}, 13", f"s_add_u32 s{sKo}, s{sE}, L_mid{sfx}-L_pc3{sfx}", f"s_add_u32 s{sE}, s{sE}, L_common-L_pc3{sfx}-8192", f"s_cmp_eq_u32 s{sKo}, L_mid{sfx}-L_pc3{sfx}",
                             f"s_cselect_b32 s{sE}, s{sKo}, s{sE}", f"s_ashr_i32 s{sKo}, s{sE}, 31", f"s_add_u32 s34, s34, s{sE}", f"s_addc_u32 s35, s35, s{sKo}")]
            late_fill.append((["v_lshlrev_b32 v47, 7, v0", ("global_load_dword v47, v47, s[34:35]", b_ + 9, False, "PF")], b_ + 5))
        for q_, g_ in late_fill: assert not G.fill(q_, g_)
        b = 9 * CH
        spread(G, kvdma(sK, KRING + 2 * STG, 2, "K2"), b + CH - 17, b + CH - 1)
        k0 = -2.0 * LOG2E * math.sqrt(2.0 / math.pi) / CSC; k1 = k0 * 0.044715 / (CSC * CSC)
        HS = {12: sVo2, 14: sVo}
        pre = [f"s_mov_b32 s{sA}, {fh(CSC)}", f"s_mov_b32 s{sB}, {fh(k1)}", f"s_mul_i32 s{sC}, s{sQB0}, {240*1024}", f"s_add_u32 s{sC}, s{sC}, {OH_OFF + (192 if NH == 4 else 194)*1024}",
               f"s_mul_i32 s{sD}, s{sNeg}, 3072", f"s_add_u32 s{sVo2}, s{sC}, s{sD}", f"s_add_u32 s{sVo}, s{sVo2}, 1024"]
        pre += [f"s_lshl_b32 s{sFL}, s{sMT}, 1", f"s_add_u32 s{sFL}, s{sFL}, s{sQH}", f"s_lshl_b32 s{sFL}, s{sFL}, 8", f"s_add_u32 s{sG}, s{sFL}, {HF_OFF}",
                f"s_lshl_b32 s{sE}, s{sSP}, 1", f"s_add_u32 s{sE}, s{sE}, s{sKH}", f"s_lshl_b32 s{sE}, s{sE}, 2", f"s_lshl_b32 s{sMSK}, 15, s{sE}",
                f"s_lshl_b32 s{sE}, s{sSP}, 3", f"s_lshl_b32 s{sD}, s{sKH}, 1", f"s_add_u32 s{sE}, s{sE}, s{sD}", f"s_lshl_b32 s{sSlot}, 0x33, s{sE}",
                f"s_lshl_b32 s{sE}, s{sQB0}, 6", f"s_and_b32 s{sE}, s{sE}, 0xffffff00", f"s_lshl_b32 s{sD}, s{sHEAD}, 3", f"s_add_u32 s{sQT}, s{sE}, s{sD}"]
        g = b - CH + 2
        for t in pre: g = G.place(g, t) + 1
        assert g < b
        G.place(b - 30, f"v_mov_b32 v{T0}, {fh(k0)}"); G.place(b - 26, "v_lshlrev_b32 v10, 4, v0")
        def gelu_q(ct, tmp):
            q = []
            for qb in range(4):
                y = tmp + 8 * (qb & 1); pk = y + 4; so_ = (sE, sF)[qb & 1]
                ad = (f"s_add_u32 s{so_}, s{HS[ct]}, {qb*240*1024}", 0, False, None)
                st = [ad, (f"buffer_store_dwordx4 {vr(pk)}, v10, {sr(sWS)}, s{so_} offen sc1", 0, False, "H")]
                q.append(tuple(f(HACC[ct] + 4 * qb, y, pk, []) + f(HACC[ct + 1] + 4 * qb, y, pk + 2, st) for f in (gelu_ops, gelu_pk)))
            return q
        g14 = gelu_q(14 if NH == 4 else 12, XB[1])
        def two_streams(G, tiles, g0, e0, partial=False, carry=False):
            import copy
            best = None
            for nfit in range(len(tiles), -1, -1):
                G2 = copy.deepcopy(G); ok = True
                for par in range(2):
                    q_ = [x for t_ in tiles[par:nfit:2] for x in t_[0]]
                    if q_: q_[0] = (q_[0][0], e0, False, None)
                    if G2.fill(q_, g0): ok = False
                if ok: break
            part = []
            np_ = nfit + 1 if (partial and nfit < len(tiles)) else nfit
            for par in ((nfit + 1) & 1, nfit & 1):
                q_ = [x for t_ in tiles[par:np_:2] for x in t_[0]]
                if q_: q_[0] = (q_[0][0], e0, False, None)
                part += G.fill(q_, g0)
            print("gelu tiles hidden:", nfit, "of", len(tiles), "partial left", len(part), file=sys.stderr)
            if carry: return nfit
            return part + [x for t_ in tiles[np_:] for x in t_[1 if opt["pk"] else 0]]
        if NH == 4: left14 = two_streams(G, g14, b, b + 20, partial=True); ndone = 0
        else: left14 = []; ndone = two_streams(G, g14, b, b + 20, carry=True)
        q = []
        n = 0
        for ks in range(6):
            for qb in range(4):
                f = qb * 6 + ks; x = PB[0] + 16 * (n & 1); n += 1
                e = b + 8 * NH + 16 * ks + 8 + 2 * qb + 1 + 5
                for p in range(2):
                    for r in range(4): q.append((f"v_accvgpr_read_b32 v{x+4*p+r}, a{4*((2*ks+p)*4+qb)+r}", e, False, None))
                d = (x + 8) if f < 16 else QV + 4 * (f - 16)
                for i in range(4): q.append((f"v_cvt_pk_bf16_f32 v{d+i}, v{x+2*i}, v{x+2*i+1}", 0, False, None))
                if f < 16:
                    for i in range(4): q.append((f"v_accvgpr_write_b32 a{192+4*f+i}, v{d+i}", 0, False, None))
        left = left14 + G.fill(q, b)
        print("Q conversion ops exposed:", len(left) - len(left14), file=sys.stderr)
        A.ext(G.emit())
        A(f"L_mid{sfx}:")
        stamp(A, 4); zst(A, 5, 1)
        A("s_nop 7")
        straight(A, left)
        zst(A, 5, 2)
        for i in range(4): A(f"ds_read_b64 {vr(244+2*i,2)}, v{VA[i]} offset:{6144*i}")
        A.l.append(lgw(rs(244, 8)))
        for i in range(8): A(f"v_and_b32 v{244+i}, 0x7fff7fff, v{244+i}")
        for i in range(4): A(f"v_pk_max_u16 v{244+i}, v{244+i}, v{248+i}")
        A("v_pk_max_u16 v244, v244, v245\nv_pk_max_u16 v246, v246, v247\nv_pk_max_u16 v244, v244, v246\nv_lshlrev_b32 v245, 16, v244\nv_max_u32 v244, v244, v245")
        A(f"v_cmp_le_u32 vcc, {fh(2.0**-6)}, v244\ns_mov_b32 s{sBI}, {fh(-BIAS_LO)}\ns_mov_b32 s{sLM}, {fh(2.0**(112-BIAS_LO))}\ns_cmp_lg_u64 vcc, 0")
        A(f"s_cselect_b32 s{sBI}, {fh(-BIAS)}, s{sBI}\ns_cselect_b32 s{sLM}, {fh(2.0**(112-BIAS))}, s{sLM}")
        zst(A, 5, 3)
        G = Gaps(qk_mfmas(set())); qk_reads(G, 0, vpre=False)
        gq = gelu_q(12, 240)[ndone:]
        for kb in range(4):
            mq = []
            for qb in range(4):
                m = NREF + 4 * qb; s_ = S(kb, qb); e = 6 * (4 * kb + qb) + 5 + 8
                if kb == 0: mq += [(f"v_max3_f32 v{m}, v{s_}, v{s_+1}, v{s_+2}", e, False, None), (f"v_max_f32 v{m}, v{m}, v{s_+3}", e, False, None)]
                else: mq += [(f"v_max3_f32 v{m}, v{m}, v{s_}, v{s_+1}", e, False, None), (f"v_max3_f32 v{m}, v{m}, v{s_+2}, v{s_+3}", e, False, None)]
            mleft = G.fill(mq, 0)
            assert kb == 3 or not mleft
        left = two_streams(G, gq, 0, 0, partial=True)
        A.ext(G.emit())
        zst(A, 5, 4)
        A.l.append(vmw({"K1"})); A("s_barrier")
        zst(A, 5, 5)
        for r in KA: A(f"v_add_u32 v{r}, {STG}, v{r}")
        A("s_nop 4")
        for ks in range(6): A(kread(0, 0, ks))
        straight(A, mleft)
        for sw in ("v_permlane32_swap_b32", "v_permlane16_swap_b32"):
            for qb in range(4): A(f"v_mov_b32 v{NREF+4*qb+1}, v{NREF+4*qb}")
            for qb in range(4): A(f"{sw} v{NREF+4*qb}, v{NREF+4*qb+1}")
            for qb in range(4): A(f"v_max_f32 v{NREF+4*qb}, v{NREF+4*qb}, v{NREF+4*qb+1}")
        for qb in range(4): A(f"v_sub_f32 v{NREF+4*qb}, s{sBI}, v{NREF+4*qb}")
        for qb in range(4):
            for r in range(1, 4): A(f"v_mov_b32 v{NREF+4*qb+r}, v{NREF+4*qb}")
        zst(A, 5, 6)
        straight(A, left)
        zst(A, 5, 7)
    head_ = list(A.l)
    FE = Asm(); front(FE, 4, "e"); FO = Asm(); front(FO, 2, "o")
    tr_o = head_ + FO.l; auto_vm(tr_o); auto_lgkm(tr_o)
    A("s_bitcmp1_b32 s2, 0\ns_cbranch_scc1 L_fo")
    A.ext(FE.l)
    A("L_common:")
    k_common = len(A.l)
    sm = sm_ops(0)
    L2 = 240
    for i in range(17):
        kb, qb = (i >> 2) & 3, i & 3
        if i < 16:
            for k in range(2): A(f"v_pk_add_f32 {vr(S(kb,qb)+2*k,2)}, {vr(S(kb,qb)+2*k,2)}, {vr(NREF+4*qb,2)}")
            for t in sm[i][0]: A(t)
        else: A("s_nop 0")
        if i > 0:
            j = i - 1; s_ = S(j >> 2, j & 3); l_ = L2 + 2 * (j & 3)
            if j < 4: A(f"v_pk_add_f32 {vr(l_,2)}, {vr(s_,2)}, {vr(s_+2,2)}")
            else:
                for k in range(2): A(f"v_pk_add_f32 {vr(l_,2)}, {vr(l_,2)}, {vr(s_+2*k,2)}")
            for t in sm[j][2]: A(t)
    for qb in range(4): A(f"v_add_f32 v{LS[qb]}, v{L2+2*qb}, v{L2+2*qb+1}")
    A(f"s_add_u32 s{sKo}, s{sWb}, {3*STG}\ns_mov_b32 s{sCnt}, 5")
    A(f"s_add_u32 s{sE}, s{sQT}, {HF_OFF}")
    A(f"v_mov_b32 v{T0}, s{sN0}\nv_mov_b32 v{T1}, s{sN1}")
    bp, bq = b_addr_ops()
    for t in bp: A(t)
    stamp(A, 5); zst(A, 5, 8); zst(A, 7, 1)
    A("s_waitcnt lgkmcnt(0)")
    Gf = gen_step(0, 0, first=True)
    Gf.place(177, f"buffer_store_dwordx2 {vr(T0,2)}, v{ZV}, {sr(sWS)}, s{sE} offen sc1")
    assert not Gf.fill(bq, 0, 192)
    sf = Gf.emit()
    A(f"s_getpc_b64 s[16:17]\nL_pc2:\ns_lshr_b32 s19, s2, 3\ns_lshl_b32 s19, s19, 2\ns_add_u32 s19, s19, s{sW}\ns_lshl_b32 s18, s{sW}, 13")
    A("s_add_u32 s18, s18, L_tail-L_pc2\ns_add_u32 s16, s16, s18\ns_addc_u32 s17, s17, 0")
    A(f"s_mul_i32 s18, s19, 15360\ns_mul_i32 s24, s{sSP}, {1536*1280}\ns_add_u32 s18, s18, s24\ns_add_u32 s26, s18, 8192")
    A(f"s_mul_i32 s19, s19, 3840\ns_mul_i32 s24, s{sSP}, {384*1280}\ns_add_u32 s19, s19, s24\ns_brev_b32 s27, 1")
    ex = {1: [(179, f"buffer_load_dword v254, v{PFV}, {sr(sWO)}, s24 offen")], 2: [(179, f"buffer_load_dword v254, v{PFV}, {sr(sWO)}, s24 offen")],
          3: [(179, f"buffer_load_dword v254, v{PFV}, {sr(sW2)}, s24 offen")], 4: [(179, f"global_load_dword v254, v{PFV}, s[16:17]")],
          }
    for k in (0, 3): ex.setdefault(k, []).append((183, f"buffer_store_dwordx4 v[246:249], v245, {sr(sWS)}, s34 offen sc1"))
    st = []
    for k in range(6):
        Gk = gen_step((k + 1) & 1, (k + 1) % 3, extra=ex.get(k, []))
        if k in (1, 2, 3): Gk.place2(150, f"s_cmp_eq_u32 s{sCnt}, 0", f"s_cselect_b32 s24, s{(0, 18, 26, 19)[k]}, s27")
        if k in (1, 4): Gk.place(20, "s_add_u32 s34, s34, 1024")
        if k == 0: Gk.place(186, f"s_sub_u32 s{sCnt}, s{sCnt}, 1")
        if k == 4: Gk.place(186, f"s_cmp_eq_u32 s{sCnt}, 0")
        st.append(Gk.emit())
    pro = list(A.l)
    auto_vm(pro); auto_lgkm(pro)
    auto_lgkm(sf)
    for k in range(6): auto_lgkm(st[k], pre=st[k - 1])
    s0 = st[4]; s1 = [x for k in range(4) for x in st[k]]
    A.ext(sf)
    zst(A, 7, 2)
    A(".p2align 6\nL_loop:")
    A.ext(s1); A.ext(s0)
    if opt["zoom"] == 7: A(f"s_mov_b32 m0, s{sCnt}\ns_memrealtime vcc\ns_waitcnt lgkmcnt(0)\nv_writelane_b32 v245, vcc_lo, m0\ns_memtime vcc\ns_waitcnt lgkmcnt(0)\nv_writelane_b32 v246, vcc_lo, m0")
    A("s_cbranch_scc1 L_tail"); A.ext(st[5]); A("s_branch L_loop")
    OOL = Asm()
    w01 = b_wdma(sW2, "W0", 0) + b_wdma(sW2, "W1", STB)
    ra = [t.replace(f"v_cndmask_b32 v{RA[2]},", "v_cndmask_b32 v254,").replace(f"v_cndmask_b32 v{RA[3]},", "v_cndmask_b32 v255,") for t in b_ra_ops()]
    ra = [t for t in ra if t != "s_nop 0"]
    b_ra_fin = [f"v_mov_b32 v{RA[2]}, v254", f"v_mov_b32 v{RA[3]}, v255", f"v_mov_b32 v254, s{sN0}", f"v_mov_b32 v255, s{sN1}"]
    post = []
    def last(G):
        B = 96
        G.place(2, f"buffer_load_dwordx2 {vr(T0,2)}, v{FLV}, {sr(sWS)}, s{sG} offen sc1")
        g = 4
        for t in b_scalars(): g = G.place(g, t) + (1 if t.startswith("v_") else 0)
        assert g < 90
        G.put(92, Ins("s_waitcnt vmcnt(0)")); G.put(92, Ins("s_barrier"))
        X_ = Asm(); cond_nonce(X_, f"s{sSlot}")(); X_("s_cbranch_scc1 L_o1\nL_o1_r:"); G.blk[94] = X_.l
        OOL("L_o1:"); poll(OOL, "L_ph", FLV, sWS, f"s{sG}", cond_nonce(OOL, f"s{sSlot}"), sleep=8); OOL("s_branch L_o1_r")
        for i, r in enumerate(VA): G.place(B + 72 + i, f"v_add_u32 v{r}, {STG}, v{r}")
        n = 0
        for db in range(3):
            for e in range(2):
                for h in range(2):
                    G.place(B + 77 + (3 * n) // 2, vread(db, e, h)); n += 1
        spread(G, w01, B, B + 92)
        post.append(G)
    Gl = gen_step(0, 0, last=last)
    k_ = [i for i, t in enumerate(ra) if t.startswith("s_cmp")][0]
    q_ = [f"v_add_u32 v{OV[r]}, s{24+r}, v245" for r in (3, 2, 1, 0)] + ra[:k_] + oepi_pre() + [f"s_lshl_b32 s16, s{sW}, 2", f"s_add_u32 s16, s16, {LDS_FL}", f"v_mov_b32 v{NREF+5}, s16", f"v_mov_b32 v{NREF+6}, {LDS_FL}"]
    lf_ = Gl.fill(q_, 100); print("step-30 set-up ops left over:", len(lf_), file=sys.stderr)
    T = Asm()
    T("L_tail:")
    if opt["zoom"] == 7:
        for i in range(5): T(f"v_readlane_b32 s{78+2*(3+i)}, v245, {4-i}\nv_readlane_b32 s{79+2*(3+i)}, v246, {4-i}")
        NST[0] = 8
    T.ext(Gl.emit())
    straight(T, lf_)
    zst(T, 1, 1)
    stamp(T, 6)
    lred(T)
    T(f"v_cmp_nge_f32 vcc, s{sLM}, v{LS[0]}")
    for qb in range(1, 4): T(f"v_cmp_nge_f32 s[34:35], s{sLM}, v{LS[qb]}\ns_nop 0\ns_or_b64 vcc, vcc, s[34:35]")
    T(f"s_cmp_lg_u64 vcc, 0\ns_cselect_b32 s16, 1, {opt['forcesafe']}\nv_mov_b32 v{NREF}, s16")
    T(f"ds_write_b32 v{NREF+5}, v{NREF}")
    for qb in range(4): T(f"v_rcp_f32 v{LS[qb]}, v{LS[qb]}")
    for t in ra[k_:]: T(t)
    T(f"v_mov_b32 v{NREF+2}, v{NREF+6}")
    T("s_waitcnt lgkmcnt(0)\ns_barrier")
    T(f"ds_read_b128 {vr(NREF+4)}, v{NREF+2}")
    G = Gaps(pv_mfmas(1)); pv_reads(G, 0)
    G.put(3, lgw(rs(NREF + 4, 4)))
    G.place(4, f"v_or3_b32 v{NREF}, v{NREF+4}, v{NREF+5}, v{NREF+6}"); G.place(5, f"v_or_b32 v{NREF}, v{NREF}, v{NREF+7}")
    G.place(7, f"v_readfirstlane_b32 s{sE}, v{NREF}")
    gck = G.place2(9, f"s_cmp_lg_u32 s{sE}, 0", "s_cbranch_scc1 L_safe")
    w2_ = b_wdma(sW2, "W2", 2 * STB)
    l0_ = ([] if opt["w2t"] else w2_) + hload(2, "O2"); l1_ = []
    ylo = hload(0, "O0") + hload(1, "O1") + (w2_ if opt["w2t"] else [])
    g = spread(G, ylo, gck + 1, opt["hl"])
    oq, _ = oepi_ops()
    items = []; cur = []
    for x in oq:
        if x[3] == "OST": items.append((cur, x)); cur = []
        else: cur.append(x)
    pc = [int(x) for x in opt["pace"].split(",")]; assert sum(pc) == 24
    first = []
    for n in range(12):
        first += items[n][0]
        if n < pc[0]: first.append(items[n][1])
    left = G.fill(first, 12)
    T.ext(G.emit())
    if opt["tst"] == 2: stamp(T, 7)
    zst(T, 1, 2)
    T("s_nop 7")
    straight(T, pkify(left))
    T("L_join:")
    zst(T, 1, 3)
    if opt["tst"] == 0: stamp(T, 7)
    for t in b_ra_fin: T(t)
    T.l.append(vmw({"W0", "O0"})); T("s_barrier")
    for nb in range(3):
        for e in range(2):
            for h in range(2): T(bread(0, nb, e, h))
    T(f"s_add_u32 s17, s{sQT}, {AF_OFF}")
    T("s_waitcnt lgkmcnt(0)")
    zst(T, 1, 4)
    def paced(k, lim=78):
        n0 = sum(pc[:k + 1]); q = []
        for j in range(pc[k + 1]):
            n = n0 + j; g = 2 + (lim - 2) * j // pc[k + 1]
            if n >= 12: q += [(t, max(0, g - 7), ng, tag) for (t, e, ng, tag) in items[n][0]]
            q.append((items[n][1][0], g, False, "OST"))
        return q
    c0, late = b_chunk(0, l0_, {"W1"}, {"O1"}, czero=True, fillq=paced(0), lim=opt["jl"] if opt["jit"] else None)
    T.ext(c0); straight(T, late); print("y0 leftover", len(late), file=sys.stderr)
    zst(T, 1, 5)
    so = {1: 18, 2: 19, 3: 16}; sYC, sXC, sYF, sXF = 26, 27, 24, 25
    assert pc[2] == pc[3] == 0 and opt["afc"] == 1
    a1 = [f"v_lshlrev_b32 v4, 4, v0", f"s_mul_i32 s{sE}, s{sW}, 20480", f"v_add_u32 v2, s{sE}, v4", f"s_xor_b32 s{sE}, s{sW}, 2", f"s_mul_i32 s{sE}, s{sE}, 20480", f"v_add_u32 v3, s{sE}, v4",
          "v_lshlrev_b32 v1, 3, v0", "v_add_u32 v1, 2048, v1", f"s_add_u32 s{sG}, s{sFL}, {AF_OFF}", f"s_mov_b32 s{sKo}, s{sF}"]
    c1, left = b_chunk(1, [f"s_mov_b32 s{sVo}, s{sH}"] + b_wdma(sWO, "W3", 3 * STB), {"W2"}, {"O2"}, lim=opt["jl"], fillq=a1, af=opt["afg"])
    T.ext(c1); assert not left
    zst(T, 1, 6)
    a2 = [f"s_lshl_b32 s{sH}, s{sMT}, 2", f"s_add_u32 s{sH}, s{sH}, s{sNT}"] + [t.replace(f"s{sA}", f"s{sInc}") for t in slot_scalars(YC_OFF, so, sYC)]
    a2 += [f"s_lshl_b32 s{sC}, s{sH}, 2", f"s_add_u32 s{sC}, s{sC}, s{sW}", f"s_lshl_b32 s{sC}, s{sC}, 6", f"s_add_u32 s{sYF}, s{sC}, {YF_OFF}", f"s_add_u32 s{sXF}, s{sC}, {XF_OFF}"]
    c2 = b_chunk(2, a2, {"W3"}, None, xw=True, inc=STB, lim=40,
                 puts=[(opt["aflg"], f"buffer_load_dwordx2 {vr(T0,2)}, v{FLV}, {sr(sWS)}, s{sG} offen sc1", "AFL")])
    T.ext(c2)
    zst(T, 1, 7); stamp(T, 8)
    YO = 80; YP = 100
    try_ = lambda i, r: (YO, 16, 130, 216)[r] + 4 * i
    T.l.append(vmw({"AFL"})); cond_nonce(T, f"s{sMSK}")(); T(f"s_cselect_b32 s{sD}, 1, 0")
    T("s_waitcnt lgkmcnt(0)\ns_barrier")
    stamp(T, 9); zst(T, 1, 8); zst(T, 2, 1)
    xchg_reads(T, try_)
    T(f"s_cmp_lg_u32 s{sD}, 0\ns_cbranch_scc1 L_o2")
    straight(T, oload(1, "O1"))
    T("s_waitcnt lgkmcnt(0)\ns_barrier")
    S_ = Asm(); yst = xchg_sum(S_, try_, YP, so, False)
    rest = Asm(); straight(rest, oload(2, "O2") + b_wdma(sWO, "W2", 2 * STB))
    grp = []; cur = []
    for x in rest.l:
        cur.append(x)
        if x.kind == "vmem": grp.append(cur); cur = []
    grp[-1] += cur
    for n, x in enumerate(S_.l):
        T.l.append(x)
        if n % 8 == 3 and grp: T.ext(grp.pop(0))
    for g_ in grp: T.ext(g_)
    zst(T, 1, 9)
    T.l.append(vmw({"O1"}))
    T("L_o2_r:")
    T(f"s_mov_b32 s{sCnt}, 2\ns_lshl_b32 s{sE}, s{sSP}, 3\ns_add_u32 s{sG}, s{sYF}, s{sE}")
    OOL("L_o2:"); straight(OOL, b_wdma(sWO, "W2", 2 * STB)); OOL("s_waitcnt lgkmcnt(0)\ns_barrier")
    xchg_sum(OOL, try_, YP, so, False)
    poll(OOL, "L_pat", FLV, sWS, f"s{sG}", cond_nonce(OOL, f"s{sMSK}"), sleep=4)
    straight(OOL, oload(1, "O1") + oload(2, "O2")); OOL("s_waitcnt vmcnt(8)\ns_branch L_o2_r")
    zst(T, 1, 10); zst(T, 2, 2)
    def sl(u): return b_wdma(sWO, f"W{(u+2)%3}", ((u + 2) % 3) * STB) + oload((u + 2) % 3, f"O{(u+2)%3}")
    def nx(k, u): return {f"{k}{(u+1)%3}"}
    for n, u in enumerate((1, 2, 0)):
        T.ext(b_chunk(u, merge(sl(u), yst[5 * n: 5 * n + 5]), nx("W", u), nx("O", u), czero=(n == 0), ph=n, inc=-STB if n == 0 else None))
        zst(T, 2, 3 + n)
    zst(T, 1, 11)
    tail = list(T.l)
    auto_lgkm(tail, pre=s0); auto_vm(tail)
    A.ext(tail)
    steps = [b_chunk(1, sl(1), nx("W", 1), nx("O", 1), ph=0, first_gap=[f"s_sub_u32 s{sCnt}, s{sCnt}, 1"]),
             b_chunk(2, sl(2), nx("W", 2), nx("O", 2), ph=1, after_barrier=f"buffer_store_dwordx2 v[254:255], v{ZV}, {sr(sWS)}, s{sG} offen sc1"),
             b_chunk(0, sl(0), nx("W", 0), nx("O", 0), ph=2, last_gap=[f"s_cmp_lg_u32 s{sCnt}, 0"])]
    for u in range(3):
        auto_lgkm(steps[u], pre=steps[(u + 2) % 3]); auto_vm(steps[u], pre=steps[(u + 1) % 3] + steps[(u + 2) % 3])
    A(".p2align 6\nL_bloop:")
    for u in range(3): A.ext(steps[u])
    A("s_cbranch_scc1 L_bloop")
    PKS = 16; XL = 48; B2L = 58
    E = Asm()
    zst(E, 2, 6)
    E(f"v_and_b32 v6, 3, v0\nv_lshlrev_b32 v6, 3, v6\ns_lshl_b32 s{sMSK}, 1, s{sSP}\ns_xor_b32 s{sMSK}, s{sMSK}, 15")
    a3 = [f"v_add_u32 v2, {STB}, v2", f"v_add_u32 v3, {STB}, v3",
          "v_lshrrev_b32 v7, 4, v0", "v_lshlrev_b32 v7, 3, v7", "v_and_b32 v5, 15, v0", "v_mul_u32_u24 v5, 1280, v5", "v_add_u32 v5, v5, v7"]
    c, left = b_chunk(1, [(f"buffer_load_dwordx2 {vr(T0,2)}, v6, {sr(sWS)}, s{sYF} offen sc1", "YF")] + sl(1), nx("W", 1), nx("O", 1), ph=0, fillq=a3); assert not left
    E.ext(c)
    E.l.append(vmw({"YF"}))
    poll(E, "L_py", 6, sWS, f"s{sYF}", cond_nonce(E, f"s{sMSK}"), sleep=4, precheck=True)
    zst(E, 2, 7)
    a4 = [f"s_lshr_b32 s{sC}, s{sFL}, 6", f"s_add_u32 s{sC}, s{sC}, s{sSP}", f"s_mul_i32 s{sKo}, s{sC}, 20480",
          f"s_mul_i32 s{sC}, s{sNT}, 320", f"s_mul_i32 s{sB}, s{sKH}, 160", f"s_add_u32 s{sC}, s{sC}, s{sB}", f"s_add_u32 s{sKo}, s{sKo}, s{sC}"]
    E.ext(b_chunk(2, inbox_loads(sYC, YP, "YL") + a4, nx("W", 2), nx("O", 2), ph=1, lim=50))
    zst(E, 2, 8)
    l2 = [(f"buffer_load_dwordx2 {vr(B2L+2*i,2)}, v7, {sr(sB2)}, s{sC} offen offset:{32*i}", "YL") for i in range(5)]
    l2 += [(f"buffer_load_dwordx2 {vr(XL+2*i,2)}, v5, {sr(sX)}, s{sKo} offen offset:{32*i}", "YL") for i in range(5)]
    if opt["opre"]: l2 += [(f"buffer_load_dword v70, v5, {sr(sOUT)}, s{sKo} offen offset:{o_}", "YL") for o_ in (0, 128)]
    a5 = [f"s_lshl_b32 s{sA}, s{sH}, 4", f"s_add_u32 s{sA}, s{sA}, s{sW}", f"s_mul_i32 s{sA}, s{sA}, 10240", f"s_add_u32 s{sA}, s{sA}, {XC_OFF}",
          f"s_mul_i32 s{sE}, s{sSP}, 40960", f"s_add_u32 s{sXC}, s{sA}, s{sE}"]
    for r in (1, 2, 3):
        a5 += [f"s_add_u32 s{so[r]}, s{sSP}, {r}", f"s_and_b32 s{so[r]}, s{so[r]}, 3", f"s_mul_i32 s{so[r]}, s{so[r]}, 40960", f"s_add_u32 s{so[r]}, s{so[r]}, s{sA}",
               f"s_add_u32 s{so[r]}, s{so[r]}, {(3 - r) * 2560}"]
    a5 += ["v_min_u32 v6, 2, v0", "v_mul_u32_u24 v6, 2560, v6", "v_add_u32 v6, 2556, v6", f"s_add_u32 s{sXF}, s{sXC}, 2560", f"s_add_u32 s{sYF}, s{sXC}, 5120"]
    c, left = b_chunk(0, l2, None, None, nxt=False, xw=True, ph=2, lim=36, fillq=a5); assert not left
    E.ext(c)
    stamp(E, 10); zst(E, 2, 9); zst(E, 3, 1)
    auto_lgkm(E.l, pre=steps[2]); auto_vm(E.l, pre=steps[1] + steps[2])
    trs = lambda i, r: 160 + 20 * r + 4 * i
    XI = 200 if opt["xat"] < 2 else 68
    def x_loads(X_):
        for n, so_ in enumerate((sXC, sXF, sYF)):
            p = XI + 10 * n
            X_(f"buffer_load_dwordx4 {vr(p)}, v4, {sr(sWS)}, s{so_} offen sc1\nbuffer_load_dwordx4 {vr(p+4)}, v4, {sr(sWS)}, s{so_} offen offset:1024 sc1\nbuffer_load_dwordx2 {vr(p+8,2)}, v1, {sr(sWS)}, s{so_} offen sc1")
    E("s_waitcnt lgkmcnt(0)\ns_barrier")
    xchg_reads(E, trs)
    xchg_sum(E, trs, PKS, so, True)
    zst(E, 2, 10); zst(E, 3, 2)
    E("s_waitcnt vmcnt(9)")
    E(f"s_mov_b32 s{sC}, 0x3f80\ns_mov_b32 s{sD}, 0x3f800000")
    def dacc(x, src):
        for k in range(2): E(f"v_dot2_f32_bf16 v{x+2*k}, v{src+k}, s{sC}, v{x+2*k}\nv_dot2_f32_bf16 v{x+2*k+1}, v{src+k}, s{sD}, v{x+2*k+1}")
    for p in range(4):
        for i in range(5): dacc(YO + 4 * i, (B2L + 2 * i) if p == 3 else (YP + 10 * p + 2 * i))
    zst(E, 3, 3)
    if opt["xat"] == 0: x_loads(E)
    for i in range(5):
        g_ = YO + 4 * i; t = 130 + 4 * i
        for k in range(4): E(f"v_mul_f32 v{t+k}, {fh(-LOG2E)}, v{g_+k}")
        for k in range(4): E(f"v_exp_f32 v{t+k}, v{t+k}")
        for k in range(4): E(f"v_add_f32 v{t+k}, 1.0, v{t+k}")
        for k in range(4): E(f"v_rcp_f32 v{t+k}, v{t+k}")
        for k in range(4): E(f"v_mul_f32 v{g_+k}, v{g_+k}, v{t+k}")
        for k in range(2): E(f"v_lshlrev_b32 v{t+2*k}, 16, v{XL+2*i+k}\nv_and_b32 v{t+2*k+1}, 0xffff0000, v{XL+2*i+k}")
    zst(E, 3, 5)
    if opt["xat"] == 1: x_loads(E)
    E(f"s_mov_b32 s{sG}, {SPIN}")
    E("L_x2:")
    for n in range(3):
        E(f"s_waitcnt vmcnt({6 - 3*n})")
        for i in range(5):
            for k in range(2):
                for hl, sel in enumerate((sC, sD)):
                    E(f"v_dot2_f32_bf16 v{trs(i,1)+2*k+hl}, v{XI+10*n+2*i+k}, s{sel}, v{trs(i, 0 if n == 0 else 1)+2*k+hl}")
    for i in range(5):
        for k in range(2):
            E(f"v_cmp_u_f32 {'vcc' if i + k == 0 else 's[%d:%d]' % (sA, sA + 1)}, v{trs(i,1)+2*k}, v{trs(i,1)+2*k+1}")
            if i + k: E(f"s_nop 0\ns_or_b64 vcc, vcc, s[{sA}:{sA+1}]")
    E("s_cmp_lg_u64 vcc, 0\ns_cbranch_scc1 L_o4\nL_o4_r:")
    stamp(E, 11); zst(E, 2, 11); zst(E, 3, 6)
    if opt["xpm"] == 0:
        OOL(f"L_o4:\ns_mov_b32 s{sE}, {MARK}\ns_mov_b64 vcc, 0")
        for n in range(30): OOL(f"v_cmp_eq_u32 s[{sA}:{sA+1}], s{sE}, v{XI+n}\ns_nop 0\ns_or_b64 vcc, vcc, s[{sA}:{sA+1}]")
        OOL("s_cmp_lg_u64 vcc, 0\ns_cbranch_scc0 L_o4_r")
        OOL(f"L_px:\ns_sub_u32 s{sG}, s{sG}, 1\ns_cmp_eq_u32 s{sG}, 0\ns_cbranch_scc1 L_o4_r")
        OOL(f"buffer_load_dword v{T0}, v6, {sr(sWS)}, s{sXC} offen sc1\ns_waitcnt vmcnt(0)\nv_cmp_eq_u32 vcc, s{sE}, v{T0}\ns_nop 0\ns_cmp_lg_u64 vcc, 0\ns_cbranch_scc0 L_px_ok\ns_sleep 1\ns_branch L_px\nL_px_ok:")
        x_loads(OOL); OOL("s_branch L_x2")
    else:
        OOL(f"L_o4:\ns_mov_b32 s{sE}, {MARK}\ns_mov_b32 s{sH}, 0")
        OOL(f"L_px:\ns_sub_u32 s{sG}, s{sG}, 1\ns_cmp_eq_u32 s{sG}, 0\ns_cbranch_scc1 L_o4_r\ns_mov_b32 s{sF}, 0")
        for n, so_ in enumerate((sXC, sXF, sYF)):
            p = XI + 10 * n
            OOL("s_mov_b64 vcc, 0")
            for k in range(10): OOL(f"v_cmp_eq_u32 s[{sA}:{sA+1}], s{sE}, v{p+k}\ns_nop 0\ns_or_b64 vcc, vcc, s[{sA}:{sA+1}]")
            OOL(f"s_cmp_lg_u64 vcc, 0\ns_cbranch_scc0 L_px{n}\ns_mov_b32 s{sF}, 1")
            OOL(f"buffer_load_dwordx4 {vr(p)}, v4, {sr(sWS)}, s{so_} offen sc1\nbuffer_load_dwordx4 {vr(p+4)}, v4, {sr(sWS)}, s{so_} offen offset:1024 sc1\nbuffer_load_dwordx2 {vr(p+8,2)}, v1, {sr(sWS)}, s{so_} offen sc1\nL_px{n}:")
        OOL(f"s_cmp_eq_u32 s{sF}, 0\ns_cbranch_scc1 L_px_ok\ns_mov_b32 s{sH}, 1\ns_waitcnt vmcnt(0)\ns_sleep {opt['xsl']}\ns_branch L_px")
        OOL(f"L_px_ok:\ns_cmp_eq_u32 s{sH}, 0\ns_cbranch_scc1 L_o4_r\ns_branch L_x2")
    for i in range(5):
        x = trs(i, 1)
        for k in range(2): E(f"v_pk_fma_f32 {vr(x+2*k,2)}, {vr(x+2*k,2)}, {vr(YO+4*i+2*k,2)}, {vr(130+4*i+2*k,2)}")
        for k in range(2): E(f"v_cvt_pk_bf16_f32 v{trs(i,0)+k}, v{x+2*k}, v{x+2*k+1}")
        E(f"buffer_store_dwordx2 {vr(trs(i,0),2)}, v5, {sr(sOUT)}, s{sKo} offen offset:{32*i}")
    if opt["stamp"]:
        E("s_waitcnt vmcnt(0)")
        E("s_memrealtime s[4:5]\ns_memtime s[6:7]\ns_load_dwordx2 s[8:9], s[0:1], 96\ns_waitcnt lgkmcnt(0)")
        E(f"s_add_u32 s8, s8, {ST_OFF}\ns_addc_u32 s9, s9, 0\ns_and_b32 s9, s9, 0xffff\ns_mov_b32 s10, 0x40000\ns_mov_b32 s11, 0x20000")
        E(f"s_lshl_b32 s12, s2, 2\ns_add_u32 s12, s12, s{sW}\ns_lshl_b32 s12, s12, 7\nv_mov_b32 v2, 0\ns_mov_b64 exec, 1")
        for i in range(NST[0] + 1):
            a, b_ = (78 + 2 * i, 79 + 2 * i) if i < NST[0] else (4, 6)
            E(f"v_mov_b32 v{16+2*i}, s{a}\nv_mov_b32 v{17+2*i}, s{b_}\nbuffer_store_dwordx2 v[{16+2*i}:{17+2*i}], v2, s[8:11], s12 offen offset:{8*i}")
    if opt["stamp"] and opt["dbgst"]:
        E("s_load_dwordx2 s[8:9], s[0:1], 88\ns_waitcnt lgkmcnt(0)\ns_and_b32 s9, s9, 0xffff\ns_mov_b32 s10, 256\ns_mov_b32 s11, 0x20000")
        E("s_not_b32 s78, s78")
        for i in range(NST[0] + 1):
            a_ = 78 + 2 * i if i < NST[0] else 4
            E(f"v_mov_b32 v{16+i}, s{a_}\nbuffer_atomic_umax v{16+i}, v2, s[8:11], 0 offen offset:{8+4*i} sc1")
    ec = list(E.l)
    A.ext(ec)
    A("L_done:\ns_endpgm")
    A.ext(OOL.l); problems += check_hazards(OOL.l, "ool")
    A("L_fo:"); A.ext(FO.l); A("s_branch L_common")
    tr_o = head_ + FO.l + pro[k_common:] + sf + s1
    problems += check_hazards(tr_o, "odd"); problems += check_waits(tr_o, "odd")[0]
    F = Asm()
    F("L_safe:")
    F("s_waitcnt vmcnt(0) lgkmcnt(0)\ns_nop 7")
    for r in KA: F(f"v_subrev_u32 v{r}, {STG}, v{r}")
    for r in VA: F(f"v_subrev_u32 v{r}, {2*STG}, v{r}")
    for i in range(192): F(f"v_accvgpr_write_b32 a{i}, 0")
    MX = PB[1]
    for qb in range(4): F(f"v_mov_b32 v{LS[qb]}, 0\nv_mov_b32 v{MX+qb}, 0xff7fffff")
    F(f"s_mov_b32 s{sSlot}, s{sWb}\ns_mov_b32 s{sCnt}, 32")
    Fp = list(F.l)
    L = Asm()
    L("L_sloop:")
    L("s_barrier")
    for srd_, base in ((sK, KRING), (sV, VRING)):
        for hf in range(2):
            L(f"s_add_u32 s{sInc}, s{sSlot}, {3072*hf}\ns_add_u32 m0, s{sWb}, {base + 3072*hf}\ns_nop 0")
            for j in range(3): L(f"buffer_load_dwordx4 v{DSR[j]}, {sr(srd_)}, s{sInc} offen offset:{1024*j} lds")
    L(f"s_add_u32 s{sSlot}, s{sSlot}, {STG}")
    L("s_waitcnt vmcnt(0)\ns_barrier")
    for ks in range(6): L(kread(0, 0, ks))
    L("s_waitcnt lgkmcnt(0)")
    G = Gaps(qk_mfmas(set())); qk_reads(G, 0, vpre=True)
    L.ext(G.emit())
    L("s_nop 7")
    for qb in range(4):
        m = NREF + 4 * qb
        v = [S(kb, qb) + r for kb in range(4) for r in range(4)]
        L(f"v_max3_f32 v{m}, v{v[0]}, v{v[1]}, v{MX+qb}")
        for i in range(2, 16, 2): L(f"v_max3_f32 v{m}, v{m}, v{v[i]}, v{v[i+1]}")
    for sw in ("v_permlane32_swap_b32", "v_permlane16_swap_b32"):
        for qb in range(4): L(f"v_mov_b32 v{NREF+4*qb+1}, v{NREF+4*qb}")
        for qb in range(4): L(f"{sw} v{NREF+4*qb}, v{NREF+4*qb+1}")
        for qb in range(4): L(f"v_max_f32 v{NREF+4*qb}, v{NREF+4*qb}, v{NREF+4*qb+1}")
    for qb in range(4): L(f"v_sub_f32 v{NREF+4*qb+1}, v{MX+qb}, v{NREF+4*qb}")
    for qb in range(4): L(f"v_exp_f32 v{NREF+4*qb+1}, v{NREF+4*qb+1}")
    for qb in range(4): L(f"v_mov_b32 v{MX+qb}, v{NREF+4*qb}")
    for qb in range(4): L(f"v_mul_f32 v{LS[qb]}, v{LS[qb]}, v{NREF+4*qb+1}")
    for db in range(12):
        for qb in range(4):
            t = PB[1] + 8 + 4 * ((db * 4 + qb) % 4)
            for r in range(4): L(f"v_accvgpr_read_b32 v{t+r}, a{O(db,qb)+r}")
            for r in range(4): L(f"v_mul_f32 v{t+r}, v{t+r}, v{NREF+4*qb+1}")
            for r in range(4): L(f"v_accvgpr_write_b32 a{O(db,qb)+r}, v{t+r}")
    for kb in range(4):
        for qb in range(4):
            for r in range(4): L(f"v_sub_f32 v{S(kb,qb)+r}, v{S(kb,qb)+r}, v{MX+qb}")
    for (ex, ad, cv) in sm_ops(0):
        for t in ex: L(t)
        L("s_nop 0")
        for t in ad + cv: L(t)
    L("s_waitcnt lgkmcnt(0)\ns_nop 1")
    G = Gaps(pv_mfmas(0)); pv_reads(G, 0)
    L.ext(G.emit())
    L(f"s_sub_u32 s{sCnt}, s{sCnt}, 1\ns_cmp_lg_u32 s{sCnt}, 0\ns_cbranch_scc1 L_sloop")
    auto_lgkm(L.l)
    X = Asm()
    X("s_waitcnt lgkmcnt(0)\ns_barrier")
    lred(X)
    for qb in range(4): X(f"v_rcp_f32 v{LS[qb]}, v{LS[qb]}")
    for t in b_scalars() + oepi_pre(): X(t)
    straight(X, w01 + ylo)
    straight(X, first)
    X("s_waitcnt vmcnt(0)\ns_branch L_join")
    A.ext(Fp); A.ext(L.l); A.ext(X.l)
    j = [i for i, x in enumerate(tail) if x.text == "L_join:"][0]
    ck = [i for i, x in enumerate(tail) if "L_safe" in x.text][0]
    bl = steps[0] + steps[1] + steps[2]
    main = pro + sf + s1 + s0 + st[5] + s1 + s0 + tail + bl + bl + ec
    problems += check_hazards(main, "main"); problems += check_waits(main, "main")[0]
    safe = s0 + tail[:ck + 1] + Fp + L.l + L.l + X.l + tail[j:]
    problems += check_hazards(safe, "safe"); problems += check_waits(safe, "safe")[0]
    return A.text()

body = gen()
kn = NAME + "_kernel"
body = "\n".join(l.strip().replace(" offset:0", "") if not l.strip().endswith(" offset:0") else l.strip()[:-9] for l in body.split("\n"))
out = f"""; Written with my own generator script (gen/gen20.py: instruction streams, MFMA-gap scheduler, hazard / waitcnt checker).
;   layernorm of 16 rows (even heads) -> xn*log2e/sqrt(192) as bf16 MFMA fragments in d_ws
;            (or is NaN) the whole workgroup redoes its attention with the exact running max (L_safe)
; @launch grid=(256,1,1) block=(256,1,1) lds={LDS_SZ}
.amdgcn_target "amdgcn-amd-amdhsa--gfx950"
.text
.globl {kn}
.p2align 8
.type {kn},@function
{kn}:
{body}
s_endpgm
.fill 256, 4, 0xbf800000
.section .rodata,"a"
.p2align 6
.amdhsa_kernel {kn}
  .amdhsa_next_free_vgpr 512
  .amdhsa_next_free_sgpr 102
  .amdhsa_accum_offset 256
  .amdhsa_group_segment_fixed_size 0
  .amdhsa_kernarg_size 104
  .amdhsa_user_sgpr_count 2
  .amdhsa_user_sgpr_kernarg_segment_ptr 1
  .amdhsa_system_sgpr_workgroup_id_x 1
.end_amdhsa_kernel
"""
if problems:
    for p in sorted(set(problems)): print(p, file=sys.stderr)
    print(f"{len(set(problems))} problems", file=sys.stderr)
sys.stdout.write(out)
```

```python
import sys, math, struct, re
from asmlib import *

NAME = "recurrent_scan__gqa_block_cached__dense_activation_gelu__prompt"
def f2u(x): return struct.unpack("<I", struct.pack("<f", x))[0]
def fh(x): return f"0x{f2u(x):08x}"
LOG2E = math.log2(math.e)
CSC = LOG2E / math.sqrt(192.0)
XS_OFF = 0
OH_OFF = 0x400000
YC_OFF = 0x2400000
XC_OFF = 0x3c00000
FL_OFF = 0x4800000
AF_OFF = FL_OFF; HF_OFF = FL_OFF + 0x4000; XF_OFF = FL_OFF + 0x8000; YF_OFF = FL_OFF + 0xc000; LF_OFF = FL_OFF + 0x10000
WS_SZ = 0x5000000
ST_OFF = 0x8000000
LDS_LN = 147456; LDS_FL = LDS_LN + 2048; LDS_SZ = 163840
SPIN = 1 << 18
MARK = 0x7f817f81

opt = dict(stamp=0, forcesafe=0, pf=1, warm=0, pst=128, snake=1, bias=102, opf=0, dense=3, zoom=0, pace="10,14,0,0", afc=1, afg=40, lim1=64, wqpf=1, aflg=56, xws=33, xid=0, xb=72, xcap=3, foff=4096, xat=0, xpm=0, xsl=1, nobar=0, gbar=80, lns=2, ost="", opre=0, xw0=11, pk=1, dbgst=0, warmh=0, jit=0, yin=0, kvw=0, pfm=6, hl=92, w2t=1, kearly=1, noh=0, jl=60, nearly=8, tst=0)
for a in sys.argv[1:]:
    k, v = a.split("="); opt[k] = type(opt.get(k, ""))(v)
problems = []
BIAS = opt["bias"]; BIAS_LO = 48
def snk(n, i): return list(range(n))[::-1] if (opt["snake"] and i & 1) else list(range(n))

def vr(b, n=4): return f"v[{b}:{b+n-1}]"
def ar(b, n=4): return f"a[{b}:{b+n-1}]"
def sr(b, n=4): return f"s[{b}:{b+n-1}]"
def rs(b, n): return {f"v{i}" for i in range(b, b + n)}
def lgw(regs): return Ins("s_waitcnt lgkmcnt(?)", ("lg", regs))
def vmw(tags, extra=""): return Ins("s_waitcnt vmcnt(?)" + extra, ("vm", set(tags)))
MF = "v_mfma_f32_16x16x32_bf16"

sK, sV, sWQ, sW1, sWS, sB1, sX, sDBG, sOUT, sWO, sB2, sW2 = 4, 8, 12, 16, 20, 24, 28, 32, 36, 40, 44, 48
sSP = 3
(sW, sHEAD, sQT, sQB0, sKo, sKo2, sVo, sVo2, sSlot, sM, sInc, sCnt, sA, sB, sC, sD, sWb, sNeg, sN0, sN1,
 sMT, sNT, sE, sF, sKH, sQH) = range(52, 78)
sMSK, sFL, sG, sH = 12, 13, 14, 15
sBI, sLM = 32, 33
KT = 76
NST = [0]
def zst(A, z, i):
    if opt["zoom"] == z: stamp(A, i, True)
def stamp(A, i, force=False):
    if opt["zoom"] and not force: return
    if opt["stamp"]:
        A(f"s_memrealtime vcc\ns_waitcnt lgkmcnt(0)\ns_mov_b32 s{78+2*i}, vcc_lo\ns_memtime vcc\ns_waitcnt lgkmcnt(0)\ns_mov_b32 s{79+2*i}, vcc_lo")
        NST[0] = max(NST[0], i + 1)

KA = [1, 2]; VA = [3, 4, 5, 6]; DSR = [7, 8, 9]; LS = [10, 11, 12, 13]; T0, T1 = 14, 15
NREF = 16; QV = 32; SB = 64; PB = [128, 160]; KV = 192
WA = [240, 241]; WA2 = [242, 243]; W1A = [244, 245, 246, 255]; DW = [247, 248, 249]; DW1 = 250; XV = [251, 252, 253, 254]
KRING = 0; VRING = 73728; STG = 24576; W1RING = 49152
DS5 = [240, 241, 242, 243, 244]; RA = [245, 246, 8, 9]; RAT = [245, 246, 254, 255]; OV = [247, 248, 249, 250]; PFV = 251; ZV = 252; FLV = 253
OB = [16, 48, 160]; WF = 192; STB = 40960; PK = 80

def qfrag(qb, ks):
    f = qb * 6 + ks
    return ar(192 + 4 * f) if f < 16 else vr(QV + 4 * (f - 16))
def S(kb, qb): return SB + 4 * (kb * 4 + qb)
def P(par, qb, e): return PB[par] + 4 * (qb * 2 + e)
def O(db, qb): return 4 * (db * 4 + qb)

class Gaps:
    def __init__(self, mfmas):
        self.m = mfmas; n = len(mfmas); self.n = n; self.cap = 2; self.blk = {}
        self.sc = [[] for _ in range(n)]; self.mem = [[] for _ in range(n)]; self.va = [[] for _ in range(n)]
    def vcost(self, g): return len(self.mem[g]) + sum(2 if x.kind == "trans" else 1 for x in self.va[g])
    def cost(self, g): return self.vcost(g) + len(self.sc[g])
    def fits(self, g, ins):
        c = 2 if ins.kind == "trans" else 1
        if ins.kind in ("valu", "trans", "ds", "vmem"):
            if self.vcost(g) + c > self.cap: return False
            if ins.kind in ("ds", "vmem") and self.va[g]: return False
            return self.vcost(g) + c + len(self.sc[g]) <= self.cap + 1
        return self.cost(g) + 1 <= 3
    def put(self, g, ins):
        if ins.kind in ("ds", "vmem"): self.mem[g].append(ins)
        elif ins.kind in ("valu", "trans"): self.va[g].append(ins)
        else: self.sc[g].append(ins)
    def place(self, g, text, tag=None):
        ins = Ins(text, tag)
        while not self.fits(g, ins): g += 1
        self.put(g, ins); return g
    def place2(self, g, t1, t2):
        while self.cost(g) + 2 > 3: g += 1
        self.put(g, Ins(t1)); self.put(g, Ins(t2)); return g
    def fill(self, queue, g0=0, g1=None):
        g1 = self.n if g1 is None else g1
        g = g0; i = 0; last = -1; lastkind = None
        while i < len(queue):
            t, e, ng, tag = (list(queue[i]) + [0, False, None])[:4] if not isinstance(queue[i], str) else (queue[i], 0, False, None)
            ins = Ins(t, tag)
            g = max(g, e)
            order = {"salu": 0, "wait": 0, "ds": 1, "vmem": 1, "valu": 2, "trans": 2}
            if last >= 0 and (ng or order[ins.kind] < order[lastkind] or (lastkind == "salu" and "m0" in queue_prev and ins.kind == "vmem")): g = max(g, last + 1)
            while g < g1 and not self.fits(g, ins): g += 1
            if g >= g1: break
            self.put(g, ins); last = g; lastkind = ins.kind; queue_prev = t; i += 1
        return queue[i:]
    def emit(self):
        out = []
        for g, m in enumerate(self.m):
            out.append(m); out += self.sc[g] + self.mem[g] + self.va[g] + self.blk.get(g, [])
        return out

def spread(G, lst, g0, g1):
    nv = max(1, sum(1 for x in lst if isinstance(x, tuple)))
    k = 0; g = g0
    for x in lst:
        t, tag = x if isinstance(x, tuple) else (x, None)
        if tag:
            tgt = g0 + 1 + int((g1 - g0 - 1) * k / nv); k += 1
            g = G.place(max(g, tgt), t, tag) + 1
        else:
            g = G.place(g, t)
            if " m0," in t: g += 1
    return g

def straight(A, lst):
    prev_m0 = False
    for x in lst:
        if isinstance(x, str): t, tag = x, None
        elif len(x) == 2: t, tag = x
        else:
            t = x[0]; tag = x[3] if len(x) > 3 else None
            if len(x) > 2 and x[2]: A("s_nop 1")
        if prev_m0 and "lds" in t: A("s_nop 0")
        A(t, tag); prev_m0 = " m0," in t

def srd(A, d, lo, size, add=None):
    if add is None:
        A(f"s_mov_b32 s{d}, s{lo}\ns_and_b32 s{d+1}, s{lo+1}, 0xffff")
    else:
        A(f"s_add_u32 s{d}, s{lo}, {add}\ns_addc_u32 s{d+1}, s{lo+1}, 0\ns_and_b32 s{d+1}, s{d+1}, 0xffff")
    A(f"s_mov_b32 s{d+2}, {size}\ns_mov_b32 s{d+3}, 0x20000")

def kread(buf, kb, ks):
    d = KV + 24 * buf + 4 * ks
    return f"ds_read_b128 {vr(d)}, v{KA[ks & 1]} offset:{(ks >> 1) * 128 + kb * 6144}"
def vread(db, e, half):
    d = KV + 8 * (db % 6) + 4 * e + 2 * half
    return f"ds_read_b64_tr_b16 {vr(d,2)}, v{VA[db & 3]} offset:{(db >> 2) * 128 + e * 12288 + half * 6144}"

def qk_mfmas(cinit):
    out = []
    for kb in range(4):
        for qb in range(4):
            for n, ks in enumerate(snk(6, qb)):
                a = KV + 24 * (kb & 1) + 4 * ks
                c = (vr(NREF + 4 * qb) if kb in cinit else "0") if n == 0 else vr(S(kb, qb))
                out.append(Ins(f"{MF} {vr(S(kb,qb))}, {vr(a)}, {qfrag(qb,ks)}, {c}"))
    return out
def pv_mfmas(par, first=False):
    out = []
    for db in range(12):
        for qb in range(4):
            for n, e in enumerate(snk(2, qb)):
                a = KV + 8 * (db % 6) + 4 * e
                c = "0" if (first and n == 0) else ar(O(db, qb))
                out.append(Ins(f"{MF} {ar(O(db,qb))}, {vr(a)}, {vr(P(par,qb,e))}, {c}"))
    return out
def sm_ops(par):
    out = []
    for kb in range(4):
        for qb in range(4):
            s = S(kb, qb); p = P(par, qb, kb >> 1) + 2 * (kb & 1)
            out.append(([f"v_exp_f32 v{s+r}, v{s+r}" for r in range(4)],
                        [f"v_add_f32 v{LS[qb]}, v{LS[qb]}, v{s+r}" for r in range(4)],
                        [f"v_cvt_pk_bf16_f32 v{p+r}, v{s+2*r}, v{s+2*r+1}" for r in range(2)]))
    return out
def qk_reads(G, base, vpre=True):
    for kb in range(3):
        for ks in range(6): G.place(base + 24 * kb + 1 + 3 * ks, kread((kb + 1) & 1, kb + 1, ks))
    if vpre:
        n = 0
        for db in range(3):
            for e in range(2):
                for h in range(2):
                    G.place(base + 73 + (n * 3) // 2, vread(db, e, h)); n += 1
    for ks in (2, 4): G.put(base + ks - 1, lgw(rs(KV + 4 * ks, 8)))
    for kb in range(1, 4): G.put(base + 24 * kb - 1, lgw(rs(KV + 24 * (kb & 1), 24)))
def pv_reads(G, B, first_wait=True):
    for db in range(9):
        n = 0
        for e in range(2):
            for h in range(2):
                G.place(B + 8 * db + 2 * n, vread(db + 3, e, h)); n += 1
    for db in range(12):
        if B + 8 * db - 1 >= 0: G.put(B + 8 * db - 1, lgw(rs(KV + 8 * (db % 6), 8)))

def gen_step(par, slot, first=False, extra=(), last=None):
    G = Gaps(qk_mfmas({0, 1, 2, 3}) + pv_mfmas(par, first))
    qk_reads(G, 0)
    B = 96
    pv_reads(G, B)
    if last:
        last(G)
    else:
        gb = B + opt["gbar"]
        G.put(gb, Ins("s_waitcnt vmcnt(12) lgkmcnt(0)"))
        if not opt["nobar"]: G.put(gb, Ins("s_barrier"))
        for (g_, t_) in extra: G.place(g_, t_)
        for ks in range(6): G.place(gb + 1 + 2 * ks, kread(0, 0, ks))
        G.put(191, lgw(rs(KV, 8)))
        G.place(2, f"s_add_u32 s{sKo2}, s{sKo}, 3072")
        G.place(4, f"s_sub_u32 s{sVo}, s{sKo}, {STG}")
        G.place(5, f"s_sub_u32 s{sVo2}, s{sKo}, {STG - 3072}")
        dm = [(sK, sKo, 0), (sK, sKo2, 3072), (sV, sVo, VRING), (sV, sVo2, VRING + 3072)]
        g = 8
        for (srd_, so, mo) in dm:
            G.place(g, f"s_add_u32 m0, s{sWb}, {slot * STG + mo}")
            for j in range(3):
                g2 = G.place(g + 3 + 12 * j, f"buffer_load_dwordx4 v{DSR[j]}, {sr(srd_)}, s{so} offen offset:{1024*j} lds")
            g = g2 + 9
        G.place(g, f"s_add_u32 s{sKo}, s{sKo}, {STG}")
        inc = (-2 * STG if slot == 1 else STG) & 0xffffffff
        for i, r in enumerate(KA): G.place(B + 10 + 2 * i, f"v_add_u32 v{r}, {inc}, v{r}")
        for i, r in enumerate(VA): G.place(B + 82 + 2 * i, f"v_add_u32 v{r}, {inc}, v{r}")
    ops = sm_ops(par ^ 1)
    first_g, last_g = 10, (160 if last else 186)
    pend = []
    exps = [(i, r) for i in range(16) for r in range(4)]
    ei = 0
    for g in range(192):
        if ei < 64:
            i, r = exps[ei]
            target = first_g + (last_g - first_g) * ei / 64.0
            if g >= 6 * i + 5 + 4 and g >= target and G.vcost(g) == 0 and len(G.sc[g]) <= 1:
                G.put(g, Ins(ops[i][0][r])); ei += 1
                pend.append((g + 1, ops[i][1][r]))
                if r & 1: pend.append((g + 1, ops[i][2][r >> 1]))
                continue
        while pend and pend[0][0] <= g and G.fits(g, Ins(pend[0][1])):
            G.put(g, Ins(pend.pop(0)[1]))
    assert ei == 64 and not pend, (ei, pend)
    return G


def poll(A, lab, voff, srd_, soff, cond, sleep=2, precheck=False):
    if precheck:
        cond(); A(f"s_cbranch_scc0 {lab}_ok")
    A(f"s_mov_b32 s{sE}, {SPIN}")
    A(f"{lab}:")
    A(f"buffer_load_dwordx2 {vr(T0,2)}, v{voff}, {sr(srd_)}, {soff} offen sc1")
    A("s_waitcnt vmcnt(0)")
    cond()
    A(f"s_cbranch_scc0 {lab}_ok")
    A(f"s_sleep {sleep}\ns_sub_u32 s{sE}, s{sE}, 1\ns_cmp_lg_u32 s{sE}, 0\ns_cbranch_scc1 {lab}")
    A(f"{lab}_ok:")
def cond_nonce(A, mask):
    def f():
        A(f"v_cmp_ne_u32 vcc, s{sN0}, v{T0}\nv_cmp_ne_u32 s[{sA}:{sA+1}], s{sN1}, v{T1}\ns_nop 0")
        A(f"s_or_b32 s{sA}, vcc_lo, s{sA}\ns_and_b32 s{sA}, s{sA}, {mask}\ns_cmp_lg_u32 s{sA}, 0")
    return f
assert sA % 2 == 0 and sC % 2 == 0

def gelu_ops(x, y, pk, store):
    q = []
    for r in range(4): q.append(f"v_mul_f32 v{y+r}, v{x+r}, v{x+r}")
    for r in range(4): q.append(f"v_fma_f32 v{y+r}, v{y+r}, s{sB}, v{T0}")
    for r in range(4): q.append(f"v_mul_f32 v{y+r}, v{y+r}, v{x+r}")
    for r in range(4): q.append(f"v_exp_f32 v{y+r}, v{y+r}")
    for r in range(4): q.append(f"v_fma_f32 v{y+r}, v{y+r}, s{sA}, s{sA}")
    for r in range(4): q.append(f"v_rcp_f32 v{y+r}, v{y+r}")
    for r in range(4): q.append(f"v_mul_f32 v{y+r}, v{y+r}, v{x+r}")
    for r in range(2): q.append(f"v_cvt_pk_bf16_f32 v{pk+r}, v{y+2*r}, v{y+2*r+1}")
    return [(t, 0, False, None) for t in q] + store

def gelu_pk(x, y, pk, store):
    q = []
    for k in range(2): q.append(f"v_pk_mul_f32 {vr(y+2*k,2)}, {vr(x+2*k,2)}, {vr(x+2*k,2)}")
    for k in range(2): q.append(f"v_pk_fma_f32 {vr(y+2*k,2)}, {vr(y+2*k,2)}, s[{sA}:{sA+1}], {vr(T0,2)} op_sel:[0,1,0] op_sel_hi:[1,1,0]")
    for k in range(2): q.append(f"v_pk_mul_f32 {vr(y+2*k,2)}, {vr(y+2*k,2)}, {vr(x+2*k,2)}")
    for r in range(4): q.append(f"v_exp_f32 v{y+r}, v{y+r}")
    q.append("s_nop 0")
    for k in range(2): q.append(f"v_pk_fma_f32 {vr(y+2*k,2)}, {vr(y+2*k,2)}, s[{sA}:{sA+1}], s[{sA}:{sA+1}] op_sel_hi:[1,0,0]")
    for r in range(4): q.append(f"v_rcp_f32 v{y+r}, v{y+r}")
    q.append("s_nop 0")
    for k in range(2): q.append(f"v_pk_mul_f32 {vr(y+2*k,2)}, {vr(y+2*k,2)}, {vr(x+2*k,2)}")
    for r in range(2): q.append(f"v_cvt_pk_bf16_f32 v{pk+r}, v{y+2*r}, v{y+2*r+1}")
    return [(t, 0, False, None) for t in q] + store
def pkify(q):
    out = []; i = 0
    while i < len(q):
        t = q[i][0] if isinstance(q[i], tuple) else q[i]
        n = (q[i + 1][0] if isinstance(q[i + 1], tuple) else q[i + 1]) if i + 1 < len(q) else ""
        m1 = re.match(r"v_(mul|add)_f32 v(\d+), v(\d+), v(\d+)$", t); m2 = re.match(r"v_(mul|add)_f32 v(\d+), v(\d+), v(\d+)$", n)
        if opt["pk"] and m1 and m2 and m1.group(1) == m2.group(1):
            d1, a1, b1 = map(int, m1.groups()[1:]); d2, a2, b2 = map(int, m2.groups()[1:])
            if d1 % 2 == 0 and a1 % 2 == 0 and d2 == d1 + 1 and a2 == a1 + 1:
                if b1 == b2 and b1 not in (d1, d2):
                    h = b1 & 1
                    out.append((f"v_pk_{m1.group(1)}_f32 {vr(d1,2)}, {vr(a1,2)}, {vr(b1-h,2)} op_sel:[0,{h}] op_sel_hi:[1,{h}]", 0, False, None)); i += 2; continue
                if b1 % 2 == 0 and b2 == b1 + 1:
                    out.append((f"v_pk_{m1.group(1)}_f32 {vr(d1,2)}, {vr(a1,2)}, {vr(b1,2)}", 0, False, None)); i += 2; continue
        out.append(q[i]); i += 1
    return out

def b_wdma(srd_, tag, slot_imm, second=16, step=64):
    o = [f"s_add_u32 s{sInc}, s{sM}, {slot_imm}", f"s_add_u32 s{sVo2}, s{sVo}, {second*1280}"]
    for hf, so in enumerate((sVo, sVo2)):
        o.append(f"s_add_u32 m0, s{sInc}, {5120*hf}")
        o += [(f"buffer_load_dwordx4 v{DS5[j]}, {sr(srd_)}, s{so} offen offset:{1024*j} lds", tag) for j in range(4)]
        o.append(f"s_add_u32 m0, s{sInc}, {5120*hf + 4096}")
        o.append((f"buffer_load_dwordx4 v{DS5[4]}, {sr(srd_)}, s{so} offen lds", tag))
    o.append(f"s_add_u32 s{sVo}, s{sVo}, {step*1280}" if isinstance(step, int) else f"s_mov_b32 s{sVo}, s{step[0]}")
    return o
def oload(buf, tag):
    o = [(f"buffer_load_dwordx4 {vr(OB[buf] + 4*(r*2+e))}, v{OV[r]}, {sr(sWS)}, s{sKo} offen offset:{1024*e} sc1", tag) for r in range(4) for e in range(2)]
    o.append(f"s_add_u32 s{sKo}, s{sKo}, 2048")
    return o
hload = oload
def b_scalars():
    o = [f"s_lshl_b32 s{sA}, s{sSP}, 1", f"s_add_u32 s{sA}, s{sA}, s{sKH}"]
    o += [f"s_mul_i32 s{sB}, s{sQH}, {32*1280}", f"s_mul_i32 s{sC}, s{sNT}, 320", f"s_add_u32 s{sB}, s{sB}, s{sC}"]
    o += [f"s_mul_i32 s{sVo}, s{sA}, {192*1280}", f"s_add_u32 s{sVo}, s{sVo}, s{sB}", f"s_mul_i32 s{sH}, s{sA}, {768*1280}", f"s_add_u32 s{sH}, s{sH}, s{sB}"]
    o += [f"s_mul_i32 s{sB}, s{sFL}, {4*240*4}", f"s_add_u32 s{sB}, s{sB}, {OH_OFF}"]
    o += [f"s_mul_i32 s{sKo}, s{sA}, {6*1024}", f"s_add_u32 s{sKo}, s{sKo}, s{sB}", f"s_add_u32 s{sKo}, s{sKo}, {192*1024}"]
    o += [f"s_mul_i32 s{sF}, s{sA}, {24*1024}", f"s_add_u32 s{sF}, s{sF}, s{sB}"]
    o += [f"s_mul_i32 s{sM}, s{sW}, 10240"]
    for r in range(4): o += [f"s_add_u32 s{24+r}, s{sSP}, {r}", f"s_and_b32 s{24+r}, s{24+r}, 3", f"s_mul_i32 s{24+r}, s{24+r}, {240*1024}"]
    return o
def b_warm():
    o = []
    for i in range(4):
        o.append((f"buffer_load_dword v7, v{PFV}, {sr(sWO)}, s{sKo2} offen", "PF"))
        if i < 3: o.append(f"s_add_u32 s{sKo2}, s{sKo2}, 4096")
    return o
def b_addr_ops():
    q = []
    t0, t1, t2, t3 = 255, 253, 254, 255
    for j in range(5):
        q += [f"v_add_u32 v{t0}, {64*j}, v0", f"v_mul_u32_u24 v{t1}, 3277, v{t0}", f"v_lshrrev_b32 v{t1}, 16, v{t1}",
              f"v_mul_u32_u24 v{t2}, 20, v{t1}", f"v_sub_u32 v{t2}, v{t0}, v{t2}", f"v_lshrrev_b32 v{t3}, 1, v{t1}", f"v_and_b32 v{t3}, 2, v{t3}",
              f"v_xor_b32 v{t2}, v{t2}, v{t3}", f"v_mul_u32_u24 v{t3}, 80, v{t1}", f"v_add_u32 v{t3}, v{t3}, v{t2}"]
        q += [f"v_lshlrev_b32 v{DS5[j]}, 4, v{t3}"]
        if 0 < j < 4: q += [f"v_subrev_u32 v{DS5[j]}, {1024*j}, v{DS5[j]}"]
    q += [f"v_and_b32 v{FLV}, 31, v0", f"v_lshlrev_b32 v{FLV}, 3, v{FLV}"]
    p = []
    p += ["v_lshlrev_b32 v245, 4, v0"] + [f"v_mov_b32 v{246+i}, {MARK}" for i in range(4)]
    p += [f"s_lshl_b32 s34, s{sMT}, 2", f"s_add_u32 s34, s34, s{sNT}", f"s_lshl_b32 s34, s34, 2", f"s_add_u32 s34, s34, s{sSP}", f"s_lshl_b32 s34, s34, 2", f"s_add_u32 s34, s34, s{sW}",
          "s_mul_i32 s34, s34, 10240", f"s_add_u32 s34, s34, {XC_OFF}"]
    p += [f"v_lshlrev_b32 v{PFV}, {6 if opt['pst'] == 64 else 7}, v0", f"v_mov_b32 v{ZV}, 0"]
    if opt["pst"] == 128: p += [f"v_min_u32 v{PFV}, {47*128}, v{PFV}"] if False else []
    return p, q

def b_ra_ops():
    t0, t1, t2 = NREF + 8, NREF + 9, NREF + 10
    lo, hi = (NREF + 11, NREF + 12), (NREF + 13, NREF + 14)
    q = [f"s_mul_i32 s{sE}, s{sKH}, 20480", f"v_lshrrev_b32 v{t0}, 2, v0", f"v_mul_u32_u24 v{t0}, 320, v{t0}", f"v_and_b32 v{t1}, 3, v0", f"v_lshl_add_u32 v{t0}, v{t1}, 3, v{t0}",
         f"v_add_u32 v{t0}, s{sE}, v{t0}", f"v_bfe_u32 v{t1}, v0, 4, 1", f"v_xor_b32 v{t2}, 1, v{t1}",
         f"v_lshl_add_u32 v{lo[0]}, v{t1}, 5, v{t0}", f"v_lshl_add_u32 v{lo[1]}, v{t2}, 5, v{t0}",
         f"v_add_u32 v{hi[0]}, 128, v{lo[1]}", f"v_add_u32 v{hi[1]}, 192, v{lo[0]}",
         f"s_cmp_eq_u32 s{sKH}, 0", f"s_cselect_b64 vcc, -1, 0", "s_nop 0"]
    for k in range(2):
        q += [f"v_cndmask_b32 v{RA[k]}, v{lo[k]}, v{hi[k]}, vcc", f"v_cndmask_b32 v{RA[2+k]}, v{hi[k]}, v{lo[k]}, vcc"]
    return q
def lred(A):
    for sw in ("v_permlane32_swap_b32", "v_permlane16_swap_b32"):
        for qb in range(4): A(f"v_mov_b32 v{NREF+qb}, v{LS[qb]}")
        for qb in range(4): A(f"{sw} v{LS[qb]}, v{NREF+qb}")
        for qb in range(4): A(f"v_add_f32 v{LS[qb]}, v{LS[qb]}, v{NREF+qb}")
NEARLY = 24
def oepi_ops():
    q = []; late = []; n = 0
    so = [sA, sB, sC, sD]
    for m in range(6):
        for qb in range(4):
            x = 144 + 8 * (n & 1); d = PK + 4 * (n % 16)
            e = 16 * m + 8 + 2 * qb + 1 + 5
            for p in range(2):
                for r in range(4): q.append((f"v_accvgpr_read_b32 v{x+4*p+r}, a{O(2*m+p,qb)+r}", e, False, None))
            for i in range(8): q.append((f"v_mul_f32 v{x+i}, v{x+i}, v{LS[qb]}", 0, False, None))
            for i in range(4): q.append((f"v_cvt_pk_bf16_f32 v{d+i}, v{x+2*i}, v{x+2*i+1}", 0, False, None))
            v, off = (T1, 1024 * m) if m < 4 else (T0, 1024 * (m - 4))
            st = f"buffer_store_dwordx4 {vr(d)}, v{v}, {sr(sWS)}, s{so[qb]} offen offset:{off} sc1"
            if n < NEARLY: q.append((st, 0, False, "OST"))
            else: late.append((st, "OST"))
            n += 1
    return q, late
def oepi_pre():
    return [f"s_mul_i32 s{sA}, s{sQB0}, {240*1024}", f"s_mul_i32 s{sB}, s{sHEAD}, {6*1024}", f"s_add_u32 s{sA}, s{sA}, s{sB}", f"s_add_u32 s{sA}, s{sA}, {OH_OFF}",
            f"s_add_u32 s{sB}, s{sA}, {240*1024}", f"s_add_u32 s{sC}, s{sA}, {480*1024}", f"s_add_u32 s{sD}, s{sA}, {720*1024}",
            f"v_lshlrev_b32 v{T1}, 4, v0", f"v_add_u32 v{T0}, 4096, v{T1}"]
def BA(nb, r): return (192 + 16 * nb if nb < 4 else 16 * (nb - 4)) + 4 * r
def bread(u, nb, e, h):
    d = WF + 8 * ((10 * u + nb) % 6) + 4 * e + 2 * h
    j = nb % 5
    return f"ds_read_b64_tr_b16 {vr(d,2)}, v{RA[2 * (nb // 5) + (j & 1)]} offset:{64*(j >> 1) + e*10240 + h*5120}"
ORDR = [(i, r) for r in (1, 2, 3, 0) for i in range(5)]
def xchg_sum(E, pq, own, tmp, PKS, so, emit):
    st = []
    for r in (1, 2, 3, 0):
        x = own if r == 0 else tmp
        for i in range(5):
            for k in range(4): E(f"v_accvgpr_read_b32 v{x+4*i+k}, a{BA(5+i, r)+k}")
        for i in range(5):
            p = pq[2 * i + (r >> 1)] + 2 * (r & 1)
            for k in range(2): E(f"v_dot2_f32_bf16 v{x+4*i+2*k}, v{p+k}, s8, v{x+4*i+2*k}\nv_dot2_f32_bf16 v{x+4*i+2*k+1}, v{p+k}, s9, v{x+4*i+2*k+1}")
        if r:
            for i in range(5):
                for k in range(2): E(f"v_cvt_pk_bf16_f32 v{PKS+10*(r-1)+2*i+k}, v{x+4*i+2*k}, v{x+4*i+2*k+1}")
            p = PKS + 10 * (r - 1)
            ss = [f"buffer_store_dwordx4 {vr(p)}, v4, {sr(sWS)}, s{so[r]} offen sc1",
                  f"buffer_store_dwordx4 {vr(p+4)}, v4, {sr(sWS)}, s{so[r]} offen offset:1024 sc1",
                  f"buffer_store_dwordx2 {vr(p+8,2)}, v1, {sr(sWS)}, s{so[r]} offen sc1"]
            if emit:
                for t_ in ss: E(t_)
            else: st += [(t_, "YST") for t_ in ss]
    return st
def slot_scalars(off, so, cons):
    o = [f"s_mul_i32 s{sA}, s{sH}, {64*3072}", f"s_mul_i32 s{sE}, s{sW}, 3072", f"s_add_u32 s{sA}, s{sA}, s{sE}", f"s_add_u32 s{sA}, s{sA}, {off}",
         f"s_mul_i32 s{sE}, s{sSP}, {16*3072}", f"s_add_u32 s{cons}, s{sA}, s{sE}", f"s_mul_i32 s{sE}, s{sSP}, {4*3072}", f"s_add_u32 s{sA}, s{sA}, s{sE}"]
    for r in (1, 2, 3):
        d = so[r]
        o += [f"s_add_u32 s{d}, s{sSP}, {r}", f"s_and_b32 s{d}, s{d}, 3", f"s_mul_i32 s{d}, s{d}, {16*3072}", f"s_add_u32 s{d}, s{d}, s{sA}"]
    return o
def inbox_loads(cons, P0, tag):
    o = []
    for r in (1, 2, 3):
        p = P0 + 10 * (r - 1)
        o += [f"s_add_u32 s{sA}, s{sSP}, {r}", f"s_and_b32 s{sA}, s{sA}, 3", f"s_mul_i32 s{sA}, s{sA}, {4*3072}", f"s_add_u32 s{sA}, s{sA}, s{cons}"]
        o += [(f"buffer_load_dwordx4 {vr(p)}, v4, {sr(sWS)}, s{sA} offen sc1", tag), (f"buffer_load_dwordx4 {vr(p+4)}, v4, {sr(sWS)}, s{sA} offen offset:1024 sc1", tag),
              (f"buffer_load_dwordx2 {vr(p+8,2)}, v1, {sr(sWS)}, s{sA} offen sc1", tag)]
    return o
def merge(a, b):
    out = []; k = 0
    na = sum(1 for x in a if isinstance(x, tuple)); seen = 0
    for x in a:
        out.append(x)
        if isinstance(x, tuple):
            seen += 1
            while k < len(b) and (k + 1) * na <= seen * len(b) and " m0," not in out[-1][0]:
                out.append(b[k]); k += 1
    return out + b[k:]
def b_chunk(u, lst, wtags, otags, czero=False, after_barrier=None, first_gap=(), last_gap=(), fillq=None, nxt=True, lim=None, xw=False, af=None, puts=(), ph=None, inc=None, blocks=None):
    mf = []; ph = u if ph is None else ph
    for nb in range(10):
        for r in range(4):
            for n, e in enumerate(snk(2, r)):
                acc = ar(BA(nb, r))
                mf.append(Ins(f"{MF} {acc}, {vr(WF + 8*((10*ph+nb)%6) + 4*e)}, {vr(OB[u] + 4*(r*2+e))}, {'0' if czero and n == 0 else acc}"))
    G = Gaps(mf)
    for nb in range(7):
        n = 0
        for e in range(2):
            for h in range(2):
                G.place(8 * nb + 2 * n, bread(ph, nb + 3, e, h)); n += 1
    for nb in range(1, 10): G.put(8 * nb - 1, lgw(rs(WF + 8 * ((10 * ph + nb) % 6), 8)))
    gb = 62
    if nxt:
        G.put(gb, vmw(wtags, " lgkmcnt(0)")); G.put(gb, Ins("s_barrier"))
        if inc is None: inc = STB if u < 2 else -2 * STB
        for i, r in enumerate(RA): G.place((30 + 2 * i) if i < 2 else (gb - 6 + i), f"v_add_u32 v{r}, {inc & 0xffffffff}, v{r}")
        if after_barrier: G.place(gb + 1, after_barrier, "FLAG")
        n = 0
        for nb in range(3):
            for e in range(2):
                for h in range(2):
                    G.place(gb + 1 + n + n // 4, bread((ph + 1) % 3, nb, e, h)); n += 1
        G.put(79, lgw(rs(WF + 8 * ((10 * ((ph + 1) % 3)) % 6), 8)))
    if otags: G.put(78, vmw(otags))
    if af is not None:
        G.put(af, vmw({"OST"})); G.place(af, f"buffer_store_dwordx2 v[254:255], v{ZV}, {sr(sWS)}, s17 offen sc1", "FLAG")
    for (g_, t_, tag_) in puts: G.place(g_, t_, tag_)
    xq = []
    if xw:
        tb, pq = xw
        xb = opt["xb"] if (not nxt or opt["xb"] != gb) else gb
        if not nxt or xb != gb: G.put(xb, Ins("s_waitcnt lgkmcnt(0)")); G.put(xb, Ins("s_barrier"))
        for n in range(10):
            i, rp = n >> 1, n & 1; t = tb + 8 * (n & 1)
            for h in range(2):
                r = 2 * rp + h
                xq += [(f"v_accvgpr_read_b32 v{t+k}, a{BA(i, r)+k}", 8 * i + 2 * r + 1 + 8, False, None) for k in range(4)]
                xq += [(f"v_cvt_pk_bf16_f32 v{t+4+2*h+k}, v{t+2*k}, v{t+2*k+1}", 0, False, None) for k in range(2)]
            xq.append((f"ds_write_b128 v2, {vr(t+4)} offset:{1024*n}", 0, False, None))
        for n in range(10): G.place(xb + 1 + (n * (78 - xb)) // 10, f"ds_read_b128 {vr(pq[n])}, v3 offset:{1024*n}")
    for t in first_gap: G.put(0, Ins(t))
    g = spread(G, lst, 1 if first_gap else 0, lim or (76 if otags else 60)) if lst else 70
    assert g <= 79, g
    for t in last_gap: G.place(g, t)
    if blocks: G.blk.update(blocks)
    if xq:
        G.cap = opt["xcap"]
        assert not G.fill(xq, 0, xb)
    if fillq is not None:
        G.cap = opt["dense"]
        left = G.fill(fillq, 0)
        return G.emit(), left
    return G.emit()

def gen():
    global problems
    A = Asm()
    A("s_cmp_ge_u32 s2, 256\ns_cbranch_scc1 L_done")
    A("s_load_dwordx16 s[76:91], s[0:1], 0\ns_load_dwordx8 s[92:99], s[0:1], 64\ns_load_dwordx2 s[100:101], s[0:1], 96")
    pX, pK, pV, pWQ, pWO, pW1, pB1, pW2, pB2, pOUT, pDBG, pWS = 76, 78, 80, 82, 84, 88, 90, 92, 94, 96, 98, 100
    A(f"s_memrealtime s[{sN0}:{sN1}]")
    if opt["stamp"]: A(f"s_memtime s[{sInc}:{sInc+1}]")
    if opt["pf"]:
        A(f"s_getpc_b64 s[{sA}:{sA+1}]\nL_pc:\ns_mov_b32 s{sD}, 32768\ns_bitcmp1_b32 s2, 0\ns_cselect_b32 s{sC}, L_fo-L_pc-{opt['foff']}, s{sD}\ns_bitcmp1_b32 s2, 3\ns_cselect_b32 s{sC}, s{sC}, 0\nv_lshlrev_b32 v98, 7, v0\nv_add_u32 v98, s{sC}, v98")
        A(f"global_load_dword v99, v98, s[{sA}:{sA+1}]")
    A("v_lshrrev_b32 v14, 6, v0\nv_and_b32 v0, 63, v0")
    A(f"v_readfirstlane_b32 s{sW}, v14")
    A(f"s_and_b32 s{sA}, s2, 7\ns_lshr_b32 s{sB}, s2, 3\ns_and_b32 s{sC}, s{sB}, 3\ns_lshl_b32 s{sA}, s{sA}, 2\ns_add_u32 s{sHEAD}, s{sA}, s{sC}")
    A(f"s_lshr_b32 s{sQT}, s{sB}, 2\ns_lshl_b32 s{sB}, s{sQT}, 4\ns_lshl_b32 s{sC}, s{sW}, 2\ns_add_u32 s{sQB0}, s{sB}, s{sC}")
    A(f"s_lshr_b32 s{sC}, s{sHEAD}, 1\ns_add_u32 s{sD}, s{sB}, s{sC}\ns_mul_i32 s{sE}, s{sD}, 20480")
    A("v_and_b32 v3, 15, v0\nv_lshrrev_b32 v4, 4, v0\nv_mul_u32_u24 v5, 1280, v3\nv_mul_u32_u24 v6, 320, v14\nv_lshlrev_b32 v7, 3, v4\nv_add3_u32 v5, v5, v6, v7")
    A("v_mov_b32 v96, 0\nv_mov_b32 v94, 0")
    A(f"s_or_b32 s{sKo}, s2, s{sW}")
    A("s_waitcnt lgkmcnt(0)")
    srd(A, sX, pX, 2621440)
    srd(A, sDBG, pDBG, 256)
    A(f"s_cmp_lg_u32 s{sKo}, 0\ns_cbranch_scc1 L_nonc")
    A(f"s_or_b32 s{sKo}, s{sN0}, 1\nv_mov_b32 v80, s{sKo}\nv_mov_b32 v81, s{sN1}")
    A(f"buffer_store_dwordx2 v[80:81], v96, {sr(sDBG)}, 0 offen sc1")
    A("L_nonc:")
    A(f"s_bitcmp1_b32 s{sHEAD}, 0\ns_cbranch_scc1 L_nox")
    for i in range(5):
        A(f"buffer_load_dwordx2 {vr(100+4*i,2)}, v5, {sr(sX)}, s{sE} offen offset:{64*i}", "LX")
        A(f"buffer_load_dwordx2 {vr(102+4*i,2)}, v5, {sr(sX)}, s{sE} offen offset:{64*i+32}", "LX")
    A("L_nox:")
    for j in range(3):
        A(f"v_add_u32 v82, {64*j}, v0\nv_mul_u32_u24 v83, 2731, v82\nv_lshrrev_b32 v83, 16, v83")
        A(f"v_mul_u32_u24 v97, 24, v83\nv_sub_u32 v82, v82, v97\nv_and_b32 v97, 6, v83\nv_xor_b32 v82, v82, v97\nv_lshlrev_b32 v82, 4, v82")
        A(f"v_mul_u32_u24 v97, 12288, v83\nv_add_u32 v97, v97, v82\nv_add_u32 v{DW[j]}, {(-1024*j) & 0xffffffff}, v97")
        A(f"v_mul_u32_u24 v97, 384, v83\nv_add_u32 v97, v97, v82\nv_add_u32 v{84+j}, {(128 - 1024*j) & 0xffffffff}, v97")
    A(f"v_lshrrev_b32 v83, 3, v0\nv_and_b32 v82, 7, v0\nv_and_b32 v97, 6, v83\nv_xor_b32 v82, v82, v97\nv_lshlrev_b32 v82, 4, v82\nv_mul_u32_u24 v97, 3072, v83\nv_add_u32 v{DW1}, v97, v82")
    A(f"s_mul_i32 s{sA}, s{sHEAD}, 384")
    A(f"s_add_u32 s{sWQ}, s{pWQ}, s{sA}\ns_addc_u32 s{sWQ+1}, s{pWQ+1}, 0\ns_and_b32 s{sWQ+1}, s{sWQ+1}, 0xffff\ns_sub_u32 s{sWQ+2}, {640*12288}, s{sA}\ns_mov_b32 s{sWQ+3}, 0x20000")
    A(f"s_lshr_b32 s{sF}, s{sHEAD}, 3\ns_lshl_b32 s{sF}, s{sF}, 2\ns_and_b32 s{sVo2}, s{sHEAD}, 3\ns_add_u32 s{sNeg}, s{sF}, s{sVo2}\ns_mul_i32 s{sF}, s{sNeg}, 192")
    A(f"s_and_b32 s{sVo2}, s2, 1\ns_lshl_b32 s{sVo2}, s{sVo2}, 7\ns_add_u32 s{sF}, s{sF}, s{sVo2}")
    A(f"s_add_u32 s{sW1}, s{pW1}, s{sF}\ns_addc_u32 s{sW1+1}, s{pW1+1}, 0\ns_and_b32 s{sW1+1}, s{sW1+1}, 0xffff\ns_sub_u32 s{sW1+2}, {640*3072}, s{sF}\ns_mov_b32 s{sW1+3}, 0x20000")
    A(f"s_mul_i32 s{sWb}, s{sW}, 6144")
    A(f"s_mul_i32 s{sA}, s{sW}, {16*12288}\ns_mul_i32 s{sB}, s{sW}, {16*3072}\ns_mul_i32 s{sC}, s{sQB0}, 20480\ns_lshl_b32 s{sM}, s{sW}, 11")
    XB = [SB, SB + 32, PB[0]]
    def wdma(ch):
        sl = ch % 3; o = []
        o.append(f"s_add_u32 m0, s{sWb}, {VRING + sl*STG}")
        o += [(f"buffer_load_dwordx4 v{DW[j]}, {sr(sWQ)}, s{sA} offen offset:{1024*j} lds", f"W{ch}") for j in range(3)]
        o.append(f"s_add_u32 s{sA}, s{sA}, {8*12288}")
        o.append(f"s_add_u32 m0, s{sWb}, {VRING + sl*STG + 3072}")
        o += [(f"buffer_load_dwordx4 v{DW[j]}, {sr(sWQ)}, s{sA} offen offset:{1024*j} lds", f"W{ch}") for j in range(3)]
        o.append(f"s_add_u32 s{sA}, s{sA}, {56*12288}")
        o.append(f"s_add_u32 m0, s{sM}, {W1RING + sl*8192}")
        o.append((f"buffer_load_dwordx4 v{DW1}, {sr(sW1)}, s{sB} offen lds", f"W{ch}"))
        o.append(f"s_add_u32 s{sB}, s{sB}, {8*3072 - 1024}")
        o.append((f"buffer_load_dwordx4 v{DW1}, {sr(sW1)}, s{sB} offen offset:1024 lds", f"W{ch}"))
        o.append(f"s_add_u32 s{sB}, s{sB}, {56*3072 + 1024}")
        return o
    def xload(ch):
        o = [(f"buffer_load_dwordx4 {vr(XB[ch%3] + 4*(qb*2+e))}, v{XV[qb]}, {sr(sWS)}, s{sC} offen offset:{1024*e} sc1", f"X{ch}") for qb in range(4) for e in range(2)]
        o.append(f"s_add_u32 s{sC}, s{sC}, 2048")
        return o
    def kvdma(srd_, slotbase, t, tag):
        o = []
        for hf in range(2):
            o.append(f"s_add_u32 s{sKo2}, s{sWb}, {t*STG + 3072*hf}")
            o.append(f"s_add_u32 m0, s{sWb}, {slotbase + 3072*hf}")
            o += [(f"buffer_load_dwordx4 v{DSR[j]}, {sr(srd_)}, s{sKo2} offen offset:{1024*j} lds", tag) for j in range(3)]
        return o
    straight(A, wdma(0))
    srd(A, sB1, pB1, 3072)
    BL = [88, 90, 92, 124]
    for ct in range(4): A(f"buffer_load_dwordx2 {vr(BL[ct], 2)}, v7, {sr(sB1)}, s{sF} offen offset:{32*ct}", "B1")
    straight(A, wdma(1))
    A(f"s_mul_i32 s{sKo}, s{sHEAD}, 786432")
    for (d, lo) in ((sK, pK), (sV, pV)):
        A(f"s_add_u32 s{d}, s{lo}, s{sKo}\ns_addc_u32 s{d+1}, s{lo+1}, 0\ns_sub_u32 s{d}, s{d}, 128\ns_subb_u32 s{d+1}, s{d+1}, 0\ns_and_b32 s{d+1}, s{d+1}, 0xffff")
        A(f"s_mov_b32 s{d+2}, {786432 + 128}\ns_mov_b32 s{d+3}, 0x20000")
    srd(A, sWS, pWS, WS_SZ)
    srd(A, sOUT, pOUT, 2621440)
    srd(A, sB2, pB2, 1280)
    srd(A, sWO, pWO, 6144 * 1280)
    srd(A, sW2, pW2, 1536 * 1280)
    if opt["stamp"]:
        A(f"s_mov_b32 s78, s{sN0}\ns_mov_b32 s79, s{sInc}"); NST[0] = 1
        if opt["xid"]: A("s_getreg_b32 s79, hwreg(HW_REG_XCC_ID)")
    A(f"s_and_b32 s{sSP}, s2, 3\ns_bfe_u32 s{sKo}, s2, 0x10002\ns_lshl_b32 s{sKo}, s{sKo}, 3\ns_bfe_u32 s{sMT}, s2, 0x30003\ns_add_u32 s{sMT}, s{sMT}, s{sKo}\ns_lshr_b32 s{sNT}, s2, 6")
    A(f"s_lshr_b32 s{sKH}, s{sW}, 1\ns_and_b32 s{sQH}, s{sW}, 1")
    A(f"s_lshl_b32 s{sVo}, s{sQT}, 7\ns_add_u32 s{sVo}, s{sVo}, {LF_OFF}")
    A(f"s_bitcmp1_b32 s{sHEAD}, 0\ns_cbranch_scc1 L_noln")
    A(f"v_lshlrev_b32 v8, 6, v3\nv_add_u32 v8, {LDS_LN}, v8\nv_lshl_add_u32 v9, v14, 2, v4\nv_lshl_add_u32 v9, v9, 2, v8")
    A("v_mul_u32_u24 v10, 5120, v14\nv_lshl_add_u32 v10, v0, 4, v10")
    A(f"s_mov_b32 s{sKo}, 0x3f803f80\ns_mov_b32 s{sKo2}, 0x3f80\ns_mov_b32 s{sSlot}, 0x3f800000")
    A("s_waitcnt vmcnt(20)")
    A(f"v_dot2_f32_bf16 v11, v100, s{sKo}, 0\nv_dot2_f32_bf16 v12, v101, s{sKo}, 0")
    for i in range(2, 20): A(f"v_dot2_f32_bf16 v{11+(i&1)}, v{100+i}, s{sKo}, v{11+(i&1)}")
    A("s_nop 2\nv_add_f32 v11, v11, v12")
    def xsum(off):
        A(f"ds_write_b32 v9, v11 offset:{off}\ns_waitcnt lgkmcnt(0)\ns_barrier")
        for i in range(4): A(f"ds_read_b128 {vr(16+4*i)}, v8 offset:{off+16*i}")
        A("s_waitcnt lgkmcnt(0)")
        for i in range(4): A(f"v_pk_add_f32 {vr(16+2*i,2)}, {vr(16+2*i,2)}, {vr(24+2*i,2)}")
        for i in range(2): A(f"v_pk_add_f32 {vr(16+2*i,2)}, {vr(16+2*i,2)}, {vr(20+2*i,2)}")
        A("v_pk_add_f32 v[16:17], v[16:17], v[18:19]\nv_add_f32 v16, v16, v17")
    xsum(0)
    A(f"v_mul_f32 v13, {fh(-1/640)}, v16")
    for i in range(20): A(f"v_dot2_f32_bf16 v{40+2*i}, v{100+i}, s{sKo2}, v13\nv_dot2_f32_bf16 v{41+2*i}, v{100+i}, s{sSlot}, v13")
    A("v_pk_mul_f32 v[36:37], v[40:41], v[40:41]\nv_pk_mul_f32 v[38:39], v[42:43], v[42:43]")
    for i in range(2, 20): A(f"v_pk_fma_f32 {vr(36+2*(i&1),2)}, {vr(40+2*i,2)}, {vr(40+2*i,2)}, {vr(36+2*(i&1),2)}")
    A("v_pk_add_f32 v[36:37], v[36:37], v[38:39]\nv_add_f32 v11, v36, v37")
    xsum(1024)
    A(f"v_mov_b32 v12, {fh(1e-5)}\nv_fmac_f32 v12, {fh(1/640)}, v16\nv_rsq_f32 v12, v12\ns_nop 0\nv_mul_f32 v12, {fh(CSC)}, v12")
    for i in range(5):
        for k in range(4): A(f"v_pk_mul_f32 {vr(40+8*i+2*k,2)}, {vr(40+8*i+2*k,2)}, v[12:13] op_sel_hi:[1,0]")
        for k in range(4): A(f"v_cvt_pk_bf16_f32 v{16+4*i+k}, v{40+8*i+2*k}, v{41+8*i+2*k}")
        if i == 4: A(f"s_add_u32 s{sE}, s{sE}, 4096")
        A(f"buffer_store_dwordx4 {vr(16+4*i)}, v10, {sr(sWS)}, s{sE} offen offset:{1024*i if i < 4 else 0} sc1")
    A(f"s_cmp_lg_u32 s{sW}, 0\ns_cbranch_scc1 L_ln2")
    A(f"buffer_load_dwordx2 v[94:95], v96, {sr(sDBG)}, 0 offen sc1")
    A("L_ln2:")
    A("s_waitcnt vmcnt(0)\ns_barrier")
    A("L_noln:")
    A(f"s_cmp_lg_u32 s{sW}, 0\ns_cbranch_scc1 L_w0a")
    A(f"v_mov_b32 v{T0}, v94\nv_mov_b32 v{T1}, v95\ns_nop 0")
    def cond_non():
        A(f"v_readfirstlane_b32 s{sN0}, v{T0}\nv_readfirstlane_b32 s{sN1}, v{T1}\ns_nop 0\ns_cmp_eq_u32 s{sN0}, 0")
    poll(A, "L_pnon", 96, sDBG, "0", cond_non, sleep=8, precheck=True)
    A(f"s_bitcmp1_b32 s{sHEAD}, 0\ns_cbranch_scc1 L_w0a")
    A(f"s_lshl_b32 s{sKo}, s{sHEAD}, 2\ns_add_u32 s{sKo}, s{sKo}, s{sVo}")
    A(f"buffer_store_dwordx2 {vr(T0,2)}, v96, {sr(sWS)}, s{sKo} offen sc1")
    A("L_w0a:")
    stamp(A, 1)
    for j in range(3): A(f"v_mov_b32 v{DSR[j]}, v{84+j}")
    for qb in range(4): A(f"v_lshlrev_b32 v17, 4, v0\nv_add_u32 v{XV[qb]}, {XS_OFF + qb*20480}, v17")
    A("v_lshrrev_b32 v16, 2, v0\nv_and_b32 v17, 6, v16\nv_and_b32 v18, 3, v0")
    A("v_lshrrev_b32 v19, 1, v18\nv_and_b32 v20, 1, v18\nv_lshlrev_b32 v20, 3, v20")
    A(f"v_mul_u32_u24 v21, 384, v16\nv_add_u32 v21, {VRING}, v21")
    for m in range(4):
        A(f"v_add_u32 v22, {2*m}, v19\nv_xor_b32 v22, v22, v17\nv_lshlrev_b32 v22, 4, v22\nv_add3_u32 v{VA[m]}, v21, v22, v20\nv_add_u32 v{VA[m]}, {STG}, v{VA[m]}")
    for e in range(2):
        A(f"v_add_u32 v22, {4*e}, v18\nv_xor_b32 v22, v22, v17\nv_lshlrev_b32 v22, 4, v22\nv_add_u32 v{WA[e]}, v21, v22\nv_add_u32 v{WA2[e]}, {2*STG}, v{WA[e]}")
    A(f"v_lshlrev_b32 v21, 7, v16\nv_add_u32 v21, {W1RING}, v21")
    for ct in range(4):
        A(f"v_add_u32 v22, {2*ct}, v19\nv_xor_b32 v22, v22, v17\nv_lshlrev_b32 v22, 4, v22\nv_add3_u32 v{W1A[ct]}, v21, v22, v20")
    A("v_and_b32 v16, 15, v0\nv_and_b32 v17, 6, v16\nv_lshrrev_b32 v18, 4, v0\nv_mul_u32_u24 v21, 384, v16")
    for e in range(2):
        A(f"v_add_u32 v22, {4*e}, v18\nv_xor_b32 v22, v22, v17\nv_lshlrev_b32 v22, 4, v22\nv_add_u32 v{KA[e]}, v21, v22")
    A(f"v_lshlrev_b32 v40, 3, v16\nv_mov_b32 v41, {LDS_FL}")
    HACC = {12: PB[1], 13: PB[1] + 16, 14: NREF, 15: QV + 16}
    A("s_waitcnt vmcnt(0)")
    if opt["wqpf"]:
        sPFa = sSlot
        A(f"s_movk_i32 s{sPFa}, {12288-384}\ns_bitcmp1_b32 s{sHEAD}, 0\ns_cbranch_scc0 L_nopf")
        A(f"s_lshl_b32 s{sKo}, s{sQT}, 2\ns_add_u32 s{sKo}, s{sKo}, s{sW}\ns_lshl_b32 s{sKo}, s{sKo}, 4\ns_add_u32 s{sKo}, s{sKo}, 127")
        A(f"s_mul_i32 s{sKo2}, s{sKo}, 3072\ns_mul_i32 s{sKo}, s{sKo}, 12288")
        A(f"v_lshrrev_b32 v120, 2, v0\nv_and_b32 v121, 3, v0\nv_min_u32 v121, 2, v121\nv_lshlrev_b32 v121, 7, v121\nv_mul_u32_u24 v122, 12288, v120\nv_add3_u32 v122, v122, v121, s{sPFa}")
        A(f"v_bfe_u32 v121, v0, 1, 1\nv_mul_u32_u24 v121, 192, v121\nv_mul_u32_u24 v123, 3072, v120\nv_add_u32 v123, v123, v121\nv_and_b32 v121, 1, v0\nv_mul_u32_u24 v121, 124, v121\nv_add_u32 v123, v123, v121\nv_add_u32 v123, {3072-192}, v123")
        A(f"buffer_load_dword v121, v122, {sr(sWQ)}, s{sKo} offen\nbuffer_load_dword v121, v122, {sr(sWQ)}, s{sKo} offen offset:384\nbuffer_load_dword v121, v123, {sr(sW1)}, s{sKo2} offen")
        A("L_nopf:")
    for ct in range(4):
        h = HACC[12 + ct]
        for r in range(2):
            A(f"v_lshlrev_b32 v{h+2*r}, 16, v{BL[ct]+r}\nv_and_b32 v{h+2*r+1}, 0xffff0000, v{BL[ct]+r}")
        for r in range(4): A(f"v_mul_f32 v{h+r}, {fh(CSC)}, v{h+r}")
        for qb in range(1, 4):
            for r in range(4): A(f"v_mov_b32 v{h+4*qb+r}, v{h+r}")
    A(f"s_cmp_lg_u32 s{sW}, 0\ns_cbranch_scc1 L_w0b")
    A(f"s_mov_b32 s{sKo}, s{sA}\ns_mov_b32 s{sKo2}, s{sB}")
    poll(A, "L_pln", 40, sWS, f"s{sVo}", cond_nonce(A, "0xffff"), sleep=opt["lns"])
    A(f"s_mov_b32 s{sA}, s{sKo}\ns_mov_b32 s{sB}, s{sKo2}")
    A(f"v_mov_b32 v42, s{sN0}\nv_mov_b32 v43, s{sN1}\nds_write_b64 v41, v[42:43]\ns_waitcnt lgkmcnt(0)")
    A("L_w0b:")
    A("s_barrier")
    stamp(A, 2)
    straight(A, xload(0) + xload(1))
    A("ds_read_b64 v[42:43], v41")
    def front(A, NH, sfx):
        NT = 12 + NH; CH = 8 * NT; OFF = (5 - (10 * NT - 1)) % 6
        order = [list(range(NT))] * 9 + [([14, 15, 12, 13] if NH == 4 else [12, 13]) + list(range(12))]
        def wread(ch, pos, e, h):
            ct = order[ch][pos]
            n = NT * ch + pos + OFF; d = KV + 8 * (n % 6) + 4 * e + 2 * h; sl = ch % 3
            if ct < 12:
                ks, p = ct >> 1, ct & 1
                a, o = (WA[ks & 1], sl * STG) if sl < 2 else (WA2[ks & 1], 0)
                return f"ds_read_b64_tr_b16 {vr(d,2)}, v{a} offset:{o + (ks >> 1)*128 + 8*p + e*12288 + h*6144}"
            return f"ds_read_b64_tr_b16 {vr(d,2)}, v{W1A[ct-12]} offset:{sl*8192 + e*4096 + h*2048}"
        mf = []
        for ch in range(10):
            for pos in range(NT):
                ct = order[ch][pos]; n = NT * ch + pos + OFF
                for qb in range(4):
                    for i_, e in enumerate(snk(2, qb)):
                        acc = ar(4 * (ct * 4 + qb)) if ct < 12 else vr(HACC[ct] + 4 * qb)
                        c = "0" if (ch == 0 and i_ == 0 and ct < 12) else acc
                        mf.append(Ins(f"{MF} {acc}, {vr(KV + 8*(n%6) + 4*e)}, {vr(XB[ch%3] + 4*(qb*2+e))}, {c}"))
        G = Gaps(mf)
        for pos in range(3):
            for e in range(2):
                for h in range(2): A(wread(0, pos, e, h))
        A.l.append(lgw(rs(KV + 8 * (OFF % 6), 8)))
        A(f"v_readfirstlane_b32 s{sN0}, v42\nv_readfirstlane_b32 s{sN1}, v43")
        A.l.append(vmw({"X0"}))
        stamp(A, 3); zst(A, 6, 1)
        if opt["zoom"] == 6:
            for ch in range(10):
                Z = Asm(); zst(Z, 6, 2 + ch); G.blk[CH * ch + CH - 1] = Z.l
        late_fill = []
        for ch in range(10):
            b = CH * ch
            for pos in range(NT - 3):
                n = 0
                for e in range(2):
                    for h in range(2):
                        G.place(b + 8 * pos + (2 * n if ch < 9 else 4 * (n >> 1)), wread(ch, pos + 3, e, h)); n += 1
            gb = b + CH - 18
            G.put(gb, vmw({f"W{ch+1}"} if ch < 9 else {"K0", "V0"}, " lgkmcnt(0)")); G.put(gb, Ins("s_barrier"))
            if ch < 9:
                n = 0
                for pos in range(3):
                    for e in range(2):
                        for h in range(2):
                            G.place(gb + 1 + n + n // 4, wread(ch + 1, pos, e, h)); n += 1
                G.put(b + CH - 2, vmw({f"X{ch+1}"}))
            else:
                for ks in range(6): G.place(gb + 1 + 2 * ks, kread(0, 0, ks))
            for pos in range(NT):
                n = NT * ch + pos + OFF
                if b + 8 * pos - 1 >= 0: G.put(b + 8 * pos - 1, lgw(rs(KV + 8 * (n % 6), 8)))
            ke = opt["kearly"]
            if ch + 2 < 10:
                lst = wdma(ch + 2) + xload(ch + 2)
                if ke == 1 and ch in (6, 7): lst += kvdma(sK, KRING + (ch - 6) * STG, ch - 6, f"K{ch-6}")
                if ke == 2 and ch in (4, 5, 6, 7): lst += kvdma(sK, KRING + ((ch - 4) >> 1) * STG, (ch - 4) >> 1, f"K{(ch-4)>>1}")[5 * (ch & 1): 5 * (ch & 1) + 5]
            elif ch == 8: lst = ([] if ke else kvdma(sK, KRING, 0, "K0")) + kvdma(sV, VRING + STG, 0, "V0")
            else: lst = ([] if ke else kvdma(sK, KRING + STG, 1, "K1")) + kvdma(sV, VRING + 2 * STG, 1, "V1")
            if ch == opt["kvw"] and ch:
                q_ = [f"s_lshr_b32 s{sE}, s{sQB0}, 2", f"s_mul_i32 s{sKo}, s{sE}, 2304", f"s_mul_i32 s{sE}, s{sE}, 1536", "v_lshlrev_b32 v60, 7, v0", "v_add_u32 v60, 128, v60",
                      f"v_min_u32 v61, {128 + 17*128}, v60", f"v_min_u32 v60, {128 + 11*128}, v60",
                      (f"buffer_load_dword v62, v61, {sr(sK)}, s{sKo} offen", 0, False, "PF"), (f"buffer_load_dword v62, v60, {sr(sV)}, s{sE} offen", b + 40, False, "PF")]
                late_fill.append((q_, b + 2))
            g = spread(G, lst, b, b + (CH - 3 if ch < 9 else CH - 20))
            assert g <= b + CH, g
        if opt["pfm"]:
            b_ = CH * opt["pfm"]
            G.blk[b_ + 3] = [Ins(t) for t in ("s_getpc_b64 s[34:35]", f"L_pc3{sfx}:", f"s_bfe_u32 s{sE}, s2, 0x10003", f"s_lshl_b32 s{sE}, s{sE}, 2", f"s_add_u32 s{sE}, s{sE}, s{sW}",
                             f"s_min_u32 s{sE}, s{sE}, 4", f"s_lshl_b32 s{sE}, s{sE}, 13", f"s_add_u32 s{sKo}, s{sE}, L_mid{sfx}-L_pc3{sfx}", f"s_add_u32 s{sE}, s{sE}, L_common-L_pc3{sfx}-8192", f"s_cmp_eq_u32 s{sKo}, L_mid{sfx}-L_pc3{sfx}",
                             f"s_cselect_b32 s{sE}, s{sKo}, s{sE}", f"s_ashr_i32 s{sKo}, s{sE}, 31", f"s_add_u32 s34, s34, s{sE}", f"s_addc_u32 s35, s35, s{sKo}")]
            late_fill.append((["v_lshlrev_b32 v47, 7, v0", ("global_load_dword v47, v47, s[34:35]", b_ + 9, False, "PF")], b_ + 5))
        for q_, g_ in late_fill: assert not G.fill(q_, g_)
        b = 9 * CH
        spread(G, kvdma(sK, KRING + 2 * STG, 2, "K2"), b + CH - 17, b + CH - 1)
        k0 = -2.0 * LOG2E * math.sqrt(2.0 / math.pi) / CSC; k1 = k0 * 0.044715 / (CSC * CSC)
        HS = {12: sVo2, 14: sVo}
        pre = [f"s_mov_b32 s{sA}, {fh(CSC)}", f"s_mov_b32 s{sB}, {fh(k1)}", f"s_mul_i32 s{sC}, s{sQB0}, {240*1024}", f"s_add_u32 s{sC}, s{sC}, {OH_OFF + (192 if NH == 4 else 194)*1024}",
               f"s_mul_i32 s{sD}, s{sNeg}, 3072", f"s_add_u32 s{sVo2}, s{sC}, s{sD}", f"s_add_u32 s{sVo}, s{sVo2}, 1024"]
        pre += [f"s_lshl_b32 s{sFL}, s{sMT}, 1", f"s_add_u32 s{sFL}, s{sFL}, s{sQH}", f"s_lshl_b32 s{sFL}, s{sFL}, 8", f"s_add_u32 s{sG}, s{sFL}, {HF_OFF}",
                f"s_lshl_b32 s{sE}, s{sSP}, 1", f"s_add_u32 s{sE}, s{sE}, s{sKH}", f"s_lshl_b32 s{sE}, s{sE}, 2", f"s_lshl_b32 s{sMSK}, 15, s{sE}",
                f"s_lshl_b32 s{sE}, s{sSP}, 3", f"s_lshl_b32 s{sD}, s{sKH}, 1", f"s_add_u32 s{sE}, s{sE}, s{sD}", f"s_lshl_b32 s{sSlot}, 0x33, s{sE}",
                f"s_lshl_b32 s{sE}, s{sQB0}, 6", f"s_and_b32 s{sE}, s{sE}, 0xffffff00", f"s_lshl_b32 s{sD}, s{sHEAD}, 3", f"s_add_u32 s{sQT}, s{sE}, s{sD}"]
        g = b - CH + 2
        for t in pre: g = G.place(g, t) + 1
        assert g < b
        G.place(b - 30, f"v_mov_b32 v{T0}, {fh(k0)}"); G.place(b - 26, "v_lshlrev_b32 v10, 4, v0")
        def gelu_q(ct, tmp):
            q = []
            for qb in range(4):
                y = tmp + 8 * (qb & 1); pk = y + 4; so_ = (sE, sF)[qb & 1]
                ad = (f"s_add_u32 s{so_}, s{HS[ct]}, {qb*240*1024}", 0, False, None)
                st = [ad, (f"buffer_store_dwordx4 {vr(pk)}, v10, {sr(sWS)}, s{so_} offen sc1", 0, False, "H")]
                q.append(tuple(f(HACC[ct] + 4 * qb, y, pk, []) + f(HACC[ct + 1] + 4 * qb, y, pk + 2, st) for f in (gelu_ops, gelu_pk)))
            return q
        g14 = gelu_q(14 if NH == 4 else 12, XB[1])
        def two_streams(G, tiles, g0, e0, partial=False, carry=False):
            import copy
            best = None
            for nfit in range(len(tiles), -1, -1):
                G2 = copy.deepcopy(G); ok = True
                for par in range(2):
                    q_ = [x for t_ in tiles[par:nfit:2] for x in t_[0]]
                    if q_: q_[0] = (q_[0][0], e0, False, None)
                    if G2.fill(q_, g0): ok = False
                if ok: break
            part = []
            np_ = nfit + 1 if (partial and nfit < len(tiles)) else nfit
            for par in ((nfit + 1) & 1, nfit & 1):
                q_ = [x for t_ in tiles[par:np_:2] for x in t_[0]]
                if q_: q_[0] = (q_[0][0], e0, False, None)
                part += G.fill(q_, g0)
            print("gelu tiles hidden:", nfit, "of", len(tiles), "partial left", len(part), file=sys.stderr)
            if carry: return nfit
            return part + [x for t_ in tiles[np_:] for x in t_[1 if opt["pk"] else 0]]
        if NH == 4: left14 = two_streams(G, g14, b, b + 20, partial=True); ndone = 0
        else: left14 = []; ndone = two_streams(G, g14, b, b + 20, carry=True)
        q = []
        n = 0
        for ks in range(6):
            for qb in range(4):
                f = qb * 6 + ks; x = PB[0] + 16 * (n & 1); n += 1
                e = b + 8 * NH + 16 * ks + 8 + 2 * qb + 1 + 5
                for p in range(2):
                    for r in range(4): q.append((f"v_accvgpr_read_b32 v{x+4*p+r}, a{4*((2*ks+p)*4+qb)+r}", e, False, None))
                d = (x + 8) if f < 16 else QV + 4 * (f - 16)
                for i in range(4): q.append((f"v_cvt_pk_bf16_f32 v{d+i}, v{x+2*i}, v{x+2*i+1}", 0, False, None))
                if f < 16:
                    for i in range(4): q.append((f"v_accvgpr_write_b32 a{192+4*f+i}, v{d+i}", 0, False, None))
        left = left14 + G.fill(q, b)
        print("Q conversion ops exposed:", len(left) - len(left14), file=sys.stderr)
        A.ext(G.emit())
        A(f"L_mid{sfx}:")
        stamp(A, 4); zst(A, 5, 1)
        A("s_nop 7")
        straight(A, left)
        zst(A, 5, 2)
        for i in range(4): A(f"ds_read_b64 {vr(244+2*i,2)}, v{VA[i]} offset:{6144*i}")
        A.l.append(lgw(rs(244, 8)))
        for i in range(8): A(f"v_and_b32 v{244+i}, 0x7fff7fff, v{244+i}")
        for i in range(4): A(f"v_pk_max_u16 v{244+i}, v{244+i}, v{248+i}")
        A("v_pk_max_u16 v244, v244, v245\nv_pk_max_u16 v246, v246, v247\nv_pk_max_u16 v244, v244, v246\nv_lshlrev_b32 v245, 16, v244\nv_max_u32 v244, v244, v245")
        A(f"v_cmp_le_u32 vcc, {fh(2.0**-6)}, v244\ns_mov_b32 s{sBI}, {fh(-BIAS_LO)}\ns_mov_b32 s{sLM}, {fh(2.0**(112-BIAS_LO))}\ns_cmp_lg_u64 vcc, 0")
        A(f"s_cselect_b32 s{sBI}, {fh(-BIAS)}, s{sBI}\ns_cselect_b32 s{sLM}, {fh(2.0**(112-BIAS))}, s{sLM}")
        zst(A, 5, 3)
        G = Gaps(qk_mfmas(set())); qk_reads(G, 0, vpre=False)
        gq = gelu_q(12, 240)[ndone:]
        for kb in range(4):
            mq = []
            for qb in range(4):
                m = NREF + 4 * qb; s_ = S(kb, qb); e = 6 * (4 * kb + qb) + 5 + 8
                if kb == 0: mq += [(f"v_max3_f32 v{m}, v{s_}, v{s_+1}, v{s_+2}", e, False, None), (f"v_max_f32 v{m}, v{m}, v{s_+3}", e, False, None)]
                else: mq += [(f"v_max3_f32 v{m}, v{m}, v{s_}, v{s_+1}", e, False, None), (f"v_max3_f32 v{m}, v{m}, v{s_+2}, v{s_+3}", e, False, None)]
            mleft = G.fill(mq, 0)
            assert kb == 3 or not mleft
        left = two_streams(G, gq, 0, 0, partial=True)
        A.ext(G.emit())
        zst(A, 5, 4)
        A.l.append(vmw({"K1"})); A("s_barrier")
        zst(A, 5, 5)
        for r in KA: A(f"v_add_u32 v{r}, {STG}, v{r}")
        A("s_nop 4")
        for ks in range(6): A(kread(0, 0, ks))
        straight(A, mleft)
        for sw in ("v_permlane32_swap_b32", "v_permlane16_swap_b32"):
            for qb in range(4): A(f"v_mov_b32 v{NREF+4*qb+1}, v{NREF+4*qb}")
            for qb in range(4): A(f"{sw} v{NREF+4*qb}, v{NREF+4*qb+1}")
            for qb in range(4): A(f"v_max_f32 v{NREF+4*qb}, v{NREF+4*qb}, v{NREF+4*qb+1}")
        for qb in range(4): A(f"v_sub_f32 v{NREF+4*qb}, s{sBI}, v{NREF+4*qb}")
        for qb in range(4):
            for r in range(1, 4): A(f"v_mov_b32 v{NREF+4*qb+r}, v{NREF+4*qb}")
        zst(A, 5, 6)
        straight(A, left)
        zst(A, 5, 7)
    head_ = list(A.l)
    FE = Asm(); front(FE, 4, "e"); FO = Asm(); front(FO, 2, "o")
    tr_o = head_ + FO.l; auto_vm(tr_o); auto_lgkm(tr_o)
    A("s_bitcmp1_b32 s2, 0\ns_cbranch_scc1 L_fo")
    A.ext(FE.l)
    A("L_common:")
    k_common = len(A.l)
    sm = sm_ops(0)
    L2 = 240
    for i in range(17):
        kb, qb = (i >> 2) & 3, i & 3
        if i < 16:
            for k in range(2): A(f"v_pk_add_f32 {vr(S(kb,qb)+2*k,2)}, {vr(S(kb,qb)+2*k,2)}, {vr(NREF+4*qb,2)}")
            for t in sm[i][0]: A(t)
        else: A("s_nop 0")
        if i > 0:
            j = i - 1; s_ = S(j >> 2, j & 3); l_ = L2 + 2 * (j & 3)
            if j < 4: A(f"v_pk_add_f32 {vr(l_,2)}, {vr(s_,2)}, {vr(s_+2,2)}")
            else:
                for k in range(2): A(f"v_pk_add_f32 {vr(l_,2)}, {vr(l_,2)}, {vr(s_+2*k,2)}")
            for t in sm[j][2]: A(t)
    for qb in range(4): A(f"v_add_f32 v{LS[qb]}, v{L2+2*qb}, v{L2+2*qb+1}")
    A(f"s_add_u32 s{sKo}, s{sWb}, {3*STG}\ns_mov_b32 s{sCnt}, 5")
    A(f"s_add_u32 s{sE}, s{sQT}, {HF_OFF}")
    A(f"v_mov_b32 v{T0}, s{sN0}\nv_mov_b32 v{T1}, s{sN1}")
    bp, bq = b_addr_ops()
    for t in bp: A(t)
    stamp(A, 5); zst(A, 5, 8); zst(A, 7, 1)
    A("s_waitcnt lgkmcnt(0)")
    Gf = gen_step(0, 0, first=True)
    Gf.place(177, f"buffer_store_dwordx2 {vr(T0,2)}, v{ZV}, {sr(sWS)}, s{sE} offen sc1")
    assert not Gf.fill(bq, 0, 192)
    sf = Gf.emit()
    A(f"s_getpc_b64 s[16:17]\nL_pc2:\ns_lshr_b32 s19, s2, 3\ns_lshl_b32 s19, s19, 2\ns_add_u32 s19, s19, s{sW}\ns_lshl_b32 s18, s{sW}, 13")
    A("s_add_u32 s18, s18, L_tail-L_pc2\ns_add_u32 s16, s16, s18\ns_addc_u32 s17, s17, 0")
    A(f"s_mul_i32 s18, s19, 15360\ns_mul_i32 s24, s{sSP}, {1536*1280}\ns_add_u32 s18, s18, s24\ns_add_u32 s26, s18, 8192")
    A(f"s_mul_i32 s19, s19, 3840\ns_mul_i32 s24, s{sSP}, {384*1280}\ns_add_u32 s19, s19, s24\ns_brev_b32 s27, 1")
    ex = {1: [(179, f"buffer_load_dword v254, v{PFV}, {sr(sWO)}, s24 offen")], 2: [(179, f"buffer_load_dword v254, v{PFV}, {sr(sWO)}, s24 offen")],
          3: [(179, f"buffer_load_dword v254, v{PFV}, {sr(sW2)}, s24 offen")], 4: [(179, f"global_load_dword v254, v{PFV}, s[16:17]")],
          }
    for k in (0, 3): ex.setdefault(k, []).append((183, f"buffer_store_dwordx4 v[246:249], v245, {sr(sWS)}, s34 offen sc1"))
    st = []
    for k in range(6):
        Gk = gen_step((k + 1) & 1, (k + 1) % 3, extra=ex.get(k, []))
        if k in (1, 2, 3): Gk.place2(150, f"s_cmp_eq_u32 s{sCnt}, 0", f"s_cselect_b32 s24, s{(0, 18, 26, 19)[k]}, s27")
        if k in (1, 4): Gk.place(20, "s_add_u32 s34, s34, 1024")
        if k == 0: Gk.place(186, f"s_sub_u32 s{sCnt}, s{sCnt}, 1")
        if k == 4: Gk.place(186, f"s_cmp_eq_u32 s{sCnt}, 0")
        st.append(Gk.emit())
    pro = list(A.l)
    auto_vm(pro); auto_lgkm(pro)
    auto_lgkm(sf)
    for k in range(6): auto_lgkm(st[k], pre=st[k - 1])
    s0 = st[4]; s1 = [x for k in range(4) for x in st[k]]
    A.ext(sf)
    zst(A, 7, 2)
    A(".p2align 6\nL_loop:")
    A.ext(s1); A.ext(s0)
    if opt["zoom"] == 7: A(f"s_mov_b32 m0, s{sCnt}\ns_memrealtime vcc\ns_waitcnt lgkmcnt(0)\nv_writelane_b32 v245, vcc_lo, m0\ns_memtime vcc\ns_waitcnt lgkmcnt(0)\nv_writelane_b32 v246, vcc_lo, m0")
    A("s_cbranch_scc1 L_tail"); A.ext(st[5]); A("s_branch L_loop")
    OOL = Asm()
    w01 = b_wdma(sW2, "W0", 0) + b_wdma(sW2, "W1", STB)
    ra = [t.replace(f"v_cndmask_b32 v{RA[2]},", "v_cndmask_b32 v254,").replace(f"v_cndmask_b32 v{RA[3]},", "v_cndmask_b32 v255,") for t in b_ra_ops()]
    ra = [t for t in ra if t != "s_nop 0"]
    b_ra_fin = [f"v_mov_b32 v{RA[2]}, v254", f"v_mov_b32 v{RA[3]}, v255", f"v_mov_b32 v254, s{sN0}", f"v_mov_b32 v255, s{sN1}"]
    post = []
    def last(G):
        B = 96
        G.place(2, f"buffer_load_dwordx2 {vr(T0,2)}, v{FLV}, {sr(sWS)}, s{sG} offen sc1")
        g = 4
        for t in b_scalars(): g = G.place(g, t) + (1 if t.startswith("v_") else 0)
        assert g < 90
        G.put(92, Ins("s_waitcnt vmcnt(0)")); G.put(92, Ins("s_barrier"))
        X_ = Asm(); cond_nonce(X_, f"s{sSlot}")(); X_("s_cbranch_scc1 L_o1\nL_o1_r:"); G.blk[94] = X_.l
        OOL("L_o1:"); poll(OOL, "L_ph", FLV, sWS, f"s{sG}", cond_nonce(OOL, f"s{sSlot}"), sleep=8); OOL("s_branch L_o1_r")
        for i, r in enumerate(VA): G.place(B + 72 + i, f"v_add_u32 v{r}, {STG}, v{r}")
        n = 0
        for db in range(3):
            for e in range(2):
                for h in range(2):
                    G.place(B + 77 + (3 * n) // 2, vread(db, e, h)); n += 1
        spread(G, w01, B, B + 92)
        post.append(G)
    Gl = gen_step(0, 0, last=last)
    k_ = [i for i, t in enumerate(ra) if t.startswith("s_cmp")][0]
    q_ = [f"v_add_u32 v{OV[r]}, s{24+r}, v245" for r in (3, 2, 1, 0)] + ra[:k_] + oepi_pre() + [f"s_lshl_b32 s16, s{sW}, 2", f"s_add_u32 s16, s16, {LDS_FL}", f"v_mov_b32 v{NREF+5}, s16", f"v_mov_b32 v{NREF+6}, {LDS_FL}"]
    lf_ = Gl.fill(q_, 100); print("step-30 set-up ops left over:", len(lf_), file=sys.stderr)
    T = Asm()
    T("L_tail:")
    if opt["zoom"] == 7:
        for i in range(5): T(f"v_readlane_b32 s{78+2*(3+i)}, v245, {4-i}\nv_readlane_b32 s{79+2*(3+i)}, v246, {4-i}")
        NST[0] = 8
    T.ext(Gl.emit())
    straight(T, lf_)
    zst(T, 1, 1)
    stamp(T, 6)
    lred(T)
    T(f"v_cmp_nge_f32 vcc, s{sLM}, v{LS[0]}")
    for qb in range(1, 4): T(f"v_cmp_nge_f32 s[34:35], s{sLM}, v{LS[qb]}\ns_nop 0\ns_or_b64 vcc, vcc, s[34:35]")
    T(f"s_cmp_lg_u64 vcc, 0\ns_cselect_b32 s16, 1, {opt['forcesafe']}\nv_mov_b32 v{NREF}, s16")
    T(f"ds_write_b32 v{NREF+5}, v{NREF}")
    for qb in range(4): T(f"v_rcp_f32 v{LS[qb]}, v{LS[qb]}")
    for t in ra[k_:]: T(t)
    T(f"v_mov_b32 v{NREF+2}, v{NREF+6}")
    T("s_waitcnt lgkmcnt(0)\ns_barrier")
    T(f"ds_read_b128 {vr(NREF+4)}, v{NREF+2}")
    G = Gaps(pv_mfmas(1)); pv_reads(G, 0)
    G.put(3, lgw(rs(NREF + 4, 4)))
    G.place(4, f"v_or3_b32 v{NREF}, v{NREF+4}, v{NREF+5}, v{NREF+6}"); G.place(5, f"v_or_b32 v{NREF}, v{NREF}, v{NREF+7}")
    G.place(7, f"v_readfirstlane_b32 s{sE}, v{NREF}")
    gck = G.place2(9, f"s_cmp_lg_u32 s{sE}, 0", "s_cbranch_scc1 L_safe")
    w2_ = b_wdma(sW2, "W2", 2 * STB)
    l0_ = ([] if opt["w2t"] else w2_) + hload(2, "O2"); l1_ = []
    ylo = hload(0, "O0") + hload(1, "O1") + (w2_ if opt["w2t"] else [])
    g = spread(G, ylo, gck + 1, opt["hl"])
    oq, _ = oepi_ops()
    items = []; cur = []
    for x in oq:
        if x[3] == "OST": items.append((cur, x)); cur = []
        else: cur.append(x)
    pc = [int(x) for x in opt["pace"].split(",")]; assert sum(pc) == 24
    first = []
    for n in range(12):
        first += items[n][0]
        if n < pc[0]: first.append(items[n][1])
    left = G.fill(first, 12)
    T.ext(G.emit())
    if opt["tst"] == 2: stamp(T, 7)
    zst(T, 1, 2)
    T("s_nop 7")
    straight(T, pkify(left))
    T("L_join:")
    zst(T, 1, 3)
    if opt["tst"] == 0: stamp(T, 7)
    for t in b_ra_fin: T(t)
    T.l.append(vmw({"W0", "O0"})); T("s_barrier")
    for nb in range(3):
        for e in range(2):
            for h in range(2): T(bread(0, nb, e, h))
    T(f"s_add_u32 s17, s{sQT}, {AF_OFF}")
    T("s_waitcnt lgkmcnt(0)")
    zst(T, 1, 4)
    def paced(k, lim=78):
        n0 = sum(pc[:k + 1]); q = []
        for j in range(pc[k + 1]):
            n = n0 + j; g = 2 + (lim - 2) * j // pc[k + 1]
            if n >= 12: q += [(t, max(0, g - 7), ng, tag) for (t, e, ng, tag) in items[n][0]]
            q.append((items[n][1][0], g, False, "OST"))
        return q
    c0, late = b_chunk(0, l0_, {"W1"}, {"O1"}, czero=True, fillq=paced(0), lim=opt["jl"] if opt["jit"] else None)
    T.ext(c0); straight(T, pkify(late)); print("y0 leftover", len(late), file=sys.stderr)
    zst(T, 1, 5)
    so = {1: 18, 2: 19, 3: 16}; sYC, sXC, sYF, sXF = 26, 27, 24, 25
    assert pc[2] == pc[3] == 0 and opt["afc"] == 1
    a1 = [f"v_lshlrev_b32 v4, 4, v0", f"s_mul_i32 s{sE}, s{sW}, 10240", f"v_add_u32 v2, s{sE}, v4", f"s_xor_b32 s{sE}, s{sW}, 2", f"s_mul_i32 s{sE}, s{sE}, 10240", f"v_add_u32 v3, s{sE}, v4",
          "s_mov_b32 s8, 0x3f80", "s_mov_b32 s9, 0x3f800000",
          "v_lshlrev_b32 v1, 3, v0", "v_add_u32 v1, 2048, v1", f"s_add_u32 s{sG}, s{sFL}, {AF_OFF}", f"s_mov_b32 s{sKo}, s{sF}"]
    c1, left = b_chunk(1, [f"s_mov_b32 s{sVo}, s{sH}"] + b_wdma(sWO, "W3", 3 * STB), {"W2"}, {"O2"}, lim=opt["jl"], fillq=a1, af=opt["afg"])
    T.ext(c1); assert not left
    zst(T, 1, 6)
    a2 = [f"s_lshl_b32 s{sH}, s{sMT}, 2", f"s_add_u32 s{sH}, s{sH}, s{sNT}"] + [t.replace(f"s{sA}", f"s{sInc}") for t in slot_scalars(YC_OFF, so, sYC)]
    a2 += [f"s_lshl_b32 s{sC}, s{sH}, 2", f"s_add_u32 s{sC}, s{sC}, s{sW}", f"s_lshl_b32 s{sC}, s{sC}, 6", f"s_add_u32 s{sYF}, s{sC}, {YF_OFF}", f"s_add_u32 s{sXF}, s{sC}, {XF_OFF}"]
    PQY = [16 + 4 * n for n in range(8)] + [130, 134]
    c2 = b_chunk(2, a2, {"W3"}, None, xw=(140, PQY), inc=STB, lim=40,
                 puts=[(opt["aflg"], f"buffer_load_dwordx2 {vr(T0,2)}, v{FLV}, {sr(sWS)}, s{sG} offen sc1", "AFL")])
    T.ext(c2)
    zst(T, 1, 7); stamp(T, 8)
    YO = 80; YP = 100
    T.l.append(vmw({"AFL"})); cond_nonce(T, f"s{sMSK}")(); T(f"s_cselect_b32 s{sD}, 1, 0")
    T("s_waitcnt lgkmcnt(0)\ns_barrier")
    stamp(T, 9); zst(T, 1, 8); zst(T, 2, 1)
    T(f"s_cmp_lg_u32 s{sD}, 0\ns_cbranch_scc1 L_o2")
    straight(T, oload(1, "O1"))
    S_ = Asm(); yst = xchg_sum(S_, PQY, YO, 140, YP, so, False)
    rest = Asm(); straight(rest, oload(2, "O2") + b_wdma(sWO, "W2", 2 * STB))
    grp = []; cur = []
    for x in rest.l:
        cur.append(x)
        if x.kind == "vmem": grp.append(cur); cur = []
    grp[-1] += cur
    for n, x in enumerate(S_.l):
        T.l.append(x)
        if n % 8 == 3 and grp: T.ext(grp.pop(0))
    for g_ in grp: T.ext(g_)
    zst(T, 1, 9)
    T.l.append(vmw({"O1"}))
    T("L_o2_r:")
    T(f"s_mov_b32 s{sCnt}, 2\ns_lshl_b32 s{sE}, s{sSP}, 3\ns_add_u32 s{sG}, s{sYF}, s{sE}")
    OOL("L_o2:"); straight(OOL, b_wdma(sWO, "W2", 2 * STB))
    xchg_sum(OOL, PQY, YO, 140, YP, so, False)
    poll(OOL, "L_pat", FLV, sWS, f"s{sG}", cond_nonce(OOL, f"s{sMSK}"), sleep=4)
    straight(OOL, oload(1, "O1") + oload(2, "O2")); OOL("s_waitcnt vmcnt(8)\ns_branch L_o2_r")
    zst(T, 1, 10); zst(T, 2, 2)
    def sl(u): return b_wdma(sWO, f"W{(u+2)%3}", ((u + 2) % 3) * STB) + oload((u + 2) % 3, f"O{(u+2)%3}")
    def nx(k, u): return {f"{k}{(u+1)%3}"}
    for n, u in enumerate((1, 2, 0)):
        T.ext(b_chunk(u, merge(sl(u), yst[5 * n: 5 * n + 5]), nx("W", u), nx("O", u), czero=(n == 0), ph=n, inc=-STB if n == 0 else None))
        zst(T, 2, 3 + n)
    zst(T, 1, 11)
    tail = list(T.l)
    auto_lgkm(tail, pre=s0); auto_vm(tail)
    A.ext(tail)
    steps = [b_chunk(1, sl(1), nx("W", 1), nx("O", 1), ph=0, first_gap=[f"s_sub_u32 s{sCnt}, s{sCnt}, 1"]),
             b_chunk(2, sl(2), nx("W", 2), nx("O", 2), ph=1, after_barrier=f"buffer_store_dwordx2 v[254:255], v{ZV}, {sr(sWS)}, s{sG} offen sc1"),
             b_chunk(0, sl(0), nx("W", 0), nx("O", 0), ph=2, last_gap=[f"s_cmp_lg_u32 s{sCnt}, 0"])]
    for u in range(3):
        auto_lgkm(steps[u], pre=steps[(u + 2) % 3]); auto_vm(steps[u], pre=steps[(u + 1) % 3] + steps[(u + 2) % 3])
    A(".p2align 6\nL_bloop:")
    for u in range(3): A.ext(steps[u])
    A("s_cbranch_scc1 L_bloop")
    PKS = 16; XL = 48; B2L = 58
    E = Asm()
    zst(E, 2, 6)
    E(f"v_and_b32 v6, 3, v0\nv_lshlrev_b32 v6, 3, v6\ns_lshl_b32 s{sMSK}, 1, s{sSP}\ns_xor_b32 s{sMSK}, s{sMSK}, 15")
    a3 = [f"v_add_u32 v2, {STB}, v2", f"v_add_u32 v3, {STB}, v3",
          "v_lshrrev_b32 v7, 4, v0", "v_lshlrev_b32 v7, 3, v7", "v_and_b32 v5, 15, v0", "v_mul_u32_u24 v5, 1280, v5", "v_add_u32 v5, v5, v7"]
    c, left = b_chunk(1, [(f"buffer_load_dwordx2 {vr(T0,2)}, v6, {sr(sWS)}, s{sYF} offen sc1", "YF")] + sl(1), nx("W", 1), nx("O", 1), ph=0, fillq=a3); assert not left
    E.ext(c)
    E.l.append(vmw({"YF"}))
    poll(E, "L_py", 6, sWS, f"s{sYF}", cond_nonce(E, f"s{sMSK}"), sleep=4, precheck=True)
    zst(E, 2, 7)
    a4 = [f"s_lshr_b32 s{sC}, s{sFL}, 6", f"s_add_u32 s{sC}, s{sC}, s{sSP}", f"s_mul_i32 s{sKo}, s{sC}, 20480",
          f"s_mul_i32 s{sC}, s{sNT}, 320", f"s_mul_i32 s{sB}, s{sKH}, 160", f"s_add_u32 s{sC}, s{sC}, s{sB}", f"s_add_u32 s{sKo}, s{sKo}, s{sC}"]
    E.ext(b_chunk(2, inbox_loads(sYC, YP, "YL") + a4, nx("W", 2), nx("O", 2), ph=1, lim=50))
    zst(E, 2, 8)
    l2 = [(f"buffer_load_dwordx2 {vr(B2L+2*i,2)}, v7, {sr(sB2)}, s{sC} offen offset:{32*i}", "YL") for i in range(5)]
    l2 += [(f"buffer_load_dwordx2 {vr(XL+2*i,2)}, v5, {sr(sX)}, s{sKo} offen offset:{32*i}", "YL") for i in range(5)]
    if opt["opre"]: l2 += [(f"buffer_load_dword v70, v5, {sr(sOUT)}, s{sKo} offen offset:{o_}", "YL") for o_ in (0, 128)]
    a5 = [f"s_lshl_b32 s{sA}, s{sH}, 4", f"s_add_u32 s{sA}, s{sA}, s{sW}", f"s_mul_i32 s{sA}, s{sA}, 10240", f"s_add_u32 s{sA}, s{sA}, {XC_OFF}",
          f"s_mul_i32 s{sE}, s{sSP}, 40960", f"s_add_u32 s{sXC}, s{sA}, s{sE}"]
    for r in (1, 2, 3):
        a5 += [f"s_add_u32 s{so[r]}, s{sSP}, {r}", f"s_and_b32 s{so[r]}, s{so[r]}, 3", f"s_mul_i32 s{so[r]}, s{so[r]}, 40960", f"s_add_u32 s{so[r]}, s{so[r]}, s{sA}",
               f"s_add_u32 s{so[r]}, s{so[r]}, {(3 - r) * 2560}"]
    a5 += ["v_min_u32 v6, 2, v0", "v_mul_u32_u24 v6, 2560, v6", "v_add_u32 v6, 2556, v6", f"s_add_u32 s{sXF}, s{sXC}, 2560", f"s_add_u32 s{sYF}, s{sXC}, 5120"]
    PQX = [160 + 4 * n for n in range(10)]
    c, left = b_chunk(0, l2, None, None, nxt=False, xw=(130, PQX), ph=2, lim=36, fillq=a5); assert not left
    E.ext(c)
    stamp(E, 10); zst(E, 2, 9); zst(E, 3, 1)
    auto_lgkm(E.l, pre=steps[2]); auto_vm(E.l, pre=steps[1] + steps[2])
    trs = lambda i, r: (130, 180)[r] + 4 * i
    XI = 200 if opt["xat"] < 2 else 68
    def x_loads(X_):
        for n, so_ in enumerate((sXC, sXF, sYF)):
            p = XI + 10 * n
            X_(f"buffer_load_dwordx4 {vr(p)}, v4, {sr(sWS)}, s{so_} offen sc1\nbuffer_load_dwordx4 {vr(p+4)}, v4, {sr(sWS)}, s{so_} offen offset:1024 sc1\nbuffer_load_dwordx2 {vr(p+8,2)}, v1, {sr(sWS)}, s{so_} offen sc1")
    E("s_waitcnt lgkmcnt(0)\ns_nop 3")
    xchg_sum(E, PQX, 130, 200, PKS, so, True)
    zst(E, 2, 10); zst(E, 3, 2)
    E("s_waitcnt vmcnt(9)")
    E(f"s_mov_b32 s{sC}, 0x3f80\ns_mov_b32 s{sD}, 0x3f800000")
    def dacc(x, src):
        for k in range(2): E(f"v_dot2_f32_bf16 v{x+2*k}, v{src+k}, s{sC}, v{x+2*k}\nv_dot2_f32_bf16 v{x+2*k+1}, v{src+k}, s{sD}, v{x+2*k+1}")
    for p in range(4):
        for i in range(5): dacc(YO + 4 * i, (B2L + 2 * i) if p == 3 else (YP + 10 * p + 2 * i))
    zst(E, 3, 3)
    if opt["xat"] == 0: x_loads(E)
    for i in range(5):
        g_ = YO + 4 * i; t = 160 + 4 * i
        for k in range(4): E(f"v_mul_f32 v{t+k}, {fh(-LOG2E)}, v{g_+k}")
        for k in range(4): E(f"v_exp_f32 v{t+k}, v{t+k}")
        for k in range(4): E(f"v_add_f32 v{t+k}, 1.0, v{t+k}")
        for k in range(4): E(f"v_rcp_f32 v{t+k}, v{t+k}")
        for k in range(4): E(f"v_mul_f32 v{g_+k}, v{g_+k}, v{t+k}")
        for k in range(2): E(f"v_lshlrev_b32 v{t+2*k}, 16, v{XL+2*i+k}\nv_and_b32 v{t+2*k+1}, 0xffff0000, v{XL+2*i+k}")
    zst(E, 3, 5)
    if opt["xat"] == 1: x_loads(E)
    E(f"s_mov_b32 s{sG}, {SPIN}")
    E("L_x2:")
    for n in range(3):
        E(f"s_waitcnt vmcnt({6 - 3*n})")
        for i in range(5):
            for k in range(2):
                for hl, sel in enumerate((sC, sD)):
                    E(f"v_dot2_f32_bf16 v{trs(i,1)+2*k+hl}, v{XI+10*n+2*i+k}, s{sel}, v{trs(i, 0 if n == 0 else 1)+2*k+hl}")
    for i in range(5):
        for k in range(2):
            E(f"v_cmp_u_f32 {'vcc' if i + k == 0 else 's[%d:%d]' % (sA, sA + 1)}, v{trs(i,1)+2*k}, v{trs(i,1)+2*k+1}")
            if i + k: E(f"s_nop 0\ns_or_b64 vcc, vcc, s[{sA}:{sA+1}]")
    E("s_cmp_lg_u64 vcc, 0\ns_cbranch_scc1 L_o4\nL_o4_r:")
    stamp(E, 11); zst(E, 2, 11); zst(E, 3, 6)
    if opt["xpm"] == 0:
        OOL(f"L_o4:\ns_mov_b32 s{sE}, {MARK}\ns_mov_b64 vcc, 0")
        for n in range(30): OOL(f"v_cmp_eq_u32 s[{sA}:{sA+1}], s{sE}, v{XI+n}\ns_nop 0\ns_or_b64 vcc, vcc, s[{sA}:{sA+1}]")
        OOL("s_cmp_lg_u64 vcc, 0\ns_cbranch_scc0 L_o4_r")
        OOL(f"L_px:\ns_sub_u32 s{sG}, s{sG}, 1\ns_cmp_eq_u32 s{sG}, 0\ns_cbranch_scc1 L_o4_r")
        OOL(f"buffer_load_dword v{T0}, v6, {sr(sWS)}, s{sXC} offen sc1\ns_waitcnt vmcnt(0)\nv_cmp_eq_u32 vcc, s{sE}, v{T0}\ns_nop 0\ns_cmp_lg_u64 vcc, 0\ns_cbranch_scc0 L_px_ok\ns_sleep 1\ns_branch L_px\nL_px_ok:")
        x_loads(OOL); OOL("s_branch L_x2")
    else:
        OOL(f"L_o4:\ns_mov_b32 s{sE}, {MARK}\ns_mov_b32 s{sH}, 0")
        OOL(f"L_px:\ns_sub_u32 s{sG}, s{sG}, 1\ns_cmp_eq_u32 s{sG}, 0\ns_cbranch_scc1 L_o4_r\ns_mov_b32 s{sF}, 0")
        for n, so_ in enumerate((sXC, sXF, sYF)):
            p = XI + 10 * n
            OOL("s_mov_b64 vcc, 0")
            for k in range(10): OOL(f"v_cmp_eq_u32 s[{sA}:{sA+1}], s{sE}, v{p+k}\ns_nop 0\ns_or_b64 vcc, vcc, s[{sA}:{sA+1}]")
            OOL(f"s_cmp_lg_u64 vcc, 0\ns_cbranch_scc0 L_px{n}\ns_mov_b32 s{sF}, 1")
            OOL(f"buffer_load_dwordx4 {vr(p)}, v4, {sr(sWS)}, s{so_} offen sc1\nbuffer_load_dwordx4 {vr(p+4)}, v4, {sr(sWS)}, s{so_} offen offset:1024 sc1\nbuffer_load_dwordx2 {vr(p+8,2)}, v1, {sr(sWS)}, s{so_} offen sc1\nL_px{n}:")
        OOL(f"s_cmp_eq_u32 s{sF}, 0\ns_cbranch_scc1 L_px_ok\ns_mov_b32 s{sH}, 1\ns_waitcnt vmcnt(0)\ns_sleep {opt['xsl']}\ns_branch L_px")
        OOL(f"L_px_ok:\ns_cmp_eq_u32 s{sH}, 0\ns_cbranch_scc1 L_o4_r\ns_branch L_x2")
    for i in range(5):
        x = trs(i, 1)
        for k in range(2): E(f"v_pk_fma_f32 {vr(x+2*k,2)}, {vr(x+2*k,2)}, {vr(YO+4*i+2*k,2)}, {vr(160+4*i+2*k,2)}")
        for k in range(2): E(f"v_cvt_pk_bf16_f32 v{trs(i,0)+k}, v{x+2*k}, v{x+2*k+1}")
        E(f"buffer_store_dwordx2 {vr(trs(i,0),2)}, v5, {sr(sOUT)}, s{sKo} offen offset:{32*i}")
    if opt["stamp"]:
        E("s_waitcnt vmcnt(0)")
        E("s_memrealtime s[4:5]\ns_memtime s[6:7]\ns_load_dwordx2 s[8:9], s[0:1], 96\ns_waitcnt lgkmcnt(0)")
        E(f"s_add_u32 s8, s8, {ST_OFF}\ns_addc_u32 s9, s9, 0\ns_and_b32 s9, s9, 0xffff\ns_mov_b32 s10, 0x40000\ns_mov_b32 s11, 0x20000")
        E(f"s_lshl_b32 s12, s2, 2\ns_add_u32 s12, s12, s{sW}\ns_lshl_b32 s12, s12, 7\nv_mov_b32 v2, 0\ns_mov_b64 exec, 1")
        for i in range(NST[0] + 1):
            a, b_ = (78 + 2 * i, 79 + 2 * i) if i < NST[0] else (4, 6)
            E(f"v_mov_b32 v{16+2*i}, s{a}\nv_mov_b32 v{17+2*i}, s{b_}\nbuffer_store_dwordx2 v[{16+2*i}:{17+2*i}], v2, s[8:11], s12 offen offset:{8*i}")
    if opt["stamp"] and opt["dbgst"]:
        E("s_load_dwordx2 s[8:9], s[0:1], 88\ns_waitcnt lgkmcnt(0)\ns_and_b32 s9, s9, 0xffff\ns_mov_b32 s10, 256\ns_mov_b32 s11, 0x20000")
        E("s_not_b32 s78, s78")
        for i in range(NST[0] + 1):
            a_ = 78 + 2 * i if i < NST[0] else 4
            E(f"v_mov_b32 v{16+i}, s{a_}\nbuffer_atomic_umax v{16+i}, v2, s[8:11], 0 offen offset:{8+4*i} sc1")
    ec = list(E.l)
    A.ext(ec)
    A("L_done:\ns_endpgm")
    A.ext(OOL.l); problems += check_hazards(OOL.l, "ool")
    A("L_fo:"); A.ext(FO.l); A("s_branch L_common")
    tr_o = head_ + FO.l + pro[k_common:] + sf + s1
    problems += check_hazards(tr_o, "odd"); problems += check_waits(tr_o, "odd")[0]
    F = Asm()
    F("L_safe:")
    F("s_waitcnt vmcnt(0) lgkmcnt(0)\ns_nop 7")
    for r in KA: F(f"v_subrev_u32 v{r}, {STG}, v{r}")
    for r in VA: F(f"v_subrev_u32 v{r}, {2*STG}, v{r}")
    for i in range(192): F(f"v_accvgpr_write_b32 a{i}, 0")
    MX = PB[1]
    for qb in range(4): F(f"v_mov_b32 v{LS[qb]}, 0\nv_mov_b32 v{MX+qb}, 0xff7fffff")
    F(f"s_mov_b32 s{sSlot}, s{sWb}\ns_mov_b32 s{sCnt}, 32")
    Fp = list(F.l)
    L = Asm()
    L("L_sloop:")
    L("s_barrier")
    for srd_, base in ((sK, KRING), (sV, VRING)):
        for hf in range(2):
            L(f"s_add_u32 s{sInc}, s{sSlot}, {3072*hf}\ns_add_u32 m0, s{sWb}, {base + 3072*hf}\ns_nop 0")
            for j in range(3): L(f"buffer_load_dwordx4 v{DSR[j]}, {sr(srd_)}, s{sInc} offen offset:{1024*j} lds")
    L(f"s_add_u32 s{sSlot}, s{sSlot}, {STG}")
    L("s_waitcnt vmcnt(0)\ns_barrier")
    for ks in range(6): L(kread(0, 0, ks))
    L("s_waitcnt lgkmcnt(0)")
    G = Gaps(qk_mfmas(set())); qk_reads(G, 0, vpre=True)
    L.ext(G.emit())
    L("s_nop 7")
    for qb in range(4):
        m = NREF + 4 * qb
        v = [S(kb, qb) + r for kb in range(4) for r in range(4)]
        L(f"v_max3_f32 v{m}, v{v[0]}, v{v[1]}, v{MX+qb}")
        for i in range(2, 16, 2): L(f"v_max3_f32 v{m}, v{m}, v{v[i]}, v{v[i+1]}")
    for sw in ("v_permlane32_swap_b32", "v_permlane16_swap_b32"):
        for qb in range(4): L(f"v_mov_b32 v{NREF+4*qb+1}, v{NREF+4*qb}")
        for qb in range(4): L(f"{sw} v{NREF+4*qb}, v{NREF+4*qb+1}")
        for qb in range(4): L(f"v_max_f32 v{NREF+4*qb}, v{NREF+4*qb}, v{NREF+4*qb+1}")
    for qb in range(4): L(f"v_sub_f32 v{NREF+4*qb+1}, v{MX+qb}, v{NREF+4*qb}")
    for qb in range(4): L(f"v_exp_f32 v{NREF+4*qb+1}, v{NREF+4*qb+1}")
    for qb in range(4): L(f"v_mov_b32 v{MX+qb}, v{NREF+4*qb}")
    for qb in range(4): L(f"v_mul_f32 v{LS[qb]}, v{LS[qb]}, v{NREF+4*qb+1}")
    for db in range(12):
        for qb in range(4):
            t = PB[1] + 8 + 4 * ((db * 4 + qb) % 4)
            for r in range(4): L(f"v_accvgpr_read_b32 v{t+r}, a{O(db,qb)+r}")
            for r in range(4): L(f"v_mul_f32 v{t+r}, v{t+r}, v{NREF+4*qb+1}")
            for r in range(4): L(f"v_accvgpr_write_b32 a{O(db,qb)+r}, v{t+r}")
    for kb in range(4):
        for qb in range(4):
            for r in range(4): L(f"v_sub_f32 v{S(kb,qb)+r}, v{S(kb,qb)+r}, v{MX+qb}")
    for (ex, ad, cv) in sm_ops(0):
        for t in ex: L(t)
        L("s_nop 0")
        for t in ad + cv: L(t)
    L("s_waitcnt lgkmcnt(0)\ns_nop 1")
    G = Gaps(pv_mfmas(0)); pv_reads(G, 0)
    L.ext(G.emit())
    L(f"s_sub_u32 s{sCnt}, s{sCnt}, 1\ns_cmp_lg_u32 s{sCnt}, 0\ns_cbranch_scc1 L_sloop")
    auto_lgkm(L.l)
    X = Asm()
    X("s_waitcnt lgkmcnt(0)\ns_barrier")
    lred(X)
    for qb in range(4): X(f"v_rcp_f32 v{LS[qb]}, v{LS[qb]}")
    for t in b_scalars() + oepi_pre(): X(t)
    straight(X, w01 + ylo)
    straight(X, first)
    X("s_waitcnt vmcnt(0)\ns_branch L_join")
    A.ext(Fp); A.ext(L.l); A.ext(X.l)
    j = [i for i, x in enumerate(tail) if x.text == "L_join:"][0]
    ck = [i for i, x in enumerate(tail) if "L_safe" in x.text][0]
    bl = steps[0] + steps[1] + steps[2]
    main = pro + sf + s1 + s0 + st[5] + s1 + s0 + tail + bl + bl + ec
    problems += check_hazards(main, "main"); problems += check_waits(main, "main")[0]
    safe = s0 + tail[:ck + 1] + Fp + L.l + L.l + X.l + tail[j:]
    problems += check_hazards(safe, "safe"); problems += check_waits(safe, "safe")[0]
    return A.text()

body = gen()
kn = NAME + "_kernel"
body = "\n".join(l.strip().replace(" offset:0", "") if not l.strip().endswith(" offset:0") else l.strip()[:-9] for l in body.split("\n"))
out = f"""; Written with my own generator script (gen/gen23.py: instruction streams, MFMA-gap scheduler, hazard / waitcnt checker).
;   layernorm of 16 rows (even heads) -> xn*log2e/sqrt(192) as bf16 MFMA fragments in d_ws
;            (or is NaN) the whole workgroup redoes its attention with the exact running max (L_safe)
; @launch grid=(256,1,1) block=(256,1,1) lds={LDS_SZ}
.amdgcn_target "amdgcn-amd-amdhsa--gfx950"
.text
.globl {kn}
.p2align 8
.type {kn},@function
{kn}:
{body}
s_endpgm
.fill 256, 4, 0xbf800000
.section .rodata,"a"
.p2align 6
.amdhsa_kernel {kn}
  .amdhsa_next_free_vgpr 512
  .amdhsa_next_free_sgpr 102
  .amdhsa_accum_offset 256
  .amdhsa_group_segment_fixed_size 0
  .amdhsa_kernarg_size 104
  .amdhsa_user_sgpr_count 2
  .amdhsa_user_sgpr_kernarg_segment_ptr 1
  .amdhsa_system_sgpr_workgroup_id_x 1
.end_amdhsa_kernel
"""
if problems:
    for p in sorted(set(problems)): print(p, file=sys.stderr)
    print(f"{len(set(problems))} problems", file=sys.stderr)
sys.stdout.write(out)
```
